```python
import torch

def _softmax(x, axis=-1):
    return torch.softmax(x, dim=axis)
def _gelu(x):
    return torch.nn.functional.gelu(x, approximate="tanh")
def _silu(x):
    return torch.nn.functional.silu(x)
def _sigmoid(x):
    return torch.sigmoid(x)
def _layernorm(x, axis=-1, eps=1e-5):
    m = x.mean(dim=axis, keepdim=True)
    v = x.var(dim=axis, keepdim=True, unbiased=False)
    return (x - m) / torch.sqrt(v + eps)
def _scatter_add(tgt, idx, src, axis=0):
    return tgt.clone().index_add_(axis, idx, src)
def _segment_sum(src, seg, n):
    out = torch.zeros((n,) + src.shape[1:], dtype=src.dtype)
    return out.index_add_(0, seg, src)
def _pad(x, pw):
    flat = tuple(v for pair in reversed(pw) for v in pair)
    return torch.nn.functional.pad(x, flat)

kernel_name = 'parallel_sum__sliding_local_dilated__dense_activation_relu__prompt'

def setup_inputs():

    _w = (lambda a: (lambda t: t.to(torch.bfloat16) if t.is_floating_point() else t)(torch.as_tensor(a)))
    def _A_setup():
        B, S, D = 1, 2048, 640
        return {
            "x": _w((lambda *s: torch.randn(*s, dtype=torch.bfloat16) * 0.05)(B, S, D)),
            "wqkv": _w((lambda *s: torch.randn(*s, dtype=torch.bfloat16) * 0.05)(D, 3 * D)),
            "wo": _w((lambda *s: torch.randn(*s, dtype=torch.bfloat16) * 0.05)(D, D)),
        }
    _A_in = _A_setup()

    def _B_setup():
        B, S, D, Dff = 1, 2048, 640, 1536
        return {
            "x": _w((lambda *s: torch.randn(*s, dtype=torch.bfloat16) * 0.05)(B, S, D)),
            "w1": _w((lambda *s: torch.randn(*s, dtype=torch.bfloat16) * 0.05)(D, Dff)),
            "w2": _w((lambda *s: torch.randn(*s, dtype=torch.bfloat16) * 0.05)(Dff, D)),
        }
    _B_in = _B_setup()

    return {
        "A_x": _A_in["x"],
        "A_wqkv": _A_in["wqkv"],
        "A_wo": _A_in["wo"],
        "B_x": _B_in["x"],
        "B_w1": _B_in["w1"],
        "B_w2": _B_in["w2"],
    }

def reference(A_x, A_wqkv, A_wo, B_x, B_w1, B_w2):
    def _A_ref(x, wqkv, wo):
        B, S, D = x.shape
        H = 32; Dh = D // H
        W, dil = 8, 2
        qkv = (lambda x, *d: x.permute(*d))((x @ wqkv).reshape(B, S, 3, H, Dh), 2, 0, 3, 1, 4)
        q, k, v = qkv[0], qkv[1], qkv[2]
        scale = Dh ** -0.5
        pos = torch.arange(S)
        off = torch.arange(W) * dil
        idx = pos[:, None] - off[None, :]
        mask = idx >= 0
        idx_c = torch.where(mask, idx, 0).reshape(-1)
        kg = k[:, :, idx_c, :].reshape(B, H, S, W, Dh)
        vg = v[:, :, idx_c, :].reshape(B, H, S, W, Dh)
        logits = torch.einsum("bhsd,bhswd->bhsw", q, kg) * scale
        logits = torch.where(mask[None, None, :, :], logits, -1e9)
        attn = _softmax(logits, axis=-1)
        o = torch.einsum("bhsw,bhswd->bhsd", attn, vg)
        return (lambda x, *d: x.permute(*d))(o, 0, 2, 1, 3).reshape(B, S, D) @ wo

    def _B_ref(x, w1, w2):
        h = torch.einsum("bsd,df->bsf", x, w1)
        zero = torch.zeros_like(h)
        h = torch.maximum(h, zero)
        return torch.einsum("bsf,fd->bsd", h, w2)

    x = A_x
    xn = _layernorm(x, axis=-1)
    return x + _A_ref(xn, A_wqkv, A_wo) + _B_ref(xn, B_w1, B_w2)
```

```python
import re


def regs(spec):
    if spec is None:
        return []
    spec = str(spec).strip()
    if spec.startswith('-'):
        spec = spec[1:]
    m = re.fullmatch(r'([vas])\[(\d+):(\d+)\]', spec)
    if m:
        return [f"{m.group(1)}{i}" for i in range(int(m.group(2)), int(m.group(3)) + 1)]
    if re.fullmatch(r'[vas]\d+', spec):
        return [spec]
    if spec in ('vcc', 'exec', 'm0'):
        return [spec]
    return []


def tup(kind, base, n):
    return f"{kind}{base}" if n == 1 else f"{kind}[{base}:{base + n - 1}]"


def V(base, n=1):
    return tup('v', base, n)


def A(base, n=1):
    return tup('a', base, n)


def S(base, n=1):
    return tup('s', base, n)


def lit(s):
    if isinstance(s, int) and s > 64:
        return hex(s)
    return str(s)


TRANS = ('v_exp_f32', 'v_rcp_f32', 'v_rsq_f32', 'v_sqrt_f32', 'v_log_f32')


class I:
    __slots__ = ('text', 'kind', 'rd', 'wr', 'cr', 'meta')

    def __init__(self, text, kind, rd=(), wr=(), cr=(), **meta):
        self.text, self.kind = text, kind
        self.rd, self.wr, self.cr = list(rd), list(wr), list(cr)
        self.meta = meta

    def __repr__(self):
        return self.text


def valu(op, dst, *srcs, mods=''):
    rd = [r for s in srcs for r in regs(s)]
    wr = regs(dst)
    base = op.replace('_e64', '').replace('_e32', '')
    kind = 'valu'
    if base in TRANS:
        kind = 'trans'
    if base.startswith('v_dot2'):
        kind = 'dot'
    if base in ('v_fmac_f32', 'v_dot2c_f32_bf16'):
        rd += wr
    if base.startswith('v_permlane'):
        kind = 'perm'
        rd += wr
        wr = wr + regs(srcs[0])
    if base.endswith('_dpp'):
        kind = 'dpp'
    if base in ('v_readfirstlane_b32', 'v_readlane_b32'):
        kind = 'rdlane'
    txt = f"{op} {dst}, " + ", ".join(lit(s) for s in srcs) + (" " + mods if mods else "")
    return I(txt, kind, rd, wr)


def salu(op, dst, *srcs):
    rd = [r for s in srcs for r in regs(s)]
    if op.startswith('s_cmp') or op.startswith('s_bitcmp'):
        return I(f"{op} {dst}, " + ", ".join(str(s) for s in srcs), 'salu', rd + regs(dst), ['scc'])
    wr = regs(dst)
    if op.startswith('s_cselect') or op.startswith('s_addc'):
        rd.append('scc')
    if not (op.startswith('s_mov') or op.startswith('s_mul') or op.startswith('s_cselect') or op.startswith('s_getpc')):
        wr.append('scc')
    return I(f"{op} {dst}" + "".join(f", {lit(s)}" for s in srcs), 'salu', rd, wr)


def mfma(d, a, b, c):
    return I(f"v_mfma_f32_16x16x32_bf16 {d}, {a}, {b}, {c}", 'mfma', regs(a) + regs(b), regs(d), regs(c))


def _off(o):
    return f" offset:{o}" if o else ""


def ds_read(op, dst, addr, off=0):
    assert 0 <= off < 65536, off
    return I(f"{op} {dst}, {addr}{_off(off)}", 'dsr', regs(addr), regs(dst))


def ds_write(op, addr, data, off=0):
    assert 0 <= off < 65536, off
    return I(f"{op} {addr}, {data}{_off(off)}", 'dsw', regs(addr) + regs(data), [])


def ds_bperm(dst, addr, src):
    return I(f"ds_bpermute_b32 {dst}, {addr}, {src}", 'dsr', regs(addr) + regs(src), regs(dst))


def _w(n):
    return {1: 'dword', 2: 'dwordx2', 3: 'dwordx3', 4: 'dwordx4'}[n]


def bload(dst, voff, srd, soff=0, off=0, fl=''):
    assert 0 <= off < 4096, off
    n = len(regs(dst))
    return I(f"buffer_load_{_w(n)} {dst}, {voff}, {srd}, {soff} offen{_off(off)}{' ' + fl if fl else ''}", 'vld',
             regs(voff) + regs(srd) + regs(soff), regs(dst))


def bdma(voff, srd, soff=0, off=0, fl=''):
    assert 0 <= off < 4096, off
    return I(f"buffer_load_dwordx4 {voff}, {srd}, {soff} offen{_off(off)}{' ' + fl if fl else ''} lds", 'dma',
             regs(voff) + regs(srd) + regs(soff) + ['m0'], [])


def bstore(data, voff, srd, soff=0, off=0, fl=''):
    assert 0 <= off < 4096, off
    n = len(regs(data))
    return I(f"buffer_store_{_w(n)} {data}, {voff}, {srd}, {soff} offen{_off(off)}{' ' + fl if fl else ''}", 'vst',
             regs(voff) + regs(srd) + regs(soff) + regs(data), [], data=regs(data) if n >= 3 else [])


def wait(vm=(), lgkm=(), all_lgkm=False, all_vm=False):
    return I('', 'wait', vm=list(vm), lgkm=list(lgkm), all_lgkm=all_lgkm, all_vm=all_vm)


def barrier():
    return I('s_barrier', 'barrier')


def raw(text, rd=(), wr=(), kind='salu', **meta):
    return I(text, kind, rd, wr, **meta)


class Skip:
    def __init__(self, n):
        self.n = n


class Group(list):
    pass


VALUS = ('valu', 'trans', 'dot', 'perm', 'dpp', 'rdlane')
VEC = ('valu', 'trans', 'dot', 'perm', 'dpp', 'rdlane', 'dsr', 'dsw', 'vld', 'dma', 'vst')


MEM = ('dsr', 'dsw', 'vld', 'dma', 'vst')
FENCE = ('barrier', 'wait', 'branch', 'label')


def items(i):
    return i if isinstance(i, Group) else [i]


def vcost(i):
    c = 0
    for x in items(i):
        if x.kind in ('trans', 'vld', 'dma', 'vst'):
            c += 2
        elif x.kind == 'dsw':
            c += 3 if 'b128' in x.text else 2
        elif x.kind in VEC:
            c += 1
    return c


def scost(i):
    return sum(1 for x in items(i) if x.kind in ('salu', 'barrier', 'branch'))


def gcost(v, s):
    return v + max(s - 1, 0)


def conflict(a, b):
    if a.kind in FENCE or b.kind in FENCE or a.meta.get('drains_lgkm') or b.meta.get('drains_lgkm'):
        return True
    if a.kind in ('dsw', 'vst', 'dma') and b.kind in MEM or b.kind in ('dsw', 'vst', 'dma') and a.kind in MEM:
        return True
    if 'exec' in a.wr or 'exec' in b.wr:
        return True
    aw, bw = set(a.wr), set(b.wr)
    if 'scc' in aw and 'scc' in bw and not (a.text.startswith('s_cmp') or b.text.startswith('s_cmp')) \
            and 'scc' not in a.rd and 'scc' not in b.rd:
        aw, bw = aw - {'scc'}, bw - {'scc'}
    return bool(aw & (set(b.rd) | set(b.cr) | bw) or bw & (set(a.rd) | set(a.cr)))


def order_gap(ins):
    units = [list(items(i)) for i in ins]
    out, first = [], True
    while units:
        ready = [k for k, u in enumerate(units)
                 if not any(conflict(x, y) for p in units[:k] for x in p for y in u)]

        def rank(k):
            u = units[k]
            kinds = {x.kind for x in u}
            if kinds <= {'salu'}:
                return 0 if first else 2
            if kinds & set(MEM):
                return 1
            return 3
        k = min(ready, key=lambda k: (rank(k), k))
        out += units.pop(k)
        first = False
    return out


def tie(seq):
    out, pend = [], None
    for i in seq:
        if pend is not None:
            if isinstance(i, Skip):
                continue
            pend.extend(i if isinstance(i, Group) else [i])
            if any('scc' in x.rd for x in (i if isinstance(i, Group) else [i])):
                out.append(pend)
                pend = None
        elif not isinstance(i, (Skip, Group)) and i.text.startswith('s_cmp'):
            pend = Group([i])
        else:
            out.append(i)
    assert pend is None
    return out


def annotate(seq):
    last = {}
    for i in flatten(seq):
        exp = i.meta.setdefault('exp', {})
        for r in i.rd + i.cr:
            if r in last:
                exp.setdefault(r, last[r])
        for r in i.wr:
            last[r] = i


def verify(prog):
    last = {}
    for i in prog:
        for r, p in i.meta.get('exp', {}).items():
            assert last.get(r) is p, f"{i.text}: {r} was meant to come from '{p.text}' but comes from '{last.get(r)}'"
        for r in i.wr:
            last[r] = i


class Weave:
    def __init__(self, main, cap=2):
        self.main = list(main)
        self.gaps = [[] for _ in self.main]
        self.v = [0] * len(self.main)
        self.s = [0] * len(self.main)
        self.cap = cap

    def at(self, g, *ins):
        annotate(ins)
        for i in ins:
            self.gaps[g].append(i)
            self.v[g] += vcost(i)
            self.s[g] += scost(i)

    def _try(self, seq, start, end, over):
        g, plan, v, s = start, [], list(self.v), list(self.s)
        valu_at = -1
        capf = lambda x: self.cap + int((x - start + 1) * over) - int((x - start) * over)
        for i in seq:
            if isinstance(i, Skip):
                g += i.n
                continue
            if not isinstance(i, Group) and i.kind == 'mfma':
                if g >= end:
                    return None
                plan.append((g, i))
                g += 1
                continue
            cv, cs = vcost(i), scost(i)
            mem = any(x.kind in MEM for x in items(i))
            while g < end and ((mem and g == valu_at) or
                               (gcost(v[g] + cv, s[g] + cs) > capf(g) and (v[g] or s[g] > 1 or cv == 0 and s[g]))):
                g += 1
            if g >= end:
                return None
            plan.append((g, i))
            v[g] += cv
            s[g] += cs
            if any(x.kind in VALUS for x in items(i)):
                valu_at = g
        return plan

    def stream(self, seq, start, end=None):
        end = len(self.main) if end is None else min(end, len(self.main))
        seq = tie(seq)
        annotate(seq)
        for k in range(0, 200):
            plan = self._try(seq, start, end, k / 8)
            if plan is not None:
                for g, i in plan:
                    self.at(g, i)
                return plan[-1][0] if plan else start
        raise RuntimeError("stream does not fit")

    def spread(self, seq, start, end):
        end = min(end, len(self.main))
        annotate(seq)
        n, g = len(seq), start - 1
        for k, i in enumerate(seq):
            lo = min(max(g + 1, start + (end - start) * k // n), end - 1)
            hi = min(max(lo + 1, start + (end - start) * (k + 1) // n), end)
            g = min(range(lo, hi), key=lambda x: (max(gcost(self.v[x] + vcost(i), self.s[x] + scost(i)) - self.cap, 0), x))
            self.at(g, i)
        return g

    def overflow(self, a=0, b=None):
        return sum(max(gcost(v, s) - self.cap, 0) for v, s in zip(self.v[a:b], self.s[a:b]))

    def flat(self):
        out = []
        for m, f in zip(self.main, self.gaps):
            out.append(m)
            seg = []
            for i in f:
                if not isinstance(i, Group) and i.kind == 'mfma':
                    out += order_gap(seg) + [i]
                    seg = []
                else:
                    seg.append(i)
            out += order_gap(seg)
        return out


def flatten(seq):
    out = []
    for i in seq:
        if isinstance(i, Skip):
            continue
        if isinstance(i, (list, tuple)):
            out.extend(flatten(i))
        else:
            out.append(i)
    return out


def insert_waits(prog, age=6):
    out, vm, lg = [], [], []
    nm, last_m = 0, None

    def need(queue, pred):
        idx = -1
        for k, (op, _, _) in enumerate(queue):
            if pred(op):
                idx = k
        return idx

    for ins in prog:
        if ins.kind == 'wait':
            ids_v = set(map(id, ins.meta['vm']))
            ids_l = set(map(id, ins.meta['lgkm']))
            iv = len(vm) - 1 if ins.meta['all_vm'] else need(vm, lambda o: id(o) in ids_v)
            il = len(lg) - 1 if ins.meta['all_lgkm'] else need(lg, lambda o: id(o) in ids_l)
        else:
            touched = set(ins.rd) | set(ins.wr) | set(ins.cr)
            rd = set(ins.rd)
            iv = need(vm, lambda o: (rd if ins.kind == 'vld' else touched) & set(o.wr))
            il = need(lg, lambda o: (rd if ins.kind == 'dsr' else touched) & set(o.wr))
        if il >= 0:
            while il + 1 < len(lg) and lg[il + 1][1] <= nm - age:
                il += 1
        if iv >= 0 or il >= 0:
            at = len(out)
            if ins.kind == 'mfma' and last_m is not None and at - last_m <= 6 \
                    and all(q[k][2] < last_m and q[k][1] <= nm - 3 for q, k in ((vm, iv), (lg, il)) if k >= 0) \
                    and not any(x.kind in FENCE or x.text.startswith('s_waitcnt') for x in out[last_m + 1:]):
                at = last_m + 1
            parts = []
            if iv >= 0:
                n = sum(1 for o in vm[iv + 1:] if o[2] < at)
                if n < 63:
                    parts.append(f"vmcnt({n})")
                vm = vm[iv + 1:]
            if il >= 0:
                n = sum(1 for o in lg[il + 1:] if o[2] < at)
                if n > 15:
                    il += n - 15
                    n = 15
                parts.append(f"lgkmcnt({n})")
                lg = lg[il + 1:]
            if parts:
                out.insert(at, I("s_waitcnt " + " ".join(parts), 'salu'))
                vm = [(o, m, p + (p >= at)) for o, m, p in vm]
                lg = [(o, m, p + (p >= at)) for o, m, p in lg]
        if ins.kind == 'wait':
            continue
        out.append(ins)
        if ins.kind == 'mfma':
            nm += 1
            last_m = len(out) - 1
        if ins.kind in ('vld', 'dma', 'vst'):
            vm.append((ins, nm, len(out) - 1))
        elif ins.kind in ('dsr', 'dsw'):
            lg.append((ins, nm, len(out) - 1))
        if ins.meta.get('drains_lgkm'):
            lg = []
    res = []
    for k, i in enumerate(out):
        res.append(i)
        if i.kind == 'mfma' and k + 3 < len(out) and out[k + 1].kind == 'dsr' and out[k + 2].kind == 'dsr' \
                and out[k + 3].kind == 'mfma':
            res.append(I("s_nop 0", 'salu', states=1))
    return res


def _is_s(r):
    return r[0] == 's' or r == 'vcc'


def required(p, c):
    n = 0
    pw, cr_, cw, cc = set(p.wr), set(c.rd), set(c.wr), set(c.cr)
    if p.kind in VALUS:
        vw = {r for r in pw if r[0] in 'va' and r != 'vcc'}
        sw = {r for r in pw if _is_s(r)}
        if c.kind == 'mfma' and vw & (cr_ | cc):
            n = max(n, 2)
        if c.kind in ('perm', 'dpp') and vw & cr_:
            n = max(n, 2)
        if c.kind == 'rdlane' and vw & cr_:
            n = max(n, 1)
        if p.kind == 'trans' and c.kind in VALUS and vw & cr_:
            n = max(n, 1)
        if p.kind == 'dot' and vw & (cr_ | cw | cc):
            same = c.kind == 'dot' and c.text.split()[0] == p.text.split()[0]
            srcs = c.text.split(',')
            if not (same and not (vw & set(regs(srcs[1]) + regs(srcs[2])))):
                n = max(n, 3)
        if c.kind in ('vld', 'dma', 'vst') and sw & cr_:
            n = max(n, 5)
        if c.kind in VALUS and sw & cr_:
            n = max(n, 4 if c.kind == 'rdlane' else 2)
        if c.kind in ('salu', 'branch') and sw & cr_:
            n = max(n, 1)
    if p.kind == 'mfma':
        if c.kind == 'mfma':
            if pw & cr_:
                n = max(n, 8)
            if pw & cc and p.wr != c.cr:
                n = max(n, 6)
            if pw & cw and p.wr != c.cr:
                n = max(n, 6)
        elif pw & (cr_ | cw):
            n = max(n, 8)
        if c.kind in VALUS and set(p.cr) & cw:
            n = max(n, 3)
    if p.kind == 'salu' and 'm0' in pw and c.kind == 'dma':
        n = max(n, 1)
    if p.kind == 'vst' and set(p.meta.get('data', ())) & cw:
        n = max(n, 2)
    return n


def insert_nops(prog):
    out = []
    for ins in prog:
        need, dist = 0, 0
        for p in reversed(out):
            if dist >= 8:
                break
            r = required(p, ins)
            need = max(need, r - dist)
            dist += p.meta.get('states', 1)
        if need > 0:
            out.append(I(f"s_nop {need - 1}", 'salu', states=need))
        out.append(ins)
    return out


def finalize(prog):
    prog = flatten(prog)
    verify(prog)
    prog = insert_nops(insert_waits(prog))
    return prog


def stats(prog):
    from collections import Counter
    c = Counter(i.kind for i in prog)
    c['nop_states'] = sum(i.meta.get('states', 0) for i in prog if i.text.startswith('s_nop'))
    c['waitcnt'] = sum(1 for i in prog if i.text.startswith('s_waitcnt'))
    return dict(c)
```

```python
import struct
import sys
from fw import *

NAME = "parallel_sum__sliding_local_dilated__dense_activation_relu__prompt_kernel"

F1, F2, F3, F4 = 0x1000, 0x2000, 0x3000, 0x5000
WQ = 0x10000
WQJ = 163840
W2P = 0x290000
W2C = 348160
ACT = 0x540000
ACTB = 278528
STAMP = 0xE00000
WS_SIZE = 0x1000000
OOB = 0x7ffffff0

HALO = 0
XR = 20480
W1R = 86016
P0A = 135168
P0B = 147456
CSF = 159744
CSQ = CSF + 512
ZERO = CSF + 1024
KV = W1R
KVR, KVC, KVH = 136, 9792, 19584
RED, REDR, REDW = 0, 336, 21504
LDS_SIZE = 163840

SX, SWQKV, SWO, SW1, SW2, SOUT, SWS = (S(n, 4) for n in (4, 8, 12, 16, 20, 24, 28))
sW, sB, sJ, sTB, sC, sTAG = (S(n) for n in range(32, 38))
sXb, sXl, sW1, sW1l, sWQ, sAP = (S(n) for n in range(38, 44))
sHS = [S(44), S(45), S(46)]
sOA, sOB, sAh, sAo, sAb, sWh, sWo, sWb = (S(n) for n in range(47, 55))
sT = [S(n) for n in range(55, 68)]
sROT, sCNT = S(68), S(69)
sROW0 = S(70, 2)
sU1, sU2, sU3 = S(72, 2), S(74, 2), S(76, 2)
sSCL = S(78)
sLO16 = S(0, 2)
sLA, sLW = S(79), S(80)
sKP, sXs, sW1b, sG, sWQb, sR = (S(n) for n in range(85, 91))
STAMP0 = 82

vL, vL16, vL16b = V(1), V(2), V(3)
vXa = [V(4), V(5), V(28), V(29)]
vXr = [V(6), V(7)]
vW1a = [V(8), V(9), V(10)]
vW1r = [V(n) for n in range(11, 17)]
vHr = [V(17), V(18)]
vWr = [V(n) for n in range(19, 23)]
vPOLL, vPA, vFA, vJUNK, vTAG = V(23), V(24), V(25), V(26), V(27)
vMEAN = [V(28), V(29)]
vRSTD = [V(30), V(31)]
vKVw = [V(n) for n in range(8, 12)]
vHKw, vKr, vK4, vVr, vV4 = V(12), V(13), V(14), V(15), V(16)
vQr, vQ4, vCQr, vCQw = V(4), V(5), V(6), V(7)
MASK = 32
WF = 40
FACC, RS, SS, CS = 64, 112, 120, 128
ACC = [136, 64]
OKEEP = 128
T = 172
WSLOT = [A(160 + 20 * i, 1) for i in range(4)]
aONES = A(240, 4)
aRES = 244
P2ACC = 40


def f2u(x):
    return struct.unpack('<I', struct.pack('<f', x))[0]


def X(s, p):
    return A(8 * s + 4 * p, 4)


def wslot(i, n):
    i %= 7
    return A(160 + 20 * i + 4 * n, 4) if i < 4 else V(196 + 20 * (i - 4) + 4 * n, 4)


def aslot(i, t):
    return A(16 * (i % 10) + 4 * t, 4)


class Gen:
    def __init__(self, stamps=False, **opt):
        self.stamps = stamps
        self.nstamp = 0
        self.stamp_names = []
        self.slow = []
        self.opt = dict(packA=1, pub1=3, halo=2, rawB=4, packB=7, pub2=9, poll1=6, chk1=8, poll2=4, chk2=7, w_end=30,
                        rot=1, f3_step=21, poll3=27, chk3=30, nA_p1b=3, f4_step=2, poll4=6, chk4=8)
        self.opt.update(opt)

    def stamp(self, name):
        if not self.stamps:
            return []
        k = self.nstamp
        assert k < 62
        self.nstamp += 1
        self.stamp_names.append(name)
        return [Group([raw("s_memtime s[82:83]", wr=['s82', 's83']),
                       raw("s_waitcnt lgkmcnt(0)", drains_lgkm=True),
                       raw(f"v_writelane_b32 {vJUNK}, s82, {k}", rd=['s82'], kind='salu')])]

    def check(self, name):
        self.slow.append(f"""L_slow_{name}:
{f"    s_add_u32 s84, s84, {1 << (8 * len(self.slow))}" if self.stamps else ""}
    s_mov_b32 {sCNT}, 0x8000
L_spin_{name}:
    buffer_load_dword {vPOLL}, {vPA}, {SWS}, 0 offen sc1
    s_waitcnt vmcnt(0)
    v_cmp_ne_u32 vcc, {sTAG}, {vPOLL}
    s_sub_u32 {sCNT}, {sCNT}, 1
    s_cbranch_scc1 L_ok_{name}
    s_cbranch_vccnz L_spin_{name}
    s_branch L_ok_{name}
""")
        return Group([valu('v_cmp_ne_u32', 'vcc', sTAG, vPOLL),
                      raw(f"s_cbranch_vccnz L_slow_{name}", rd=['vcc'], kind='branch'),
                      raw(f"L_ok_{name}:", kind='label', states=0)])

    def divc(self, dst, src, d, maxv):
        for sh in range(8, 24):
            m = -(-(1 << sh) // d)
            if m * maxv < (1 << 32) and m < (1 << 24) and all((v * m) >> sh == v // d for v in range(maxv + 1)):
                return [valu('v_mul_u32_u24', dst, m, src), valu('v_lshrrev_b32', dst, sh, dst)]
        raise ValueError

    def rstats(self, vs, vq, mean, rstd, t):
        inv = f2u(1.0 / 640.0)
        return [valu('v_mul_f32', mean, inv, vs),
                valu('v_mul_f32', t, inv, vq),
                valu('v_fma_f32', t, '-' + mean, mean, t),
                valu('v_max_f32', t, 0, t),
                valu('v_cvt_pk_bf16_f32', t, mean, t),
                valu('v_lshlrev_b32', mean, 16, t),
                valu('v_and_b32', t, 0xffff0000, t),
                valu('v_add_f32', t, f2u(1e-5), t),
                valu('v_cvt_pk_bf16_f32', t, t, t),
                valu('v_lshlrev_b32', t, 16, t),
                valu('v_sqrt_f32', t, t),
                Skip(1),
                valu('v_cvt_pk_bf16_f32', t, t, t),
                valu('v_lshlrev_b32', t, 16, t),
                valu('v_rcp_f32', rstd, t)]

    def stage_dma(self, R):
        slot, out = R & 3, []
        if R < 10:
            for k in range(4):
                out.append(Group([bdma(vXa[k], SX, sXs, k * 1024)]))
            for m in range(3):
                out.append(Group([bdma(vW1a[m], SW1, sW1, m * 1024)]))
            self.stage_pre[R] = {0: [salu('s_add_u32', 'm0', sXl, slot * 4096)],
                                 4: [salu('s_add_u32', 'm0', sW1l, slot * 12288)],
                                 7: [salu('s_add_u32', sKP, sKP, 1),
                                     Group([salu('s_cmp_eq_u32', sKP, 10), salu('s_cselect_b32', sKP, 0, sKP)]),
                                     salu('s_lshl_b32', sXs, sKP, 7), salu('s_add_u32', sXs, sXs, sXb),
                                     salu('s_mul_i32', sW1, sKP, 64 * 3072), salu('s_add_u32', sW1, sW1, sW1b)] if R < 9 else []}
        else:
            for m in range(4):
                out.append(Group([bdma(vL16, SWS, sWQ, m * 1024, 'sc1')]))
            self.stage_pre[R] = {0: [salu('s_add_u32', 'm0', sXl, slot * 4096)],
                                 4: [salu('s_add_u32', sG, sG, 4),
                                     Group([salu('s_cmp_ge_u32', sG, 20), salu('s_cselect_b32', sWQ, 20, 0)]),
                                     salu('s_sub_u32', sG, sG, sWQ), salu('s_lshl_b32', sWQ, sG, 12),
                                     salu('s_add_u32', sWQ, sWQ, sWQb)] +
                                    ([salu('s_add_u32', sWQ, sWQ, 81920)] if R >= 14 else []) if R < 19 else []}
        self.stage_ops[R] = [i for g in out for i in g if i.kind == 'dma']
        return out

    def inline_stage(self, R):
        out, pre = self.stage_dma(R), self.stage_pre[R]
        for k, ins in pre.items():
            ins = flatten(ins)
            if k < len(out):
                out[k][:0] = ins
            else:
                out[-1].extend(ins)
        return out

    def place_mem(self, w, seq, start, end):
        annotate([x for g, pre in seq for x in list(pre) + ([g] if g else [])])
        mem = [g for g, _ in seq if g]
        n, prev, k = len(mem), start - 1, 0
        for g, pre in seq:
            if g:
                lo = max(prev + 1 + len(pre), start + len(seq[0][1]) + (end - start - len(seq[0][1]) - 1) * k // n)
                lo = min(lo, end - 1)
                hi = min(max(lo + 1, lo + (end - start) // n - 1), end)
                at = min(range(lo, hi), key=lambda x: (max(gcost(w.v[x] + vcost(g), w.s[x] + scost(g)) - w.cap, 0), x))
                k += 1
            else:
                at = None
            if pre:
                w.stream(pre, prev + 1, at if at is not None and at > prev + 1 else None)
            if g:
                w.at(at, g)
                prev = at

    def ring_barrier(self, R, extra_vm=()):
        return Group([wait(vm=self.stage_ops[R] + list(extra_vm), all_lgkm=True), barrier()])

    def p2_steps(self):
        return [(sAh, sWh, i) for i in range(12)] + [(sAo, sWo, i) for i in range(4)] + [(sAb, sWb, 0)]

    def w_loads(self, i):
        _, sw, k = self.p2_steps()[i]
        out = []
        for n in range(5):
            g = [bload(wslot(i, n), vL16 if n < 4 else vL16b, SWS, sLW, (n & 3) * 1024, 'sc1')]
            if n == 0:
                g.insert(0, salu('s_add_u32', sLW, sw, k * 5120))
            out.append(Group(g))
        return out

    def a_loads(self, i):
        sa, _, k = self.p2_steps()[i]
        out = []
        for t in range(4):
            g = [bload(aslot(i, t), vL16, SWS, sLA, t * 1024, 'sc1')]
            if t == 0:
                g.insert(0, salu('s_add_u32', sLA, sa, k * 4096))
            out.append(Group(g))
        return out

    def startup(self):
        t = [V(n) for n in range(136, 256)]
        vQ, vZ, vOOB, vU, vHu, vR, vCC, vPs = t[5], t[7], t[14], t[15], t[16], t[17], t[18], t[19]
        rdA, soA = [t[20], t[21], t[22]], [sT[8], sT[9], sT[10]]
        rdB, stB, ldB = [t[23], t[24], t[25]], [t[26], t[27], t[28]], [t[29], t[30], t[31]]
        s6T, s5T, sW2c = sT[6], sT[7], sT[11]
        H, PK = 200, 176
        p = []
        e = p.append
        x = p.extend
        e(salu('s_cmp_ge_u32', 's2', 256))
        e(raw("s_cbranch_scc1 L_end", rd=['scc'], kind='branch'))
        e(salu('s_getpc_b64', S(56, 2)))
        e(raw("L_pc:", kind='label', states=0))
        for r, off in ((4, 0), (16, 32), (8, 8), (28, 64), (12, 16), (20, 40), (24, 48)):
            e(raw(f"s_load_dwordx2 {S(r, 2)}, s[0:1], {off}", wr=regs(S(r, 2))))
        e(salu('s_lshr_b32', sT[0], 's2', 3))
        e(salu('s_lshl_b32', sT[4], sT[0], 4))
        e(valu('v_lshrrev_b32', t[0], 6, 'v0'))
        e(valu('v_and_b32', t[1], 3, 'v0'))
        e(valu('v_lshl_add_u32', t[1], t[0], 2, t[1]))
        e(valu('v_add_lshl_u32', t[1], sT[4], t[1], 7))
        e(valu('v_min_u32', t[1], 'L_last-L_pc-4', t[1]))
        e(valu('v_mov_b32', t[3], 's57'))
        e(I(f"v_add_co_u32 {t[2]}, vcc, s56, {t[1]}", 'valu', ['s56', t[1]], [t[2], 'vcc']))
        e(valu('v_readfirstlane_b32', sW, t[0]))
        e(valu('v_and_b32', vL, 63, 'v0'))
        e(I(f"v_addc_co_u32 {t[3]}, vcc, 0, {t[3]}, vcc", 'valu', [t[3], 'vcc'], [t[3], 'vcc']))
        e(I(f"global_load_dword v255, {V(138, 2)}, off", 'vld', [t[2], t[3]], ['v255']))
        x(self.stamp('start'))
        if self.stamps:
            e(salu('s_mov_b32', 's84', 0))
        e(salu('s_and_b32', sT[3], 's2', 7))
        e(salu('s_lshr_b32', sT[4], sT[3], 1))
        e(salu('s_and_b32', sT[3], sT[3], 1))
        e(salu('s_and_b32', sB, sT[0], 3))
        e(salu('s_lshl2_add_u32', sB, sT[4], sB))
        e(valu('v_lshrrev_b32', t[4], 3, vL))
        e(valu('v_lshrrev_b32', vQ, 4, vL))
        e(valu('v_and_b32', t[6], 7, vL))
        e(valu('v_xor_b32', t[6], t[6], vQ))
        e(valu('v_lshlrev_b32', t[6], 4, t[6]))
        e(valu('v_mul_u32_u24', vXa[0], 2560, t[4]))
        e(valu('v_add_u32', vXa[0], vXa[0], t[6]))
        e(valu('v_xor_b32', vXa[2], 64, vXa[0]))
        e(valu('v_add_u32', vXa[1], 1280 - 1024, vXa[0]))
        e(valu('v_add_u32', vXa[3], 20480 + 1280 - 3072, vXa[2]))
        e(valu('v_add_u32', vXa[2], 20480 - 2048, vXa[2]))
        e(salu('s_and_b32', sR, sT[0], 3))
        e(salu('s_mul_i32', sR, sR, 5))
        e(salu('s_lshr_b32', sR, sR, 1))
        e(salu('s_lshr_b32', sKP, sT[0], 2))
        e(salu('s_add_u32', sR, sR, sKP))
        e(salu('s_cmp_ge_u32', sR, 10))
        e(salu('s_cselect_b32', sKP, 10, 0))
        e(salu('s_sub_u32', sR, sR, sKP))
        if not self.opt['rot']:
            e(salu('s_mov_b32', sR, 0))
        e(salu('s_mov_b32', sKP, sR))
        e(salu('s_lshl2_add_u32', sXb, sB, sW))
        e(salu('s_mul_i32', sXb, sXb, 32 * 1280))
        e(salu('s_lshl_b32', sXs, sKP, 7))
        e(salu('s_add_u32', sXs, sXs, sXb))
        e(salu('s_lshl_b32', sXl, sW, 14))
        e(salu('s_add_u32', sXl, sXl, XR))
        for r, size in ((4, 2621440), (16, 1966080)):
            e(salu('s_mov_b32', S(r + 2), size))
            e(salu('s_mov_b32', S(r + 3), 0x20000))
        e(salu('s_lshr_b32', sJ, sT[0], 2))
        e(salu('s_lshl3_add_u32', sJ, sT[3], sJ))
        e(salu('s_mul_i32', sW1b, sW, 16 * 3072))
        e(salu('s_mul_i32', sT[1], sJ, 192))
        e(salu('s_add_u32', sW1b, sW1b, sT[1]))
        e(salu('s_mul_i32', sW1, sKP, 64 * 3072))
        e(salu('s_add_u32', sW1, sW1, sW1b))
        e(salu('s_mul_i32', sW1l, sW, 3072))
        e(salu('s_add_u32', sW1l, sW1l, W1R))
        e(raw("s_waitcnt lgkmcnt(0)", drains_lgkm=True))
        st = [self.inline_stage(R) for R in range(4)]

        def w1_addr(m):
            return [valu('v_add_u32', t[8], 64 * m, vL)] + self.divc(t[9], t[8], 12, 191) + [
                valu('v_mul_u32_u24', t[10], 12, t[9]), valu('v_sub_u32', t[8], t[8], t[10]),
                valu('v_lshrrev_b32', t[10], 2, t[9]), valu('v_and_b32', t[10], 2, t[10]),
                valu('v_xor_b32', t[8], t[8], t[10]), valu('v_mul_u32_u24', t[9], 3072, t[9]),
                valu('v_lshl_add_u32', vW1a[m], t[8], 4, t[9])] + (
                [valu('v_subrev_u32', vW1a[m], 1024 * m, vW1a[m])] if m else [])
        e(st[0][0])
        e(st[0][1])
        x(w1_addr(0))
        e(st[0][2])
        x(w1_addr(1))
        e(st[0][3])
        x(w1_addr(2))
        e(st[0][4])
        e(salu('s_and_b32', sTB, sT[0], 7))
        e(salu('s_lshl3_add_u32', sTB, sT[4], sTB))
        e(salu('s_lshr_b32', sC, sT[0], 3))
        e(salu('s_lshl2_add_u32', sC, sT[3], sC))
        for r, size in ((8, 2457600), (12, 819200), (20, 1966080), (24, 2621440), (28, WS_SIZE)):
            e(salu('s_mov_b32', S(r + 2), size))
            e(salu('s_mov_b32', S(r + 3), 0x20000))
        e(valu('v_mov_b32', vZ, 0))
        e(valu('v_mov_b32', vOOB, OOB))
        e(st[0][5])
        e(st[0][6])
        self.p0a = []
        e(salu('s_mul_i32', sT[1], sB, 40 * 3840))
        e(salu('s_mul_i32', sT[2], sJ, 80))
        e(salu('s_add_u32', sT[1], sT[1], sT[2]))
        e(salu('s_mul_i32', sT[2], sW, 192))
        e(salu('s_mul_i32', sT[5], sW, 3072))
        for m in range(3):
            e(valu('v_add_u32', t[8], sT[2], vL))
            if m:
                e(valu('v_add_u32', t[8], 64 * m, t[8]))
            x(self.divc(t[9], t[8], 15, 767))
            e(valu('v_mul_u32_u24', t[10], 15, t[9]))
            e(valu('v_sub_u32', t[10], t[8], t[10]))
            e(valu('v_cmp_gt_u32', 'vcc', 600, t[8]))
            x(self.divc(t[11], t[10], 5, 14))
            e(valu('v_mul_u32_u24', t[9], 3840, t[9]))
            e(valu('v_mul_u32_u24', t[11], 1200, t[11]))
            e(valu('v_lshlrev_b32', t[10], 4, t[10]))
            e(valu('v_add3_u32', t[9], t[9], t[10], t[11]))
            e(salu('s_add_u32', 'm0', sT[5], P0A + 1024 * m))
            e(valu('v_cndmask_b32', t[9], vOOB, t[9], 'vcc'))
            d = bdma(t[9], SWQKV, sT[1])
            e(d)
            self.p0a.append(d)
        e(bload(vTAG, vZ, SWS, 0, 0, 'sc1'))
        x(self.stamp('p0a'))

        q = []
        e = q.append
        x = q.extend
        vHa = t[32]
        e(valu('v_and_b32', vU, 15, vL))
        e(salu('s_lshl_b32', sT[2], sW, 2))
        e(valu('v_add_u32', vHu, sT[2], vQ))
        e(salu('s_lshl_b32', sT[2], sB, 7))
        e(salu('s_sub_u32', sT[2], sT[2], 16))
        e(valu('v_add_u32', vHa, sT[2], vHu))
        e(valu('v_cmp_le_i32', 'vcc', 0, vHa))
        e(valu('v_mul_u32_u24', vHa, 1280, vHa))
        e(valu('v_cndmask_b32', vHa, vOOB, vHa, 'vcc'))
        e(valu('v_cmp_ne_u32', 'vcc', 0, vHu))
        e(valu('v_bfe_u32', vR, vL, 2, 2))
        e(valu('v_and_b32', vCC, 3, vL))
        e(valu('v_cndmask_b32', vHa, vOOB, vHa, 'vcc'))
        e(salu('s_lshl_b32', sT[2], sR, 3))
        halo_loads = []
        for i5 in range(5):
            ha = V(224 + i5)
            e(valu('v_add_u32', ha, sT[2], vU))
            if i5:
                e(valu('v_add_u32', ha, 16 * i5, ha))
            e(valu('v_subrev_u32', t[8], 80, ha))
            e(valu('v_min_u32', ha, ha, t[8]))
            e(valu('v_lshl_add_u32', ha, ha, 4, vHa))
            halo_loads.append(bload(V(H + 4 * i5, 4), ha, SX))
        e(valu('v_lshlrev_b32', vL16, 4, vL))
        e(valu('v_add_u32', vL16b, 4096, vL16))
        e(valu('v_lshrrev_b32', t[8], 1, vU))
        e(valu('v_xor_b32', t[8], t[8], vQ))
        e(valu('v_lshlrev_b32', t[8], 4, t[8]))
        e(valu('v_lshl_add_u32', vHr[0], vU, 7, t[8]))
        e(valu('v_xor_b32', vHr[1], 64, vHr[0]))
        e(valu('v_and_b32', t[8], 8, vU))
        e(valu('v_lshlrev_b32', t[8], 7, t[8]))
        e(valu('v_add3_u32', vXr[0], sXl, vHr[0], t[8]))
        e(valu('v_xor_b32', vXr[1], 64, vXr[0]))
        e(valu('v_lshl_add_u32', t[8], vQ, 3, vR))
        e(valu('v_mul_u32_u24', t[8], 192, t[8]))
        e(valu('v_lshl_add_u32', t[8], vCC, 3, t[8]))
        e(valu('v_and_b32', t[9], 1, vQ))
        e(valu('v_lshl_add_u32', t[8], t[9], 5, t[8]))
        e(salu('s_cmp_eq_u32', sW, 3))
        e(salu('s_cselect_b32', sROT, 0, sW))
        e(salu('s_lshl_b32', sT[1], sB, 1))
        e(salu('s_lshr_b32', sT[2], sW, 1))
        e(salu('s_add_u32', sT[12], sT[1], sT[2]))
        e(salu('s_mul_i32', sAP, sT[12], ACTB))
        e(salu('s_and_b32', sT[2], sW, 1))
        e(salu('s_lshl_b32', sT[2], sT[2], 11))
        e(salu('s_add_u32', sAP, sAP, sT[2]))
        e(salu('s_add_u32', sAP, sAP, ACT))
        for m in range(3):
            e(salu('s_add_u32', sT[1], sROT, m))
            e(salu('s_cmp_ge_u32', sT[1], 3))
            e(salu('s_cselect_b32', sT[2], 3, 0))
            e(salu('s_sub_u32', sT[1], sT[1], sT[2]))
            e(salu('s_lshl_b32', sT[2], sT[1], 6))
            e(salu('s_add_u32', sT[2], sT[2], W1R))
            e(valu('v_add_u32', vW1r[2 * m], sT[2], t[8]))
            e(valu('v_xor_b32', vW1r[2 * m + 1], 32, vW1r[2 * m]))
            e(salu('s_mul_i32', sT[2], sJ, 3))
            e(salu('s_add_u32', sT[1], sT[1], sT[2]))
            e(salu('s_lshl_b32', sT[1], sT[1], 12))
            e(salu('s_add_u32', sHS[m], sT[1], sAP))
        e(valu('v_mov_b32', t[8], 0x3f803f80))
        for r in range(4):
            e(valu('v_accvgpr_write_b32', A(240 + r), t[8]))
        e(valu('v_lshlrev_b32', vPs, 4, vU))
        e(valu('v_lshl_add_u32', vPs, vQ, 10, vPs))
        e(valu('v_mul_u32_u24', t[8], 80, vQ))
        e(valu('v_cmp_ne_u32', 'vcc', 3, vCC))
        e(valu('v_lshl_add_u32', t[8], vCC, 3, t[8]))
        e(valu('v_mul_u32_u24', t[9], 80, vCC))
        e(valu('v_cndmask_b32', t[9], 0, t[9], 'vcc'))
        e(valu('v_cmp_ne_u32', 'vcc', 3, vQ))
        e(valu('v_add_u32', t[9], 32, t[9]))
        e(valu('v_mul_u32_u24', t[10], 240, vR))
        e(valu('v_cndmask_b32', t[8], t[9], t[8], 'vcc'))
        e(valu('v_add_u32', t[8], t[8], t[10]))
        for k in range(3):
            e(salu('s_add_u32', sT[1], sW, 4 * k))
            e(salu('s_min_u32', sT[1], sT[1], 9))
            e(salu('s_and_b32', sT[2], sT[1], 1))
            e(salu('s_lshr_b32', sT[1], sT[1], 1))
            e(salu('s_mul_i32', sT[3], sT[1], 1920))
            e(salu('s_mul_i32', sT[4], sT[2], 40))
            e(salu('s_add_u32', sT[3], sT[3], sT[4]))
            e(salu('s_add_u32', sT[3], sT[3], P0A))
            e(valu('v_add_u32', rdA[k], sT[3], t[8]))
            e(salu('s_mul_i32', sT[3], sB, 5))
            e(salu('s_add_u32', sT[1], sT[1], sT[3]))
            e(salu('s_mul_i32', sT[2], sT[2], 20))
            e(salu('s_lshr_b32', sT[3], sT[1], 2))
            e(salu('s_add_u32', sT[2], sT[2], sT[3]))
            e(salu('s_lshl_b32', sT[2], sT[2], 12))
            e(salu('s_and_b32', sT[1], sT[1], 3))
            e(salu('s_lshl_b32', sT[1], sT[1], 8))
            e(salu('s_add_u32', sT[1], sT[1], sT[2]))
            e(salu('s_mul_i32', sT[2], sJ, WQJ))
            e(salu('s_add_u32', sT[1], sT[1], sT[2]))
            e(salu('s_add_u32', soA[k], sT[1], WQ))
        vPs2 = t[33]
        e(salu('s_cmp_lt_u32', sW, 2))
        e(salu('s_cselect_b64', 'vcc', -1, 0))
        e(valu('v_cndmask_b32', vPs2, vOOB, vPs, 'vcc'))
        e(salu('s_mul_i32', s6T, sTB, 6))
        e(salu('s_mul_i32', s5T, sTB, 5))
        e(salu('s_lshr_b32', s5T, s5T, 1))
        for m in range(3):
            e(salu('s_lshl_b32', sT[2], sW, 7 if m < 2 else 6))
            e(valu('v_add_u32', t[8], sT[2], vL))
            if m == 1:
                e(valu('v_add_u32', t[8], 64, t[8]))
            x(self.divc(t[9], t[8], 80, 511))
            e(valu('v_mul_u32_u24', t[10], 80, t[9]))
            e(valu('v_sub_u32', t[10], t[8], t[10]))
            x(self.divc(t[11], t[10], 10, 79))
            e(valu('v_mul_u32_u24', t[12], 10, t[11]))
            e(valu('v_sub_u32', t[10], t[10], t[12]))
            e(valu('v_and_b32', t[12], 3, t[11]))
            e(valu('v_lshrrev_b32', t[11], 2, t[11]))
            if m < 2:
                e(valu('v_lshl_add_u32', t[11], t[11], 4, t[12]))
                e(valu('v_add_u32', t[9], s6T, t[9]))
                e(valu('v_and_b32', t[12], 3, t[9]))
                e(valu('v_lshl_add_u32', t[11], t[12], 2, t[11]))
                e(valu('v_lshrrev_b32', t[9], 2, t[9]))
                e(valu('v_lshl_add_u32', t[11], t[9], 5, t[11]))
            else:
                e(valu('v_mad_u32_u24', t[11], t[11], 20, t[12]))
                e(valu('v_add_u32', t[9], s5T, t[9]))
                e(valu('v_min_u32', t[9], 79, t[9]))
                e(valu('v_cmp_gt_u32', 'vcc', 64, t[9]))
                e(valu('v_lshrrev_b32', t[12], 2, t[9]))
                e(valu('v_mul_u32_u24', t[12], 40, t[12]))
                e(valu('v_and_b32', t[13], 3, t[9]))
                e(valu('v_lshl_add_u32', t[12], t[13], 2, t[12]))
                e(valu('v_mul_u32_u24', t[13], 40, t[9]))
                e(valu('v_subrev_u32', t[13], 40 * 64 - 16, t[13]))
                e(valu('v_cndmask_b32', t[12], t[13], t[12], 'vcc'))
                e(valu('v_add_u32', t[11], t[11], t[12]))
            e(valu('v_cmp_gt_u32', 'vcc', 480 if m < 2 else 240, t[8]))
            e(valu('v_mul_u32_u24', t[11], 1280, t[11]))
            e(valu('v_lshl_add_u32', t[11], t[10], 4, t[11]))
            e(valu('v_cndmask_b32', ldB[m], vOOB, t[11], 'vcc'))
        e(valu('v_mul_u32_u24', t[8], 160, vR))
        e(valu('v_lshl_add_u32', t[8], vCC, 3, t[8]))
        for k in range(3):
            if k < 2:
                e(salu('s_lshl_b32', sT[1], sW, 3))
                e(salu('s_add_u32', sT[1], sT[1], 4 * k))
            else:
                e(salu('s_lshl_b32', sT[1], sW, 2))
            e(valu('v_add_u32', t[13], sT[1], vQ))
            e(valu('v_min_u32', t[9], 29 if k < 2 else 14, t[13]))
            e(valu('v_cmp_eq_u32', 'vcc', t[9], t[13]))
            x(self.divc(t[10], t[9], 5, 31))
            e(valu('v_mul_u32_u24', t[11], 5, t[10]))
            e(valu('v_sub_u32', t[9], t[9], t[11]))
            e(valu('v_mul_u32_u24', t[11], 1280, t[10]))
            e(valu('v_lshl_add_u32', t[11], t[9], 5, t[11]))
            e(valu('v_add_u32', t[11], (P0B if k < 2 else P0B + 8192), t[11]))
            e(valu('v_add_u32', rdB[k], t[11], t[8]))
            e(valu('v_add_u32', t[10], s6T if k < 2 else s5T, t[10]))
            if k == 2:
                e(valu('v_min_u32', t[10], 79, t[10]))
                e(valu('v_add_u32', t[10], 192, t[10]))
            e(valu('v_lshrrev_b32', t[11], 2, t[10]))
            e(valu('v_mul_u32_u24', t[11], 5120, t[11]))
            e(valu('v_lshl_add_u32', t[11], t[9], 10, t[11]))
            e(valu('v_and_b32', t[10], 3, t[10]))
            e(valu('v_lshl_add_u32', t[11], t[10], 8, t[11]))
            e(valu('v_lshl_add_u32', t[11], vU, 4, t[11]))
            e(valu('v_cndmask_b32', stB[k], vOOB, t[11], 'vcc'))
        e(salu('s_mul_i32', sW2c, sC, W2C))
        e(salu('s_add_u32', sW2c, sW2c, W2P))
        vHw = t[34]
        e(valu('v_lshrrev_b32', t[8], 1, vHu))
        e(valu('v_xor_b32', t[8], t[8], vU))
        e(valu('v_and_b32', t[8], 7, t[8]))
        e(valu('v_lshlrev_b32', t[8], 4, t[8]))
        e(valu('v_lshl_add_u32', t[8], vHu, 7, t[8]))
        e(valu('v_lshrrev_b32', t[9], 3, vU))
        e(valu('v_lshl_add_u32', vHw, t[9], 11, t[8]))
        e(salu('s_lshl_b32', sT[1], sJ, 6))
        e(salu('s_add_u32', sT[1], sT[1], F1))
        e(salu('s_lshl2_add_u32', sT[3], sB, sT[1]))
        e(valu('v_cmp_eq_u32', 'vcc', 0, 'v0'))
        e(valu('v_mov_b32', t[8], sT[3]))
        e(valu('v_lshl_add_u32', vPA, vU, 2, sT[1]))
        e(valu('v_cndmask_b32', vFA, vOOB, t[8], 'vcc'))
        e(salu('s_mul_i32', sWQb, sJ, WQJ))
        e(salu('s_add_u32', sWQb, sWQb, WQ))
        e(salu('s_lshl1_add_u32', sG, sR, sW))
        e(salu('s_cmp_ge_u32', sG, 20))
        e(salu('s_cselect_b32', sWQ, 20, 0))
        e(salu('s_sub_u32', sG, sG, sWQ))
        e(salu('s_lshl_b32', sWQ, sG, 12))
        e(salu('s_add_u32', sWQ, sWQ, sWQb))
        e(salu('s_mul_i32', sT[1], sTB, ACTB))
        e(salu('s_add_u32', sT[1], sT[1], ACT))
        e(salu('s_mul_i32', sT[2], sW, 12 * 4096))
        e(salu('s_add_u32', sAh, sT[1], sT[2]))
        e(salu('s_lshl_b32', sT[2], sW, 14))
        e(salu('s_add_u32', sAo, sT[1], sT[2]))
        e(salu('s_add_u32', sAo, sAo, 48 * 4096))
        e(salu('s_lshl_b32', sT[2], sW, 12))
        e(salu('s_add_u32', sAb, sT[1], sT[2]))
        e(salu('s_add_u32', sAb, sAb, 64 * 4096))
        e(salu('s_mul_i32', sT[2], sW, 12 * 5120))
        e(salu('s_add_u32', sWh, sW2c, sT[2]))
        e(salu('s_mul_i32', sT[2], sW, 4 * 5120))
        e(salu('s_add_u32', sWo, sW2c, sT[2]))
        e(salu('s_add_u32', sWo, sWo, 48 * 5120))
        e(salu('s_mul_i32', sT[2], sW, 5120))
        e(salu('s_add_u32', sWb, sW2c, sT[2]))
        e(salu('s_add_u32', sWb, sWb, 64 * 5120))
        e(salu('s_add_u32', sT[1], sJ, 48))
        e(salu('s_lshl_b32', sT[1], sT[1], 12))
        e(salu('s_add_u32', sOA, sT[1], sAP))
        e(salu('s_lshr_b32', sT[1], sJ, 2))
        e(salu('s_add_u32', sT[1], sT[1], 64))
        e(salu('s_lshl_b32', sT[1], sT[1], 12))
        e(salu('s_and_b32', sT[2], sJ, 3))
        e(salu('s_lshl_b32', sT[2], sT[2], 8))
        e(salu('s_add_u32', sT[1], sT[1], sT[2]))
        e(salu('s_add_u32', sOB, sT[1], sAP))
        e(salu('s_mov_b64', sLO16, 0xffff))
        e(salu('s_mov_b32', 's70', 0x00010001))
        e(salu('s_mov_b32', 's71', 0x00010001))
        for k, r in enumerate((72, 74, 76)):
            e(salu('s_mov_b32', S(r), 0x11111111 << (k + 1)))
            e(salu('s_mov_b32', S(r + 1), 0x11111111 << (k + 1)))
        e(salu('s_mov_b32', sSCL, f2u(20 ** -0.5 * 1.4426950408889634)))
        for i in range(4):
            e(salu('s_add_u32', sT[1], sW, i))
            e(salu('s_and_b32', sT[1], sT[1], 3))
            e(salu('s_lshl_b32', sT[1], sT[1], 10))
            e(salu('s_add_u32', sT[1], sT[1], XR))
            e(valu('v_add_u32', vWr[i], sT[1], vL16))
        e(valu('v_lshlrev_b32', t[8], 2, vQ))
        e(valu('v_sub_u32', t[8], vU, t[8]))
        e(valu('v_mov_b32', t[10], f2u(-1e30)))
        e(salu('s_or_b32', sT[1], sB, sW))
        e(salu('s_cmp_eq_u32', sT[1], 0))
        e(salu('s_cselect_b32', sT[1], 0, 2))
        e(valu('v_cmp_gt_u32', 'vcc', sT[1], vQ))
        e(valu('v_cndmask_b32', t[11], t[10], vZ, 'vcc'))
        for r in range(4):
            e(valu('v_subrev_u32', t[9], r, t[8]))
            e(valu('v_cmp_gt_u32', 'vcc', 8, t[9]))
            e(valu('v_cmp_gt_i32', S(56, 2), 0, t[9]))
            e(valu('v_cndmask_b32', V(MASK + 4 + r), t[10], vZ, 'vcc'))
            e(valu('v_cndmask_b32', V(MASK + r), t[10], t[11], S(56, 2)))
        e(valu('v_mov_b32', t[8], ZERO))
        e(valu('v_mov_b32', t[10], 0))
        e(valu('v_mov_b32', t[11], 0))
        e(ds_write('ds_write_b64', t[8], V(146, 2)))
        e(salu('s_mul_i32', sT[12], sC, 160))
        loads = st[1] + halo_loads + st[2] + st[3]
        p += self.sprinkle(q, [loads[0]] + loads[1:], max(1, (len(q) - 16) // len(loads)), start=0)
        p += self.stamp('setup')
        p.append(Group([wait(vm=self.stage_ops[0]), barrier()]))
        p += self.stamp('B0')

        def pack(rd, k0, half, dst):
            o_ = []
            for k in range(3):
                o_ += [ds_read('ds_read_b64_tr_b16', V(PK + 4 * (k0 + k) + 2 * h, 2), rd[k], h * half) for h in range(2)]
            sts = [bstore(V(PK + 4 * (k0 + k), 4), dst[k][0], SWS, dst[k][1], 0, 'sc1') for k in range(3)]
            return o_, sts
        self.packA = pack(rdA, 0, 960, [(vPs, soA[0]), (vPs, soA[1]), (vPs2, soA[2])])
        self.packB = pack(rdB, 3, 640, [(stB[k], sW2c) for k in range(3)])
        self.rawB = []
        for m in range(3):
            self.rawB.append(Group([salu('s_lshl_b32', sT[5], sW, 11 if m < 2 else 10),
                                    salu('s_add_u32', 'm0', sT[5], P0B + (1024 * m if m < 2 else 8192)),
                                    bdma(ldB[m], SW2 if m < 2 else SWO, sT[12])]))
        self.tag = [valu('v_readfirstlane_b32', sTAG, vTAG), salu('s_mul_i32', sTAG, sTAG, 0x19660d),
                    salu('s_add_u32', sTAG, sTAG, 0x3c6ef35f), valu('v_mov_b32', vTAG, sTAG)]
        self.f2_pub = [salu('s_lshl_b32', sT[2], sC, 7), salu('s_add_u32', sT[2], sT[2], F2),
                       salu('s_lshl2_add_u32', sT[4], sTB, sT[2]), valu('v_mov_b32', t[8], sT[4]),
                       valu('v_cmp_eq_u32', 'vcc', 0, 'v0'), Skip(1), valu('v_cndmask_b32', vFA, vOOB, t[8], 'vcc')]
        self.f2_poll = [salu('s_lshl_b32', sT[2], sC, 7), salu('s_add_u32', sT[2], sT[2], F2),
                        valu('v_and_b32', V(T + 22), 31, vL), valu('v_lshl_add_u32', vPA, V(T + 22), 2, sT[2])]
        U = 220
        hs, hq, ht, hm, hr = t[8], t[9], t[10], t[11], t[12]
        h_ = []
        for i in range(20):
            lo, hi = V(U + 2 * (i & 1)), V(U + 2 * (i & 1) + 1)
            h_ += [valu('v_lshlrev_b32', lo, 16, V(H + i)), valu('v_and_b32', hi, 0xffff0000, V(H + i))]
            if i == 0:
                h_ += [valu('v_add_f32', hs, lo, hi), valu('v_mul_f32', hq, lo, lo)]
            else:
                h_ += [valu('v_add_f32', hs, hs, lo), valu('v_fmac_f32', hq, lo, lo), valu('v_add_f32', hs, hs, hi)]
            h_.append(valu('v_fmac_f32', hq, hi, hi))
        for sh in (8, 4, 2, 1):
            h_.append(Skip(1))
            for r in (hs, hq):
                h_.append(valu('v_add_f32_dpp', r, r, r, mods=f'row_ror:{sh} row_mask:0xf bank_mask:0xf'))
        h_ += self.rstats(hs, hq, hm, hr, ht)
        h_ += [valu('v_cmp_ne_u32', 'vcc', 0, vHu), valu('v_mul_f32', hm, hm, hr), Skip(1),
               valu('v_cndmask_b32', hm, -1.0, hm, 'vcc')]
        for i in range(20):
            h_ += [valu('v_lshlrev_b32', t[8], 16, V(H + i)), valu('v_and_b32', t[9], 0xffff0000, V(H + i)),
                   valu('v_fma_f32', t[8], t[8], hr, '-' + hm), valu('v_fma_f32', t[9], t[9], hr, '-' + hm),
                   valu('v_cvt_pk_bf16_f32', V(H + i), t[8], t[9])]
            if i % 4 == 3:
                h_.append(ds_write('ds_write_b128', vHw, V(H + i - 3, 4), HALO + 4096 * (i // 4)))
        self.halo = h_
        return p

    def x_reads(self, s):
        i, h = s >> 1, s & 1
        return [ds_read('ds_read_b128', X(s, p), vXr[h], (i & 3) * 4096 + p * 1024) for p in range(2)]

    def w1_reads(self, s, n):
        i, h = s >> 1, s & 1
        return [ds_read('ds_read_b64_tr_b16', V(WF + 4 * n + 2 * e_, 2), vW1r[n], (i & 3) * 12288 + (32 * h + 4 * e_) * 192)
                for e_ in range(2)]

    def wq_read(self, g, n):
        k, sg = g >> 2, g & 3
        return ds_read('ds_read_b128', V(WF + 4 * n, 4), vWr[n], sg * 16384 + ((10 + k) & 3) * 4096)

    def halo_read(self, g):
        s = g % 20
        return ds_read('ds_read_b128', V(WF + 16, 4), vHr[s & 1], HALO + (s >> 1) * 2048)

    def late_addresses(self):
        t = [V(T + n) for n in range(24)]
        vQ, vU, vR, vCC = t[0], t[1], t[2], t[3]
        p = [valu('v_lshrrev_b32', vQ, 4, vL), valu('v_and_b32', vU, 15, vL),
             valu('v_bfe_u32', vR, vL, 2, 2), valu('v_and_b32', vCC, 3, vL),
             salu('s_mul_i32', sT[1], sW, 16 * KVR), salu('s_add_u32', sT[1], sT[1], KV),
             valu('v_mul_u32_u24', t[4], KVR, vU),
             valu('v_add_u32', t[4], sT[1], t[4]),
             valu('v_add_u32', vK4, 72, t[4]),
             valu('v_lshl_add_u32', t[5], vQ, 3, t[4]),
             valu('v_add_u32', vKr, 40, t[5]),
             valu('v_add_u32', vQr, 8 * KVR, t[5]),
             valu('v_add_u32', t[6], 8 * KVR + 32, t[4]),
             valu('v_mov_b32', t[7], ZERO),
             valu('v_cmp_eq_u32', 'vcc', 0, vQ),
             valu('v_cndmask_b32', vQ4, t[7], t[6], 'vcc'),
             valu('v_lshl_add_u32', t[6], vQ, 2, vR),
             valu('v_mul_u32_u24', t[6], KVR, t[6]),
             valu('v_add_u32', t[6], sT[1], t[6]),
             valu('v_add_u32', vV4, 112, t[6]),
             valu('v_lshl_add_u32', t[6], vCC, 3, t[6]),
             valu('v_add_u32', vVr, 80, t[6]),
             valu('v_mul_u32_u24', t[6], 40, vQ),
             valu('v_add_u32', t[6], 32, t[6]),
             valu('v_min_u32', t[6], 120, t[6]),
             valu('v_lshlrev_b32', t[7], 3, vQ),
             valu('v_and_b32', t[8], 1, vU),
             valu('v_mul_u32_u24', t[8], KVC, t[8]),
             valu('v_lshrrev_b32', t[9], 1, vU),
             valu('v_mul_u32_u24', t[9], KVR, t[9]),
             valu('v_add_u32', t[8], t[8], t[9]),
             valu('v_add_u32', t[8], KV, t[8])]
        for i in range(4):
            p += [salu('s_add_u32', sT[2], sW, i), salu('s_and_b32', sT[2], sT[2], 3),
                  salu('s_mul_i32', sT[3], sT[2], 40),
                  salu('s_cmp_eq_u32', sT[2], 3), salu('s_cselect_b64', 'vcc', -1, 0),
                  valu('v_add_u32', t[9], sT[3], t[7]),
                  valu('v_cndmask_b32', t[9], t[9], t[6], 'vcc')]
            if i == 0:
                p.append(valu('v_add_u32', vHKw, t[8], t[9]))
            p += [valu('v_add_u32', t[9], t[4], t[9]), valu('v_add_u32', vKVw[i], 8 * KVR, t[9])]
        p += [salu('s_lshl_b32', sT[2], sW, 6), salu('s_add_u32', sT[2], sT[2], CSQ),
              valu('v_lshl_add_u32', vCQw, vQ, 4, sT[2]),
              valu('v_lshlrev_b32', vCQr, 4, vQ)]
        return p

    def flag_addr(self, base):
        t0, t1 = V(T + 22), V(T + 23)
        return [salu('s_lshl_b32', sT[1], sB, 1), salu('s_lshr_b32', sT[2], sW, 1), salu('s_add_u32', sT[1], sT[1], sT[2]),
                salu('s_lshl_b32', sT[1], sT[1], 7), salu('s_and_b32', sT[2], sW, 1), salu('s_lshl1_add_u32', sT[2], sJ, sT[2]),
                salu('s_lshl2_add_u32', sT[1], sT[2], sT[1]), salu('s_add_u32', sT[1], sT[1], base),
                valu('v_mov_b32', t0, sT[1]), valu('v_mov_b32', t1, OOB),
                valu('v_cmp_eq_u32', 'vcc', 0, vL), valu('v_cndmask_b32', vFA, t1, t0, 'vcc'),
                salu('s_lshl_b32', sT[1], sTB, 7), salu('s_lshl_b32', sT[2], sW, 5), salu('s_add_u32', sT[1], sT[1], sT[2]),
                salu('s_add_u32', sT[1], sT[1], base),
                valu('v_and_b32', t0, 7, vL), valu('v_lshl_add_u32', vPA, t0, 2, sT[1])]

    def lanes0(self, ins):
        return Group([salu('s_mov_b64', 'exec', sROW0), ins, salu('s_mov_b64', 'exec', -1)])

    def ff_pre(self):
        t = [V(T + n) for n in range(24)]
        p = [valu('v_lshrrev_b32', t[0], 4, vL), salu('s_lshl_b32', sT[1], sROT, 7), salu('s_add_u32', sT[1], sT[1], CSF),
             valu('v_lshl_add_u32', t[0], t[0], 4, sT[1]),
             self.lanes0(ds_write('ds_write_b128', t[0], V(CS, 4), 0)),
             self.lanes0(ds_write('ds_write_b128', t[0], V(CS + 4, 4), 64)),
             valu('v_and_b32', t[1], 15, vL), valu('v_bfe_u32', t[2], vL, 2, 2),
             valu('v_lshl_add_u32', t[1], t[2], 4, t[1]), valu('v_lshlrev_b32', t[1], 2, t[1])]
        for q in range(2):
            p += [valu('v_cndmask_b32', t[3 + q], V(SS + 4 * q), V(SS + 4 * q + 1), sU1),
                  valu('v_cndmask_b32', t[3 + q], t[3 + q], V(SS + 4 * q + 2), sU2),
                  valu('v_cndmask_b32', t[3 + q], t[3 + q], V(SS + 4 * q + 3), sU3),
                  ds_bperm(t[3 + q], t[1], t[3 + q])]
        p.append(Skip(3))
        a = self.rstats(V(RS), t[3], vMEAN[0], vRSTD[0], t[5])
        b = self.rstats(V(RS + 4), t[4], vMEAN[1], vRSTD[1], t[6])
        for i, j in zip(a, b):
            p += [i] if isinstance(i, Skip) else [i, j]
        return p

    def ff_post(self):
        t = [V(T + n) for n in range(24)]
        p = [valu('v_lshrrev_b32', V(RS), 4, vL), valu('v_lshlrev_b32', V(RS), 4, V(RS))]
        for m in range(3):
            p += [salu('s_add_u32', sT[1], sROT, m), salu('s_cmp_ge_u32', sT[1], 3), salu('s_cselect_b32', sT[2], 3, 0),
                  salu('s_sub_u32', sT[1], sT[1], sT[2]), salu('s_lshl_b32', sT[1], sT[1], 7), salu('s_add_u32', sT[1], sT[1], CSF),
                  valu('v_add_u32', V(RS + 1), sT[1], V(RS)),
                  ds_read('ds_read_b128', V(T + 8 * m, 4), V(RS + 1), 0),
                  ds_read('ds_read_b128', V(T + 8 * m + 4, 4), V(RS + 1), 64)]
        p.append(Skip(2))
        self.h_stores = []
        for m in range(3):
            for q in range(2):
                dst = SS + 4 * ((2 * m + q) & 1)
                for n in (2 * m, 2 * m + 1):
                    a = FACC + 8 * n + 4 * q
                    for r in range(4):
                        p.append(valu('v_fma_f32', V(a + r), '-' + vMEAN[q], V(T + 4 * n + r), V(a + r)))
                    for r in range(4):
                        p.append(valu('v_mul_f32', V(a + r), V(a + r), vRSTD[q]))
                    for hh in range(2):
                        p.append(valu('v_cvt_pk_bf16_f32', V(dst + 2 * (n & 1) + hh), V(a + 2 * hh), V(a + 2 * hh + 1)))
                for r in range(4):
                    p.append(valu('v_pk_max_i16', V(dst + r), V(dst + r), 0))
                s_ = bstore(V(dst, 4), vL16, SWS, sHS[m], q * 1024, 'sc1')
                self.h_stores.append(s_)
                p.append(s_)
        return p

    def qkv_pre(self, hd, packed):
        a = ACC[hd]
        t = [V(T + n) for n in range(24)]
        p = [self.lanes0(ds_write('ds_write_b128', vCQw, V(a + 32, 4), hd * 256)),
             valu('v_cvt_pk_bf16_f32', t[16], V(a + 32), V(a + 33)),
             valu('v_cvt_pk_bf16_f32', t[17], V(a + 34), V(a + 35)),
             ds_write('ds_write_b64', vHKw, V(T + 16, 2), hd * KVH)]
        self.qkv_pub = [i for g in p for i in (g if isinstance(g, Group) else [g]) if i.kind == 'dsw']
        q = []
        for cls in range(2):
            q.append(valu('v_mul_f32', t[18 + cls], vMEAN[cls], vRSTD[cls]))
        for n in range(4):
            for cls in range(2):
                b = a + 8 * n + 4 * cls
                if packed:
                    for r in (0, 2):
                        q.append(I(f"v_pk_mul_f32 {V(b + r, 2)}, {V(b + r, 2)}, {V(30, 2)} op_sel:[0,{cls}] op_sel_hi:[1,{cls}]",
                                   'valu', regs(V(b + r, 2)) + regs(V(30, 2)), regs(V(b + r, 2))))
                else:
                    for r in range(4):
                        q.append(valu('v_mul_f32', V(b + r), V(b + r), vRSTD[cls]))
        return p, q

    def qkv_post(self, hd, packed):
        a = ACC[hd]
        t = [V(T + n) for n in range(24)]
        p = []
        for n in range(4):
            p += [salu('s_add_u32', sT[1], sW, n), salu('s_and_b32', sT[1], sT[1], 3), salu('s_lshl_b32', sT[1], sT[1], 6),
                  salu('s_add_u32', sT[1], sT[1], CSQ + 256 * hd), valu('v_add_u32', t[20], sT[1], vCQr),
                  ds_read('ds_read_b128', V(T + 4 * n, 4), t[20], 0)]
        p.append(Skip(2))
        self.kv_writes = []
        for n in range(4):
            for cls in range(2):
                b = a + 8 * n + 4 * cls
                if packed:
                    for r in (0, 2):
                        p.append(I(f"v_pk_fma_f32 {V(b + r, 2)}, {V(T + 4 * n + r, 2)}, {V(T + 18, 2)}, {V(b + r, 2)} "
                                   f"op_sel:[0,{cls},0] op_sel_hi:[1,{cls},1] neg_lo:[1,0,0] neg_hi:[1,0,0]", 'valu',
                                   regs(V(b + r, 2)) + regs(V(T + 4 * n + r, 2)) + regs(V(T + 18, 2)), regs(V(b + r, 2))))
                else:
                    for r in range(4):
                        p.append(valu('v_fma_f32', V(b + r), '-' + t[18 + cls], V(T + 4 * n + r), V(b + r)))
                p += [valu('v_cvt_pk_bf16_f32', V(b), V(b), V(b + 1)), valu('v_cvt_pk_bf16_f32', V(b + 1), V(b + 2), V(b + 3))]
                w_ = ds_write('ds_write_b64', vKVw[n], V(b, 2), hd * KVH + cls * KVC)
                self.kv_writes.append(w_)
                p.append(w_)
        return p

    def attention(self, hd):
        a = ACC[hd]
        streams = []
        for cls in range(2):
            off = hd * KVH + cls * KVC
            b = a + 16 * cls
            u = T + 12 * cls
            Kf = [V(b, 4), V(b + 4, 4)]
            Qf, Sf = V(b + 8, 4), [V(u, 4), V(u + 4, 4)]
            Vf = Kf
            Pf = Qf
            O0, O1, L = V(u, 4), V(u + 4, 4), V(b + 12, 4)
            m, m2 = V(u + 8), V(u + 9)
            p = [ds_read('ds_read_b64', V(b + 8, 2), vQr, off)]
            p.append(I(f"ds_read_b64 {V(b + 10, 2)}, {V(u + 10)}", 'dsr', [V(u + 10)], regs(V(b + 10, 2))))
            p.insert(0, valu('v_cndmask_b32', V(u + 10), vQ4, V(u + 11), sLO16))
            for k in range(2):
                p += [ds_read('ds_read_b64', V(b + 4 * k, 2), vKr, off + k * 8 * KVR),
                      ds_read('ds_read_b64', V(b + 4 * k + 2, 2), vK4, off + k * 8 * KVR)]
            p.append(Skip(2))
            p += [mfma(Sf[k], Kf[k], Qf, V(MASK + 4 * k, 4)) for k in range(2)]
            for k in range(2):
                p += [ds_read('ds_read_b64_tr_b16', V(b + 2 * k, 2), vVr, off + k * 8 * KVR),
                      ds_read('ds_read_b64_tr_b16', V(b + 4 + 2 * k, 2), vV4, off + k * 8 * KVR)]
            p.append(Skip(1))
            p += [valu('v_max3_f32', m, V(u), V(u + 1), V(u + 2)), valu('v_max3_f32', m2, V(u + 3), V(u + 4), V(u + 5)),
                  valu('v_max3_f32', m, m, V(u + 6), V(u + 7)), valu('v_max_f32', m, m, m2)]
            for sw in ('v_permlane16_swap_b32', 'v_permlane32_swap_b32'):
                p += [valu('v_mov_b32', m2, m), valu(sw, m, m2), valu('v_max_f32', m, m, m2)]
            p.append(valu('v_mul_f32', m, sSCL, m))
            p += [valu('v_fma_f32', V(u + r), V(u + r), sSCL, '-' + m) for r in range(8)]
            p += [valu('v_exp_f32', V(u + r), V(u + r)) for r in range(8)]
            p += [valu('v_cvt_pk_bf16_f32', V(b + 8 + r), V(u + 2 * r), V(u + 2 * r + 1)) for r in range(4)]
            p += [mfma(L, aONES, Pf, 0), mfma(O0, Vf[0], Pf, 0), mfma(O1, Vf[1], Pf, 0), Skip(2)]
            p.append(valu('v_rcp_f32', m, V(b + 12)))
            p += [valu('v_mul_f32', V(u + r), V(u + r), m) for r in range(8)]
            for k in range(2):
                for hh in range(2):
                    p.append(valu('v_cvt_pk_bf16_f32', V(self.oreg(cls, k) + 2 * hd + hh), V(u + 4 * k + 2 * hh), V(u + 4 * k + 2 * hh + 1)))
            streams.append(p)
        pre = []
        for cls in range(2):
            pre.append(valu('v_add_u32', V(T + 12 * cls + 11), hd * KVH + cls * KVC, vQ4))
        out = pre
        for i, j in zip(*streams):
            out += [i] if isinstance(i, Skip) else [i, j]
        return out

    def oreg(self, cls, k):
        return 112 + 8 * cls + 4 * k

    def phase1(self):
        o = self.opt
        main, pos = [], {}
        for s in range(20):
            for n in range(6):
                for q in range(2):
                    d = V(FACC + 8 * n + 4 * q, 4)
                    main.append(mfma(d, V(WF + 4 * n, 4), X(s, q), d if s else 0))
                if n < 2:
                    d = V(CS + 4 * n, 4)
                    main.append(mfma(d, V(WF + 4 * n, 4), aONES, d if s else 0))
                pos['a', s, n] = len(main) - 1
                if n in (1, 3):
                    q = n >> 1
                    d = V(RS + 4 * q, 4)
                    main.append(mfma(d, aONES, X(s, q), d if s else 0))
                    d = V(SS + 4 * q, 4)
                    main.append(mfma(d, X(s, q), X(s, q), d if s else 0))
                    pos['st', s, q] = len(main) - 1
        for g in range(40):
            hd, s = divmod(g, 20)
            a = ACC[hd]
            for n in range(4):
                for q in range(2):
                    d = V(a + 8 * n + 4 * q, 4)
                    main.append(mfma(d, V(WF + 4 * n, 4), X(s, q), d if s else 0))
                if n == 0:
                    d = V(a + 32, 4)
                    main.append(mfma(d, V(WF, 4), V(WF + 16, 4), d if s else 0))
                pos['b', g, n] = len(main) - 1
        w = Weave(main)
        first_b = pos['a', 19, 5] + 1
        stepb = lambda g: first_b + 9 * g
        bar = {}
        dma = {R: self.stage_dma(R) for R in range(4, 20)}
        for i in range(10):
            bar[i + 1] = pos['st', 2 * i + 1, 0]
        for k in range(9):
            bar[11 + k] = pos['b', 4 * k + 3, 1]
        rawb = [i for g_ in self.rawB for i in g_ if i.kind == 'dma']
        extra = {o['packA']: self.p0a, o['pub1']: self.packA[1], o['packB']: rawb, o['pub2']: self.packB[1]}
        assert len(extra) == 4
        for R, gb in bar.items():
            w.at(gb, self.ring_barrier(R, extra.get(R, ())))
            w.at(gb, *self.stamp(f'B{R}'))
            if R in (o['pub1'], o['pub2']):
                w.at(gb, bstore(vTAG, vFA, SWS, 0, 0, 'sc1'))
            if R == o['poll1']:
                w.at(gb, bload(vPOLL, vPA, SWS, 0, 0, 'sc1'))
            if R == o['chk1']:
                w.at(gb, self.check('f1'))
        for s in range(20):
            start = bar[(s >> 1) + 1] if s & 1 else 0
            nxt = 18 * (s + 1)
            if s < 19:
                lim = len(main) if s & 1 else bar[(s >> 1) + 1]
                w.stream(self.x_reads(s + 1), max(start, pos['a', s, 0] - 2), nxt - 1)
                for n in range(6):
                    w.stream(self.w1_reads(s + 1, n), max(start, pos['a', s, n]), min(lim, pos['a', s + 1, n] - 4))
            else:
                for n in range(4):
                    w.stream([self.wq_read(0, n)], max(start, pos['a', s, n]), nxt - 1)
                w.stream([self.halo_read(0)], pos['a', s, 4], nxt - 1)
        for g in range(39):
            start = bar[11 + (g >> 2)] if g & 3 == 3 else 0
            lim = bar.get(11 + (g >> 2), len(main)) if g & 3 == 2 else len(main)
            w.stream([self.wq_read(g + 1, 0), self.halo_read(g + 1)], max(start, pos['b', g, 0]), stepb(g + 1) - 1)
            for n in range(1, 4):
                w.stream([self.wq_read(g + 1, n)], max(start, pos['b', g, n]), min(lim, pos['b', g + 1, n] - 3))
        for R, gb in bar.items():
            todo = [R + 3] if R + 3 < 10 or o['chk1'] < R < 17 else []
            if R == o['chk1']:
                todo = list(range(10, R + 4))
            seq = []
            for r_ in todo:
                pre = self.stage_pre[r_]
                seq += [(x_, pre.get(k, [])) for k, x_ in enumerate(dma[r_])] + [(None, pre[len(dma[r_])])]
            if R == o['rawB']:
                seq += [(Group([x_[-1]]), x_[:-1]) for x_ in self.rawB]
            for name, pk in (('packA', self.packA), ('packB', self.packB)):
                if R == o[name]:
                    w.stream(pk[0], gb + 1, gb + 14)
                    k = min(len(seq), 4)
                    seq = seq[:k] + [(x_, []) for x_ in pk[1]] + seq[k:]
            if seq:
                self.place_mem(w, seq, gb + (1 if len(seq) > 3 else 16), bar[R + 1])
        g = w.stream(self.tag, bar[o['packA']] + 1, bar[o['pub1']])
        g = w.stream(self.halo, max(g + 1, bar[o['halo']]), bar[9])
        w.stream(self.f2_pub, max(g + 1, bar[o['pub1']] + 1), bar[o['pub2']])
        g = w.stream(self.ff_pre() + self.f2_poll, first_b + 4, bar[11])
        assert stepb(o['poll2']) > g
        w.at(stepb(o['poll2']), bload(vPOLL, vPA, SWS, 0, 0, 'sc1'))
        w.at(stepb(o['chk2']), self.check('f2'))
        wl = [x_ for i in range(7) for x_ in self.w_loads(i)]
        w.spread(wl, stepb(o['chk2']) + 1, stepb(o['w_end']))
        g = w.stream(self.ff_post(), bar[11] + 1, stepb(18))
        g = w.stream(self.late_addresses() + self.flag_addr(F3), max(g + 1, stepb(o['chk2']) + 1), stepb(20) + 3)
        w.at(stepb(o['f3_step']), Group([wait(vm=self.h_stores), bstore(vTAG, vFA, SWS, 0, 0, 'sc1')]))
        w.at(stepb(o['poll3']), bload(vPOLL, vPA, SWS, 0, 0, 'sc1'))
        w.at(stepb(o['chk3']), self.check('f3'))
        assert o['chk3'] >= 20 + 2 * o['nA_p1b'] - (40 - o['chk3']) * (o['nA_p1b'] - 1) // max(o['nA_p1b'], 1)
        al = [x_ for i in range(o['nA_p1b']) for x_ in self.a_loads(i)]
        w.spread(al, stepb(o['chk3']) + 1, stepb(40))
        pre, mul = self.qkv_pre(0, False)
        g = w.stream(pre, stepb(20) + 5)
        g = w.stream(mul[:12], g + 1)
        w.at(g + 1, Group([wait(lgkm=self.qkv_pub), barrier()]))
        g = w.stream(mul[12:] + self.qkv_post(0, False), g + 1)
        g = w.stream([Skip(3)] + [Group([wait(lgkm=self.kv_writes), barrier()])], g)
        w.stream(self.attention(0), g, len(main))
        self.ovf = (w.overflow(0, first_b), w.overflow(first_b, stepb(20)), w.overflow(stepb(20)))
        pro = self.x_reads(0) + [r for n in range(6) for r in self.w1_reads(0, n)]
        return pro + w.flat()

    @staticmethod
    def sprinkle(seq, extra, every, start=0):
        out, n, extra = [], -start, list(extra)
        seq = tie(seq)
        annotate(seq)
        annotate(extra)
        for i in seq:
            out.append(i)
            if isinstance(i, Skip):
                continue
            n += 1
            if extra and n >= every:
                out.append(extra.pop(0))
                n = 0
        return out + extra

    def tail1(self):
        o = self.opt
        p = self.stamp('gemm1')
        pre, mul = self.qkv_pre(1, True)
        seq = pre + mul + [Group([wait(lgkm=self.qkv_pub), barrier()])] + self.qkv_post(1, True)
        seq += [Group([wait(lgkm=self.kv_writes), barrier()])] + self.attention(1)
        al = [x_ for i in range(o['nA_p1b'], 10) for x_ in self.a_loads(i)]
        p += self.sprinkle(seq, al, 8)
        t0 = V(T)
        self.o_stores = [bstore(V(self.oreg(c, 0), 4), vL16, SWS, sOA, c * 1024, 'sc1') for c in range(2)]
        p += self.o_stores
        p += [valu('v_mov_b32', t0, OOB), valu('v_cndmask_b32', t0, t0, vL16, sLO16)]
        ob = [bstore(V(self.oreg(c, 1), 4), t0, SWS, sOB, c * 1024, 'sc1') for c in range(2)]
        p += ob
        self.o_stores += ob
        p += self.flag_addr(F4)
        return p + self.stamp('attn')

    def phase2(self):
        o = self.opt
        t = [V(136 + n) for n in range(60)]
        main = []
        for i in range(17):
            for n in range(5):
                for k in range(4):
                    d = V(P2ACC + 16 * n + 4 * k, 4)
                    main.append(mfma(d, wslot(i, n), aslot(i, k), d if i else 0))
        w = Weave(main)
        pre = [salu('s_mul_i32', sT[1], sTB, 64 * 1280), salu('s_mul_i32', sT[2], sC, 160), salu('s_add_u32', sT[3], sT[1], sT[2]),
               valu('v_mov_b32', t[9], OOB)]
        vO, vRd = t[0:3], t[3:6]
        for r in range(3):
            pre += [valu('v_add_u32', t[6], 256 * r, 'v0')] + self.divc(t[7], t[6], 10, 767)
            pre += [valu('v_mul_u32_u24', t[8], 10, t[7]), valu('v_sub_u32', t[8], t[6], t[8]),
                    valu('v_mul_u32_u24', vO[r], 1280, t[7]), valu('v_lshl_add_u32', vO[r], t[8], 4, vO[r])]
            if r == 2:
                pre += [valu('v_cmp_gt_u32', 'vcc', 640, t[6]), valu('v_cndmask_b32', vO[r], t[9], vO[r], 'vcc'),
                        valu('v_and_b32', t[7], 63, t[7])]
            pre += [bload(A(aRES + 4 * r, 4), vO[r], SX, sT[3]),
                    valu('v_and_b32', t[6], 1, t[7]), valu('v_lshlrev_b32', t[6], 4, t[6]),
                    valu('v_and_b32', vRd[r], 32, t[7]), valu('v_add_u32', t[6], t[6], vRd[r]),
                    valu('v_bfe_u32', vRd[r], t[7], 1, 4), valu('v_add_u32', t[6], t[6], vRd[r]),
                    valu('v_mul_u32_u24', t[6], REDR, t[6]), valu('v_lshl_add_u32', vRd[r], t[8], 5, t[6])]
        vRw = t[10]
        pre += [valu('v_and_b32', t[6], 15, vL), valu('v_mul_u32_u24', t[6], REDR, t[6]), valu('v_lshrrev_b32', t[7], 4, vL),
                valu('v_lshl_add_u32', t[6], t[7], 4, t[6]), salu('s_mul_i32', sT[1], sW, REDW),
                valu('v_add_u32', vRw, sT[1], t[6])]
        nexta = 10
        for i in range(17):
            g0 = 20 * i
            if i & 1:
                w.at(g0, *self.stamp(f'S{i}'))
            if i == o['f4_step']:
                w.at(g0, Group([wait(vm=self.o_stores), bstore(vTAG, vFA, SWS, 0, 0, 'sc1')]))
            if i == o['poll4']:
                w.at(g0 + 1, bload(vPOLL, vPA, SWS, 0, 0, 'sc1'))
            if i == o['chk4']:
                w.at(g0 + 19, self.check('f4'))
            if i + 7 < 17:
                for n, x_ in enumerate(self.w_loads(i + 7)):
                    w.at(g0 + 4 * n + 3, x_)
            lim = min(i + 10, 16 if i >= o['chk4'] else 11)
            k = 0
            while nexta <= lim and k < 2 and i < 16:
                for tt, x_ in enumerate(self.a_loads(nexta)):
                    w.at(g0 + 20 + 5 * k + tt, x_)
                nexta += 1
                k += 1
        assert nexta == 17
        w.stream(pre, 45, 20 * o['chk4'] + 15)
        p = w.flat() + self.stamp('gemm2')
        ws_ = []
        for n in range(5):
            for k in range(4):
                ws_.append(ds_write('ds_write_b128', vRw, V(P2ACC + 16 * n + 4 * k, 4), RED + k * 16 * REDR + 64 * n))
        p += ws_ + [Group([wait(all_lgkm=True), barrier()])] + self.stamp('redbar')
        R0 = 40
        for r in range(3):
            for wv in range(4):
                for hh in range(2):
                    p.append(ds_read('ds_read_b128', V(R0 + 32 * r + 8 * wv + 4 * hh, 4), vRd[r], RED + wv * REDW + 16 * hh))
        pk = lambda op, d, a_, b_: I(f"{op} {d}, {a_}, {b_}", 'valu', regs(a_) + regs(b_), regs(d))
        for r in range(3):
            b = R0 + 32 * r
            for k in range(4):
                p.append(valu('v_accvgpr_read_b32', t[12 + k], A(aRES + 4 * r + k)))
            for k in range(4):
                p += [valu('v_lshlrev_b32', t[16 + 2 * k], 16, t[12 + k]), valu('v_and_b32', t[17 + 2 * k], 0xffff0000, t[12 + k])]
            for k in range(4):
                p.append(pk('v_pk_add_f32', V(b + 2 * k, 2), V(b + 2 * k, 2), V(b + 8 + 2 * k, 2)))
            for k in range(4):
                p.append(pk('v_pk_add_f32', V(b + 16 + 2 * k, 2), V(b + 16 + 2 * k, 2), V(b + 24 + 2 * k, 2)))
            for k in range(4):
                p.append(pk('v_pk_add_f32', V(b + 2 * k, 2), V(b + 2 * k, 2), V(152 + 2 * k, 2)))
            for k in range(4):
                p.append(pk('v_pk_add_f32', V(b + 2 * k, 2), V(b + 2 * k, 2), V(b + 16 + 2 * k, 2)))
            for k in range(4):
                p.append(valu('v_cvt_pk_bf16_f32', V(b + 8 + k), V(b + 2 * k), V(b + 2 * k + 1)))
            p.append(bstore(V(b + 8, 4), vO[r], SOUT, sT[3]))
        p += [valu('v_mov_b32', t[6], OOB), valu('v_or_b32', t[7], 's2', 'v0'), valu('v_cmp_ne_u32', 'vcc', 0, t[7]),
              valu('v_cndmask_b32', t[6], 0, t[6], 'vcc'), bstore(vTAG, t[6], SWS, 0, 0, 'sc1')]
        return p

    def stamp_out(self):
        if not self.stamps:
            return []
        p = self.stamp('end')
        p += [raw("s_memrealtime s[82:83]", wr=['s82', 's83']), raw("s_waitcnt lgkmcnt(0)"),
              raw(f"v_writelane_b32 {vJUNK}, s82, 63", rd=['s82'], wr=[vJUNK], kind='valu'),
              raw(f"v_writelane_b32 {vJUNK}, s84, 62", rd=['s84'], wr=[vJUNK], kind='valu'),
              salu('s_lshl2_add_u32', sT[1], 's2', sW), salu('s_lshl_b32', sT[1], sT[1], 8), salu('s_add_u32', sT[1], sT[1], STAMP),
              valu('v_lshlrev_b32', V(140), 2, vL), bstore(vJUNK, V(140), SWS, sT[1])]
        return p

    def build(self):
        self.stage_ops = {}
        self.stage_pre = {}
        prog = self.startup() + self.phase1() + self.tail1() + self.phase2() + self.stamp_out()
        prog = finalize(prog)
        self.prog = prog
        body = "\n".join(("" if i.kind == 'label' else "    ") + i.text for i in prog)
        return f"""; Fused LayerNorm + sliding-window attention + ReLU FFN + residual, one workgroup per CU.
; @launch grid=(256,1,1) block=(256,1,1) lds={LDS_SIZE}
.amdgcn_target "amdgcn-amd-amdhsa--gfx950"
.text
.globl {NAME}
.p2align 8
.type {NAME},@function
{NAME}:
{body}
L_end:
    s_endpgm
{"".join(self.slow)}L_last:
.section .rodata,"a"
.p2align 6
.amdhsa_kernel {NAME}
  .amdhsa_next_free_vgpr 512
  .amdhsa_next_free_sgpr 102
  .amdhsa_accum_offset 256
  .amdhsa_group_segment_fixed_size 0
  .amdhsa_kernarg_size 72
  .amdhsa_user_sgpr_count 2
  .amdhsa_user_sgpr_kernarg_segment_ptr 1
  .amdhsa_system_sgpr_workgroup_id_x 1
.end_amdhsa_kernel
"""


if __name__ == "__main__":
    out = sys.argv[1]
    opts = dict(kv.split('=') for kv in sys.argv[2:])
    opts = {k: int(v) for k, v in opts.items()}
    g = Gen(stamps=bool(opts.pop('stamps', 0)), **opts)
    open(out, "w").write(g.build())
    print(stats(g.prog), g.ovf)
```

```python
import re


def regs(spec):
    if spec is None:
        return []
    spec = str(spec).strip()
    if spec.startswith('-'):
        spec = spec[1:]
    m = re.fullmatch(r'([vas])\[(\d+):(\d+)\]', spec)
    if m:
        return [f"{m.group(1)}{i}" for i in range(int(m.group(2)), int(m.group(3)) + 1)]
    if re.fullmatch(r'[vas]\d+', spec):
        return [spec]
    if spec in ('vcc', 'exec', 'm0'):
        return [spec]
    return []


def tup(kind, base, n):
    return f"{kind}{base}" if n == 1 else f"{kind}[{base}:{base + n - 1}]"


def V(base, n=1):
    return tup('v', base, n)


def A(base, n=1):
    return tup('a', base, n)


def S(base, n=1):
    return tup('s', base, n)


def lit(s):
    if isinstance(s, int) and s > 64:
        return hex(s)
    return str(s)


TRANS = ('v_exp_f32', 'v_rcp_f32', 'v_rsq_f32', 'v_sqrt_f32', 'v_log_f32')


class I:
    __slots__ = ('text', 'kind', 'rd', 'wr', 'cr', 'meta')

    def __init__(self, text, kind, rd=(), wr=(), cr=(), **meta):
        self.text, self.kind = text, kind
        self.rd, self.wr, self.cr = list(rd), list(wr), list(cr)
        self.meta = meta

    def __repr__(self):
        return self.text


def valu(op, dst, *srcs, mods=''):
    rd = [r for s in srcs for r in regs(s)]
    wr = regs(dst)
    base = op.replace('_e64', '').replace('_e32', '')
    kind = 'valu'
    if base in TRANS:
        kind = 'trans'
    if base.startswith('v_dot2'):
        kind = 'dot'
    if base in ('v_fmac_f32', 'v_dot2c_f32_bf16'):
        rd += wr
    if base.startswith('v_permlane'):
        kind = 'perm'
        rd += wr
        wr = wr + regs(srcs[0])
    if base.endswith('_dpp'):
        kind = 'dpp'
    if base in ('v_readfirstlane_b32', 'v_readlane_b32'):
        kind = 'rdlane'
    txt = f"{op} {dst}, " + ", ".join(lit(s) for s in srcs) + (" " + mods if mods else "")
    return I(txt, kind, rd, wr)


def salu(op, dst, *srcs):
    rd = [r for s in srcs for r in regs(s)]
    if op.startswith('s_cmp') or op.startswith('s_bitcmp'):
        return I(f"{op} {dst}, " + ", ".join(str(s) for s in srcs), 'salu', rd + regs(dst), ['scc'])
    wr = regs(dst)
    if op.startswith('s_cselect') or op.startswith('s_addc'):
        rd.append('scc')
    if not (op.startswith('s_mov') or op.startswith('s_mul') or op.startswith('s_cselect') or op.startswith('s_getpc')):
        wr.append('scc')
    return I(f"{op} {dst}" + "".join(f", {lit(s)}" for s in srcs), 'salu', rd, wr)


def mfma(d, a, b, c):
    return I(f"v_mfma_f32_16x16x32_bf16 {d}, {a}, {b}, {c}", 'mfma', regs(a) + regs(b), regs(d), regs(c))


def _off(o):
    return f" offset:{o}" if o else ""


def ds_read(op, dst, addr, off=0):
    assert 0 <= off < 65536, off
    return I(f"{op} {dst}, {addr}{_off(off)}", 'dsr', regs(addr), regs(dst))


def ds_write(op, addr, data, off=0):
    assert 0 <= off < 65536, off
    return I(f"{op} {addr}, {data}{_off(off)}", 'dsw', regs(addr) + regs(data), [])


def ds_bperm(dst, addr, src):
    return I(f"ds_bpermute_b32 {dst}, {addr}, {src}", 'dsr', regs(addr) + regs(src), regs(dst))


def _w(n):
    return {1: 'dword', 2: 'dwordx2', 3: 'dwordx3', 4: 'dwordx4'}[n]


def bload(dst, voff, srd, soff=0, off=0, fl=''):
    assert 0 <= off < 4096, off
    n = len(regs(dst))
    return I(f"buffer_load_{_w(n)} {dst}, {voff}, {srd}, {soff} offen{_off(off)}{' ' + fl if fl else ''}", 'vld',
             regs(voff) + regs(srd) + regs(soff), regs(dst))


def bdma(voff, srd, soff=0, off=0, fl=''):
    assert 0 <= off < 4096, off
    return I(f"buffer_load_dwordx4 {voff}, {srd}, {soff} offen{_off(off)}{' ' + fl if fl else ''} lds", 'dma',
             regs(voff) + regs(srd) + regs(soff) + ['m0'], [])


def bstore(data, voff, srd, soff=0, off=0, fl=''):
    assert 0 <= off < 4096, off
    n = len(regs(data))
    return I(f"buffer_store_{_w(n)} {data}, {voff}, {srd}, {soff} offen{_off(off)}{' ' + fl if fl else ''}", 'vst',
             regs(voff) + regs(srd) + regs(soff) + regs(data), [], data=regs(data) if n >= 3 else [])


def wait(vm=(), lgkm=(), all_lgkm=False, all_vm=False):
    return I('', 'wait', vm=list(vm), lgkm=list(lgkm), all_lgkm=all_lgkm, all_vm=all_vm)


def barrier():
    return I('s_barrier', 'barrier')


def raw(text, rd=(), wr=(), kind='salu', **meta):
    return I(text, kind, rd, wr, **meta)


class Skip:
    def __init__(self, n):
        self.n = n


class Group(list):
    pass


VALUS = ('valu', 'trans', 'dot', 'perm', 'dpp', 'rdlane')
VEC = ('valu', 'trans', 'dot', 'perm', 'dpp', 'rdlane', 'dsr', 'dsw', 'vld', 'dma', 'vst')


MEM = ('dsr', 'dsw', 'vld', 'dma', 'vst')
FENCE = ('barrier', 'wait', 'branch', 'label')


def items(i):
    return i if isinstance(i, Group) else [i]


def vcost(i):
    c = 0
    for x in items(i):
        if x.kind in ('trans', 'vld', 'dma', 'vst'):
            c += 2
        elif x.kind == 'dsw':
            c += 3 if 'b128' in x.text else 2
        elif x.kind in VEC:
            c += 1
    return c


def scost(i):
    return sum(1 for x in items(i) if x.kind in ('salu', 'barrier', 'branch'))


def gcost(v, s):
    return v + max(s - 1, 0)


def conflict(a, b):
    if a.kind in FENCE or b.kind in FENCE or a.meta.get('drains_lgkm') or b.meta.get('drains_lgkm'):
        return True
    if a.kind in ('dsw', 'vst', 'dma') and b.kind in MEM or b.kind in ('dsw', 'vst', 'dma') and a.kind in MEM:
        return True
    if 'exec' in a.wr or 'exec' in b.wr:
        return True
    aw, bw = set(a.wr), set(b.wr)
    if 'scc' in aw and 'scc' in bw and not (a.text.startswith('s_cmp') or b.text.startswith('s_cmp')) \
            and 'scc' not in a.rd and 'scc' not in b.rd:
        aw, bw = aw - {'scc'}, bw - {'scc'}
    return bool(aw & (set(b.rd) | set(b.cr) | bw) or bw & (set(a.rd) | set(a.cr)))


def order_gap(ins):
    units = [list(items(i)) for i in ins]
    out, first = [], True
    while units:
        ready = [k for k, u in enumerate(units)
                 if not any(conflict(x, y) for p in units[:k] for x in p for y in u)]

        def rank(k):
            u = units[k]
            kinds = {x.kind for x in u}
            if kinds <= {'salu'}:
                return 0 if first else 2
            if kinds & set(MEM):
                return 1
            return 3
        k = min(ready, key=lambda k: (rank(k), k))
        out += units.pop(k)
        first = False
    return out


def tie(seq):
    out, pend = [], None
    for i in seq:
        if pend is not None:
            if isinstance(i, Skip):
                continue
            pend.extend(i if isinstance(i, Group) else [i])
            if any('scc' in x.rd for x in (i if isinstance(i, Group) else [i])):
                out.append(pend)
                pend = None
        elif not isinstance(i, (Skip, Group)) and i.text.startswith('s_cmp'):
            pend = Group([i])
        else:
            out.append(i)
    assert pend is None
    return out


def annotate(seq):
    last = {}
    for i in flatten(seq):
        exp = i.meta.setdefault('exp', {})
        for r in i.rd + i.cr:
            if r in last:
                exp.setdefault(r, last[r])
        for r in i.wr:
            last[r] = i


def verify(prog):
    last = {}
    for i in prog:
        for r, p in i.meta.get('exp', {}).items():
            assert last.get(r) is p, f"{i.text}: {r} was meant to come from '{p.text}' but comes from '{last.get(r)}'"
        for r in i.wr:
            last[r] = i


class Weave:
    def __init__(self, main, cap=2):
        self.main = list(main)
        self.gaps = [[] for _ in self.main]
        self.v = [0] * len(self.main)
        self.s = [0] * len(self.main)
        self.cap = cap

    def at(self, g, *ins):
        annotate(ins)
        for i in ins:
            self.gaps[g].append(i)
            self.v[g] += vcost(i)
            self.s[g] += scost(i)

    def _try(self, seq, start, end, over):
        g, plan, v, s = start, [], list(self.v), list(self.s)
        valu_at = -1
        capf = lambda x: self.cap + int((x - start + 1) * over) - int((x - start) * over)
        for i in seq:
            if isinstance(i, Skip):
                g += i.n
                continue
            if not isinstance(i, Group) and i.kind == 'mfma':
                if g >= end:
                    return None
                plan.append((g, i))
                g += 1
                continue
            cv, cs = vcost(i), scost(i)
            mem = any(x.kind in MEM for x in items(i))
            while g < end and ((mem and g == valu_at) or
                               (gcost(v[g] + cv, s[g] + cs) > capf(g) and (v[g] or s[g] > 1 or cv == 0 and s[g]))):
                g += 1
            if g >= end:
                return None
            plan.append((g, i))
            v[g] += cv
            s[g] += cs
            if any(x.kind in VALUS for x in items(i)):
                valu_at = g
        return plan

    def stream(self, seq, start, end=None):
        end = len(self.main) if end is None else min(end, len(self.main))
        seq = tie(seq)
        annotate(seq)
        for k in range(0, 200):
            plan = self._try(seq, start, end, k / 8)
            if plan is not None:
                for g, i in plan:
                    self.at(g, i)
                return plan[-1][0] if plan else start
        raise RuntimeError("stream does not fit")

    def spread(self, seq, start, end):
        end = min(end, len(self.main))
        annotate(seq)
        n, g = len(seq), start - 1
        for k, i in enumerate(seq):
            lo = min(max(g + 1, start + (end - start) * k // n), end - 1)
            hi = min(max(lo + 1, start + (end - start) * (k + 1) // n), end)
            g = min(range(lo, hi), key=lambda x: (max(gcost(self.v[x] + vcost(i), self.s[x] + scost(i)) - self.cap, 0), x))
            self.at(g, i)
        return g

    def overflow(self, a=0, b=None):
        return sum(max(gcost(v, s) - self.cap, 0) for v, s in zip(self.v[a:b], self.s[a:b]))

    def flat(self):
        out = []
        for m, f in zip(self.main, self.gaps):
            out.append(m)
            seg = []
            for i in f:
                if not isinstance(i, Group) and i.kind == 'mfma':
                    out += order_gap(seg) + [i]
                    seg = []
                else:
                    seg.append(i)
            out += order_gap(seg)
        return out


def flatten(seq):
    out = []
    for i in seq:
        if isinstance(i, Skip):
            continue
        if isinstance(i, (list, tuple)):
            out.extend(flatten(i))
        else:
            out.append(i)
    return out


def insert_waits(prog, age=6):
    out, vm, lg = [], [], []
    nm, last_m = 0, None

    def need(queue, pred):
        idx = -1
        for k, (op, _, _) in enumerate(queue):
            if pred(op):
                idx = k
        return idx

    for ins in prog:
        if ins.kind == 'wait':
            ids_v = set(map(id, ins.meta['vm']))
            ids_l = set(map(id, ins.meta['lgkm']))
            iv = len(vm) - 1 if ins.meta['all_vm'] else need(vm, lambda o: id(o) in ids_v)
            il = len(lg) - 1 if ins.meta['all_lgkm'] else need(lg, lambda o: id(o) in ids_l)
        else:
            touched = set(ins.rd) | set(ins.wr) | set(ins.cr)
            rd = set(ins.rd)
            iv = need(vm, lambda o: (rd if ins.kind == 'vld' else touched) & set(o.wr))
            il = need(lg, lambda o: (rd if ins.kind == 'dsr' else touched) & set(o.wr))
        if il >= 0:
            while il + 1 < len(lg) and lg[il + 1][1] <= nm - age:
                il += 1
        if iv >= 0 or il >= 0:
            at = len(out)
            if ins.kind == 'mfma' and last_m is not None and at - last_m <= 6 \
                    and all(q[k][2] < last_m and q[k][1] <= nm - 3 for q, k in ((vm, iv), (lg, il)) if k >= 0) \
                    and not any(x.kind in FENCE or x.text.startswith('s_waitcnt') for x in out[last_m + 1:]):
                at = last_m + 1
            parts = []
            if iv >= 0:
                n = sum(1 for o in vm[iv + 1:] if o[2] < at)
                if n < 63:
                    parts.append(f"vmcnt({n})")
                vm = vm[iv + 1:]
            if il >= 0:
                n = sum(1 for o in lg[il + 1:] if o[2] < at)
                if n > 15:
                    il += n - 15
                    n = 15
                parts.append(f"lgkmcnt({n})")
                lg = lg[il + 1:]
            if parts:
                out.insert(at, I("s_waitcnt " + " ".join(parts), 'salu'))
                vm = [(o, m, p + (p >= at)) for o, m, p in vm]
                lg = [(o, m, p + (p >= at)) for o, m, p in lg]
        if ins.kind == 'wait':
            continue
        out.append(ins)
        if ins.kind == 'mfma':
            nm += 1
            last_m = len(out) - 1
        if ins.kind in ('vld', 'dma', 'vst'):
            vm.append((ins, nm, len(out) - 1))
        elif ins.kind in ('dsr', 'dsw'):
            lg.append((ins, nm, len(out) - 1))
        if ins.meta.get('drains_lgkm'):
            lg = []
    res = []
    for k, i in enumerate(out):
        res.append(i)
        if i.kind == 'mfma' and k + 3 < len(out) and out[k + 1].kind == 'dsr' and out[k + 2].kind == 'dsr' \
                and out[k + 3].kind == 'mfma':
            res.append(I("s_nop 0", 'salu', states=1))
    return res


def _is_s(r):
    return r[0] == 's' or r == 'vcc'


def required(p, c):
    n = 0
    pw, cr_, cw, cc = set(p.wr), set(c.rd), set(c.wr), set(c.cr)
    if p.kind in VALUS:
        vw = {r for r in pw if r[0] in 'va' and r != 'vcc'}
        sw = {r for r in pw if _is_s(r)}
        if c.kind == 'mfma' and vw & (cr_ | cc):
            n = max(n, 2)
        if c.kind in ('perm', 'dpp') and vw & cr_:
            n = max(n, 2)
        if c.kind == 'rdlane' and vw & cr_:
            n = max(n, 1)
        if p.kind == 'trans' and c.kind in VALUS and vw & cr_:
            n = max(n, 1)
        if p.kind == 'dot' and vw & (cr_ | cw | cc):
            same = c.kind == 'dot' and c.text.split()[0] == p.text.split()[0]
            srcs = c.text.split(',')
            if not (same and not (vw & set(regs(srcs[1]) + regs(srcs[2])))):
                n = max(n, 3)
        if c.kind in ('vld', 'dma', 'vst') and sw & cr_:
            n = max(n, 5)
        if c.kind in VALUS and sw & cr_:
            n = max(n, 4 if c.kind == 'rdlane' else 2)
        if c.kind in ('salu', 'branch') and sw & cr_:
            n = max(n, 1)
    if p.kind == 'mfma':
        if c.kind == 'mfma':
            if pw & cr_:
                n = max(n, 8)
            if pw & cc and p.wr != c.cr:
                n = max(n, 6)
            if pw & cw and p.wr != c.cr:
                n = max(n, 6)
        elif pw & (cr_ | cw):
            n = max(n, 8)
        if c.kind in VALUS and set(p.cr) & cw:
            n = max(n, 3)
    if p.kind == 'salu' and 'm0' in pw and c.kind == 'dma':
        n = max(n, 1)
    if p.kind == 'vst' and set(p.meta.get('data', ())) & cw:
        n = max(n, 2)
    return n


def insert_nops(prog):
    out = []
    for ins in prog:
        need, dist = 0, 0
        for p in reversed(out):
            if dist >= 8:
                break
            r = required(p, ins)
            need = max(need, r - dist)
            dist += p.meta.get('states', 1)
        if need > 0:
            out.append(I(f"s_nop {need - 1}", 'salu', states=need))
        out.append(ins)
    return out


def finalize(prog):
    prog = flatten(prog)
    verify(prog)
    prog = insert_nops(insert_waits(prog))
    return prog


def stats(prog):
    from collections import Counter
    c = Counter(i.kind for i in prog)
    c['nop_states'] = sum(i.meta.get('states', 0) for i in prog if i.text.startswith('s_nop'))
    c['waitcnt'] = sum(1 for i in prog if i.text.startswith('s_waitcnt'))
    return dict(c)


def estimate(prog):
    t, last_m, prev, marks = 0, -100, None, []
    for i in prog:
        k = i.kind
        if k == 'label':
            continue
        if k == 'mfma':
            t = max(t, last_m + 16)
            last_m = t
            t += 4
        elif k in VEC:
            t = max(t, last_m + 8)
            if k in MEM and prev is not None and prev.kind in VALUS:
                t += 8
            t += 4 * vcost(i)
        else:
            t += 4 * i.meta.get('states', 1)
        if k == 'barrier':
            marks.append(('bar', t))
        prev = i
    marks.append(('end', t))
    return marks
```

```python
import struct
import sys
from fw import *

NAME = "parallel_sum__sliding_local_dilated__dense_activation_relu__prompt_kernel"

F1, F2, F3, F4 = 0x1000, 0x2000, 0x3000, 0x5000
WQ = 0x10000
WQJ = 163840
W2P = 0x290000
W2C = 348160
ACT = 0x540000
ACTB = 278528
STAMP = 0xE00000
WS_SIZE = 0x1000000
OOB = 0x7ffffff0

HALO = 0
XR = 20480
W1R = 86016
P0A = 135168
P0B = 147456
CSF = 159744
CSQ = CSF + 512
ZERO = CSF + 1024
KV = W1R
KVR, KVC, KVH = 136, 9792, 19584
RED, REDR, REDW = 0, 336, 21504
LDS_SIZE = 163840

SX, SWQKV, SWO, SW1, SW2, SOUT, SWS = (S(n, 4) for n in (4, 8, 12, 16, 20, 24, 28))
sW, sB, sJ, sTB, sC, sTAG = (S(n) for n in range(32, 38))
sXb, sXl, sW1, sW1l, sWQ, sAP = (S(n) for n in range(38, 44))
sHS = [S(44), S(45), S(46)]
sOA, sOB, sAh, sAo, sAb, sWh, sWo, sWb = (S(n) for n in range(47, 55))
sT = [S(n) for n in range(55, 68)]
sROT, sCNT = S(68), S(69)
sROW0 = S(70, 2)
sU1, sU2, sU3 = S(72, 2), S(74, 2), S(76, 2)
sSCL = S(78)
sCMP = S(81)
sLO16 = S(0, 2)
sLA, sLW = S(79), S(80)
sKP, sXs, sW1b, sG, sWQb, sR, sR2 = (S(n) for n in range(85, 92))
STAMP0 = 82

vL, vL16, vL16b = V(1), V(2), V(3)
vXa = [V(4), V(5), V(28), V(29)]
vXr = [V(6), V(7)]
vW1a = [V(8), V(9), V(10)]
vW1r = [V(n) for n in range(11, 17)]
vHr = [V(17), V(18)]
vWr = [V(n) for n in range(19, 23)]
vPOLL, vPA, vFA, vJUNK, vTAG = V(23), V(24), V(25), V(26), V(27)
vMEAN = [V(28), V(29)]
vRSTD = [V(30), V(31)]
vKVw = [V(n) for n in range(8, 12)]
vHKw, vKr, vK4, vVr, vV4 = V(12), V(13), V(14), V(15), V(16)
vQr, vQ4, vCQr, vCQw = V(4), V(5), V(6), V(7)
MASK = 32
WF = 40
FACC, RS, SS, CS = 64, 112, 120, 128
ACC = [136, 64]
OKEEP = 128
T = 172
WSLOT = [A(160 + 20 * i, 1) for i in range(4)]
aONES = A(240, 4)
aRES = 244
P2ACC = 40


def f2u(x):
    return struct.unpack('<I', struct.pack('<f', x))[0]


def X(s, p):
    return A(8 * s + 4 * p, 4)


def wslot(i, n):
    i %= 7
    return A(160 + 20 * i + 4 * n, 4) if i < 4 else V(196 + 20 * (i - 4) + 4 * n, 4)


def aslot(i, t):
    return A(16 * (i % 10) + 4 * t, 4)


LIGHT = ('start', 'B0', 'B5', 'B10', 'B15', 'gemm1', 'attn', 'S5', 'S11', 'gemm2', 'end')


class Gen:
    def __init__(self, stamps=False, **opt):
        self.stamps = stamps
        self.nstamp = 0
        self.stamp_names = []
        self.slow = []
        self.opt = dict(rot=4, rot2=0, npro=2, catch=2, pro_every=99, packA=1, pub1=3, halo=2, poll1=6, chk1=8,
                        rawB=5, packB=8, pub2=11, poll2=13, chk2=15, w_end=39, ff_end=18, f3_step=21, poll3=18, chk3=20,
                        kv_end=30, nA_p1b=1, nA_att=6, att_every=8, a_rate=2, f4_step=4, poll4=7, chk4=9)
        self.opt.update(opt)

    def stamp(self, name):
        if not self.stamps or (self.stamps == 1 and name not in LIGHT):
            return []
        k = self.nstamp
        assert k < 61
        self.nstamp += 1
        self.stamp_names.append(name)
        return [Group([raw("s_memtime s[82:83]", wr=['s82', 's83']),
                       raw("s_waitcnt lgkmcnt(0)", drains_lgkm=True),
                       raw(f"v_writelane_b32 {vJUNK}, s82, {k}", rd=['s82'], kind='salu')])]

    def check(self, name):
        self.slow.append(f"""L_slow_{name}:
{f"    s_add_u32 s84, s84, {1 << (8 * len(self.slow))}" if self.stamps else ""}
    s_mov_b32 {sCNT}, 0x8000
L_spin_{name}:
    s_sleep 2
    buffer_load_dword {vPOLL}, {vPA}, {SWS}, 0 offen sc1
    s_waitcnt vmcnt(0)
    v_cmp_ne_u32 vcc, {sCMP}, {vPOLL}
    s_sub_u32 {sCNT}, {sCNT}, 1
    s_cbranch_scc1 L_ok_{name}
    s_cbranch_vccnz L_spin_{name}
    s_branch L_ok_{name}
""")
        return Group([valu('v_cmp_ne_u32', 'vcc', sCMP, vPOLL),
                      raw(f"s_cbranch_vccnz L_slow_{name}", rd=['vcc'], kind='branch'),
                      raw(f"L_ok_{name}:", kind='label', states=0)])

    def divc(self, dst, src, d, maxv):
        for sh in range(8, 24):
            m = -(-(1 << sh) // d)
            if m * maxv < (1 << 32) and m < (1 << 24) and all((v * m) >> sh == v // d for v in range(maxv + 1)):
                return [valu('v_mul_u32_u24', dst, m, src), valu('v_lshrrev_b32', dst, sh, dst)]
        raise ValueError

    def rstats(self, vs, vq, mean, rstd, t):
        inv = f2u(1.0 / 640.0)
        return [valu('v_mul_f32', mean, inv, vs),
                valu('v_mul_f32', t, inv, vq),
                valu('v_fma_f32', t, '-' + mean, mean, t),
                valu('v_max_f32', t, 0, t),
                valu('v_cvt_pk_bf16_f32', t, mean, t),
                valu('v_lshlrev_b32', mean, 16, t),
                valu('v_and_b32', t, 0xffff0000, t),
                valu('v_add_f32', t, f2u(1e-5), t),
                valu('v_cvt_pk_bf16_f32', t, t, t),
                valu('v_lshlrev_b32', t, 16, t),
                valu('v_sqrt_f32', t, t),
                Skip(1),
                valu('v_cvt_pk_bf16_f32', t, t, t),
                valu('v_lshlrev_b32', t, 16, t),
                valu('v_rcp_f32', rstd, t)]

    def stage_dma(self, R):
        slot, out = R & 3, []
        if R < 10:
            for k in range(4):
                out.append(Group([bdma(vXa[k], SX, sXs, k * 1024)]))
            for m in range(3):
                out.append(Group([bdma(vW1a[m], SW1, sW1, m * 1024)]))
            self.stage_pre[R] = {0: [salu('s_add_u32', 'm0', sXl, slot * 4096)],
                                 4: [salu('s_add_u32', 'm0', sW1l, slot * 12288)],
                                 7: [salu('s_add_u32', sKP, sKP, 1),
                                     Group([salu('s_cmp_eq_u32', sKP, 10), salu('s_cselect_b32', sKP, 0, sKP)]),
                                     salu('s_lshl_b32', sXs, sKP, 7), salu('s_add_u32', sXs, sXs, sXb),
                                     salu('s_mul_i32', sW1, sKP, 64 * 3072), salu('s_add_u32', sW1, sW1, sW1b)] if R < 9 else []}
        else:
            for m in range(4):
                out.append(Group([bdma(vL16, SWS, sWQ, m * 1024, 'sc1')]))
            self.stage_pre[R] = {0: [salu('s_add_u32', 'm0', sXl, slot * 4096)],
                                 4: [salu('s_add_u32', sG, sG, 4),
                                     Group([salu('s_cmp_ge_u32', sG, 20), salu('s_cselect_b32', sWQ, 20, 0)]),
                                     salu('s_sub_u32', sG, sG, sWQ), salu('s_lshl_b32', sWQ, sG, 12),
                                     salu('s_add_u32', sWQ, sWQ, sWQb)] +
                                    ([salu('s_add_u32', sWQ, sWQ, 81920)] if R >= 14 else []) if R < 19 else []}
        self.stage_ops[R] = [i for g in out for i in g if i.kind == 'dma']
        return out

    def inline_stage(self, R):
        out, pre = self.stage_dma(R), self.stage_pre[R]
        for k, ins in pre.items():
            ins = flatten(ins)
            if k < len(out):
                out[k][:0] = ins
            else:
                out[-1].extend(ins)
        return out

    def place_mem(self, w, seq, start, end):
        annotate([x for g, pre in seq for x in list(pre) + ([g] if g else [])])
        n = sum(1 for g, _ in seq if g)
        first = start + len(seq[0][1])
        last = end - (len(seq[-1][1]) if seq[-1][0] is None else 0) - 1
        prev, k = start - 1, 0
        for g, pre in seq:
            if pre:
                prev = w.stream(pre, prev + 1, max(min(end, first + (last - first) * k // n if g else end), prev + 2))
            if g:
                lo = min(max(prev + 1, first + (last - first) * k // n), end - 1)
                hi = min(max(lo + 1, first + (last - first) * (k + 1) // n - 1), end)
                prev = min(range(lo, hi), key=lambda x: (max(gcost(w.v[x] + vcost(g), w.s[x] + scost(g)) - w.cap, 0), x))
                w.at(prev, g)
                k += 1

    def ring_barrier(self, R, extra_vm=()):
        return Group([wait(vm=self.stage_ops[R] + list(extra_vm), all_lgkm=True), barrier()])

    def p2_steps(self):
        return [(sAh, sWh, i) for i in range(12)] + [(sAo, sWo, i) for i in range(4)] + [(sAb, sWb, 0)]

    def step_base(self, dst, base, k, stride, i):
        if i >= 12 or not self.opt['rot2']:
            return [salu('s_add_u32', dst, base, k * stride)]
        return [salu('s_cmp_ge_u32', sR2, 12 - k), salu('s_cselect_b32', dst, (k - 12) & 0xffffffff, k),
                salu('s_add_u32', dst, dst, sR2), salu('s_mul_i32', dst, dst, stride), salu('s_add_u32', dst, dst, base)]

    def w_loads(self, i):
        _, sw, k = self.p2_steps()[i]
        out = []
        for n in range(5):
            g = [bload(wslot(i, n), vL16 if n < 4 else vL16b, SWS, sLW, (n & 3) * 1024, 'sc1')]
            if n == 0:
                g[:0] = self.step_base(sLW, sw, k, 5120, i)
            out.append(Group(g))
        return out

    def a_loads(self, i):
        sa, _, k = self.p2_steps()[i]
        out = []
        for t in range(4):
            g = [bload(aslot(i, t), vL16, SWS, sLA, t * 1024, 'sc1')]
            if t == 0:
                g[:0] = self.step_base(sLA, sa, k, 4096, i)
            out.append(Group(g))
        return out

    def startup(self):
        t = [V(n) for n in range(136, 256)]
        vQ, vZ, vOOB, vU, vHu, vR, vCC, vPs = t[5], t[7], t[14], t[15], t[16], t[17], t[18], t[19]
        rdA, soA = [t[20], t[21], t[22]], [sT[8], sT[9], sT[10]]
        rdB, stB, ldB = [t[23], t[24], t[25]], [t[26], t[27], t[28]], [t[29], t[30], t[31]]
        s6T, s5T, sW2c = sT[6], sT[7], sT[11]
        H, PK = 200, 176
        p = []
        e = p.append
        x = p.extend
        e(salu('s_cmp_ge_u32', 's2', 256))
        e(raw("s_cbranch_scc1 L_end", rd=['scc'], kind='branch'))
        e(salu('s_getpc_b64', S(56, 2)))
        e(raw("L_pc:", kind='label', states=0))
        for r, off in ((4, 0), (16, 32), (8, 8), (28, 64), (12, 16), (20, 40), (24, 48)):
            e(raw(f"s_load_dwordx2 {S(r, 2)}, s[0:1], {off}", wr=regs(S(r, 2))))
        if self.opt.get('dbg'):
            e(raw("s_load_dwordx2 s[98:99], s[0:1], 56", wr=['s98', 's99']))
        e(salu('s_lshr_b32', sT[0], 's2', 3))
        e(salu('s_lshl_b32', sT[4], sT[0], 4))
        e(valu('v_lshrrev_b32', t[0], 6, 'v0'))
        e(valu('v_and_b32', t[1], 3, 'v0'))
        e(valu('v_lshl_add_u32', t[1], t[0], 2, t[1]))
        e(valu('v_add_lshl_u32', t[1], sT[4], t[1], 7))
        e(valu('v_min_u32', t[1], 'L_last-L_pc-4', t[1]))
        e(valu('v_mov_b32', t[3], 's57'))
        e(I(f"v_add_co_u32 {t[2]}, vcc, s56, {t[1]}", 'valu', ['s56', t[1]], [t[2], 'vcc']))
        e(valu('v_readfirstlane_b32', sW, t[0]))
        e(valu('v_and_b32', vL, 63, 'v0'))
        e(I(f"v_addc_co_u32 {t[3]}, vcc, 0, {t[3]}, vcc", 'valu', [t[3], 'vcc'], [t[3], 'vcc']))
        e(I(f"global_load_dword v255, {V(138, 2)}, off", 'vld', [t[2], t[3]], ['v255']))
        x(self.stamp('start'))
        if self.stamps:
            e(salu('s_mov_b32', 's84', 0))
            e(raw("s_memrealtime s[82:83]", wr=['s82', 's83']))
            e(raw("s_waitcnt lgkmcnt(0)"))
            e(raw(f"v_writelane_b32 {vJUNK}, s82, 61", rd=['s82'], kind='salu'))
        e(salu('s_and_b32', sT[3], 's2', 7))
        e(salu('s_lshr_b32', sT[4], sT[3], 1))
        e(salu('s_and_b32', sT[3], sT[3], 1))
        e(salu('s_and_b32', sB, sT[0], 3))
        e(salu('s_lshl2_add_u32', sB, sT[4], sB))
        e(valu('v_lshrrev_b32', t[4], 3, vL))
        e(valu('v_lshrrev_b32', vQ, 4, vL))
        e(valu('v_and_b32', t[6], 7, vL))
        e(valu('v_xor_b32', t[6], t[6], vQ))
        e(valu('v_lshlrev_b32', t[6], 4, t[6]))
        e(valu('v_mul_u32_u24', vXa[0], 2560, t[4]))
        e(valu('v_add_u32', vXa[0], vXa[0], t[6]))
        e(valu('v_xor_b32', vXa[2], 64, vXa[0]))
        e(valu('v_add_u32', vXa[1], 1280 - 1024, vXa[0]))
        e(valu('v_add_u32', vXa[3], 20480 + 1280 - 3072, vXa[2]))
        e(valu('v_add_u32', vXa[2], 20480 - 2048, vXa[2]))
        rot = self.opt['rot']
        if rot == 1:
            e(salu('s_and_b32', sR, sT[0], 3))
            e(salu('s_mul_i32', sR, sR, 5))
            e(salu('s_lshr_b32', sR, sR, 1))
            e(salu('s_lshr_b32', sKP, sT[0], 2))
            e(salu('s_add_u32', sR, sR, sKP))
            e(salu('s_cmp_ge_u32', sR, 10))
            e(salu('s_cselect_b32', sKP, 10, 0))
            e(salu('s_sub_u32', sR, sR, sKP))
        elif rot == 2:
            e(salu('s_lshr_b32', sR, sT[0], 2))
            e(salu('s_xor_b32', sR, sR, sT[0]))
            e(salu('s_and_b32', sR, sR, 1))
            e(salu('s_mul_i32', sR, sR, 5))
        elif rot == 4:
            e(salu('s_lshr_b32', sR, sT[0], 2))
            e(salu('s_add_u32', sR, sR, sT[0]))
            e(salu('s_and_b32', sR, sR, 3))
            e(salu('s_mul_i32', sR, sR, 5))
            e(salu('s_lshr_b32', sR, sR, 1))
        elif rot in (5, 6):
            e(salu('s_and_b32', sR, sT[0], 3))
            e(salu('s_mul_i32', sR, sR, 5))
            e(salu('s_lshr_b32', sR, sR, 1))
            if rot == 5:
                e(salu('s_lshr_b32', sKP, sT[0], 2))
            else:
                e(salu('s_lshr_b32', sKP, sT[0], 2))
                e(salu('s_and_b32', sKP, sKP, 3))
                e(salu('s_mul_i32', sKP, sKP, 5))
                e(salu('s_lshr_b32', sKP, sKP, 1))
            e(salu('s_add_u32', sR, sR, sKP))
            e(salu('s_mul_i32', sKP, sT[3], 5 if rot == 5 else 1))
            e(salu('s_add_u32', sR, sR, sKP))
            e(salu('s_add_u32', sR, sR, sT[4]))
            e(salu('s_mul_i32', sKP, sR, 26))
            e(salu('s_lshr_b32', sKP, sKP, 8))
            e(salu('s_mul_i32', sKP, sKP, 10))
            e(salu('s_sub_u32', sR, sR, sKP))
        else:
            e(salu('s_mov_b32', sR, 0))
        e(salu('s_mov_b32', sKP, sR))
        e(salu('s_lshl2_add_u32', sXb, sB, sW))
        e(salu('s_mul_i32', sXb, sXb, 32 * 1280))
        e(salu('s_lshl_b32', sXs, sKP, 7))
        e(salu('s_add_u32', sXs, sXs, sXb))
        e(salu('s_lshl_b32', sXl, sW, 14))
        e(salu('s_add_u32', sXl, sXl, XR))
        for r, size in ((4, 2621440), (16, 1966080)):
            e(salu('s_mov_b32', S(r + 2), size))
            e(salu('s_mov_b32', S(r + 3), 0x20000))
        e(salu('s_lshr_b32', sJ, sT[0], 2))
        e(salu('s_lshl3_add_u32', sJ, sT[3], sJ))
        e(salu('s_mul_i32', sW1b, sW, 16 * 3072))
        e(salu('s_mul_i32', sT[1], sJ, 192))
        e(salu('s_add_u32', sW1b, sW1b, sT[1]))
        e(salu('s_mul_i32', sW1, sKP, 64 * 3072))
        e(salu('s_add_u32', sW1, sW1, sW1b))
        e(salu('s_mul_i32', sW1l, sW, 3072))
        e(salu('s_add_u32', sW1l, sW1l, W1R))
        e(raw("s_waitcnt lgkmcnt(0)", drains_lgkm=True))
        npro = self.opt['npro']
        st = [self.inline_stage(R) for R in range(npro)]

        def w1_addr(m):
            return [valu('v_add_u32', t[8], 64 * m, vL)] + self.divc(t[9], t[8], 12, 191) + [
                valu('v_mul_u32_u24', t[10], 12, t[9]), valu('v_sub_u32', t[8], t[8], t[10]),
                valu('v_lshrrev_b32', t[10], 2, t[9]), valu('v_and_b32', t[10], 2, t[10]),
                valu('v_xor_b32', t[8], t[8], t[10]), valu('v_mul_u32_u24', t[9], 3072, t[9]),
                valu('v_lshl_add_u32', vW1a[m], t[8], 4, t[9])] + (
                [valu('v_subrev_u32', vW1a[m], 1024 * m, vW1a[m])] if m else [])
        e(st[0][0])
        e(st[0][1])
        x(w1_addr(0))
        e(st[0][2])
        x(w1_addr(1))
        e(st[0][3])
        x(w1_addr(2))
        e(st[0][4])
        e(salu('s_and_b32', sTB, sT[0], 7))
        e(salu('s_lshl3_add_u32', sTB, sT[4], sTB))
        e(salu('s_lshr_b32', sC, sT[0], 3))
        e(salu('s_lshl2_add_u32', sC, sT[3], sC))
        for r, size in ((8, 2457600), (12, 819200), (20, 1966080), (24, 2621440), (28, WS_SIZE)):
            e(salu('s_mov_b32', S(r + 2), size))
            e(salu('s_mov_b32', S(r + 3), 0x20000))
        e(valu('v_mov_b32', vZ, 0))
        e(valu('v_mov_b32', vOOB, OOB))
        e(st[0][5])
        e(st[0][6])
        self.p0a = []
        e(salu('s_mul_i32', sT[1], sB, 40 * 3840))
        e(salu('s_mul_i32', sT[2], sJ, 80))
        e(salu('s_add_u32', sT[1], sT[1], sT[2]))
        e(salu('s_mul_i32', sT[2], sW, 192))
        e(salu('s_mul_i32', sT[5], sW, 3072))
        for m in range(3):
            e(valu('v_add_u32', t[8], sT[2], vL))
            if m:
                e(valu('v_add_u32', t[8], 64 * m, t[8]))
            x(self.divc(t[9], t[8], 15, 767))
            e(valu('v_mul_u32_u24', t[10], 15, t[9]))
            e(valu('v_sub_u32', t[10], t[8], t[10]))
            e(valu('v_cmp_gt_u32', 'vcc', 600, t[8]))
            x(self.divc(t[11], t[10], 5, 14))
            e(valu('v_mul_u32_u24', t[9], 3840, t[9]))
            e(valu('v_mul_u32_u24', t[11], 1200, t[11]))
            e(valu('v_lshlrev_b32', t[10], 4, t[10]))
            e(valu('v_add3_u32', t[9], t[9], t[10], t[11]))
            e(salu('s_add_u32', 'm0', sT[5], P0A + 1024 * m))
            e(valu('v_cndmask_b32', t[9], vOOB, t[9], 'vcc'))
            d = bdma(t[9], SWQKV, sT[1])
            e(d)
            self.p0a.append(d)
        e(bload(vTAG, vZ, SWS, 0, 0, 'sc1'))
        x(self.stamp('p0a'))

        q = []
        e = q.append
        x = q.extend
        vHa = t[32]
        e(valu('v_and_b32', vU, 15, vL))
        e(salu('s_lshl_b32', sT[2], sW, 2))
        e(valu('v_add_u32', vHu, sT[2], vQ))
        e(salu('s_lshl_b32', sT[2], sB, 7))
        e(salu('s_sub_u32', sT[2], sT[2], 16))
        e(valu('v_add_u32', vHa, sT[2], vHu))
        e(valu('v_cmp_le_i32', 'vcc', 0, vHa))
        e(valu('v_mul_u32_u24', vHa, 1280, vHa))
        e(valu('v_cndmask_b32', vHa, vOOB, vHa, 'vcc'))
        e(valu('v_cmp_ne_u32', 'vcc', 0, vHu))
        e(valu('v_bfe_u32', vR, vL, 2, 2))
        e(valu('v_and_b32', vCC, 3, vL))
        e(valu('v_cndmask_b32', vHa, vOOB, vHa, 'vcc'))
        e(salu('s_lshl_b32', sT[2], sR, 3))
        halo_loads = []
        for i5 in range(5):
            ha = V(224 + i5)
            e(valu('v_add_u32', ha, sT[2], vU))
            if i5:
                e(valu('v_add_u32', ha, 16 * i5, ha))
            e(valu('v_subrev_u32', t[8], 80, ha))
            e(valu('v_min_u32', ha, ha, t[8]))
            e(valu('v_lshl_add_u32', ha, ha, 4, vHa))
            halo_loads.append(bload(V(H + 4 * i5, 4), ha, SX))
        e(valu('v_lshlrev_b32', vL16, 4, vL))
        e(valu('v_add_u32', vL16b, 4096, vL16))
        e(valu('v_lshrrev_b32', t[8], 1, vU))
        e(valu('v_xor_b32', t[8], t[8], vQ))
        e(valu('v_lshlrev_b32', t[8], 4, t[8]))
        e(valu('v_lshl_add_u32', vHr[0], vU, 7, t[8]))
        e(valu('v_xor_b32', vHr[1], 64, vHr[0]))
        e(valu('v_and_b32', t[8], 8, vU))
        e(valu('v_lshlrev_b32', t[8], 7, t[8]))
        e(valu('v_add3_u32', vXr[0], sXl, vHr[0], t[8]))
        e(valu('v_xor_b32', vXr[1], 64, vXr[0]))
        e(valu('v_lshl_add_u32', t[8], vQ, 3, vR))
        e(valu('v_mul_u32_u24', t[8], 192, t[8]))
        e(valu('v_lshl_add_u32', t[8], vCC, 3, t[8]))
        e(valu('v_and_b32', t[9], 1, vQ))
        e(valu('v_lshl_add_u32', t[8], t[9], 5, t[8]))
        e(salu('s_cmp_eq_u32', sW, 3))
        e(salu('s_cselect_b32', sROT, 0, sW))
        e(salu('s_lshl_b32', sT[1], sB, 1))
        e(salu('s_lshr_b32', sT[2], sW, 1))
        e(salu('s_add_u32', sT[12], sT[1], sT[2]))
        e(salu('s_mul_i32', sAP, sT[12], ACTB))
        e(salu('s_and_b32', sT[2], sW, 1))
        e(salu('s_lshl_b32', sT[2], sT[2], 11))
        e(salu('s_add_u32', sAP, sAP, sT[2]))
        e(salu('s_add_u32', sAP, sAP, ACT))
        for m in range(3):
            e(salu('s_add_u32', sT[1], sROT, m))
            e(salu('s_cmp_ge_u32', sT[1], 3))
            e(salu('s_cselect_b32', sT[2], 3, 0))
            e(salu('s_sub_u32', sT[1], sT[1], sT[2]))
            e(salu('s_lshl_b32', sT[2], sT[1], 6))
            e(salu('s_add_u32', sT[2], sT[2], W1R))
            e(valu('v_add_u32', vW1r[2 * m], sT[2], t[8]))
            e(valu('v_xor_b32', vW1r[2 * m + 1], 32, vW1r[2 * m]))
            e(salu('s_mul_i32', sT[2], sJ, 3))
            e(salu('s_add_u32', sT[1], sT[1], sT[2]))
            e(salu('s_lshl_b32', sT[1], sT[1], 12))
            e(salu('s_add_u32', sHS[m], sT[1], sAP))
        e(valu('v_mov_b32', t[8], 0x3f803f80))
        for r in range(4):
            e(valu('v_accvgpr_write_b32', A(240 + r), t[8]))
        e(valu('v_lshlrev_b32', vPs, 4, vU))
        e(valu('v_lshl_add_u32', vPs, vQ, 10, vPs))
        e(valu('v_mul_u32_u24', t[8], 80, vQ))
        e(valu('v_cmp_ne_u32', 'vcc', 3, vCC))
        e(valu('v_lshl_add_u32', t[8], vCC, 3, t[8]))
        e(valu('v_mul_u32_u24', t[9], 80, vCC))
        e(valu('v_cndmask_b32', t[9], 0, t[9], 'vcc'))
        e(valu('v_cmp_ne_u32', 'vcc', 3, vQ))
        e(valu('v_add_u32', t[9], 32, t[9]))
        e(valu('v_mul_u32_u24', t[10], 240, vR))
        e(valu('v_cndmask_b32', t[8], t[9], t[8], 'vcc'))
        e(valu('v_add_u32', t[8], t[8], t[10]))
        for k in range(3):
            e(salu('s_add_u32', sT[1], sW, 4 * k))
            e(salu('s_min_u32', sT[1], sT[1], 9))
            e(salu('s_and_b32', sT[2], sT[1], 1))
            e(salu('s_lshr_b32', sT[1], sT[1], 1))
            e(salu('s_mul_i32', sT[3], sT[1], 1920))
            e(salu('s_mul_i32', sT[4], sT[2], 40))
            e(salu('s_add_u32', sT[3], sT[3], sT[4]))
            e(salu('s_add_u32', sT[3], sT[3], P0A))
            e(valu('v_add_u32', rdA[k], sT[3], t[8]))
            e(salu('s_mul_i32', sT[3], sB, 5))
            e(salu('s_add_u32', sT[1], sT[1], sT[3]))
            e(salu('s_mul_i32', sT[2], sT[2], 20))
            e(salu('s_lshr_b32', sT[3], sT[1], 2))
            e(salu('s_add_u32', sT[2], sT[2], sT[3]))
            e(salu('s_lshl_b32', sT[2], sT[2], 12))
            e(salu('s_and_b32', sT[1], sT[1], 3))
            e(salu('s_lshl_b32', sT[1], sT[1], 8))
            e(salu('s_add_u32', sT[1], sT[1], sT[2]))
            e(salu('s_mul_i32', sT[2], sJ, WQJ))
            e(salu('s_add_u32', sT[1], sT[1], sT[2]))
            e(salu('s_add_u32', soA[k], sT[1], WQ))
        vPs2 = t[33]
        e(salu('s_cmp_lt_u32', sW, 2))
        e(salu('s_cselect_b64', 'vcc', -1, 0))
        e(valu('v_cndmask_b32', vPs2, vOOB, vPs, 'vcc'))
        e(salu('s_mul_i32', s6T, sTB, 6))
        e(salu('s_mul_i32', s5T, sTB, 5))
        e(salu('s_lshr_b32', s5T, s5T, 1))
        for m in range(3):
            e(salu('s_lshl_b32', sT[2], sW, 7 if m < 2 else 6))
            e(valu('v_add_u32', t[8], sT[2], vL))
            if m == 1:
                e(valu('v_add_u32', t[8], 64, t[8]))
            x(self.divc(t[9], t[8], 80, 511))
            e(valu('v_mul_u32_u24', t[10], 80, t[9]))
            e(valu('v_sub_u32', t[10], t[8], t[10]))
            x(self.divc(t[11], t[10], 10, 79))
            e(valu('v_mul_u32_u24', t[12], 10, t[11]))
            e(valu('v_sub_u32', t[10], t[10], t[12]))
            e(valu('v_and_b32', t[12], 3, t[11]))
            e(valu('v_lshrrev_b32', t[11], 2, t[11]))
            if m < 2:
                e(valu('v_lshl_add_u32', t[11], t[11], 4, t[12]))
                e(valu('v_add_u32', t[9], s6T, t[9]))
                e(valu('v_and_b32', t[12], 3, t[9]))
                e(valu('v_lshl_add_u32', t[11], t[12], 2, t[11]))
                e(valu('v_lshrrev_b32', t[9], 2, t[9]))
                e(valu('v_lshl_add_u32', t[11], t[9], 5, t[11]))
            else:
                e(valu('v_mad_u32_u24', t[11], t[11], 20, t[12]))
                e(valu('v_add_u32', t[9], s5T, t[9]))
                e(valu('v_min_u32', t[9], 79, t[9]))
                e(valu('v_cmp_gt_u32', 'vcc', 64, t[9]))
                e(valu('v_lshrrev_b32', t[12], 2, t[9]))
                e(valu('v_mul_u32_u24', t[12], 40, t[12]))
                e(valu('v_and_b32', t[13], 3, t[9]))
                e(valu('v_lshl_add_u32', t[12], t[13], 2, t[12]))
                e(valu('v_mul_u32_u24', t[13], 40, t[9]))
                e(valu('v_subrev_u32', t[13], 40 * 64 - 16, t[13]))
                e(valu('v_cndmask_b32', t[12], t[13], t[12], 'vcc'))
                e(valu('v_add_u32', t[11], t[11], t[12]))
            e(valu('v_cmp_gt_u32', 'vcc', 480 if m < 2 else 240, t[8]))
            e(valu('v_mul_u32_u24', t[11], 1280, t[11]))
            e(valu('v_lshl_add_u32', t[11], t[10], 4, t[11]))
            e(valu('v_cndmask_b32', ldB[m], vOOB, t[11], 'vcc'))
        e(valu('v_mul_u32_u24', t[8], 160, vR))
        e(valu('v_lshl_add_u32', t[8], vCC, 3, t[8]))
        for k in range(3):
            if k < 2:
                e(salu('s_lshl_b32', sT[1], sW, 3))
                e(salu('s_add_u32', sT[1], sT[1], 4 * k))
            else:
                e(salu('s_lshl_b32', sT[1], sW, 2))
            e(valu('v_add_u32', t[13], sT[1], vQ))
            e(valu('v_min_u32', t[9], 29 if k < 2 else 14, t[13]))
            e(valu('v_cmp_eq_u32', 'vcc', t[9], t[13]))
            x(self.divc(t[10], t[9], 5, 31))
            e(valu('v_mul_u32_u24', t[11], 5, t[10]))
            e(valu('v_sub_u32', t[9], t[9], t[11]))
            e(valu('v_mul_u32_u24', t[11], 1280, t[10]))
            e(valu('v_lshl_add_u32', t[11], t[9], 5, t[11]))
            e(valu('v_add_u32', t[11], (P0B if k < 2 else P0B + 8192), t[11]))
            e(valu('v_add_u32', rdB[k], t[11], t[8]))
            e(valu('v_add_u32', t[10], s6T if k < 2 else s5T, t[10]))
            if k == 2:
                e(valu('v_min_u32', t[10], 79, t[10]))
                e(valu('v_add_u32', t[10], 192, t[10]))
            e(valu('v_lshrrev_b32', t[11], 2, t[10]))
            e(valu('v_mul_u32_u24', t[11], 5120, t[11]))
            e(valu('v_lshl_add_u32', t[11], t[9], 10, t[11]))
            e(valu('v_and_b32', t[10], 3, t[10]))
            e(valu('v_lshl_add_u32', t[11], t[10], 8, t[11]))
            e(valu('v_lshl_add_u32', t[11], vU, 4, t[11]))
            e(valu('v_cndmask_b32', stB[k], vOOB, t[11], 'vcc'))
        e(salu('s_mul_i32', sW2c, sC, W2C))
        e(salu('s_add_u32', sW2c, sW2c, W2P))
        vHw = t[34]
        e(valu('v_lshrrev_b32', t[8], 1, vHu))
        e(valu('v_xor_b32', t[8], t[8], vU))
        e(valu('v_and_b32', t[8], 7, t[8]))
        e(valu('v_lshlrev_b32', t[8], 4, t[8]))
        e(valu('v_lshl_add_u32', t[8], vHu, 7, t[8]))
        e(valu('v_lshrrev_b32', t[9], 3, vU))
        e(valu('v_lshl_add_u32', vHw, t[9], 11, t[8]))
        e(salu('s_lshl_b32', sT[1], sJ, 6))
        e(salu('s_add_u32', sT[1], sT[1], F1))
        e(salu('s_lshl2_add_u32', sT[3], sB, sT[1]))
        e(valu('v_cmp_eq_u32', 'vcc', 0, 'v0'))
        e(valu('v_mov_b32', t[8], sT[3]))
        e(valu('v_cndmask_b32', vFA, vOOB, t[8], 'vcc'))
        x(self.poll_addr(sJ, F1, 6, t[9], 15))
        e(salu('s_mul_i32', sWQb, sJ, WQJ))
        e(salu('s_add_u32', sWQb, sWQb, WQ))
        e(salu('s_lshl1_add_u32', sG, sR, sW))
        e(salu('s_cmp_ge_u32', sG, 20))
        e(salu('s_cselect_b32', sWQ, 20, 0))
        e(salu('s_sub_u32', sG, sG, sWQ))
        e(salu('s_lshl_b32', sWQ, sG, 12))
        e(salu('s_add_u32', sWQ, sWQ, sWQb))
        e(salu('s_lshr_b32', sT[1], 's2', 3))
        e(salu('s_and_b32', sT[2], sT[1], 7))
        e(salu('s_mul_i32', sT[2], sT[2], 3))
        e(salu('s_lshr_b32', sT[2], sT[2], 1))
        e(salu('s_lshr_b32', sT[1], sT[1], 3))
        e(salu('s_mul_i32', sT[1], sT[1], 3))
        e(salu('s_add_u32', sR2, sT[1], sT[2]))
        e(salu('s_cmp_ge_u32', sR2, 12))
        e(salu('s_cselect_b32', sT[1], 12, 0))
        e(salu('s_sub_u32', sR2, sR2, sT[1]))
        e(salu('s_mul_i32', sT[1], sTB, ACTB))
        e(salu('s_add_u32', sT[1], sT[1], ACT))
        e(salu('s_mul_i32', sT[2], sW, 12 * 4096))
        e(salu('s_add_u32', sAh, sT[1], sT[2]))
        e(salu('s_lshl_b32', sT[2], sW, 14))
        e(salu('s_add_u32', sAo, sT[1], sT[2]))
        e(salu('s_add_u32', sAo, sAo, 48 * 4096))
        e(salu('s_lshl_b32', sT[2], sW, 12))
        e(salu('s_add_u32', sAb, sT[1], sT[2]))
        e(salu('s_add_u32', sAb, sAb, 64 * 4096))
        e(salu('s_mul_i32', sT[2], sW, 12 * 5120))
        e(salu('s_add_u32', sWh, sW2c, sT[2]))
        e(salu('s_mul_i32', sT[2], sW, 4 * 5120))
        e(salu('s_add_u32', sWo, sW2c, sT[2]))
        e(salu('s_add_u32', sWo, sWo, 48 * 5120))
        e(salu('s_mul_i32', sT[2], sW, 5120))
        e(salu('s_add_u32', sWb, sW2c, sT[2]))
        e(salu('s_add_u32', sWb, sWb, 64 * 5120))
        e(salu('s_add_u32', sT[1], sJ, 48))
        e(salu('s_lshl_b32', sT[1], sT[1], 12))
        e(salu('s_add_u32', sOA, sT[1], sAP))
        e(salu('s_lshr_b32', sT[1], sJ, 2))
        e(salu('s_add_u32', sT[1], sT[1], 64))
        e(salu('s_lshl_b32', sT[1], sT[1], 12))
        e(salu('s_and_b32', sT[2], sJ, 3))
        e(salu('s_lshl_b32', sT[2], sT[2], 8))
        e(salu('s_add_u32', sT[1], sT[1], sT[2]))
        e(salu('s_add_u32', sOB, sT[1], sAP))
        e(salu('s_mov_b64', sLO16, 0xffff))
        e(salu('s_mov_b32', 's70', 0x00010001))
        e(salu('s_mov_b32', 's71', 0x00010001))
        for k, r in enumerate((72, 74, 76)):
            e(salu('s_mov_b32', S(r), 0x11111111 << (k + 1)))
            e(salu('s_mov_b32', S(r + 1), 0x11111111 << (k + 1)))
        e(salu('s_mov_b32', sSCL, f2u(20 ** -0.5 * 1.4426950408889634)))
        for i in range(4):
            e(salu('s_add_u32', sT[1], sW, i))
            e(salu('s_and_b32', sT[1], sT[1], 3))
            e(salu('s_lshl_b32', sT[1], sT[1], 10))
            e(salu('s_add_u32', sT[1], sT[1], XR))
            e(valu('v_add_u32', vWr[i], sT[1], vL16))
        e(valu('v_lshlrev_b32', t[8], 2, vQ))
        e(valu('v_sub_u32', t[8], vU, t[8]))
        e(valu('v_mov_b32', t[10], f2u(-1e30)))
        e(salu('s_or_b32', sT[1], sB, sW))
        e(salu('s_cmp_eq_u32', sT[1], 0))
        e(salu('s_cselect_b32', sT[1], 0, 2))
        e(valu('v_cmp_gt_u32', 'vcc', sT[1], vQ))
        e(valu('v_cndmask_b32', t[11], t[10], vZ, 'vcc'))
        for r in range(4):
            e(valu('v_subrev_u32', t[9], r, t[8]))
            e(valu('v_cmp_gt_u32', 'vcc', 8, t[9]))
            e(valu('v_cmp_gt_i32', S(56, 2), 0, t[9]))
            e(valu('v_cndmask_b32', V(MASK + 4 + r), t[10], vZ, 'vcc'))
            e(valu('v_cndmask_b32', V(MASK + r), t[10], t[11], S(56, 2)))
        e(valu('v_mov_b32', t[8], ZERO))
        e(valu('v_mov_b32', t[10], 0))
        e(valu('v_mov_b32', t[11], 0))
        e(ds_write('ds_write_b64', t[8], V(146, 2)))
        e(salu('s_mul_i32', sT[12], sC, 160))
        loads = st[1] + (halo_loads if npro > 2 else []) + [x_ for r_ in st[2:] for x_ in r_]
        self.halo_loads = [] if npro > 2 else halo_loads
        p += self.sprinkle(q, loads, max(1, min(self.opt['pro_every'], (len(q) - 16) // len(loads))), start=0)
        p += self.stamp('setup')
        p.append(Group([wait(vm=self.stage_ops[0]), barrier()]))
        p += self.stamp('B0')

        def pack(rd, k0, half, dst):
            o_ = []
            for k in range(3):
                o_ += [ds_read('ds_read_b64_tr_b16', V(PK + 4 * (k0 + k) + 2 * h, 2), rd[k], h * half) for h in range(2)]
            sts = [bstore(V(PK + 4 * (k0 + k), 4), dst[k][0], SWS, dst[k][1], 0, 'sc1') for k in range(3)]
            return o_, sts
        self.packA = pack(rdA, 0, 960, [(vPs, soA[0]), (vPs, soA[1]), (vPs2, soA[2])])
        self.packB = pack(rdB, 3, 640, [(stB[k], sW2c) for k in range(3)])
        self.rawB = []
        for m in range(3):
            self.rawB.append(Group([salu('s_lshl_b32', sT[5], sW, 11 if m < 2 else 10),
                                    salu('s_add_u32', 'm0', sT[5], P0B + (1024 * m if m < 2 else 8192)),
                                    bdma(ldB[m], SW2 if m < 2 else SWO, sT[12])]))
        self.tag = [valu('v_readfirstlane_b32', sTAG, vTAG), salu('s_mul_i32', sTAG, sTAG, 0x19660d),
                    salu('s_add_u32', sTAG, sTAG, 0x3c6ef35f), valu('v_mov_b32', vTAG, sTAG),
                    salu('s_cmp_eq_u32', sW, 0), salu('s_cselect_b32', sCMP, sTAG, 0)]
        self.f2_pub = [salu('s_lshl_b32', sT[2], sC, 7), salu('s_add_u32', sT[2], sT[2], F2),
                       salu('s_lshl2_add_u32', sT[4], sTB, sT[2]), valu('v_mov_b32', t[35], sT[4]),
                       valu('v_cmp_eq_u32', S(92, 2), 0, 'v0'), Skip(1), valu('v_cndmask_b32', vFA, vOOB, t[35], S(92, 2))]
        U = 220
        hs, hq, ht, hm, hr = t[8], t[9], t[10], t[11], t[12]
        h_ = []
        for i in range(20):
            lo, hi = V(U + 2 * (i & 1)), V(U + 2 * (i & 1) + 1)
            h_ += [valu('v_lshlrev_b32', lo, 16, V(H + i)), valu('v_and_b32', hi, 0xffff0000, V(H + i))]
            if i == 0:
                h_ += [valu('v_add_f32', hs, lo, hi), valu('v_mul_f32', hq, lo, lo)]
            else:
                h_ += [valu('v_add_f32', hs, hs, lo), valu('v_fmac_f32', hq, lo, lo), valu('v_add_f32', hs, hs, hi)]
            h_.append(valu('v_fmac_f32', hq, hi, hi))
        for sh in (8, 4, 2, 1):
            h_.append(Skip(1))
            for r in (hs, hq):
                h_.append(valu('v_add_f32_dpp', r, r, r, mods=f'row_ror:{sh} row_mask:0xf bank_mask:0xf'))
        h_ += self.rstats(hs, hq, hm, hr, ht)
        h_ += [valu('v_cmp_ne_u32', S(94, 2), 0, vHu), valu('v_mul_f32', hm, hm, hr), Skip(1),
               valu('v_cndmask_b32', hm, -1.0, hm, S(94, 2))]
        for i in range(20):
            h_ += [valu('v_lshlrev_b32', t[8], 16, V(H + i)), valu('v_and_b32', t[9], 0xffff0000, V(H + i)),
                   valu('v_fma_f32', t[8], t[8], hr, '-' + hm), valu('v_fma_f32', t[9], t[9], hr, '-' + hm),
                   valu('v_cvt_pk_bf16_f32', V(H + i), t[8], t[9])]
            if i % 4 == 3:
                h_.append(ds_write('ds_write_b128', vHw, V(H + i - 3, 4), HALO + 4096 * (i // 4)))
        self.halo = h_
        return p

    def x_reads(self, s):
        i, h = s >> 1, s & 1
        return [ds_read('ds_read_b128', X(s, p), vXr[h], (i & 3) * 4096 + p * 1024) for p in range(2)]

    def w1_reads(self, s, n):
        i, h = s >> 1, s & 1
        return [ds_read('ds_read_b64_tr_b16', V(WF + 4 * n + 2 * e_, 2), vW1r[n], (i & 3) * 12288 + (32 * h + 4 * e_) * 192)
                for e_ in range(2)]

    def wq_read(self, g, n):
        k, sg = g >> 2, g & 3
        return ds_read('ds_read_b128', V(WF + 4 * n, 4), vWr[n], sg * 16384 + ((10 + k) & 3) * 4096)

    def halo_read(self, g):
        s = g % 20
        return ds_read('ds_read_b128', V(WF + 16, 4), vHr[s & 1], HALO + (s >> 1) * 2048)

    def late_addresses(self):
        t = [V(T + n) for n in range(24)]
        vQ, vU, vR, vCC = t[0], t[1], t[2], t[3]
        p = [valu('v_lshrrev_b32', vQ, 4, vL), valu('v_and_b32', vU, 15, vL),
             valu('v_bfe_u32', vR, vL, 2, 2), valu('v_and_b32', vCC, 3, vL),
             salu('s_mul_i32', sT[1], sW, 16 * KVR), salu('s_add_u32', sT[1], sT[1], KV),
             valu('v_mul_u32_u24', t[4], KVR, vU),
             valu('v_add_u32', t[4], sT[1], t[4]),
             valu('v_add_u32', vK4, 72, t[4]),
             valu('v_lshl_add_u32', t[5], vQ, 3, t[4]),
             valu('v_add_u32', vKr, 40, t[5]),
             valu('v_add_u32', vQr, 8 * KVR, t[5]),
             valu('v_add_u32', t[6], 8 * KVR + 32, t[4]),
             valu('v_mov_b32', t[7], ZERO),
             valu('v_cmp_eq_u32', S(92, 2), 0, vQ),
             valu('v_cndmask_b32', vQ4, t[7], t[6], S(92, 2)),
             valu('v_lshl_add_u32', t[6], vQ, 2, vR),
             valu('v_mul_u32_u24', t[6], KVR, t[6]),
             valu('v_add_u32', t[6], sT[1], t[6]),
             valu('v_add_u32', vV4, 112, t[6]),
             valu('v_lshl_add_u32', t[6], vCC, 3, t[6]),
             valu('v_add_u32', vVr, 80, t[6]),
             valu('v_mul_u32_u24', t[6], 40, vQ),
             valu('v_add_u32', t[6], 32, t[6]),
             valu('v_min_u32', t[6], 120, t[6]),
             valu('v_lshlrev_b32', t[7], 3, vQ),
             valu('v_and_b32', t[8], 1, vU),
             valu('v_mul_u32_u24', t[8], KVC, t[8]),
             valu('v_lshrrev_b32', t[9], 1, vU),
             valu('v_mul_u32_u24', t[9], KVR, t[9]),
             valu('v_add_u32', t[8], t[8], t[9]),
             valu('v_add_u32', t[8], KV, t[8])]
        for i in range(4):
            p += [salu('s_add_u32', sT[2], sW, i), salu('s_and_b32', sT[2], sT[2], 3),
                  salu('s_mul_i32', sT[3], sT[2], 40),
                  salu('s_cmp_eq_u32', sT[2], 3), salu('s_cselect_b64', S(92, 2), -1, 0),
                  valu('v_add_u32', t[9], sT[3], t[7]),
                  valu('v_cndmask_b32', t[9], t[9], t[6], S(92, 2))]
            if i == 0:
                p.append(valu('v_add_u32', vHKw, t[8], t[9]))
            p += [valu('v_add_u32', t[9], t[4], t[9]), valu('v_add_u32', vKVw[i], 8 * KVR, t[9])]
        p += [salu('s_lshl_b32', sT[2], sW, 6), salu('s_add_u32', sT[2], sT[2], CSQ),
              valu('v_lshl_add_u32', vCQw, vQ, 4, sT[2]),
              valu('v_lshlrev_b32', vCQr, 4, vQ)]
        return p

    def flag_addr(self, base):
        t0, t1 = V(T + 22), V(T + 23)
        return [salu('s_lshl_b32', sT[1], sB, 1), salu('s_lshr_b32', sT[2], sW, 1), salu('s_add_u32', sT[1], sT[1], sT[2]),
                salu('s_lshl_b32', sT[1], sT[1], 7), salu('s_and_b32', sT[2], sW, 1), salu('s_lshl1_add_u32', sT[2], sJ, sT[2]),
                salu('s_lshl2_add_u32', sT[1], sT[2], sT[1]), salu('s_add_u32', sT[1], sT[1], base),
                valu('v_mov_b32', t0, sT[1]), valu('v_mov_b32', t1, OOB),
                valu('v_cmp_eq_u32', S(92, 2), 0, vL), valu('v_cndmask_b32', vFA, t1, t0, S(92, 2))]

    def poll_addr(self, idx, base, shift, t0, mask):
        return [salu('s_lshl_b32', 's96', idx, shift), salu('s_add_u32', 's96', 's96', base),
                salu('s_cmp_eq_u32', sW, 0), salu('s_cselect_b32', 's96', 's96', OOB),
                valu('v_and_b32', t0, mask, vL), valu('v_lshl_add_u32', vPA, t0, 2, 's96')]

    def lanes0(self, ins):
        return Group([salu('s_mov_b64', 'exec', sROW0), ins, salu('s_mov_b64', 'exec', -1)])

    def ff_pre(self):
        t = [V(T + n) for n in range(24)]
        p = [valu('v_lshrrev_b32', t[0], 4, vL), salu('s_lshl_b32', sT[1], sROT, 7), salu('s_add_u32', sT[1], sT[1], CSF),
             valu('v_lshl_add_u32', t[0], t[0], 4, sT[1]),
             self.lanes0(ds_write('ds_write_b128', t[0], V(CS, 4), 0)),
             self.lanes0(ds_write('ds_write_b128', t[0], V(CS + 4, 4), 64)),
             valu('v_and_b32', t[1], 15, vL), valu('v_bfe_u32', t[2], vL, 2, 2),
             valu('v_lshl_add_u32', t[1], t[2], 4, t[1]), valu('v_lshlrev_b32', t[1], 2, t[1])]
        for q in range(2):
            p += [valu('v_cndmask_b32', t[3 + q], V(SS + 4 * q), V(SS + 4 * q + 1), sU1),
                  valu('v_cndmask_b32', t[3 + q], t[3 + q], V(SS + 4 * q + 2), sU2),
                  valu('v_cndmask_b32', t[3 + q], t[3 + q], V(SS + 4 * q + 3), sU3),
                  ds_bperm(t[3 + q], t[1], t[3 + q])]
        p.append(Skip(3))
        a = self.rstats(V(RS), t[3], vMEAN[0], vRSTD[0], t[5])
        b = self.rstats(V(RS + 4), t[4], vMEAN[1], vRSTD[1], t[6])
        for i, j in zip(a, b):
            p += [i] if isinstance(i, Skip) else [i, j]
        return p

    def ff_post(self):
        t = [V(T + n) for n in range(24)]
        p = [valu('v_lshrrev_b32', V(RS), 4, vL), valu('v_lshlrev_b32', V(RS), 4, V(RS))]
        for m in range(3):
            p += [salu('s_add_u32', sT[1], sROT, m), salu('s_cmp_ge_u32', sT[1], 3), salu('s_cselect_b32', sT[2], 3, 0),
                  salu('s_sub_u32', sT[1], sT[1], sT[2]), salu('s_lshl_b32', sT[1], sT[1], 7), salu('s_add_u32', sT[1], sT[1], CSF),
                  valu('v_add_u32', V(RS + 1), sT[1], V(RS)),
                  ds_read('ds_read_b128', V(T + 8 * m, 4), V(RS + 1), 0),
                  ds_read('ds_read_b128', V(T + 8 * m + 4, 4), V(RS + 1), 64)]
        p.append(Skip(2))
        self.h_stores = []
        for m in range(3):
            for q in range(2):
                dst = SS + 4 * ((2 * m + q) & 1)
                for n in (2 * m, 2 * m + 1):
                    a = FACC + 8 * n + 4 * q
                    for r in range(4):
                        p.append(valu('v_fma_f32', V(a + r), '-' + vMEAN[q], V(T + 4 * n + r), V(a + r)))
                    for r in range(4):
                        p.append(valu('v_mul_f32', V(a + r), V(a + r), vRSTD[q]))
                    for hh in range(2):
                        p.append(valu('v_cvt_pk_bf16_f32', V(dst + 2 * (n & 1) + hh), V(a + 2 * hh), V(a + 2 * hh + 1)))
                for r in range(4):
                    p.append(valu('v_pk_max_i16', V(dst + r), V(dst + r), 0))
                s_ = bstore(V(dst, 4), vL16, SWS, sHS[m], q * 1024, 'sc1')
                self.h_stores.append(s_)
                p.append(s_)
        return p

    def qkv_pre(self, hd, packed):
        a = ACC[hd]
        t = [V(T + n) for n in range(24)]
        p = [self.lanes0(ds_write('ds_write_b128', vCQw, V(a + 32, 4), hd * 256)),
             valu('v_cvt_pk_bf16_f32', t[16], V(a + 32), V(a + 33)),
             valu('v_cvt_pk_bf16_f32', t[17], V(a + 34), V(a + 35)),
             ds_write('ds_write_b64', vHKw, V(T + 16, 2), hd * KVH)]
        self.qkv_pub = [i for g in p for i in (g if isinstance(g, Group) else [g]) if i.kind == 'dsw']
        q = []
        for cls in range(2):
            q.append(valu('v_mul_f32', t[18 + cls], vMEAN[cls], vRSTD[cls]))
        for n in range(4):
            for cls in range(2):
                b = a + 8 * n + 4 * cls
                if packed:
                    for r in (0, 2):
                        q.append(I(f"v_pk_mul_f32 {V(b + r, 2)}, {V(b + r, 2)}, {V(30, 2)} op_sel:[0,{cls}] op_sel_hi:[1,{cls}]",
                                   'valu', regs(V(b + r, 2)) + regs(V(30, 2)), regs(V(b + r, 2))))
                else:
                    for r in range(4):
                        q.append(valu('v_mul_f32', V(b + r), V(b + r), vRSTD[cls]))
        return p, q

    def qkv_post(self, hd, packed):
        a = ACC[hd]
        t = [V(T + n) for n in range(24)]
        p = []
        for n in range(4):
            p += [salu('s_add_u32', sT[1], sW, n), salu('s_and_b32', sT[1], sT[1], 3), salu('s_lshl_b32', sT[1], sT[1], 6),
                  salu('s_add_u32', sT[1], sT[1], CSQ + 256 * hd), valu('v_add_u32', t[20], sT[1], vCQr),
                  ds_read('ds_read_b128', V(T + 4 * n, 4), t[20], 0)]
        p.append(Skip(2))
        self.kv_writes = []
        for n in range(4):
            for cls in range(2):
                b = a + 8 * n + 4 * cls
                if packed:
                    for r in (0, 2):
                        p.append(I(f"v_pk_fma_f32 {V(b + r, 2)}, {V(T + 4 * n + r, 2)}, {V(T + 18, 2)}, {V(b + r, 2)} "
                                   f"op_sel:[0,{cls},0] op_sel_hi:[1,{cls},1] neg_lo:[1,0,0] neg_hi:[1,0,0]", 'valu',
                                   regs(V(b + r, 2)) + regs(V(T + 4 * n + r, 2)) + regs(V(T + 18, 2)), regs(V(b + r, 2))))
                else:
                    for r in range(4):
                        p.append(valu('v_fma_f32', V(b + r), '-' + t[18 + cls], V(T + 4 * n + r), V(b + r)))
                p += [valu('v_cvt_pk_bf16_f32', V(b), V(b), V(b + 1)), valu('v_cvt_pk_bf16_f32', V(b + 1), V(b + 2), V(b + 3))]
                w_ = ds_write('ds_write_b64', vKVw[n], V(b, 2), hd * KVH + cls * KVC)
                self.kv_writes.append(w_)
                p.append(w_)
        return p

    def attention(self, hd):
        a = ACC[hd]
        streams = []
        for cls in range(2):
            off = hd * KVH + cls * KVC
            b = a + 16 * cls
            u = T + 12 * cls
            Kf = [V(b, 4), V(b + 4, 4)]
            Qf, Sf = V(b + 8, 4), [V(u, 4), V(u + 4, 4)]
            Vf = Kf
            Pf = Qf
            O0, O1, L = V(u, 4), V(u + 4, 4), V(b + 12, 4)
            m, m2 = V(u + 8), V(u + 9)
            p = [ds_read('ds_read_b64', V(b + 8, 2), vQr, off)]
            p.append(I(f"ds_read_b64 {V(b + 10, 2)}, {V(u + 10)}", 'dsr', [V(u + 10)], regs(V(b + 10, 2))))
            p.insert(0, valu('v_cndmask_b32', V(u + 10), vQ4, V(u + 11), sLO16))
            for k in range(2):
                p += [ds_read('ds_read_b64', V(b + 4 * k, 2), vKr, off + k * 8 * KVR),
                      ds_read('ds_read_b64', V(b + 4 * k + 2, 2), vK4, off + k * 8 * KVR)]
            p.append(Skip(2))
            p += [mfma(Sf[k], Kf[k], Qf, V(MASK + 4 * k, 4)) for k in range(2)]
            for k in range(2):
                p += [ds_read('ds_read_b64_tr_b16', V(b + 2 * k, 2), vVr, off + k * 8 * KVR),
                      ds_read('ds_read_b64_tr_b16', V(b + 4 + 2 * k, 2), vV4, off + k * 8 * KVR)]
            p.append(Skip(1))
            p += [valu('v_max3_f32', m, V(u), V(u + 1), V(u + 2)), valu('v_max3_f32', m2, V(u + 3), V(u + 4), V(u + 5)),
                  valu('v_max3_f32', m, m, V(u + 6), V(u + 7)), valu('v_max_f32', m, m, m2)]
            for sw in ('v_permlane16_swap_b32', 'v_permlane32_swap_b32'):
                p += [valu('v_mov_b32', m2, m), valu(sw, m, m2), valu('v_max_f32', m, m, m2)]
            p.append(valu('v_mul_f32', m, sSCL, m))
            p += [valu('v_fma_f32', V(u + r), V(u + r), sSCL, '-' + m) for r in range(8)]
            p += [valu('v_exp_f32', V(u + r), V(u + r)) for r in range(8)]
            p += [valu('v_cvt_pk_bf16_f32', V(b + 8 + r), V(u + 2 * r), V(u + 2 * r + 1)) for r in range(4)]
            p += [mfma(L, aONES, Pf, 0), mfma(O0, Vf[0], Pf, 0), mfma(O1, Vf[1], Pf, 0), Skip(2)]
            p.append(valu('v_rcp_f32', m, V(b + 12)))
            p += [valu('v_mul_f32', V(u + r), V(u + r), m) for r in range(8)]
            for k in range(2):
                for hh in range(2):
                    p.append(valu('v_cvt_pk_bf16_f32', V(self.oreg(cls, k) + 2 * hd + hh), V(u + 4 * k + 2 * hh), V(u + 4 * k + 2 * hh + 1)))
            streams.append(p)
        pre = []
        for cls in range(2):
            pre.append(valu('v_add_u32', V(T + 12 * cls + 11), hd * KVH + cls * KVC, vQ4))
        out = pre
        for i, j in zip(*streams):
            out += [i] if isinstance(i, Skip) else [i, j]
        return out

    def oreg(self, cls, k):
        return 112 + 8 * cls + 4 * k

    def phase1(self):
        o = self.opt
        main, pos = [], {}
        for s in range(20):
            for n in range(6):
                for q in range(2):
                    d = V(FACC + 8 * n + 4 * q, 4)
                    main.append(mfma(d, V(WF + 4 * n, 4), X(s, q), d if s else 0))
                if n < 2:
                    d = V(CS + 4 * n, 4)
                    main.append(mfma(d, V(WF + 4 * n, 4), aONES, d if s else 0))
                pos['a', s, n] = len(main) - 1
                if n in (1, 3):
                    q = n >> 1
                    d = V(RS + 4 * q, 4)
                    main.append(mfma(d, aONES, X(s, q), d if s else 0))
                    d = V(SS + 4 * q, 4)
                    main.append(mfma(d, X(s, q), X(s, q), d if s else 0))
                    pos['st', s, q] = len(main) - 1
        for g in range(40):
            hd, s = divmod(g, 20)
            a = ACC[hd]
            for n in range(4):
                for q in range(2):
                    d = V(a + 8 * n + 4 * q, 4)
                    main.append(mfma(d, V(WF + 4 * n, 4), X(s, q), d if s else 0))
                if n == 0:
                    d = V(a + 32, 4)
                    main.append(mfma(d, V(WF, 4), V(WF + 16, 4), d if s else 0))
                pos['b', g, n] = len(main) - 1
        w = Weave(main)
        first_b = pos['a', 19, 5] + 1
        stepb = lambda g: first_b + 9 * g
        bar = {}
        dma = {R: self.stage_dma(R) for R in range(o['npro'], 20)}
        for i in range(10):
            bar[i + 1] = pos['st', 2 * i + 1, 0]
        for k in range(9):
            bar[11 + k] = pos['b', 4 * k + 3, 1]
        rawb = [i for g_ in self.rawB for i in g_ if i.kind == 'dma']
        extra = {o['packA']: self.p0a, o['pub1']: self.packA[1], o['packB']: rawb, o['pub2']: self.packB[1]}
        assert len(extra) == 4
        checks = {o['chk1']: 'f1', o['chk2']: 'f2', o['chk3']: 'f3'}
        assert len(checks) == 3
        for R, gb in bar.items():
            if R in checks:
                w.at(gb, self.check(checks[R]))
            w.at(gb, self.ring_barrier(R, extra.get(R, ())))
            w.at(gb, *self.stamp(f'B{R}'))
            if R in (o['pub1'], o['pub2']):
                w.at(gb, bstore(vTAG, vFA, SWS, 0, 0, 'sc1'))
            if R in (o['poll1'], o['poll2'], o['poll3']):
                w.at(gb, bload(vPOLL, vPA, SWS, 0, 0, 'sc1'))
        for s in range(20):
            start = bar[(s >> 1) + 1] if s & 1 else 0
            nxt = 18 * (s + 1)
            if s < 19:
                lim = len(main) if s & 1 else bar[(s >> 1) + 1]
                w.stream(self.x_reads(s + 1), max(start, pos['a', s, 0] - 2), nxt - 1)
                for n in range(6):
                    w.stream(self.w1_reads(s + 1, n), max(start, pos['a', s, n]), min(lim, pos['a', s + 1, n] - 4))
            else:
                for n in range(4):
                    w.stream([self.wq_read(0, n)], max(start, pos['a', s, n]), nxt - 1)
                w.stream([self.halo_read(0)], pos['a', s, 4], nxt - 1)
        for g in range(39):
            start = bar[11 + (g >> 2)] if g & 3 == 3 else 0
            lim = bar.get(11 + (g >> 2), len(main)) if g & 3 == 2 else len(main)
            w.stream([self.wq_read(g + 1, 0), self.halo_read(g + 1)], max(start, pos['b', g, 0]), stepb(g + 1) - 1)
            for n in range(1, 4):
                w.stream([self.wq_read(g + 1, n)], max(start, pos['b', g, n]), min(lim, pos['b', g + 1, n] - 3))
        nxt, plan = o['npro'], []
        for R, gb in [(0, 0)] + list(bar.items()):
            lim = min(R + 3, 9 if R < o['chk1'] else 19, nxt + o['catch'] - 1)
            todo = list(range(nxt, lim + 1))
            nxt = max(nxt, lim + 1)
            seq = []
            for r_ in todo:
                pre = self.stage_pre[r_]
                seq += [(x_, pre.get(k, [])) for k, x_ in enumerate(dma[r_])] + [(None, pre[len(dma[r_])])]
            if R == 0:
                seq += [(x_, []) for x_ in self.halo_loads]
            if R == o['rawB']:
                seq += [(Group([x_[-1]]), x_[:-1]) for x_ in self.rawB]
            for name, pk in (('packA', self.packA), ('packB', self.packB)):
                if R == o[name]:
                    w.stream(pk[0], gb + 1, gb + 14)
                    k = min(len(seq), 4)
                    seq = seq[:k] + [(x_, []) for x_ in pk[1]] + seq[k:]
            if seq:
                plan.append((seq, gb + (1 if len(seq) > 3 else 16), bar[R + 1]))
        annotate([x for seq, _, _ in plan for g_, pre in seq for x in list(pre) + ([g_] if g_ else [])])
        for seq, a_, b_ in plan:
            self.place_mem(w, seq, a_, b_)
        assert 1 <= o['packA'] < o['pub1'] < o['pub2'] <= 14 and o['rawB'] < o['packB'] < o['pub2'] and o['packB'] <= 9
        assert o['poll1'] < o['chk1'] <= 9 and o['chk1'] < o['poll2'] < o['chk2'] < o['poll3'] < o['chk3'] <= 20
        g = w.stream(self.tag, bar[o['packA']] + 1, bar[o['pub1']])
        w.stream(self.f2_pub, bar[o['pub1']] + 1, bar[o['pub1']] + 12)
        w.stream(self.halo, bar[o['halo']], bar[9])
        tp = V(WF + 20)
        assert o['poll2'] >= 11
        w.stream(self.ff_pre() + self.poll_addr(sC, F2, 7, tp, 31), first_b + 4, bar[11])
        wl = [x_ for i in range(7) for x_ in self.w_loads(i)]
        w.spread(wl, bar[o['chk2']] + 2, stepb(o['w_end']))
        g = w.stream(self.ff_post(), bar[11] + 1, stepb(o['ff_end']))
        g = w.stream(self.late_addresses() + self.flag_addr(F3), max(g + 1, bar[o['pub2']] + 1), stepb(20) + 3)
        assert stepb(o['f3_step']) > g
        w.at(stepb(o['f3_step']), Group([wait(vm=self.h_stores), bstore(vTAG, vFA, SWS, 0, 0, 'sc1')]))
        w.stream(self.poll_addr(sTB, F3, 7, tp, 31), max(bar[o['chk2']] + 1, g + 1), bar[o['poll3']])
        if o['chk3'] < 20:
            nA = o['nA_p1b']
            for i in range(nA):
                lo = bar[o['chk3']] + 2 + (stepb(40) - bar[o['chk3']] - 2) * i // nA
                assert lo >= stepb(20 + 2 * i + 2)
                w.spread(self.a_loads(i), lo, bar[o['chk3']] + 2 + (stepb(40) - bar[o['chk3']] - 2) * (i + 1) // nA)
        pre, mul = self.qkv_pre(0, False)
        g = w.stream(pre, stepb(20) + 5)
        g = w.stream(mul[:12], g + 1)
        w.at(g + 1, Group([wait(lgkm=self.qkv_pub), barrier()]))
        g = w.stream(mul[12:] + self.qkv_post(0, False), g + 1, stepb(o['kv_end']))
        g = w.stream([Skip(3)] + [Group([wait(lgkm=self.kv_writes), barrier()])], g)
        w.stream(self.attention(0), g, len(main))
        self.ovf = (w.overflow(0, first_b), w.overflow(first_b, stepb(20)), w.overflow(stepb(20)))
        pro = self.x_reads(0) + [r for n in range(6) for r in self.w1_reads(0, n)]
        return pro + w.flat()

    @staticmethod
    def sprinkle(seq, extra, every, start=0):
        out, n, extra = [], -start, list(extra)
        seq = tie(seq)
        annotate(seq)
        annotate(extra)
        for i in seq:
            out.append(i)
            if isinstance(i, Skip):
                continue
            n += 1
            if extra and n >= every:
                out.append(extra.pop(0))
                n = 0
        return out + extra

    def tail1(self):
        o = self.opt
        p = self.stamp('gemm1')
        pre, mul = self.qkv_pre(1, True)
        late = o['chk3'] == 20
        head = pre + mul + ([self.check('f3')] if late else []) + [Group([wait(lgkm=self.qkv_pub), barrier()])]
        seq = self.qkv_post(1, True) + [Group([wait(lgkm=self.kv_writes), barrier()])] + self.attention(1)
        al = [x_ for i in range(0 if late else o['nA_p1b'], o['nA_att']) for x_ in self.a_loads(i)]
        p += head + self.sprinkle(seq, al, o['att_every']) if late else self.sprinkle(head + seq, al, o['att_every'])
        t0 = V(T)
        self.o_stores = [bstore(V(self.oreg(c, 0), 4), vL16, SWS, sOA, c * 1024, 'sc1') for c in range(2)]
        p += self.o_stores
        p += [valu('v_mov_b32', t0, OOB), valu('v_cndmask_b32', t0, t0, vL16, sLO16)]
        ob = [bstore(V(self.oreg(c, 1), 4), t0, SWS, sOB, c * 1024, 'sc1') for c in range(2)]
        p += ob
        self.o_stores += ob
        p += self.flag_addr(F4) + self.poll_addr(sTB, F4, 7, V(T + 1), 31)
        return p + self.stamp('attn')

    def phase2(self):
        o = self.opt
        t = [V(136 + n) for n in range(60)]
        main = []
        for i in range(17):
            for n in range(5):
                for k in range(4):
                    d = V(P2ACC + 16 * n + 4 * k, 4)
                    main.append(mfma(d, wslot(i, n), aslot(i, k), d if i else 0))
        w = Weave(main)
        pre = [salu('s_mul_i32', sT[1], sTB, 64 * 1280), salu('s_mul_i32', sT[2], sC, 160), salu('s_add_u32', sT[3], sT[1], sT[2]),
               valu('v_mov_b32', t[9], OOB)]
        vO, vRd = t[0:3], t[3:6]
        for r in range(3):
            pre += [valu('v_add_u32', t[6], 256 * r, 'v0')] + self.divc(t[7], t[6], 10, 767)
            pre += [valu('v_mul_u32_u24', t[8], 10, t[7]), valu('v_sub_u32', t[8], t[6], t[8]),
                    valu('v_mul_u32_u24', vO[r], 1280, t[7]), valu('v_lshl_add_u32', vO[r], t[8], 4, vO[r])]
            if r == 2:
                pre += [salu('s_mov_b32', sT[2], 640), valu('v_cmp_gt_u32', S(92, 2), sT[2], t[6]), valu('v_cndmask_b32', vO[r], t[9], vO[r], S(92, 2)),
                        valu('v_and_b32', t[7], 63, t[7])]
            pre += [bload(A(aRES + 4 * r, 4), vO[r], SX, sT[3]),
                    valu('v_and_b32', t[6], 1, t[7]), valu('v_lshlrev_b32', t[6], 4, t[6]),
                    valu('v_and_b32', vRd[r], 32, t[7]), valu('v_add_u32', t[6], t[6], vRd[r]),
                    valu('v_bfe_u32', vRd[r], t[7], 1, 4), valu('v_add_u32', t[6], t[6], vRd[r]),
                    valu('v_mul_u32_u24', t[6], REDR, t[6]), valu('v_lshl_add_u32', vRd[r], t[8], 5, t[6])]
        vRw = t[10]
        pre += [valu('v_and_b32', t[6], 15, vL), valu('v_mul_u32_u24', t[6], REDR, t[6]), valu('v_lshrrev_b32', t[7], 4, vL),
                valu('v_lshl_add_u32', t[6], t[7], 4, t[6]), salu('s_mul_i32', sT[1], sW, REDW),
                valu('v_add_u32', vRw, sT[1], t[6])]
        nexta = o['nA_att']
        for i in range(17):
            g0 = 20 * i
            w.at(g0, *self.stamp(f'S{i}'))
            if i == o['f4_step']:
                w.at(g0, Group([wait(vm=self.o_stores), bstore(vTAG, vFA, SWS, 0, 0, 'sc1')]))
            if i == o['poll4']:
                w.at(g0 + 1, bload(vPOLL, vPA, SWS, 0, 0, 'sc1'))
            if i == o['chk4']:
                w.at(g0 + 19, self.check('f4'), barrier())
            if i + 7 < 17:
                for n, x_ in enumerate(self.w_loads(i + 7)):
                    w.at(g0 + 4 * n + 3, x_)
            lim = min(i + 10, 16 if i >= o['chk4'] else 11)
            k = 0
            while nexta <= lim and k < o['a_rate'] and i < 16:
                for tt, x_ in enumerate(self.a_loads(nexta)):
                    w.at(g0 + 21 + (4 * k + tt) * 18 // (4 * o['a_rate']), x_)
                nexta += 1
                k += 1
        assert nexta == 17
        w.stream(pre, 45, 20 * o['chk4'] + 15)
        p = w.flat() + self.stamp('gemm2')
        ws_ = []
        for n in range(5):
            for k in range(4):
                ws_.append(ds_write('ds_write_b128', vRw, V(P2ACC + 16 * n + 4 * k, 4), RED + k * 16 * REDR + 64 * n))
        p += ws_ + [Group([wait(all_lgkm=True), barrier()])] + self.stamp('redbar')
        R0 = 40
        for r in range(3):
            for wv in range(4):
                for hh in range(2):
                    p.append(ds_read('ds_read_b128', V(R0 + 32 * r + 8 * wv + 4 * hh, 4), vRd[r], RED + wv * REDW + 16 * hh))
        pk = lambda op, d, a_, b_: I(f"{op} {d}, {a_}, {b_}", 'valu', regs(a_) + regs(b_), regs(d))
        for r in range(3):
            b = R0 + 32 * r
            for k in range(4):
                p.append(valu('v_accvgpr_read_b32', t[12 + k], A(aRES + 4 * r + k)))
            for k in range(4):
                p += [valu('v_lshlrev_b32', t[16 + 2 * k], 16, t[12 + k]), valu('v_and_b32', t[17 + 2 * k], 0xffff0000, t[12 + k])]
            for k in range(4):
                p.append(pk('v_pk_add_f32', V(b + 2 * k, 2), V(b + 2 * k, 2), V(b + 8 + 2 * k, 2)))
            for k in range(4):
                p.append(pk('v_pk_add_f32', V(b + 16 + 2 * k, 2), V(b + 16 + 2 * k, 2), V(b + 24 + 2 * k, 2)))
            for k in range(4):
                p.append(pk('v_pk_add_f32', V(b + 2 * k, 2), V(b + 2 * k, 2), V(152 + 2 * k, 2)))
            for k in range(4):
                p.append(pk('v_pk_add_f32', V(b + 2 * k, 2), V(b + 2 * k, 2), V(b + 16 + 2 * k, 2)))
            for k in range(4):
                p.append(valu('v_cvt_pk_bf16_f32', V(b + 8 + k), V(b + 2 * k), V(b + 2 * k + 1)))
            p.append(bstore(V(b + 8, 4), vO[r], SOUT, sT[3]))
        p += [valu('v_mov_b32', t[6], OOB), valu('v_or_b32', t[7], 's2', 'v0'), valu('v_cmp_ne_u32', 'vcc', 0, t[7]),
              valu('v_cndmask_b32', t[6], 0, t[6], 'vcc'), bstore(vTAG, t[6], SWS, 0, 0, 'sc1')]
        return p

    def stamp_out(self):
        if not self.stamps:
            return []
        p = self.stamp('end')
        p += [raw("s_memrealtime s[82:83]", wr=['s82', 's83']), raw("s_waitcnt lgkmcnt(0)"),
              raw(f"v_writelane_b32 {vJUNK}, s82, 63", rd=['s82'], wr=[vJUNK], kind='valu'),
              raw(f"v_writelane_b32 {vJUNK}, s84, 62", rd=['s84'], wr=[vJUNK], kind='valu'),
              salu('s_lshl2_add_u32', sT[1], 's2', sW), salu('s_lshl_b32', sT[1], sT[1], 8), salu('s_add_u32', sT[1], sT[1], STAMP),
              valu('v_lshlrev_b32', V(140), 2, vL), bstore(vJUNK, V(140), SWS, sT[1])]
        if self.opt.get('dbg'):
            p += [raw(f"v_readlane_b32 s82, {vJUNK}, 0", rd=[vJUNK], wr=['s82'], kind='rdlane'),
                  raw(f"v_readlane_b32 s83, {vJUNK}, 61", rd=[vJUNK], wr=['s83'], kind='rdlane'),
                  raw(f"v_readlane_b32 s85, {vJUNK}, 63", rd=[vJUNK], wr=['s85'], kind='rdlane'),
                  valu('v_subrev_u32', V(141), 's82', vJUNK),
                  salu('s_sub_u32', 's85', 's85', 's83'),
                  raw("v_writelane_b32 v141, s85, 12", rd=['s85'], wr=['v141'], kind='valu'),
                  raw("v_writelane_b32 v141, s84, 13", rd=['s84'], wr=['v141'], kind='valu'),
                  salu('s_mov_b32', 's4', 's98'), salu('s_mov_b32', 's5', 's99'), salu('s_mov_b32', 's6', 64),
                  salu('s_lshl2_add_u32', sT[1], 's2', sW),
                  salu('s_cmp_eq_u32', sT[1], self.opt['dbg']), salu('s_cselect_b32', sT[1], 0, 256),
                  bstore(V(141), V(140), SX, sT[1])]
        return p

    def build(self):
        self.stage_ops = {}
        self.stage_pre = {}
        prog = self.startup() + self.phase1() + self.tail1() + self.phase2() + self.stamp_out()
        abl = self.opt.get('abl', 0)
        if abl:
            prog = flatten(prog)
            nb, keep = 0, []
            for i in prog:
                nb += i.kind == 'barrier'
                flag = i.kind == 'vst' and 'dwordx4' not in i.text
                drop = (abl & 1 and i.kind == 'dma' and nb >= 2) or (abl & 2 and i.kind == 'vst' and not flag) or \
                       (abl & 4 and i.kind == 'vld' and nb >= 2 and 'dwordx4' in i.text) or \
                       (abl & 8 and i.kind == 'mfma') or (abl & 16 and i.kind == 'dsr') or \
                       (abl & 32 and i.kind in VALUS and 2 <= nb <= 21 and 'v_cmp_ne_u32 vcc, s37' not in i.text
                        and i.wr and i.wr[0] not in ('v24', 'v25', 'v27', 's37', 'vcc', 'v144', 'v194', 'v195') and int(i.wr[0][1:]) >= 32)
                if not drop:
                    i.meta.pop('exp', None)
                    keep.append(i)
            prog = keep
        prog = finalize(prog)
        self.prog = prog
        body = "\n".join(("" if i.kind == 'label' else "    ") + i.text for i in prog)
        return f"""; Fused LayerNorm + sliding-window attention + ReLU FFN + residual, one workgroup per CU.
; @launch grid=(256,1,1) block=(256,1,1) lds={LDS_SIZE}
.amdgcn_target "amdgcn-amd-amdhsa--gfx950"
.text
.globl {NAME}
.p2align 8
.type {NAME},@function
{NAME}:
{body}
L_end:
    s_endpgm
{"".join(self.slow)}L_last:
.section .rodata,"a"
.p2align 6
.amdhsa_kernel {NAME}
  .amdhsa_next_free_vgpr 512
  .amdhsa_next_free_sgpr 102
  .amdhsa_accum_offset 256
  .amdhsa_group_segment_fixed_size 0
  .amdhsa_kernarg_size 72
  .amdhsa_user_sgpr_count 2
  .amdhsa_user_sgpr_kernarg_segment_ptr 1
  .amdhsa_system_sgpr_workgroup_id_x 1
.end_amdhsa_kernel
"""


if __name__ == "__main__":
    out = sys.argv[1]
    opts = dict(kv.split('=') for kv in sys.argv[2:])
    opts = {k: int(v) for k, v in opts.items()}
    g = Gen(stamps=opts.pop('stamps', 0), **opts)
    open(out, "w").write(g.build())
    print(stats(g.prog), g.ovf)
```

```python
import struct
import sys
from fw import *

NAME = "parallel_sum__sliding_local_dilated__dense_activation_relu__prompt_kernel"

F1, F2, F3, F4 = 0x1000, 0x2000, 0x3000, 0x5000
ST = 0x8000
WQ = 0x10000
WQJ = 163840
W2P = 0x290000
W2C = 348160
ACT = 0x540000
ACTB = 278528
STAMP = 0xE00000
WS_SIZE = 0x1000000
OOB = 0x7ffffff0

HALO = 0
XR = 20480
W1R = 86016
P0A = 135168
P0B = 147456
CSF = 159744
CSQ = CSF + 512
ZERO = CSF + 1024
DUMMY = CSF + 2048
KV = W1R
KVR, KVC, KVH = 136, 9792, 19584
RED, REDR, REDW = 0, 336, 21504
LDS_SIZE = 163840

SX, SWQKV, SWO, SW1, SW2, SOUT, SWS = (S(n, 4) for n in (4, 8, 12, 16, 20, 24, 28))
sW, sB, sJ, sTB, sC, sTAG = (S(n) for n in range(32, 38))
sXb, sXl, sW1, sW1l, sWQ, sAP = (S(n) for n in range(38, 44))
sHS = [S(44), S(45), S(46)]
sOA, sOB, sAh, sAo, sAb, sWh, sWo, sWb = (S(n) for n in range(47, 55))
sT = [S(n) for n in range(55, 68)]
sROT, sCNT = S(68), S(69)
sROW0 = S(70, 2)
sU1, sU2, sU3 = S(72, 2), S(74, 2), S(76, 2)
sSCL = S(78)
sCMP = S(81)
sLO16 = S(0, 2)
sLA, sLW = S(79), S(80)
sKP, sXs, sW1b, sG, sWQb, sR, sR2 = (S(n) for n in range(85, 92))
STAMP0 = 82

vL, vL16, vL16b = V(1), V(2), V(3)
vXa = [V(4), V(5), V(28), V(29)]
vXr = [V(6), V(7)]
vW1a = [V(8), V(9), V(10)]
vW1r = [V(n) for n in range(11, 17)]
vHr = [V(17), V(18)]
vWr = [V(n) for n in range(19, 23)]
vPOLL, vPA, vFA, vJUNK, vTAG = V(23), V(24), V(25), V(26), V(27)
vMEAN = [V(28), V(29)]
vRSTD = [V(30), V(31)]
vKVw = [V(n) for n in range(8, 12)]
vHKw, vKr, vK4, vVr, vV4 = V(12), V(13), V(14), V(15), V(16)
vQr, vQ4, vCQr, vCQw = V(4), V(5), V(6), V(7)
MASK = 32
WF = 40
FACC, RS, SS, CS = 64, 112, 120, 128
vMEANH, vRSTDH = V(61), V(62)
vSA, vSH = V(126), V(127)
ACC = [136, 64]
OKEEP = 128
T = 172
WSLOT = [A(160 + 20 * i, 1) for i in range(4)]
aONES = A(240, 4)
aRES = 244
P2ACC = 40


def f2u(x):
    return struct.unpack('<I', struct.pack('<f', x))[0]


def X(s, p):
    return A(8 * s + 4 * p, 4)


def wslot(i, n):
    i %= 7
    return A(160 + 20 * i + 4 * n, 4) if i < 4 else V(196 + 20 * (i - 4) + 4 * n, 4)


def aslot(i, t):
    return A(16 * (i % 10) + 4 * t, 4)


LIGHT = ('start', 'B0', 'B5', 'B10', 'B15', 'gemm1', 'attn', 'S5', 'S11', 'gemm2', 'end')


class Gen:
    def __init__(self, stamps=False, **opt):
        self.stamps = stamps
        self.nstamp = 0
        self.stamp_names = []
        self.slow = []
        self.opt = dict(rot=4, rot2=0, npro=2, catch=2, pro_every=99, rawA=-1, haloL=0, packA=1, pub1=3, halo=4, statL=7, srow=0, statC=1, poll1=6, chk1=8,
                        rawB=3, packB=7, pub2=10, poll2=13, chk2=16, w_end=39, ff_end=12, f3_step=21, poll3=18, chk3=20,
                        kv_end=30, pre2=45, nA_p1b=1, nA_att=8, att_every=8, a_rate=2, f4_step=4, poll4=7, chk4=9)
        self.opt.update(opt)

    def stamp(self, name):
        if not self.stamps or (self.stamps == 1 and name not in LIGHT):
            return []
        k = self.nstamp
        assert k < 61
        self.nstamp += 1
        self.stamp_names.append(name)
        rt = self.stamps == 1
        return [Group([raw("s_memtime s[82:83]", wr=['s82', 's83'])] +
                      ([raw("s_memrealtime s[100:101]", wr=['s100', 's101'])] if rt else []) +
                      [raw("s_waitcnt lgkmcnt(0)", drains_lgkm=True),
                       raw(f"v_writelane_b32 {vJUNK}, s82, {k}", rd=['s82'], kind='salu')] +
                      ([raw(f"v_writelane_b32 {vJUNK}, s100, {32 + k}", rd=['s100'], kind='salu')] if rt else []))]

    def check(self, name):
        self.slow.append(f"""L_slow_{name}:
{f"    s_add_u32 s84, s84, {1 << (4 * len(self.slow))}" if self.stamps else ""}
    s_mov_b32 {sCNT}, 0x8000
L_spin_{name}:
    s_sleep 2
    buffer_load_dword {vPOLL}, {vPA}, {SWS}, 0 offen sc1
    s_waitcnt vmcnt(0)
    v_cmp_ne_u32 vcc, {sCMP}, {vPOLL}
    s_sub_u32 {sCNT}, {sCNT}, 1
    s_cbranch_scc1 L_ok_{name}
    s_cbranch_vccnz L_spin_{name}
    s_branch L_ok_{name}
""")
        return Group([valu('v_cmp_ne_u32', 'vcc', sCMP, vPOLL),
                      raw(f"s_cbranch_vccnz L_slow_{name}", rd=['vcc'], kind='branch'),
                      raw(f"L_ok_{name}:", kind='label', states=0)])

    def divc(self, dst, src, d, maxv):
        for sh in range(8, 24):
            m = -(-(1 << sh) // d)
            if m * maxv < (1 << 32) and m < (1 << 24) and all((v * m) >> sh == v // d for v in range(maxv + 1)):
                return [valu('v_mul_u32_u24', dst, m, src), valu('v_lshrrev_b32', dst, sh, dst)]
        raise ValueError

    def rstats(self, vs, vq, dst, t):
        inv = f2u(1.0 / 640.0)
        return [valu('v_mul_f32', vs, inv, vs),
                valu('v_mul_f32', t, inv, vq),
                valu('v_fma_f32', t, '-' + vs, vs, t),
                valu('v_max_f32', t, 0, t),
                valu('v_cvt_pk_bf16_f32', t, t, t),
                valu('v_lshlrev_b32', t, 16, t),
                valu('v_add_f32', t, f2u(1e-5), t),
                valu('v_cvt_pk_bf16_f32', t, t, t),
                valu('v_lshlrev_b32', t, 16, t),
                valu('v_sqrt_f32', t, t),
                valu('v_cvt_pk_bf16_f32', dst, vs, t)]

    def stat_loads(self):
        return [bload(V(RS, 4), vSA, SWS, 0, 0, 'sc1'), bload(V(RS + 4, 2), vSH, SWS, 0, 0, 'sc1')]

    def check_stats(self):
        t = V(RS + 6)
        test = [valu('v_xor_b32', t, vTAG, V(RS + 1)), valu('v_xor_b32', V(RS + 7), vTAG, V(RS + 3)),
                valu('v_xor_b32', V(RS + 5), vTAG, V(RS + 5)), valu('v_or3_b32', t, t, V(RS + 7), V(RS + 5)),
                valu('v_cmp_ne_u32', 'vcc', 0, t)]
        body = "\n".join("    " + i.text for i in self.stat_loads()) + "\n    s_waitcnt vmcnt(0)\n" + \
            "\n".join("    " + i.text for i in test)
        self.slow.append(f"""L_slow_st:
{f"    s_add_u32 s84, s84, {1 << (4 * len(self.slow))}" if self.stamps else ""}
    s_mov_b32 {sCNT}, 0x8000
L_spin_st:
    s_sleep 2
{body}
    s_sub_u32 {sCNT}, {sCNT}, 1
    s_cbranch_scc1 L_ok_st
    s_cbranch_vccnz L_spin_st
    s_branch L_ok_st
""")
        return test[:-1] + [Group([test[-1], raw("s_cbranch_vccnz L_slow_st", rd=['vcc'], kind='branch'),
                                   raw("L_ok_st:", kind='label', states=0)])]

    def stage_dma(self, R):
        slot, out = R & 3, []
        if R < 10:
            for k in range(4):
                out.append(Group([bdma(vXa[k], SX, sXs, k * 1024)]))
            for m in range(3):
                out.append(Group([bdma(vW1a[m], SW1, sW1, m * 1024)]))
            self.stage_pre[R] = {0: [salu('s_add_u32', 'm0', sXl, slot * 4096)],
                                 4: [salu('s_add_u32', 'm0', sW1l, slot * 12288)],
                                 7: [salu('s_add_u32', sKP, sKP, 1),
                                     Group([salu('s_cmp_eq_u32', sKP, 10), salu('s_cselect_b32', sKP, 0, sKP)]),
                                     salu('s_lshl_b32', sXs, sKP, 7), salu('s_add_u32', sXs, sXs, sXb),
                                     salu('s_mul_i32', sW1, sKP, 64 * 3072), salu('s_add_u32', sW1, sW1, sW1b)] if R < 9 else []}
        else:
            for m in range(4):
                out.append(Group([bdma(vL16, SWS, sWQ, m * 1024, 'sc1')]))
            self.stage_pre[R] = {0: [salu('s_add_u32', 'm0', sXl, slot * 4096)],
                                 4: [salu('s_add_u32', sG, sG, 4),
                                     Group([salu('s_cmp_ge_u32', sG, 20), salu('s_cselect_b32', sWQ, 20, 0)]),
                                     salu('s_sub_u32', sG, sG, sWQ), salu('s_lshl_b32', sWQ, sG, 12),
                                     salu('s_add_u32', sWQ, sWQ, sWQb)] +
                                    ([salu('s_add_u32', sWQ, sWQ, 81920)] if R >= 14 else []) if R < 19 else []}
        self.stage_ops[R] = [i for g in out for i in g if i.kind == 'dma']
        return out

    def inline_stage(self, R):
        out, pre = self.stage_dma(R), self.stage_pre[R]
        for k, ins in pre.items():
            ins = flatten(ins)
            if k < len(out):
                out[k][:0] = ins
            else:
                out[-1].extend(ins)
        return out

    def place_mem(self, w, seq, start, end):
        n = sum(1 for g, _ in seq if g)
        first = start + len(seq[0][1])
        last = end - (min(len(seq[-1][1]), 3) if seq[-1][0] is None else 0) - 1
        prev, k, carry = start - 1, 0, []
        for g, pre in seq + [(None, None)]:
            if pre is not None:
                carry += pre
            if g is None and pre is not None:
                continue
            if g is not None:
                lo = min(max(prev + 1, first + (last - first) * k // n), end - 1)
                hi = min(max(lo + 1, first + (last - first) * (k + 1) // n - 1), end)
                at = min(range(lo, hi), key=lambda x: (max(gcost(w.v[x] + vcost(g), w.s[x] + scost(g)) - w.cap, 0), x))
                k += 1
            else:
                at = end
            room = at - prev - 1
            if room <= 0:
                if g is not None:
                    w.at(at, Group(flatten(carry) + flatten([g])))
                elif carry:
                    w.at(prev, Group(flatten(carry)))
            else:
                for j, c in enumerate(carry):
                    w.at(prev + 1 + (j if len(carry) <= room else j * room // len(carry)), c)
                if g is not None:
                    w.at(at, g)
            carry, prev = [], at

    def ring_barrier(self, R, extra_vm=()):
        return Group([wait(vm=self.stage_ops[R] + list(extra_vm), all_lgkm=True), barrier()])

    def p2_steps(self):
        return [(sAh, sWh, i) for i in range(12)] + [(sAo, sWo, i) for i in range(4)] + [(sAb, sWb, 0)]

    def step_base(self, dst, base, k, stride, i):
        m = self.opt['rot2']
        if i == 16 or not m or (m == 12 and i >= 12):
            return [salu('s_add_u32', dst, base, k * stride)]
        if m in (2, 4):
            return [salu('s_add_u32', dst, sR2, k & (m - 1)), salu('s_and_b32', dst, dst, m - 1), salu('s_mul_i32', dst, dst, stride),
                    salu('s_add_u32', dst, dst, base)] + ([salu('s_add_u32', dst, dst, (k & ~(m - 1)) * stride)] if k >= m else [])
        return [salu('s_cmp_ge_u32', sR2, 12 - k), salu('s_cselect_b32', dst, (k - 12) & 0xffffffff, k),
                salu('s_add_u32', dst, dst, sR2), salu('s_mul_i32', dst, dst, stride), salu('s_add_u32', dst, dst, base)]

    def w_loads(self, i):
        _, sw, k = self.p2_steps()[i]
        out = []
        for n in range(5):
            g = [bload(wslot(i, n), vL16 if n < 4 else vL16b, SWS, sLW, (n & 3) * 1024, 'sc1')]
            if n == 0:
                g[:0] = self.step_base(sLW, sw, k, 5120, i)
            out.append(Group(g))
        return out

    def a_loads(self, i):
        sa, _, k = self.p2_steps()[i]
        out = []
        for t in range(4):
            g = [bload(aslot(i, t), vL16, SWS, sLA, t * 1024, 'sc1')]
            if t == 0:
                g[:0] = self.step_base(sLA, sa, k, 4096, i)
            out.append(Group(g))
        return out

    def startup(self):
        t = [V(n) for n in range(136, 256)]
        vQ, vZ, vOOB, vU, vHu, vR, vCC, vPs = t[5], t[7], t[14], t[15], t[16], t[17], t[18], t[19]
        rdA, soA = [t[20], t[21], t[22]], [sT[8], sT[9], sT[10]]
        rdB, stB, ldB = [t[23], t[24], t[25]], [t[26], t[27], t[28]], [t[29], t[30], t[31]]
        s6T, s5T, sW2c = sT[6], sT[7], sT[11]
        H, PK = 200, 176
        p = []
        e = p.append
        x = p.extend
        e(salu('s_cmp_ge_u32', 's2', 256))
        e(raw("s_cbranch_scc1 L_end", rd=['scc'], kind='branch'))
        e(salu('s_getpc_b64', S(56, 2)))
        e(raw("L_pc:", kind='label', states=0))
        for r, off in ((4, 0), (16, 32), (8, 8), (28, 64), (12, 16), (20, 40), (24, 48)):
            e(raw(f"s_load_dwordx2 {S(r, 2)}, s[0:1], {off}", wr=regs(S(r, 2))))
        if self.opt.get('dbg'):
            e(raw("s_load_dwordx2 s[98:99], s[0:1], 56", wr=['s98', 's99']))
        e(salu('s_lshr_b32', sT[0], 's2', 3))
        e(salu('s_lshl_b32', sT[4], sT[0], 4))
        e(valu('v_lshrrev_b32', t[0], 6, 'v0'))
        e(valu('v_and_b32', t[1], 3, 'v0'))
        e(valu('v_lshl_add_u32', t[1], t[0], 2, t[1]))
        e(valu('v_add_lshl_u32', t[1], sT[4], t[1], 7))
        e(valu('v_min_u32', t[1], 'L_last-L_pc-4', t[1]))
        e(valu('v_mov_b32', t[3], 's57'))
        e(I(f"v_add_co_u32 {t[2]}, vcc, s56, {t[1]}", 'valu', ['s56', t[1]], [t[2], 'vcc']))
        e(valu('v_readfirstlane_b32', sW, t[0]))
        e(valu('v_and_b32', vL, 63, 'v0'))
        e(I(f"v_addc_co_u32 {t[3]}, vcc, 0, {t[3]}, vcc", 'valu', [t[3], 'vcc'], [t[3], 'vcc']))
        e(I(f"global_load_dword v255, {V(138, 2)}, off", 'vld', [t[2], t[3]], ['v255']))
        x(self.stamp('start'))
        if self.stamps:
            e(salu('s_mov_b32', 's84', 0))
            e(raw("s_memrealtime s[82:83]", wr=['s82', 's83']))
            e(raw("s_waitcnt lgkmcnt(0)"))
            e(raw(f"v_writelane_b32 {vJUNK}, s82, 61", rd=['s82'], kind='salu'))
        e(salu('s_and_b32', sT[3], 's2', 7))
        e(salu('s_lshr_b32', sT[4], sT[3], 1))
        e(salu('s_and_b32', sT[3], sT[3], 1))
        e(salu('s_and_b32', sB, sT[0], 3))
        e(salu('s_lshl2_add_u32', sB, sT[4], sB))
        e(valu('v_lshrrev_b32', t[4], 3, vL))
        e(valu('v_lshrrev_b32', vQ, 4, vL))
        e(valu('v_and_b32', t[6], 7, vL))
        e(valu('v_xor_b32', t[6], t[6], vQ))
        e(valu('v_lshlrev_b32', t[6], 4, t[6]))
        e(valu('v_mul_u32_u24', vXa[0], 2560, t[4]))
        e(valu('v_add_u32', vXa[0], vXa[0], t[6]))
        e(valu('v_xor_b32', vXa[2], 64, vXa[0]))
        e(valu('v_add_u32', vXa[1], 1280 - 1024, vXa[0]))
        e(valu('v_add_u32', vXa[3], 20480 + 1280 - 3072, vXa[2]))
        e(valu('v_add_u32', vXa[2], 20480 - 2048, vXa[2]))
        rot = self.opt['rot']
        if rot == 1:
            e(salu('s_and_b32', sR, sT[0], 3))
            e(salu('s_mul_i32', sR, sR, 5))
            e(salu('s_lshr_b32', sR, sR, 1))
            e(salu('s_lshr_b32', sKP, sT[0], 2))
            e(salu('s_add_u32', sR, sR, sKP))
            e(salu('s_cmp_ge_u32', sR, 10))
            e(salu('s_cselect_b32', sKP, 10, 0))
            e(salu('s_sub_u32', sR, sR, sKP))
        elif rot == 2:
            e(salu('s_lshr_b32', sR, sT[0], 2))
            e(salu('s_xor_b32', sR, sR, sT[0]))
            e(salu('s_and_b32', sR, sR, 1))
            e(salu('s_mul_i32', sR, sR, 5))
        elif rot == 4:
            e(salu('s_lshr_b32', sR, sT[0], 2))
            e(salu('s_add_u32', sR, sR, sT[0]))
            e(salu('s_and_b32', sR, sR, 3))
            e(salu('s_mul_i32', sR, sR, 5))
            e(salu('s_lshr_b32', sR, sR, 1))
        elif rot in (5, 6):
            e(salu('s_and_b32', sR, sT[0], 3))
            e(salu('s_mul_i32', sR, sR, 5))
            e(salu('s_lshr_b32', sR, sR, 1))
            if rot == 5:
                e(salu('s_lshr_b32', sKP, sT[0], 2))
            else:
                e(salu('s_lshr_b32', sKP, sT[0], 2))
                e(salu('s_and_b32', sKP, sKP, 3))
                e(salu('s_mul_i32', sKP, sKP, 5))
                e(salu('s_lshr_b32', sKP, sKP, 1))
            e(salu('s_add_u32', sR, sR, sKP))
            e(salu('s_mul_i32', sKP, sT[3], 5 if rot == 5 else 1))
            e(salu('s_add_u32', sR, sR, sKP))
            e(salu('s_add_u32', sR, sR, sT[4]))
            e(salu('s_mul_i32', sKP, sR, 26))
            e(salu('s_lshr_b32', sKP, sKP, 8))
            e(salu('s_mul_i32', sKP, sKP, 10))
            e(salu('s_sub_u32', sR, sR, sKP))
        else:
            e(salu('s_mov_b32', sR, 0))
        e(salu('s_mov_b32', sKP, sR))
        e(salu('s_lshl2_add_u32', sXb, sB, sW))
        e(salu('s_mul_i32', sXb, sXb, 32 * 1280))
        e(salu('s_lshl_b32', sXs, sKP, 7))
        e(salu('s_add_u32', sXs, sXs, sXb))
        e(salu('s_lshl_b32', sXl, sW, 14))
        e(salu('s_add_u32', sXl, sXl, XR))
        for r, size in ((4, 2621440), (16, 1966080)):
            e(salu('s_mov_b32', S(r + 2), size))
            e(salu('s_mov_b32', S(r + 3), 0x20000))
        e(salu('s_lshr_b32', sJ, sT[0], 2))
        e(salu('s_lshl3_add_u32', sJ, sT[3], sJ))
        e(salu('s_mul_i32', sW1b, sW, 16 * 3072))
        e(salu('s_mul_i32', sT[1], sJ, 192))
        e(salu('s_add_u32', sW1b, sW1b, sT[1]))
        e(salu('s_mul_i32', sW1, sKP, 64 * 3072))
        e(salu('s_add_u32', sW1, sW1, sW1b))
        e(salu('s_mul_i32', sW1l, sW, 3072))
        e(salu('s_add_u32', sW1l, sW1l, W1R))
        e(salu('s_mov_b32', S(30), WS_SIZE))
        e(salu('s_mov_b32', S(31), 0x20000))
        vSr, vSt, SR = V(232), V(233), 236
        e(valu('v_mov_b32', vZ, 0))
        e(valu('v_mov_b32', vOOB, OOB))
        e(salu('s_lshl2_add_u32', sT[1], sJ, sW))
        e(salu('s_lshl_b32', sT[1], sT[1], 1))
        e(salu('s_lshl_b32', sT[2], sB, 7))
        e(salu('s_add_u32', sT[1], sT[1], sT[2]))
        e(valu('v_lshrrev_b32', vSt, 5, vL))
        e(valu('v_add_u32', vSt, sT[1], vSt))
        e(valu('v_and_b32', t[8], 31, vL))
        e(valu('v_cmp_gt_u32', 'vcc', 16, t[8]))
        e(valu('v_mul_u32_u24', vSr, 1280, vSt))
        e(valu('v_lshl_add_u32', vSr, t[8], 4, vSr))
        e(valu('v_cndmask_b32', V(234), vOOB, vSr, 'vcc'))
        e(raw("s_waitcnt lgkmcnt(0)", drains_lgkm=True))
        x(self.stamp('karg'))
        srow = [bload(V(SR, 4), vSr, SX), bload(V(SR + 4, 4), vSr, SX, 0, 512), bload(V(SR + 8, 4), V(234), SX, 0, 1024),
                bload(vTAG, vZ, SWS, 0, 0, 'sc1')]
        if self.opt['srow'] == 0:
            x(srow)
        npro = self.opt['npro']
        st = [self.inline_stage(R) for R in range(npro)]

        def w1_addr(m):
            return [valu('v_add_u32', t[8], 64 * m, vL)] + self.divc(t[9], t[8], 12, 191) + [
                valu('v_mul_u32_u24', t[10], 12, t[9]), valu('v_sub_u32', t[8], t[8], t[10]),
                valu('v_lshrrev_b32', t[10], 2, t[9]), valu('v_and_b32', t[10], 2, t[10]),
                valu('v_xor_b32', t[8], t[8], t[10]), valu('v_mul_u32_u24', t[9], 3072, t[9]),
                valu('v_lshl_add_u32', vW1a[m], t[8], 4, t[9])] + (
                [valu('v_subrev_u32', vW1a[m], 1024 * m, vW1a[m])] if m else [])
        e(st[0][0])
        e(st[0][1])
        x(w1_addr(0))
        e(st[0][2])
        x(w1_addr(1))
        e(st[0][3])
        x(self.stamp('st0x'))
        x(w1_addr(2))
        e(st[0][4])
        e(salu('s_and_b32', sTB, sT[0], 7))
        e(salu('s_lshl3_add_u32', sTB, sT[4], sTB))
        e(salu('s_lshr_b32', sC, sT[0], 3))
        e(salu('s_lshl2_add_u32', sC, sT[3], sC))
        for r, size in ((8, 2457600), (12, 819200), (20, 1966080), (24, 2621440)):
            e(salu('s_mov_b32', S(r + 2), size))
            e(salu('s_mov_b32', S(r + 3), 0x20000))
        e(st[0][5])
        e(st[0][6])
        x(self.stamp('st0w'))
        if self.opt['srow'] == 1:
            x(srow)
        self.p0a, self.rawA = [], []
        early = self.opt['rawA'] < 0
        ldA, sA = [V(229), V(230), V(231)], S(97)
        later = []
        e_, x_ = (e, x) if early else (later.append, later.extend)
        e_(salu('s_mul_i32', sA, sB, 40 * 3840))
        e_(salu('s_mul_i32', sT[2], sJ, 80))
        e_(salu('s_add_u32', sA, sA, sT[2]))
        e_(salu('s_mul_i32', sT[2], sW, 192))
        for m in range(3):
            e_(valu('v_add_u32', t[8], sT[2], vL))
            if m:
                e_(valu('v_add_u32', t[8], 64 * m, t[8]))
            x_(self.divc(t[9], t[8], 15, 767))
            e_(valu('v_mul_u32_u24', t[10], 15, t[9]))
            e_(valu('v_sub_u32', t[10], t[8], t[10]))
            e_(valu('v_cmp_gt_u32', 'vcc', 600, t[8]))
            x_(self.divc(t[11], t[10], 5, 14))
            e_(valu('v_mul_u32_u24', t[9], 3840, t[9]))
            e_(valu('v_mul_u32_u24', t[11], 1200, t[11]))
            e_(valu('v_lshlrev_b32', t[10], 4, t[10]))
            e_(valu('v_add3_u32', t[9], t[9], t[10], t[11]))
            e_(valu('v_cndmask_b32', ldA[m], vOOB, t[9], 'vcc'))
            d = bdma(ldA[m], SWQKV, sA)
            g_ = Group([salu('s_mul_i32', sT[5], sW, 3072), salu('s_add_u32', 'm0', sT[5], P0A + 1024 * m), d])
            self.p0a.append(d)
            if early:
                e(g_)
            else:
                self.rawA.append(g_)
        x(self.stamp('p0a'))

        q = later
        e = q.append
        x = q.extend
        vHa = t[32]
        e(valu('v_and_b32', vU, 15, vL))
        e(valu('v_bfe_u32', vR, vL, 2, 2))
        e(valu('v_and_b32', vCC, 3, vL))
        e(salu('s_and_b32', sT[1], sW, 1))
        e(salu('s_lshl_b32', sT[2], sT[1], 3))
        e(valu('v_lshrrev_b32', vHu, 3, vL))
        e(valu('v_add_u32', vHu, sT[2], vHu))
        e(salu('s_lshl_b32', sT[2], sB, 7))
        e(salu('s_sub_u32', sT[2], sT[2], 16))
        e(valu('v_add_u32', vHa, sT[2], vHu))
        e(valu('v_cmp_le_i32', 'vcc', 0, vHa))
        e(valu('v_lshrrev_b32', t[8], 1, vHu))
        e(valu('v_xor_b32', t[8], t[8], vL))
        e(valu('v_and_b32', t[8], 7, t[8]))
        e(valu('v_mul_u32_u24', vHa, 1280, vHa))
        e(valu('v_lshl_add_u32', vHa, t[8], 4, vHa))
        e(valu('v_cndmask_b32', vHa, vOOB, vHa, 'vcc'))
        sHk, sHl = S(94), S(95)
        e(salu('s_lshr_b32', sT[2], sW, 1))
        e(salu('s_mul_i32', sT[2], sT[2], 5))
        e(salu('s_lshl_b32', sHl, sT[2], 11))
        e(salu('s_lshl_b32', sT[1], sT[1], 10))
        e(salu('s_add_u32', sHl, sHl, sT[1]))
        e(salu('s_add_u32', sHk, sT[2], sR))
        halo_loads = []
        for i5 in range(5):
            halo_loads.append(Group([salu('s_cmp_ge_u32', sHk, 10 - i5), salu('s_cselect_b32', sT[5], (i5 - 10) & 0xffffffff, i5),
                                     salu('s_add_u32', sT[5], sT[5], sHk), salu('s_lshl_b32', sT[5], sT[5], 7),
                                     salu('s_add_u32', 'm0', sHl, HALO + 2048 * i5), bdma(vHa, SX, sT[5])]))
        self.halo_ops = [g_[-1] for g_ in halo_loads]
        e(salu('s_lshl2_add_u32', sT[1], sB, sW))
        e(salu('s_lshl_b32', sT[1], sT[1], 8))
        e(salu('s_add_u32', sT[1], sT[1], ST))
        e(valu('v_lshl_add_u32', vSA, vU, 4, sT[1]))
        e(salu('s_lshl_b32', sT[1], sB, 10))
        e(salu('s_max_u32', sT[1], sT[1], 128))
        e(salu('s_add_u32', sT[1], sT[1], ST - 128))
        e(valu('v_lshl_add_u32', vSH, vU, 3, sT[1]))
        e(valu('v_lshlrev_b32', vL16, 4, vL))
        e(valu('v_add_u32', vL16b, 4096, vL16))
        e(valu('v_lshrrev_b32', t[8], 1, vU))
        e(valu('v_xor_b32', t[8], t[8], vQ))
        e(valu('v_lshlrev_b32', t[8], 4, t[8]))
        e(valu('v_lshl_add_u32', vHr[0], vU, 7, t[8]))
        e(valu('v_xor_b32', vHr[1], 64, vHr[0]))
        e(valu('v_and_b32', t[8], 8, vU))
        e(valu('v_lshlrev_b32', t[8], 7, t[8]))
        e(valu('v_add3_u32', vXr[0], sXl, vHr[0], t[8]))
        e(valu('v_xor_b32', vXr[1], 64, vXr[0]))
        e(valu('v_lshl_add_u32', t[8], vQ, 3, vR))
        e(valu('v_mul_u32_u24', t[8], 192, t[8]))
        e(valu('v_lshl_add_u32', t[8], vCC, 3, t[8]))
        e(valu('v_and_b32', t[9], 1, vQ))
        e(valu('v_lshl_add_u32', t[8], t[9], 5, t[8]))
        e(salu('s_cmp_eq_u32', sW, 3))
        e(salu('s_cselect_b32', sROT, 0, sW))
        e(salu('s_lshl_b32', sT[1], sB, 1))
        e(salu('s_lshr_b32', sT[2], sW, 1))
        e(salu('s_add_u32', sT[12], sT[1], sT[2]))
        e(salu('s_mul_i32', sAP, sT[12], ACTB))
        e(salu('s_and_b32', sT[2], sW, 1))
        e(salu('s_lshl_b32', sT[2], sT[2], 11))
        e(salu('s_add_u32', sAP, sAP, sT[2]))
        e(salu('s_add_u32', sAP, sAP, ACT))
        for m in range(3):
            e(salu('s_add_u32', sT[1], sROT, m))
            e(salu('s_cmp_ge_u32', sT[1], 3))
            e(salu('s_cselect_b32', sT[2], 3, 0))
            e(salu('s_sub_u32', sT[1], sT[1], sT[2]))
            e(salu('s_lshl_b32', sT[2], sT[1], 6))
            e(salu('s_add_u32', sT[2], sT[2], W1R))
            e(valu('v_add_u32', vW1r[2 * m], sT[2], t[8]))
            e(valu('v_xor_b32', vW1r[2 * m + 1], 32, vW1r[2 * m]))
            e(salu('s_mul_i32', sT[2], sJ, 3))
            e(salu('s_add_u32', sT[1], sT[1], sT[2]))
            e(salu('s_lshl_b32', sT[1], sT[1], 12))
            e(salu('s_add_u32', sHS[m], sT[1], sAP))
        e(valu('v_mov_b32', t[8], 0x3f803f80))
        for r in range(4):
            e(valu('v_accvgpr_write_b32', A(240 + r), t[8]))
        e(valu('v_lshlrev_b32', vPs, 4, vU))
        e(valu('v_lshl_add_u32', vPs, vQ, 10, vPs))
        e(valu('v_mul_u32_u24', t[8], 80, vQ))
        e(valu('v_cmp_ne_u32', 'vcc', 3, vCC))
        e(valu('v_lshl_add_u32', t[8], vCC, 3, t[8]))
        e(valu('v_mul_u32_u24', t[9], 80, vCC))
        e(valu('v_cndmask_b32', t[9], 0, t[9], 'vcc'))
        e(valu('v_cmp_ne_u32', 'vcc', 3, vQ))
        e(valu('v_add_u32', t[9], 32, t[9]))
        e(valu('v_mul_u32_u24', t[10], 240, vR))
        e(valu('v_cndmask_b32', t[8], t[9], t[8], 'vcc'))
        e(valu('v_add_u32', t[8], t[8], t[10]))
        for k in range(3):
            e(salu('s_add_u32', sT[1], sW, 4 * k))
            e(salu('s_min_u32', sT[1], sT[1], 9))
            e(salu('s_and_b32', sT[2], sT[1], 1))
            e(salu('s_lshr_b32', sT[1], sT[1], 1))
            e(salu('s_mul_i32', sT[3], sT[1], 1920))
            e(salu('s_mul_i32', sT[4], sT[2], 40))
            e(salu('s_add_u32', sT[3], sT[3], sT[4]))
            e(salu('s_add_u32', sT[3], sT[3], P0A))
            e(valu('v_add_u32', rdA[k], sT[3], t[8]))
            e(salu('s_mul_i32', sT[3], sB, 5))
            e(salu('s_add_u32', sT[1], sT[1], sT[3]))
            e(salu('s_mul_i32', sT[2], sT[2], 20))
            e(salu('s_lshr_b32', sT[3], sT[1], 2))
            e(salu('s_add_u32', sT[2], sT[2], sT[3]))
            e(salu('s_lshl_b32', sT[2], sT[2], 12))
            e(salu('s_and_b32', sT[1], sT[1], 3))
            e(salu('s_lshl_b32', sT[1], sT[1], 8))
            e(salu('s_add_u32', sT[1], sT[1], sT[2]))
            e(salu('s_mul_i32', sT[2], sJ, WQJ))
            e(salu('s_add_u32', sT[1], sT[1], sT[2]))
            e(salu('s_add_u32', soA[k], sT[1], WQ))
        vPs2 = t[33]
        e(salu('s_cmp_lt_u32', sW, 2))
        e(salu('s_cselect_b64', 'vcc', -1, 0))
        e(valu('v_cndmask_b32', vPs2, vOOB, vPs, 'vcc'))
        e(salu('s_mul_i32', s6T, sTB, 6))
        e(salu('s_mul_i32', s5T, sTB, 5))
        e(salu('s_lshr_b32', s5T, s5T, 1))
        for m in range(3):
            e(salu('s_lshl_b32', sT[2], sW, 7 if m < 2 else 6))
            e(valu('v_add_u32', t[8], sT[2], vL))
            if m == 1:
                e(valu('v_add_u32', t[8], 64, t[8]))
            x(self.divc(t[9], t[8], 80, 511))
            e(valu('v_mul_u32_u24', t[10], 80, t[9]))
            e(valu('v_sub_u32', t[10], t[8], t[10]))
            x(self.divc(t[11], t[10], 10, 79))
            e(valu('v_mul_u32_u24', t[12], 10, t[11]))
            e(valu('v_sub_u32', t[10], t[10], t[12]))
            e(valu('v_and_b32', t[12], 3, t[11]))
            e(valu('v_lshrrev_b32', t[11], 2, t[11]))
            if m < 2:
                e(valu('v_lshl_add_u32', t[11], t[11], 4, t[12]))
                e(valu('v_add_u32', t[9], s6T, t[9]))
                e(valu('v_and_b32', t[12], 3, t[9]))
                e(valu('v_lshl_add_u32', t[11], t[12], 2, t[11]))
                e(valu('v_lshrrev_b32', t[9], 2, t[9]))
                e(valu('v_lshl_add_u32', t[11], t[9], 5, t[11]))
            else:
                e(valu('v_mad_u32_u24', t[11], t[11], 20, t[12]))
                e(valu('v_add_u32', t[9], s5T, t[9]))
                e(valu('v_min_u32', t[9], 79, t[9]))
                e(valu('v_cmp_gt_u32', 'vcc', 64, t[9]))
                e(valu('v_lshrrev_b32', t[12], 2, t[9]))
                e(valu('v_mul_u32_u24', t[12], 40, t[12]))
                e(valu('v_and_b32', t[13], 3, t[9]))
                e(valu('v_lshl_add_u32', t[12], t[13], 2, t[12]))
                e(valu('v_mul_u32_u24', t[13], 40, t[9]))
                e(valu('v_subrev_u32', t[13], 40 * 64 - 16, t[13]))
                e(valu('v_cndmask_b32', t[12], t[13], t[12], 'vcc'))
                e(valu('v_add_u32', t[11], t[11], t[12]))
            e(valu('v_cmp_gt_u32', 'vcc', 480 if m < 2 else 240, t[8]))
            e(valu('v_mul_u32_u24', t[11], 1280, t[11]))
            e(valu('v_lshl_add_u32', t[11], t[10], 4, t[11]))
            e(valu('v_cndmask_b32', ldB[m], vOOB, t[11], 'vcc'))
        e(valu('v_mul_u32_u24', t[8], 160, vR))
        e(valu('v_lshl_add_u32', t[8], vCC, 3, t[8]))
        for k in range(3):
            if k < 2:
                e(salu('s_lshl_b32', sT[1], sW, 3))
                e(salu('s_add_u32', sT[1], sT[1], 4 * k))
            else:
                e(salu('s_lshl_b32', sT[1], sW, 2))
            e(valu('v_add_u32', t[13], sT[1], vQ))
            e(valu('v_min_u32', t[9], 29 if k < 2 else 14, t[13]))
            e(valu('v_cmp_eq_u32', 'vcc', t[9], t[13]))
            x(self.divc(t[10], t[9], 5, 31))
            e(valu('v_mul_u32_u24', t[11], 5, t[10]))
            e(valu('v_sub_u32', t[9], t[9], t[11]))
            e(valu('v_mul_u32_u24', t[11], 1280, t[10]))
            e(valu('v_lshl_add_u32', t[11], t[9], 5, t[11]))
            e(valu('v_add_u32', t[11], (P0B if k < 2 else P0B + 8192), t[11]))
            e(valu('v_add_u32', rdB[k], t[11], t[8]))
            e(valu('v_add_u32', t[10], s6T if k < 2 else s5T, t[10]))
            if k == 2:
                e(valu('v_min_u32', t[10], 79, t[10]))
                e(valu('v_add_u32', t[10], 192, t[10]))
            e(valu('v_lshrrev_b32', t[11], 2, t[10]))
            e(valu('v_mul_u32_u24', t[11], 5120, t[11]))
            e(valu('v_lshl_add_u32', t[11], t[9], 10, t[11]))
            e(valu('v_and_b32', t[10], 3, t[10]))
            e(valu('v_lshl_add_u32', t[11], t[10], 8, t[11]))
            e(valu('v_lshl_add_u32', t[11], vU, 4, t[11]))
            e(valu('v_cndmask_b32', stB[k], vOOB, t[11], 'vcc'))
        e(salu('s_mul_i32', sW2c, sC, W2C))
        e(salu('s_add_u32', sW2c, sW2c, W2P))
        vHw = t[34]
        e(salu('s_mul_i32', sT[1], sW, 20))
        e(valu('v_add_u32', t[8], sT[1], vL))
        e(valu('v_cmp_gt_u32', 'vcc', 20, vL))
        e(valu('v_lshrrev_b32', t[9], 3, t[8]))
        e(valu('v_and_b32', t[8], 7, t[8]))
        e(valu('v_lshlrev_b32', t[8], 4, t[8]))
        e(valu('v_lshl_add_u32', t[8], t[9], 11, t[8]))
        e(valu('v_add_u32', t[9], DUMMY, vL16))
        e(valu('v_cndmask_b32', vHw, t[9], t[8], 'vcc'))
        e(salu('s_lshl_b32', sT[1], sJ, 6))
        e(salu('s_add_u32', sT[1], sT[1], F1))
        e(salu('s_lshl2_add_u32', sT[3], sB, sT[1]))
        e(valu('v_cmp_eq_u32', 'vcc', 0, 'v0'))
        e(valu('v_mov_b32', t[8], sT[3]))
        e(valu('v_cndmask_b32', vFA, vOOB, t[8], 'vcc'))
        x(self.poll_addr(sJ, F1, 6, t[9], 15))
        e(salu('s_mul_i32', sWQb, sJ, WQJ))
        e(salu('s_add_u32', sWQb, sWQb, WQ))
        e(salu('s_lshl1_add_u32', sG, sR, sW))
        e(salu('s_cmp_ge_u32', sG, 20))
        e(salu('s_cselect_b32', sWQ, 20, 0))
        e(salu('s_sub_u32', sG, sG, sWQ))
        e(salu('s_lshl_b32', sWQ, sG, 12))
        e(salu('s_add_u32', sWQ, sWQ, sWQb))
        e(salu('s_lshr_b32', sT[1], 's2', 3))
        e(salu('s_and_b32', sT[2], sT[1], 7))
        e(salu('s_mul_i32', sT[2], sT[2], 3))
        e(salu('s_lshr_b32', sT[2], sT[2], 1))
        e(salu('s_lshr_b32', sT[1], sT[1], 3))
        e(salu('s_mul_i32', sT[1], sT[1], 3))
        e(salu('s_add_u32', sR2, sT[1], sT[2]))
        e(salu('s_cmp_ge_u32', sR2, 12))
        e(salu('s_cselect_b32', sT[1], 12, 0))
        e(salu('s_sub_u32', sR2, sR2, sT[1]))
        if self.opt['rot2'] in (2, 4):
            e(salu('s_lshr_b32', sT[1], 's2', 3))
            e(salu('s_lshr_b32', sT[2], 's2', 6))
            e(salu('s_add_u32', sR2, sT[1], sT[2]))
        e(salu('s_mul_i32', sT[1], sTB, ACTB))
        e(salu('s_add_u32', sT[1], sT[1], ACT))
        e(salu('s_mul_i32', sT[2], sW, 12 * 4096))
        e(salu('s_add_u32', sAh, sT[1], sT[2]))
        e(salu('s_lshl_b32', sT[2], sW, 14))
        e(salu('s_add_u32', sAo, sT[1], sT[2]))
        e(salu('s_add_u32', sAo, sAo, 48 * 4096))
        e(salu('s_lshl_b32', sT[2], sW, 12))
        e(salu('s_add_u32', sAb, sT[1], sT[2]))
        e(salu('s_add_u32', sAb, sAb, 64 * 4096))
        e(salu('s_mul_i32', sT[2], sW, 12 * 5120))
        e(salu('s_add_u32', sWh, sW2c, sT[2]))
        e(salu('s_mul_i32', sT[2], sW, 4 * 5120))
        e(salu('s_add_u32', sWo, sW2c, sT[2]))
        e(salu('s_add_u32', sWo, sWo, 48 * 5120))
        e(salu('s_mul_i32', sT[2], sW, 5120))
        e(salu('s_add_u32', sWb, sW2c, sT[2]))
        e(salu('s_add_u32', sWb, sWb, 64 * 5120))
        e(salu('s_add_u32', sT[1], sJ, 48))
        e(salu('s_lshl_b32', sT[1], sT[1], 12))
        e(salu('s_add_u32', sOA, sT[1], sAP))
        e(salu('s_lshr_b32', sT[1], sJ, 2))
        e(salu('s_add_u32', sT[1], sT[1], 64))
        e(salu('s_lshl_b32', sT[1], sT[1], 12))
        e(salu('s_and_b32', sT[2], sJ, 3))
        e(salu('s_lshl_b32', sT[2], sT[2], 8))
        e(salu('s_add_u32', sT[1], sT[1], sT[2]))
        e(salu('s_add_u32', sOB, sT[1], sAP))
        e(salu('s_mov_b64', sLO16, 0xffff))
        e(salu('s_mov_b32', 's70', 0x00010001))
        e(salu('s_mov_b32', 's71', 0x00010001))
        for k, r in enumerate((72, 74, 76)):
            e(salu('s_mov_b32', S(r), 0x11111111 << (k + 1)))
            e(salu('s_mov_b32', S(r + 1), 0x11111111 << (k + 1)))
        e(salu('s_mov_b32', sSCL, f2u(20 ** -0.5 * 1.4426950408889634)))
        for i in range(4):
            e(salu('s_add_u32', sT[1], sW, i))
            e(salu('s_and_b32', sT[1], sT[1], 3))
            e(salu('s_lshl_b32', sT[1], sT[1], 10))
            e(salu('s_add_u32', sT[1], sT[1], XR))
            e(valu('v_add_u32', vWr[i], sT[1], vL16))
        e(valu('v_lshlrev_b32', t[8], 2, vQ))
        e(valu('v_sub_u32', t[8], vU, t[8]))
        e(valu('v_mov_b32', t[10], f2u(-1e30)))
        e(salu('s_or_b32', sT[1], sB, sW))
        e(salu('s_cmp_eq_u32', sT[1], 0))
        e(salu('s_cselect_b32', sT[1], 0, 2))
        e(valu('v_cmp_gt_u32', 'vcc', sT[1], vQ))
        e(valu('v_cndmask_b32', t[11], t[10], vZ, 'vcc'))
        for r in range(4):
            e(valu('v_subrev_u32', t[9], r, t[8]))
            e(valu('v_cmp_gt_u32', 'vcc', 8, t[9]))
            e(valu('v_cmp_gt_i32', S(56, 2), 0, t[9]))
            e(valu('v_cndmask_b32', V(MASK + 4 + r), t[10], vZ, 'vcc'))
            e(valu('v_cndmask_b32', V(MASK + r), t[10], t[11], S(56, 2)))
        e(valu('v_mov_b32', t[8], ZERO))
        e(valu('v_mov_b32', t[10], 0))
        e(valu('v_mov_b32', t[11], 0))
        e(ds_write('ds_write_b64', t[8], V(146, 2)))
        e(salu('s_mul_i32', sT[12], sC, 160))
        loads = st[1] + (halo_loads if npro > 2 else []) + [x_ for r_ in st[2:] for x_ in r_]
        self.halo_loads = [] if npro > 2 else halo_loads
        p += self.sprinkle(q, loads, max(1, min(self.opt['pro_every'], (len(q) - 16) // len(loads))), start=0)
        p += self.stamp('setup')
        shadow = self.opt['srow'] >= 2
        hs, hq, ht, h3, h4, h5 = (V(n) for n in range(224, 229)) if False else (V(248), V(249), V(250), V(251), V(252), V(253))
        z = [valu('v_readfirstlane_b32', sTAG, vTAG), valu('v_mov_b32', ht, 0x3f803f80),
             salu('s_mul_i32', sTAG, sTAG, 0x19660d), salu('s_add_u32', sTAG, sTAG, 0x3c6ef35f),
             salu('s_cmp_eq_u32', sW, 0), salu('s_cselect_b32', sCMP, sTAG, 0), valu('v_mov_b32', vTAG, sTAG)]
        for i in range(12):
            if not shadow:
                z += [valu('v_dot2_f32_bf16', hs, V(SR + i), ht, hs if i else 0),
                      valu('v_dot2_f32_bf16', hq, V(SR + i), V(SR + i), hq if i else 0)]
                continue
            z += [valu('v_lshlrev_b32', h4, 16, V(SR + i)), valu('v_and_b32', h5, 0xffff0000, V(SR + i))]
            z += [valu('v_add_f32', hs, h4, h5), valu('v_mul_f32', hq, h4, h4)] if i == 0 else \
                [valu('v_add_f32', hs, hs, h4), valu('v_fmac_f32', hq, h4, h4), valu('v_add_f32', hs, hs, h5)]
            z.append(valu('v_fmac_f32', hq, h5, h5))
        z += [valu('v_and_b32', h3, 31, vL), valu('v_cmp_eq_u32', S(98, 2) if not self.opt.get('dbg') else 'vcc', 0, h3),
              valu('v_lshlrev_b32', h3, 3, vSt), valu('v_add_u32', h3, ST, h3)]
        for sh in (8, 4, 2, 1):
            z.append(Skip(1))
            for r in (hs, hq):
                z.append(valu('v_add_f32_dpp', r, r, r, mods=f'row_ror:{sh} row_mask:0xf bank_mask:0xf'))
        z += [valu('v_mov_b32', h4, hs), valu('v_mov_b32', h5, hq),
              valu('v_cndmask_b32', h3, vOOB, h3, S(98, 2) if not self.opt.get('dbg') else 'vcc'), Skip(1),
              valu('v_permlane16_swap_b32', hs, h4), valu('v_permlane16_swap_b32', hq, h5),
              valu('v_add_f32', hs, hs, h4), valu('v_add_f32', hq, hq, h5)]
        z += self.rstats(hs, hq, V(SR), ht) + [valu('v_mov_b32', V(SR + 1), sTAG), bstore(V(SR, 2), h3, SWS, 0, 0, 'sc1')]
        self.srow, self.stats = (srow, z) if shadow else ([], [])
        if not shadow:
            p += z
        p += self.stamp('stats')
        p.append(Group([wait(vm=self.stage_ops[0]), barrier()]))
        p += self.stamp('B0')

        def pack(rd, k0, half, dst):
            o_ = []
            for k in range(3):
                o_ += [ds_read('ds_read_b64_tr_b16', V(PK + 4 * (k0 + k) + 2 * h, 2), rd[k], h * half) for h in range(2)]
            sts = [bstore(V(PK + 4 * (k0 + k), 4), dst[k][0], SWS, dst[k][1], 0, 'sc1') for k in range(3)]
            return o_, sts
        self.packA = pack(rdA, 0, 960, [(vPs, soA[0]), (vPs, soA[1]), (vPs2, soA[2])])
        self.packB = pack(rdB, 3, 640, [(stB[k], sW2c) for k in range(3)])
        self.rawB = []
        for m in range(3):
            self.rawB.append(Group([salu('s_lshl_b32', sT[5], sW, 11 if m < 2 else 10),
                                    salu('s_add_u32', 'm0', sT[5], P0B + (1024 * m if m < 2 else 8192)),
                                    bdma(ldB[m], SW2 if m < 2 else SWO, sT[12])]))
        self.f2_pub = [salu('s_lshl_b32', sT[2], sC, 7), salu('s_add_u32', sT[2], sT[2], F2),
                       salu('s_lshl2_add_u32', sT[4], sTB, sT[2]), valu('v_mov_b32', t[35], sT[4]),
                       valu('v_cmp_eq_u32', S(92, 2), 0, 'v0'), Skip(1), valu('v_cndmask_b32', vFA, vOOB, t[35], S(92, 2))]
        self.ones = [valu('v_mov_b32', V(220 + r), 0x3f803f80) for r in range(4)] + \
            [ds_write('ds_write_b128', vHw, V(220, 4), HALO)]
        return p

    def x_reads(self, s):
        i, h = s >> 1, s & 1
        return [ds_read('ds_read_b128', X(s, p), vXr[h], (i & 3) * 4096 + p * 1024) for p in range(2)]

    def w1_reads(self, s, n):
        i, h = s >> 1, s & 1
        return [ds_read('ds_read_b64_tr_b16', V(WF + 4 * n + 2 * e_, 2), vW1r[n], (i & 3) * 12288 + (32 * h + 4 * e_) * 192)
                for e_ in range(2)]

    def wq_read(self, g, n):
        k, sg = g >> 2, g & 3
        return ds_read('ds_read_b128', V(WF + 4 * n, 4), vWr[n], sg * 16384 + ((10 + k) & 3) * 4096)

    def halo_read(self, g):
        s = g % 20
        return ds_read('ds_read_b128', V(WF + 16, 4), vHr[s & 1], HALO + (s >> 1) * 2048)

    def late_addresses(self):
        t = [V(T + n) for n in range(24)]
        vQ, vU, vR, vCC = t[0], t[1], t[2], t[3]
        p = [valu('v_lshrrev_b32', vQ, 4, vL), valu('v_and_b32', vU, 15, vL),
             valu('v_bfe_u32', vR, vL, 2, 2), valu('v_and_b32', vCC, 3, vL),
             salu('s_mul_i32', sT[1], sW, 16 * KVR), salu('s_add_u32', sT[1], sT[1], KV),
             valu('v_mul_u32_u24', t[4], KVR, vU),
             valu('v_add_u32', t[4], sT[1], t[4]),
             valu('v_add_u32', vK4, 72, t[4]),
             valu('v_lshl_add_u32', t[5], vQ, 3, t[4]),
             valu('v_add_u32', vKr, 40, t[5]),
             valu('v_add_u32', vQr, 8 * KVR, t[5]),
             valu('v_add_u32', t[6], 8 * KVR + 32, t[4]),
             valu('v_mov_b32', t[7], ZERO),
             valu('v_cmp_eq_u32', S(92, 2), 0, vQ),
             valu('v_cndmask_b32', vQ4, t[7], t[6], S(92, 2)),
             valu('v_lshl_add_u32', t[6], vQ, 2, vR),
             valu('v_mul_u32_u24', t[6], KVR, t[6]),
             valu('v_add_u32', t[6], sT[1], t[6]),
             valu('v_add_u32', vV4, 112, t[6]),
             valu('v_lshl_add_u32', t[6], vCC, 3, t[6]),
             valu('v_add_u32', vVr, 80, t[6]),
             valu('v_mul_u32_u24', t[6], 40, vQ),
             valu('v_add_u32', t[6], 32, t[6]),
             valu('v_min_u32', t[6], 120, t[6]),
             valu('v_lshlrev_b32', t[7], 3, vQ),
             valu('v_and_b32', t[8], 1, vU),
             valu('v_mul_u32_u24', t[8], KVC, t[8]),
             valu('v_lshrrev_b32', t[9], 1, vU),
             valu('v_mul_u32_u24', t[9], KVR, t[9]),
             valu('v_add_u32', t[8], t[8], t[9]),
             valu('v_add_u32', t[8], KV, t[8])]
        for i in range(4):
            p += [salu('s_add_u32', sT[2], sW, i), salu('s_and_b32', sT[2], sT[2], 3),
                  salu('s_mul_i32', sT[3], sT[2], 40),
                  salu('s_cmp_eq_u32', sT[2], 3), salu('s_cselect_b64', S(92, 2), -1, 0),
                  valu('v_add_u32', t[9], sT[3], t[7]),
                  valu('v_cndmask_b32', t[9], t[9], t[6], S(92, 2))]
            if i == 0:
                p.append(valu('v_add_u32', vHKw, t[8], t[9]))
            p += [valu('v_add_u32', t[9], t[4], t[9]), valu('v_add_u32', vKVw[i], 8 * KVR, t[9])]
        p += [salu('s_lshl_b32', sT[2], sW, 6), salu('s_add_u32', sT[2], sT[2], CSQ),
              valu('v_lshl_add_u32', vCQw, vQ, 4, sT[2]),
              valu('v_lshlrev_b32', vCQr, 4, vQ)]
        return p

    def flag_addr(self, base):
        t0, t1 = V(T + 22), V(T + 23)
        return [salu('s_lshl_b32', sT[1], sB, 1), salu('s_lshr_b32', sT[2], sW, 1), salu('s_add_u32', sT[1], sT[1], sT[2]),
                salu('s_lshl_b32', sT[1], sT[1], 7), salu('s_and_b32', sT[2], sW, 1), salu('s_lshl1_add_u32', sT[2], sJ, sT[2]),
                salu('s_lshl2_add_u32', sT[1], sT[2], sT[1]), salu('s_add_u32', sT[1], sT[1], base),
                valu('v_mov_b32', t0, sT[1]), valu('v_mov_b32', t1, OOB),
                valu('v_cmp_eq_u32', S(92, 2), 0, vL), valu('v_cndmask_b32', vFA, t1, t0, S(92, 2))]

    def poll_addr(self, idx, base, shift, t0, mask):
        return [salu('s_lshl_b32', 's96', idx, shift), salu('s_add_u32', 's96', 's96', base),
                salu('s_cmp_eq_u32', sW, 0), salu('s_cselect_b32', 's96', 's96', OOB),
                valu('v_and_b32', t0, mask, vL), valu('v_lshl_add_u32', vPA, t0, 2, 's96')]

    def lanes0(self, ins):
        return Group([salu('s_mov_b64', 'exec', sROW0), ins, salu('s_mov_b64', 'exec', -1)])

    def ff_pre(self):
        t = [V(T + n) for n in range(24)]
        p = [valu('v_lshrrev_b32', t[0], 4, vL), salu('s_lshl_b32', sT[1], sROT, 7), salu('s_add_u32', sT[1], sT[1], CSF),
             valu('v_lshl_add_u32', t[0], t[0], 4, sT[1]),
             self.lanes0(ds_write('ds_write_b128', t[0], V(CS, 4), 0)),
             self.lanes0(ds_write('ds_write_b128', t[0], V(CS + 4, 4), 64))]
        for src, mean, rstd in ((RS, vMEAN[0], vRSTD[0]), (RS + 2, vMEAN[1], vRSTD[1]), (RS + 4, vMEANH, vRSTDH)):
            p += [valu('v_and_b32', rstd, 0xffff0000, V(src)), valu('v_lshlrev_b32', mean, 16, V(src)),
                  valu('v_rcp_f32', rstd, rstd)]
        return p

    def ff_post(self):
        t = [V(T + n) for n in range(24)]
        p = [valu('v_lshrrev_b32', V(RS), 4, vL), valu('v_lshlrev_b32', V(RS), 4, V(RS))]
        for m in range(3):
            p += [salu('s_add_u32', sT[1], sROT, m), salu('s_cmp_ge_u32', sT[1], 3), salu('s_cselect_b32', sT[2], 3, 0),
                  salu('s_sub_u32', sT[1], sT[1], sT[2]), salu('s_lshl_b32', sT[1], sT[1], 7), salu('s_add_u32', sT[1], sT[1], CSF),
                  valu('v_add_u32', V(RS + 1), sT[1], V(RS)),
                  ds_read('ds_read_b128', V(T + 8 * m, 4), V(RS + 1), 0),
                  ds_read('ds_read_b128', V(T + 8 * m + 4, 4), V(RS + 1), 64)]
        p.append(Skip(2))
        self.h_stores = []
        for m in range(3):
            for q in range(2):
                dst = SS + 4 * ((2 * m + q) & 1)
                for n in (2 * m, 2 * m + 1):
                    a = FACC + 8 * n + 4 * q
                    for r in range(4):
                        p.append(valu('v_fma_f32', V(a + r), '-' + vMEAN[q], V(T + 4 * n + r), V(a + r)))
                    for r in range(4):
                        p.append(valu('v_mul_f32', V(a + r), V(a + r), vRSTD[q]))
                    for hh in range(2):
                        p.append(valu('v_cvt_pk_bf16_f32', V(dst + 2 * (n & 1) + hh), V(a + 2 * hh), V(a + 2 * hh + 1)))
                for r in range(4):
                    p.append(valu('v_pk_max_i16', V(dst + r), V(dst + r), 0))
                s_ = bstore(V(dst, 4), vL16, SWS, sHS[m], q * 1024, 'sc1')
                self.h_stores.append(s_)
                p.append(s_)
        return p

    def qkv_pre(self, hd, packed):
        a = ACC[hd]
        t = [V(T + n) for n in range(24)]
        p = [self.lanes0(ds_write('ds_write_b128', vCQw, V(a + 32, 4), hd * 256))]
        self.qkv_pub = [i for g in p for i in (g if isinstance(g, Group) else [g]) if i.kind == 'dsw']
        q = []
        for cls in range(2):
            q.append(valu('v_mul_f32', t[18 + cls], vMEAN[cls], vRSTD[cls]))
        for n in range(4):
            for cls in range(2):
                b = a + 8 * n + 4 * cls
                if packed:
                    for r in (0, 2):
                        q.append(I(f"v_pk_mul_f32 {V(b + r, 2)}, {V(b + r, 2)}, {V(30, 2)} op_sel:[0,{cls}] op_sel_hi:[1,{cls}]",
                                   'valu', regs(V(b + r, 2)) + regs(V(30, 2)), regs(V(b + r, 2))))
                else:
                    for r in range(4):
                        q.append(valu('v_mul_f32', V(b + r), V(b + r), vRSTD[cls]))
        return p, q

    def qkv_post(self, hd, packed):
        a = ACC[hd]
        t = [V(T + n) for n in range(24)]
        p = []
        for n in range(4):
            p += [salu('s_add_u32', sT[1], sW, n), salu('s_and_b32', sT[1], sT[1], 3), salu('s_lshl_b32', sT[1], sT[1], 6),
                  salu('s_add_u32', sT[1], sT[1], CSQ + 256 * hd), valu('v_add_u32', t[20], sT[1], vCQr),
                  ds_read('ds_read_b128', V(T + 4 * n, 4), t[20], 0)]
        p.append(Skip(2))
        p += [valu('v_fma_f32', V(a + 32 + r), '-' + vMEANH, V(T + r), V(a + 32 + r)) for r in range(4)]
        p += [valu('v_mul_f32', V(a + 32 + r), V(a + 32 + r), vRSTDH) for r in range(4)]
        p += [valu('v_cvt_pk_bf16_f32', t[16], V(a + 32), V(a + 33)), valu('v_cvt_pk_bf16_f32', t[17], V(a + 34), V(a + 35))]
        self.kv_writes = [ds_write('ds_write_b64', vHKw, V(T + 16, 2), hd * KVH)]
        p += self.kv_writes
        for n in range(4):
            for cls in range(2):
                b = a + 8 * n + 4 * cls
                if packed:
                    for r in (0, 2):
                        p.append(I(f"v_pk_fma_f32 {V(b + r, 2)}, {V(T + 4 * n + r, 2)}, {V(T + 18, 2)}, {V(b + r, 2)} "
                                   f"op_sel:[0,{cls},0] op_sel_hi:[1,{cls},1] neg_lo:[1,0,0] neg_hi:[1,0,0]", 'valu',
                                   regs(V(b + r, 2)) + regs(V(T + 4 * n + r, 2)) + regs(V(T + 18, 2)), regs(V(b + r, 2))))
                else:
                    for r in range(4):
                        p.append(valu('v_fma_f32', V(b + r), '-' + t[18 + cls], V(T + 4 * n + r), V(b + r)))
                p += [valu('v_cvt_pk_bf16_f32', V(b), V(b), V(b + 1)), valu('v_cvt_pk_bf16_f32', V(b + 1), V(b + 2), V(b + 3))]
                w_ = ds_write('ds_write_b64', vKVw[n], V(b, 2), hd * KVH + cls * KVC)
                self.kv_writes.append(w_)
                p.append(w_)
        return p

    def attention(self, hd):
        a = ACC[hd]
        streams = []
        for cls in range(2):
            off = hd * KVH + cls * KVC
            b = a + 16 * cls
            u = T + 12 * cls
            Kf = [V(b, 4), V(b + 4, 4)]
            Qf, Sf = V(b + 8, 4), [V(u, 4), V(u + 4, 4)]
            Vf = Kf
            Pf = Qf
            O0, O1, L = V(u, 4), V(u + 4, 4), V(b + 12, 4)
            m, m2 = V(u + 8), V(u + 9)
            p = [ds_read('ds_read_b64', V(b + 8, 2), vQr, off)]
            p.append(I(f"ds_read_b64 {V(b + 10, 2)}, {V(u + 10)}", 'dsr', [V(u + 10)], regs(V(b + 10, 2))))
            p.insert(0, valu('v_cndmask_b32', V(u + 10), vQ4, V(u + 11), sLO16))
            for k in range(2):
                p += [ds_read('ds_read_b64', V(b + 4 * k, 2), vKr, off + k * 8 * KVR),
                      ds_read('ds_read_b64', V(b + 4 * k + 2, 2), vK4, off + k * 8 * KVR)]
            p.append(Skip(2))
            p += [mfma(Sf[k], Kf[k], Qf, V(MASK + 4 * k, 4)) for k in range(2)]
            for k in range(2):
                p += [ds_read('ds_read_b64_tr_b16', V(b + 2 * k, 2), vVr, off + k * 8 * KVR),
                      ds_read('ds_read_b64_tr_b16', V(b + 4 + 2 * k, 2), vV4, off + k * 8 * KVR)]
            p.append(Skip(1))
            p += [valu('v_max3_f32', m, V(u), V(u + 1), V(u + 2)), valu('v_max3_f32', m2, V(u + 3), V(u + 4), V(u + 5)),
                  valu('v_max3_f32', m, m, V(u + 6), V(u + 7)), valu('v_max_f32', m, m, m2)]
            for sw in ('v_permlane16_swap_b32', 'v_permlane32_swap_b32'):
                p += [valu('v_mov_b32', m2, m), valu(sw, m, m2), valu('v_max_f32', m, m, m2)]
            p.append(valu('v_mul_f32', m, sSCL, m))
            p += [valu('v_fma_f32', V(u + r), V(u + r), sSCL, '-' + m) for r in range(8)]
            p += [valu('v_exp_f32', V(u + r), V(u + r)) for r in range(8)]
            p += [valu('v_cvt_pk_bf16_f32', V(b + 8 + r), V(u + 2 * r), V(u + 2 * r + 1)) for r in range(4)]
            p += [mfma(L, aONES, Pf, 0), mfma(O0, Vf[0], Pf, 0), mfma(O1, Vf[1], Pf, 0), Skip(2)]
            p.append(valu('v_rcp_f32', m, V(b + 12)))
            p += [valu('v_mul_f32', V(u + r), V(u + r), m) for r in range(8)]
            for k in range(2):
                for hh in range(2):
                    p.append(valu('v_cvt_pk_bf16_f32', V(self.oreg(cls, k) + 2 * hd + hh), V(u + 4 * k + 2 * hh), V(u + 4 * k + 2 * hh + 1)))
            streams.append(p)
        pre = []
        for cls in range(2):
            pre.append(valu('v_add_u32', V(T + 12 * cls + 11), hd * KVH + cls * KVC, vQ4))
        out = pre
        for i, j in zip(*streams):
            out += [i] if isinstance(i, Skip) else [i, j]
        return out

    def oreg(self, cls, k):
        return 112 + 8 * cls + 4 * k

    def phase1(self):
        o = self.opt
        main, pos = [], {}
        for s in range(20):
            for n in range(6):
                for q in range(2):
                    d = V(FACC + 8 * n + 4 * q, 4)
                    main.append(mfma(d, V(WF + 4 * n, 4), X(s, q), d if s else 0))
                if n < 2:
                    d = V(CS + 4 * n, 4)
                    main.append(mfma(d, V(WF + 4 * n, 4), aONES, d if s else 0))
                pos['a', s, n] = len(main) - 1
        for g in range(40):
            hd, s = divmod(g, 20)
            a = ACC[hd]
            for n in range(4):
                for q in range(2):
                    d = V(a + 8 * n + 4 * q, 4)
                    main.append(mfma(d, V(WF + 4 * n, 4), X(s, q), d if s else 0))
                if n == 0:
                    d = V(a + 32, 4)
                    main.append(mfma(d, V(WF, 4), V(WF + 16, 4), d if s else 0))
                pos['b', g, n] = len(main) - 1
        w = Weave(main)
        first_b = pos['a', 19, 5] + 1
        stepb = lambda g: first_b + 9 * g
        bar = {}
        dma = {R: self.stage_dma(R) for R in range(o['npro'], 20)}
        for i in range(10):
            bar[i + 1] = pos['a', 2 * i + 1, 1]
        for k in range(9):
            bar[11 + k] = pos['b', 4 * k + 3, 1]
        rawb = [i for g_ in self.rawB for i in g_ if i.kind == 'dma']
        extra = {}
        for key, ops in (('packA', self.p0a), ('pub1', self.packA[1]), ('packB', rawb), ('pub2', self.packB[1]),
                         ('halo', self.halo_ops)):
            extra.setdefault(o[key], []).extend(ops)
        checks = {o['chk1']: 'f1', o['chk2']: 'f2', o['chk3']: 'f3'}
        assert len(checks) == 3
        for R, gb in bar.items():
            if R in checks:
                w.at(gb, self.check(checks[R]))
            w.at(gb, self.ring_barrier(R, extra.get(R, ())))
            w.at(gb, *self.stamp(f'B{R}'))
            if R in (o['pub1'], o['pub2']):
                w.at(gb, bstore(vTAG, vFA, SWS, 0, 0, 'sc1'))
            if R in (o['poll1'], o['poll2'], o['poll3']):
                w.at(gb, bload(vPOLL, vPA, SWS, 0, 0, 'sc1'))
        for s in range(20):
            start = bar[(s >> 1) + 1] if s & 1 else 0
            nxt = 14 * (s + 1)
            if s < 19:
                lim = len(main) if s & 1 else bar[(s >> 1) + 1]
                w.stream(self.x_reads(s + 1), max(start, pos['a', s, 0] - 2), nxt - 1)
                for n in range(6):
                    w.stream(self.w1_reads(s + 1, n), max(start, pos['a', s, n]), min(lim, pos['a', s + 1, n] - 4))
            else:
                for n in range(4):
                    w.stream([self.wq_read(0, n)], max(start, pos['a', s, n]), nxt - 1)
                w.stream([self.halo_read(0)], pos['a', s, 4], nxt - 1)
        for g in range(39):
            start = bar[11 + (g >> 2)] if g & 3 == 3 else 0
            lim = bar.get(11 + (g >> 2), len(main)) if g & 3 == 2 else len(main)
            w.stream([self.wq_read(g + 1, 0), self.halo_read(g + 1)], max(start, pos['b', g, 0]), stepb(g + 1) - 1)
            for n in range(1, 4):
                w.stream([self.wq_read(g + 1, n)], max(start, pos['b', g, n]), min(lim, pos['b', g + 1, n] - 3))
        nxt, plan = o['npro'], []
        for R, gb in [(0, 0)] + list(bar.items()):
            lim = min(R + 3, 9 if R < o['chk1'] else 19, nxt + o['catch'] - 1)
            todo = list(range(nxt, lim + 1))
            nxt = max(nxt, lim + 1)
            seq = []
            for r_ in todo:
                pre = self.stage_pre[r_]
                seq += [(x_, pre.get(k, [])) for k, x_ in enumerate(dma[r_])] + [(None, pre[len(dma[r_])])]
            if R == o['haloL']:
                seq += [(Group([x_[-1]]), [Group(x_[:2])] + x_[2:-1]) for x_ in self.halo_loads]
            if R == o['srow'] - 2:
                seq += [(x_, []) for x_ in self.srow]
            if R == o['rawA']:
                seq += [(Group([x_[-1]]), x_[:-1]) for x_ in self.rawA]
            if R == o['rawB']:
                seq += [(Group([x_[-1]]), x_[:-1]) for x_ in self.rawB]
            for name, pk in (('packA', self.packA), ('packB', self.packB)):
                if R == o[name]:
                    w.stream(pk[0], gb + 1, gb + 11)
                    k = min(len(seq), 4)
                    seq = seq[:k] + [(x_, []) for x_ in pk[1]] + seq[k:]
            if seq:
                plan.append((seq, gb + (1 if len(seq) > 3 else 13), bar[R + 1]))
        annotate([x for seq, _, _ in plan for g_, pre in seq for x in list(pre) + ([g_] if g_ else [])])
        for seq, a_, b_ in plan:
            self.place_mem(w, seq, a_, b_)
        assert o['rawA'] < o['packA'] and 1 <= o['packA'] < o['pub1'] < o['pub2'] <= 14 and o['rawB'] < o['packB'] < o['pub2'] and o['packB'] <= 9
        assert o['poll1'] < o['chk1'] <= 9 and o['chk1'] < o['poll2'] < o['chk2'] < o['poll3'] < o['chk3'] <= 20
        assert o['haloL'] < o['halo'] <= 8 and o['statL'] <= 8
        if self.stats:
            assert o['srow'] - 2 < o['statC'] < o['pub1']
            w.stream(self.stats, bar[o['statC']] + 1, bar[o['pub1']])
        w.stream(self.f2_pub, bar[o['pub1']] + 1, bar[o['pub1']] + 12)
        w.stream(self.ones, bar[o['halo']] + 1, bar[o['halo'] + 1])
        w.spread(self.stat_loads(), bar[o['statL']] + 1, bar[o['statL']] + 8)
        w.stream(self.check_stats(), bar[10] + 1, first_b)
        tp = V(WF + 20)
        assert o['poll2'] >= 11
        w.stream(self.ff_pre() + self.poll_addr(sC, F2, 7, tp, 31), first_b + 4, bar[11])
        wl = [x_ for i in range(7) for x_ in self.w_loads(i)]
        w.spread(wl, bar[o['chk2']] + 2, stepb(o['w_end']))
        g = w.stream(self.ff_post(), bar[11] + 1, stepb(o['ff_end']))
        g = w.stream(self.late_addresses() + self.flag_addr(F3), max(g + 1, bar[o['pub2']] + 1), stepb(20) + 3)
        assert stepb(o['f3_step']) > g
        w.at(stepb(o['f3_step']), Group([wait(vm=self.h_stores), bstore(vTAG, vFA, SWS, 0, 0, 'sc1')]))
        w.stream(self.poll_addr(sTB, F3, 7, tp, 31), max(bar[o['chk2']] + 1, g + 1), bar[o['poll3']])
        if o['chk3'] < 20:
            nA = o['nA_p1b']
            for i in range(nA):
                lo = bar[o['chk3']] + 2 + (stepb(40) - bar[o['chk3']] - 2) * i // nA
                assert lo >= stepb(20 + 2 * i + 2)
                w.spread(self.a_loads(i), lo, bar[o['chk3']] + 2 + (stepb(40) - bar[o['chk3']] - 2) * (i + 1) // nA)
        pre, mul = self.qkv_pre(0, False)
        g = w.stream(pre, stepb(20) + 5)
        g = w.stream(mul[:12], g + 1)
        w.at(g + 1, Group([wait(lgkm=self.qkv_pub), barrier()]))
        g = w.stream(mul[12:] + self.qkv_post(0, False), g + 1, stepb(o['kv_end']))
        g = w.stream([Skip(3)] + [Group([wait(lgkm=self.kv_writes), barrier()])], g)
        w.stream(self.attention(0), g, len(main))
        self.ovf = (w.overflow(0, first_b), w.overflow(first_b, stepb(20)), w.overflow(stepb(20)))
        pro = self.x_reads(0) + [r for n in range(6) for r in self.w1_reads(0, n)]
        return pro + w.flat()

    @staticmethod
    def sprinkle(seq, extra, every, start=0):
        out, n, extra = [], -start, list(extra)
        seq = tie(seq)
        annotate(seq)
        annotate(extra)
        for i in seq:
            out.append(i)
            if isinstance(i, Skip):
                continue
            n += 1
            if extra and n >= every:
                out.append(extra.pop(0))
                n = 0
        return out + extra

    def tail1(self):
        o = self.opt
        p = self.stamp('gemm1')
        pre, mul = self.qkv_pre(1, True)
        late = o['chk3'] == 20
        head = pre + mul + ([self.check('f3')] if late else []) + [Group([wait(lgkm=self.qkv_pub), barrier()])]
        seq = self.qkv_post(1, True) + [Group([wait(lgkm=self.kv_writes), barrier()])] + self.attention(1)
        al = [x_ for i in range(0 if late else o['nA_p1b'], o['nA_att']) for x_ in self.a_loads(i)]
        p += head + self.sprinkle(seq, al, o['att_every']) if late else self.sprinkle(head + seq, al, o['att_every'])
        t0 = V(T)
        self.o_stores = [bstore(V(self.oreg(c, 0), 4), vL16, SWS, sOA, c * 1024, 'sc1') for c in range(2)]
        p += self.o_stores
        p += [valu('v_mov_b32', t0, OOB), valu('v_cndmask_b32', t0, t0, vL16, sLO16)]
        ob = [bstore(V(self.oreg(c, 1), 4), t0, SWS, sOB, c * 1024, 'sc1') for c in range(2)]
        p += ob
        self.o_stores += ob
        p += self.flag_addr(F4) + self.poll_addr(sTB, F4, 7, V(T + 1), 31)
        return p + self.stamp('attn')

    def phase2(self):
        o = self.opt
        t = [V(136 + n) for n in range(60)]
        main = []
        for i in range(17):
            for n in range(5):
                for k in range(4):
                    d = V(P2ACC + 16 * n + 4 * k, 4)
                    main.append(mfma(d, wslot(i, n), aslot(i, k), d if i else 0))
        w = Weave(main)
        pre = [salu('s_mul_i32', sT[1], sTB, 64 * 1280), salu('s_mul_i32', sT[2], sC, 160), salu('s_add_u32', sT[3], sT[1], sT[2])]
        vO, vRd = t[12:17], t[17:22]
        for r in range(5):
            pre += [valu('v_add_u32', t[6], 256 * r, 'v0')] + self.divc(t[7], t[6], 20, 1279)
            pre += [valu('v_mul_u32_u24', t[8], 20, t[7]), valu('v_sub_u32', t[8], t[6], t[8]),
                    valu('v_mul_u32_u24', vO[r], 1280, t[7]), valu('v_lshl_add_u32', vO[r], t[8], 3, vO[r]),
                    bload(A(aRES + 2 * r, 2), vO[r], SX, sT[3]),
                    valu('v_and_b32', t[6], 1, t[7]), valu('v_lshlrev_b32', t[6], 4, t[6]),
                    valu('v_and_b32', vRd[r], 32, t[7]), valu('v_add_u32', t[6], t[6], vRd[r]),
                    valu('v_bfe_u32', vRd[r], t[7], 1, 4), valu('v_add_u32', t[6], t[6], vRd[r]),
                    valu('v_mul_u32_u24', t[6], REDR, t[6]), valu('v_lshl_add_u32', vRd[r], t[8], 4, t[6])]
        vRw = t[10]
        pre += [valu('v_and_b32', t[6], 15, vL), valu('v_mul_u32_u24', t[6], REDR, t[6]), valu('v_lshrrev_b32', t[7], 4, vL),
                valu('v_lshl_add_u32', t[6], t[7], 4, t[6]), salu('s_mul_i32', sT[1], sW, REDW),
                valu('v_add_u32', vRw, sT[1], t[6])]
        nexta = o['nA_att']
        for i in range(17):
            g0 = 20 * i
            w.at(g0, *self.stamp(f'S{i}'))
            if i == o['f4_step']:
                w.at(g0, Group([wait(vm=self.o_stores), bstore(vTAG, vFA, SWS, 0, 0, 'sc1')]))
            if i == o['poll4']:
                w.at(g0 + 1, bload(vPOLL, vPA, SWS, 0, 0, 'sc1'))
            if i == o['chk4']:
                w.at(g0 + 19, self.check('f4'), barrier())
            if i + 7 < 17:
                for n, x_ in enumerate(self.w_loads(i + 7)):
                    w.at(g0 + 4 * n + 3, x_)
            lim = min(i + 10, 16 if i >= o['chk4'] else 11)
            k = 0
            while nexta <= lim and k < o['a_rate'] and i < 16:
                for tt, x_ in enumerate(self.a_loads(nexta)):
                    w.at(g0 + 21 + (4 * k + tt) * 18 // (4 * o['a_rate']), x_)
                nexta += 1
                k += 1
        assert nexta == 17 and o['chk4'] <= 10
        w.stream(pre, o['pre2'], 20 * 15)
        ws_ = []
        for n in range(5):
            for k in range(4):
                ws_.append(ds_write('ds_write_b128', vRw, V(P2ACC + 16 * n + 4 * k, 4), RED + k * 16 * REDR + 64 * n))
        for m in range(16):
            w.at(320 + m + 4, ws_[m])
        p = w.flat() + self.stamp('gemm2')
        p += ws_[16:] + [Group([wait(all_lgkm=True), barrier()])] + self.stamp('redbar')
        R0 = 40
        for r in range(5):
            for wv in range(4):
                p.append(ds_read('ds_read_b128', V(R0 + 16 * r + 4 * wv, 4), vRd[r], RED + wv * REDW))
        pk = lambda op, d, a_, b_: I(f"{op} {d}, {a_}, {b_}", 'valu', regs(a_) + regs(b_), regs(d))
        X0 = 160
        for r in range(5):
            for k in range(2):
                p.append(valu('v_accvgpr_read_b32', V(X0 + 4 * r + 2 * k + 1), A(aRES + 2 * r + k)))
            for k in range(2):
                p += [valu('v_lshlrev_b32', V(X0 + 4 * r + 2 * k), 16, V(X0 + 4 * r + 2 * k + 1)),
                      valu('v_and_b32', V(X0 + 4 * r + 2 * k + 1), 0xffff0000, V(X0 + 4 * r + 2 * k + 1))]
        for r in range(5):
            b = R0 + 16 * r
            for k in range(2):
                p.append(pk('v_pk_add_f32', V(b + 2 * k, 2), V(b + 2 * k, 2), V(b + 4 + 2 * k, 2)))
            for k in range(2):
                p.append(pk('v_pk_add_f32', V(b + 8 + 2 * k, 2), V(b + 8 + 2 * k, 2), V(b + 12 + 2 * k, 2)))
            for k in range(2):
                p.append(pk('v_pk_add_f32', V(b + 2 * k, 2), V(b + 2 * k, 2), V(X0 + 4 * r + 2 * k, 2)))
            for k in range(2):
                p.append(pk('v_pk_add_f32', V(b + 2 * k, 2), V(b + 2 * k, 2), V(b + 8 + 2 * k, 2)))
            for k in range(2):
                p.append(valu('v_cvt_pk_bf16_f32', V(b + 4 + k), V(b + 2 * k), V(b + 2 * k + 1)))
            p.append(bstore(V(b + 4, 2), vO[r], SOUT, sT[3]))
        p += [valu('v_mov_b32', t[6], OOB), valu('v_or_b32', t[7], 's2', 'v0'), valu('v_cmp_ne_u32', 'vcc', 0, t[7]),
              valu('v_cndmask_b32', t[6], 0, t[6], 'vcc'), bstore(vTAG, t[6], SWS, 0, 0, 'sc1')]
        return p

    def stamp_out(self):
        if not self.stamps:
            return []
        p = self.stamp('end')
        p += [raw("s_memrealtime s[82:83]", wr=['s82', 's83']), raw("s_waitcnt lgkmcnt(0)"),
              raw(f"v_writelane_b32 {vJUNK}, s82, 63", rd=['s82'], wr=[vJUNK], kind='valu'),
              raw(f"v_writelane_b32 {vJUNK}, s84, 62", rd=['s84'], wr=[vJUNK], kind='valu'),
              salu('s_lshl2_add_u32', sT[1], 's2', sW), salu('s_lshl_b32', sT[1], sT[1], 8), salu('s_add_u32', sT[1], sT[1], STAMP),
              valu('v_lshlrev_b32', V(140), 2, vL), bstore(vJUNK, V(140), SWS, sT[1])]
        if self.opt.get('dbg'):
            p += [raw(f"v_readlane_b32 s82, {vJUNK}, 0", rd=[vJUNK], wr=['s82'], kind='rdlane'),
                  raw(f"v_readlane_b32 s83, {vJUNK}, 61", rd=[vJUNK], wr=['s83'], kind='rdlane'),
                  raw(f"v_readlane_b32 s85, {vJUNK}, 63", rd=[vJUNK], wr=['s85'], kind='rdlane'),
                  valu('v_subrev_u32', V(141), 's82', vJUNK),
                  salu('s_sub_u32', 's85', 's85', 's83'),
                  raw("v_writelane_b32 v141, s85, 12", rd=['s85'], wr=['v141'], kind='valu'),
                  raw("v_writelane_b32 v141, s84, 13", rd=['s84'], wr=['v141'], kind='valu'),
                  salu('s_mov_b32', 's4', 's98'), salu('s_mov_b32', 's5', 's99'), salu('s_mov_b32', 's6', 64),
                  salu('s_lshl2_add_u32', sT[1], 's2', sW),
                  salu('s_cmp_eq_u32', sT[1], self.opt['dbg']), salu('s_cselect_b32', sT[1], 0, 256),
                  bstore(V(141), V(140), SX, sT[1])]
        return p

    def build(self):
        self.stage_ops = {}
        self.stage_pre = {}
        prog = self.startup() + self.phase1() + self.tail1() + self.phase2() + self.stamp_out()
        abl = self.opt.get('abl', 0)
        if abl:
            prog = flatten(prog)
            nb, keep = 0, []
            for i in prog:
                nb += i.kind == 'barrier'
                flag = i.kind == 'vst' and 'dwordx4' not in i.text
                drop = (abl & 1 and i.kind == 'dma' and nb >= 2) or (abl & 2 and i.kind == 'vst' and not flag) or \
                       (abl & 4 and i.kind == 'vld' and nb >= 2 and 'dwordx4' in i.text) or \
                       (abl & 8 and i.kind == 'mfma') or (abl & 16 and i.kind == 'dsr') or \
                       (abl & 32 and i.kind in VALUS and 2 <= nb <= 21 and 'v_cmp_ne_u32 vcc, s37' not in i.text
                        and i.wr and i.wr[0] not in ('v24', 'v25', 'v27', 's37', 'vcc', 'v144', 'v194', 'v195') and int(i.wr[0][1:]) >= 32)
                if not drop:
                    i.meta.pop('exp', None)
                    keep.append(i)
            prog = keep
        prog = finalize(prog)
        self.prog = prog
        body = "\n".join(("" if i.kind == 'label' else "    ") + i.text for i in prog)
        return f"""; Fused LayerNorm + sliding-window attention + ReLU FFN + residual, one workgroup per CU.
; @launch grid=(256,1,1) block=(256,1,1) lds={LDS_SIZE}
.amdgcn_target "amdgcn-amd-amdhsa--gfx950"
.text
.globl {NAME}
.p2align 8
.type {NAME},@function
{NAME}:
{body}
L_end:
    s_endpgm
{"".join(self.slow)}L_last:
.section .rodata,"a"
.p2align 6
.amdhsa_kernel {NAME}
  .amdhsa_next_free_vgpr 512
  .amdhsa_next_free_sgpr 102
  .amdhsa_accum_offset 256
  .amdhsa_group_segment_fixed_size 0
  .amdhsa_kernarg_size 72
  .amdhsa_user_sgpr_count 2
  .amdhsa_user_sgpr_kernarg_segment_ptr 1
  .amdhsa_system_sgpr_workgroup_id_x 1
.end_amdhsa_kernel
"""


if __name__ == "__main__":
    out = sys.argv[1]
    opts = dict(kv.split('=') for kv in sys.argv[2:])
    opts = {k: int(v) for k, v in opts.items()}
    g = Gen(stamps=opts.pop('stamps', 0), **opts)
    open(out, "w").write(g.build())
    print(stats(g.prog), g.ovf)
```

```python
import re


def regs(spec):
    if spec is None:
        return []
    spec = str(spec).strip()
    if spec.startswith('-'):
        spec = spec[1:]
    m = re.fullmatch(r'([vas])\[(\d+):(\d+)\]', spec)
    if m:
        return [f"{m.group(1)}{i}" for i in range(int(m.group(2)), int(m.group(3)) + 1)]
    if re.fullmatch(r'[vas]\d+', spec):
        return [spec]
    if spec in ('vcc', 'exec', 'm0'):
        return [spec]
    return []


def tup(kind, base, n):
    return f"{kind}{base}" if n == 1 else f"{kind}[{base}:{base + n - 1}]"


def V(base, n=1):
    return tup('v', base, n)


def A(base, n=1):
    return tup('a', base, n)


def S(base, n=1):
    return tup('s', base, n)


def lit(s):
    if isinstance(s, int) and s > 64:
        return hex(s)
    return str(s)


TRANS = ('v_exp_f32', 'v_rcp_f32', 'v_rsq_f32', 'v_sqrt_f32', 'v_log_f32')


class I:
    __slots__ = ('text', 'kind', 'rd', 'wr', 'cr', 'meta')

    def __init__(self, text, kind, rd=(), wr=(), cr=(), **meta):
        self.text, self.kind = text, kind
        self.rd, self.wr, self.cr = list(rd), list(wr), list(cr)
        self.meta = meta

    def __repr__(self):
        return self.text


def valu(op, dst, *srcs, mods=''):
    rd = [r for s in srcs for r in regs(s)]
    wr = regs(dst)
    base = op.replace('_e64', '').replace('_e32', '')
    kind = 'valu'
    if base in TRANS:
        kind = 'trans'
    if base.startswith('v_dot2'):
        kind = 'dot'
    if base in ('v_fmac_f32', 'v_dot2c_f32_bf16'):
        rd += wr
    if base.startswith('v_permlane'):
        kind = 'perm'
        rd += wr
        wr = wr + regs(srcs[0])
    if base.endswith('_dpp'):
        kind = 'dpp'
    if base in ('v_readfirstlane_b32', 'v_readlane_b32'):
        kind = 'rdlane'
    txt = f"{op} {dst}, " + ", ".join(lit(s) for s in srcs) + (" " + mods if mods else "")
    return I(txt, kind, rd, wr)


def salu(op, dst, *srcs):
    rd = [r for s in srcs for r in regs(s)]
    if op.startswith('s_cmp') or op.startswith('s_bitcmp'):
        return I(f"{op} {dst}, " + ", ".join(str(s) for s in srcs), 'salu', rd + regs(dst), ['scc'])
    wr = regs(dst)
    if op.startswith('s_cselect') or op.startswith('s_addc'):
        rd.append('scc')
    if not (op.startswith('s_mov') or op.startswith('s_mul') or op.startswith('s_cselect') or op.startswith('s_getpc')):
        wr.append('scc')
    return I(f"{op} {dst}" + "".join(f", {lit(s)}" for s in srcs), 'salu', rd, wr)


def mfma(d, a, b, c):
    return I(f"v_mfma_f32_16x16x32_bf16 {d}, {a}, {b}, {c}", 'mfma', regs(a) + regs(b), regs(d), regs(c))


def _off(o):
    return f" offset:{o}" if o else ""


def ds_read(op, dst, addr, off=0):
    assert 0 <= off < 65536, off
    return I(f"{op} {dst}, {addr}{_off(off)}", 'dsr', regs(addr), regs(dst))


def ds_write(op, addr, data, off=0):
    assert 0 <= off < 65536, off
    return I(f"{op} {addr}, {data}{_off(off)}", 'dsw', regs(addr) + regs(data), [])


def ds_bperm(dst, addr, src):
    return I(f"ds_bpermute_b32 {dst}, {addr}, {src}", 'dsr', regs(addr) + regs(src), regs(dst))


def _w(n):
    return {1: 'dword', 2: 'dwordx2', 3: 'dwordx3', 4: 'dwordx4'}[n]


def bload(dst, voff, srd, soff=0, off=0, fl=''):
    assert 0 <= off < 4096, off
    n = len(regs(dst))
    return I(f"buffer_load_{_w(n)} {dst}, {voff}, {srd}, {soff} offen{_off(off)}{' ' + fl if fl else ''}", 'vld',
             regs(voff) + regs(srd) + regs(soff), regs(dst))


def bdma(voff, srd, soff=0, off=0, fl=''):
    assert 0 <= off < 4096, off
    return I(f"buffer_load_dwordx4 {voff}, {srd}, {soff} offen{_off(off)}{' ' + fl if fl else ''} lds", 'dma',
             regs(voff) + regs(srd) + regs(soff) + ['m0'], [])


def bstore(data, voff, srd, soff=0, off=0, fl=''):
    assert 0 <= off < 4096, off
    n = len(regs(data))
    return I(f"buffer_store_{_w(n)} {data}, {voff}, {srd}, {soff} offen{_off(off)}{' ' + fl if fl else ''}", 'vst',
             regs(voff) + regs(srd) + regs(soff) + regs(data), [], data=regs(data) if n >= 3 else [])


def wait(vm=(), lgkm=(), all_lgkm=False, all_vm=False):
    return I('', 'wait', vm=list(vm), lgkm=list(lgkm), all_lgkm=all_lgkm, all_vm=all_vm)


def barrier(note=''):
    return I('s_barrier' + (f"                                ; {note}" if note else ''), 'barrier')


def raw(text, rd=(), wr=(), kind='salu', **meta):
    return I(text, kind, rd, wr, **meta)


class Skip:
    def __init__(self, n):
        self.n = n


class Group(list):
    pass


VALUS = ('valu', 'trans', 'dot', 'perm', 'dpp', 'rdlane')
VEC = ('valu', 'trans', 'dot', 'perm', 'dpp', 'rdlane', 'dsr', 'dsw', 'vld', 'dma', 'vst')


MEM = ('dsr', 'dsw', 'vld', 'dma', 'vst')
FENCE = ('barrier', 'wait', 'branch', 'label')


def items(i):
    return i if isinstance(i, Group) else [i]


def vcost(i):
    c = 0
    for x in items(i):
        if x.kind in ('trans', 'vld', 'dma', 'vst'):
            c += 2
        elif x.kind == 'dsw':
            c += 3 if 'b128' in x.text else 2
        elif x.kind in VEC:
            c += 1
    return c


def scost(i):
    return sum(1 for x in items(i) if x.kind in ('salu', 'barrier', 'branch'))


def gcost(v, s):
    return v + max(s - 1, 0)


def conflict(a, b):
    if a.kind in FENCE or b.kind in FENCE or a.meta.get('drains_lgkm') or b.meta.get('drains_lgkm'):
        return True
    if a.kind in ('dsw', 'vst', 'dma') and b.kind in MEM or b.kind in ('dsw', 'vst', 'dma') and a.kind in MEM:
        return True
    if 'exec' in a.wr or 'exec' in b.wr:
        return True
    aw, bw = set(a.wr), set(b.wr)
    if 'scc' in aw and 'scc' in bw and not (a.text.startswith('s_cmp') or b.text.startswith('s_cmp')) \
            and 'scc' not in a.rd and 'scc' not in b.rd:
        aw, bw = aw - {'scc'}, bw - {'scc'}
    return bool(aw & (set(b.rd) | set(b.cr) | bw) or bw & (set(a.rd) | set(a.cr)))


def order_gap(ins):
    units = [list(items(i)) for i in ins]
    out, first = [], True
    while units:
        ready = [k for k, u in enumerate(units)
                 if not any(conflict(x, y) for p in units[:k] for x in p for y in u)]

        def rank(k):
            u = units[k]
            kinds = {x.kind for x in u}
            if kinds <= {'salu'}:
                return 0 if first else 2
            if kinds & set(MEM):
                return 1
            return 3
        k = min(ready, key=lambda k: (rank(k), k))
        out += units.pop(k)
        first = False
    return out


def tie(seq):
    out, pend = [], None
    for i in seq:
        if pend is not None:
            if isinstance(i, Skip):
                continue
            pend.extend(i if isinstance(i, Group) else [i])
            if any('scc' in x.rd for x in (i if isinstance(i, Group) else [i])):
                out.append(pend)
                pend = None
        elif not isinstance(i, (Skip, Group)) and i.text.startswith('s_cmp'):
            pend = Group([i])
        else:
            out.append(i)
    assert pend is None
    return out


def annotate(seq):
    last = {}
    for i in flatten(seq):
        exp = i.meta.setdefault('exp', {})
        for r in i.rd + i.cr:
            if r in last:
                exp.setdefault(r, last[r])
        for r in i.wr:
            last[r] = i


def verify(prog):
    last = {}
    for i in prog:
        for r, p in i.meta.get('exp', {}).items():
            assert last.get(r) is p, f"{i.text}: {r} was meant to come from '{p.text}' but comes from '{last.get(r)}'"
        for r in i.wr:
            last[r] = i


class Weave:
    def __init__(self, main, cap=2):
        self.main = list(main)
        self.gaps = [[] for _ in self.main]
        self.v = [0] * len(self.main)
        self.s = [0] * len(self.main)
        self.cap = cap

    def at(self, g, *ins):
        annotate(ins)
        for i in ins:
            self.gaps[g].append(i)
            self.v[g] += vcost(i)
            self.s[g] += scost(i)

    def _try(self, seq, start, end, over):
        g, plan, v, s = start, [], list(self.v), list(self.s)
        valu_at = -1
        capf = lambda x: self.cap + int((x - start + 1) * over) - int((x - start) * over)
        for i in seq:
            if isinstance(i, Skip):
                g += i.n
                continue
            if not isinstance(i, Group) and i.kind == 'mfma':
                if g >= end:
                    return None
                plan.append((g, i))
                g += 1
                continue
            cv, cs = vcost(i), scost(i)
            mem = any(x.kind in MEM for x in items(i))
            while g < end and ((mem and g == valu_at) or
                               (gcost(v[g] + cv, s[g] + cs) > capf(g) and (v[g] or s[g] > 1 or cv == 0 and s[g]))):
                g += 1
            if g >= end:
                return None
            plan.append((g, i))
            v[g] += cv
            s[g] += cs
            if any(x.kind in VALUS for x in items(i)):
                valu_at = g
        return plan

    def stream(self, seq, start, end=None):
        end = len(self.main) if end is None else min(end, len(self.main))
        seq = tie(seq)
        annotate(seq)
        for k in range(0, 200):
            plan = self._try(seq, start, end, k / 8)
            if plan is not None:
                for g, i in plan:
                    self.at(g, i)
                return plan[-1][0] if plan else start
        raise RuntimeError("stream does not fit")

    def spread(self, seq, start, end):
        end = min(end, len(self.main))
        annotate(seq)
        n, g = len(seq), start - 1
        for k, i in enumerate(seq):
            lo = min(max(g + 1, start + (end - start) * k // n), end - 1)
            hi = min(max(lo + 1, start + (end - start) * (k + 1) // n), end)
            g = min(range(lo, hi), key=lambda x: (max(gcost(self.v[x] + vcost(i), self.s[x] + scost(i)) - self.cap, 0), x))
            self.at(g, i)
        return g

    def overflow(self, a=0, b=None):
        return sum(max(gcost(v, s) - self.cap, 0) for v, s in zip(self.v[a:b], self.s[a:b]))

    def flat(self):
        out = []
        for m, f in zip(self.main, self.gaps):
            out.append(m)
            seg = []
            for i in f:
                if not isinstance(i, Group) and i.kind == 'mfma':
                    out += order_gap(seg) + [i]
                    seg = []
                else:
                    seg.append(i)
            out += order_gap(seg)
        return out


def flatten(seq):
    out = []
    for i in seq:
        if isinstance(i, Skip):
            continue
        if isinstance(i, (list, tuple)):
            out.extend(flatten(i))
        else:
            out.append(i)
    return out


def insert_waits(prog, age=6, strict=True):
    out, vm, lg = [], [], []
    nm, last_m, seen = 0, None, set()

    def need(queue, pred):
        idx = -1
        for k, (op, _, _) in enumerate(queue):
            if pred(op):
                idx = k
        return idx

    for ins in prog:
        if ins.kind == 'wait':
            ids_v = set(map(id, ins.meta['vm']))
            ids_l = set(map(id, ins.meta['lgkm']))
            assert strict is False or (ids_v | ids_l) <= seen, "wait for an operation that has not been issued"
            iv = len(vm) - 1 if ins.meta['all_vm'] else need(vm, lambda o: id(o) in ids_v)
            il = len(lg) - 1 if ins.meta['all_lgkm'] else need(lg, lambda o: id(o) in ids_l)
        else:
            touched = set(ins.rd) | set(ins.wr) | set(ins.cr)
            rd = set(ins.rd)
            iv = need(vm, lambda o: (rd if ins.kind == 'vld' else touched) & set(o.wr))
            il = need(lg, lambda o: (rd if ins.kind == 'dsr' else touched) & set(o.wr))
        if il >= 0:
            while il + 1 < len(lg) and lg[il + 1][1] <= nm - age:
                il += 1
        if iv >= 0 or il >= 0:
            at = len(out)
            if ins.kind == 'mfma' and last_m is not None and at - last_m <= 6 \
                    and all(q[k][2] < last_m and q[k][1] <= nm - 3 for q, k in ((vm, iv), (lg, il)) if k >= 0) \
                    and not any(x.kind in FENCE or x.text.startswith('s_waitcnt') for x in out[last_m + 1:]):
                at = last_m + 1
            parts = []
            if iv >= 0:
                n = sum(1 for o in vm[iv + 1:] if o[2] < at)
                if n < 63:
                    parts.append(f"vmcnt({n})")
                vm = vm[iv + 1:]
            if il >= 0:
                n = sum(1 for o in lg[il + 1:] if o[2] < at)
                if n > 15:
                    il += n - 15
                    n = 15
                parts.append(f"lgkmcnt({n})")
                lg = lg[il + 1:]
            if parts:
                out.insert(at, I("s_waitcnt " + " ".join(parts), 'salu'))
                vm = [(o, m, p + (p >= at)) for o, m, p in vm]
                lg = [(o, m, p + (p >= at)) for o, m, p in lg]
        if ins.kind == 'wait':
            continue
        out.append(ins)
        seen.add(id(ins))
        if ins.kind == 'mfma':
            nm += 1
            last_m = len(out) - 1
        if ins.kind in ('vld', 'dma', 'vst'):
            vm.append((ins, nm, len(out) - 1))
        elif ins.kind in ('dsr', 'dsw'):
            lg.append((ins, nm, len(out) - 1))
        if ins.meta.get('drains_lgkm'):
            lg = []
    res = []
    for k, i in enumerate(out):
        res.append(i)
        if i.kind == 'mfma' and k + 3 < len(out) and out[k + 1].kind == 'dsr' and out[k + 2].kind == 'dsr' \
                and out[k + 3].kind == 'mfma':
            res.append(I("s_nop 0", 'salu', states=1))
    return res


def _is_s(r):
    return r[0] == 's' or r == 'vcc'


def required(p, c):
    n = 0
    pw, cr_, cw, cc = set(p.wr), set(c.rd), set(c.wr), set(c.cr)
    if p.kind in VALUS:
        vw = {r for r in pw if r[0] in 'va' and r != 'vcc'}
        sw = {r for r in pw if _is_s(r)}
        if c.kind == 'mfma' and vw & (cr_ | cc):
            n = max(n, 2)
        if c.kind in ('perm', 'dpp') and vw & cr_:
            n = max(n, 2)
        if c.kind == 'rdlane' and vw & cr_:
            n = max(n, 1)
        if p.kind == 'trans' and c.kind in VALUS and vw & cr_:
            n = max(n, 1)
        if p.kind == 'dot' and vw & (cr_ | cw | cc):
            same = c.kind == 'dot' and c.text.split()[0] == p.text.split()[0]
            srcs = c.text.split(',')
            if not (same and not (vw & set(regs(srcs[1]) + regs(srcs[2])))):
                n = max(n, 3)
        if c.kind in ('vld', 'dma', 'vst') and sw & cr_:
            n = max(n, 5)
        if c.kind in VALUS and sw & cr_:
            n = max(n, 4 if c.kind == 'rdlane' else 2)
        if c.kind in ('salu', 'branch') and sw & cr_:
            n = max(n, 1)
    if p.kind == 'mfma':
        if c.kind == 'mfma':
            if pw & cr_:
                n = max(n, 8)
            if pw & cc and p.wr != c.cr:
                n = max(n, 6)
            if pw & cw and p.wr != c.cr:
                n = max(n, 6)
        elif pw & (cr_ | cw):
            n = max(n, 8)
        if c.kind in VALUS and set(p.cr) & cw:
            n = max(n, 3)
    if p.kind == 'salu' and 'm0' in pw and c.kind == 'dma':
        n = max(n, 1)
    if p.kind == 'vst' and set(p.meta.get('data', ())) & cw:
        n = max(n, 2)
    return n


def insert_nops(prog):
    out = []
    for ins in prog:
        need, dist = 0, 0
        for p in reversed(out):
            if dist >= 8:
                break
            r = required(p, ins)
            need = max(need, r - dist)
            dist += p.meta.get('states', 1)
        if need > 0:
            out.append(I(f"s_nop {need - 1}", 'salu', states=need))
        out.append(ins)
    return out


def finalize(prog, strict=True, age=6):
    prog = flatten(prog)
    verify(prog)
    prog = insert_nops(insert_waits(prog, age, strict))
    return prog


def stats(prog):
    from collections import Counter
    c = Counter(i.kind for i in prog)
    c['nop_states'] = sum(i.meta.get('states', 0) for i in prog if i.text.startswith('s_nop'))
    c['waitcnt'] = sum(1 for i in prog if i.text.startswith('s_waitcnt'))
    return dict(c)


def estimate(prog):
    t, last_m, prev, marks = 0, -100, None, []
    for i in prog:
        k = i.kind
        if k == 'label':
            continue
        if k == 'mfma':
            t = max(t, last_m + 16)
            last_m = t
            t += 4
        elif k in VEC:
            t = max(t, last_m + 8)
            if k in MEM and prev is not None and prev.kind in VALUS:
                t += 8
            t += 4 * vcost(i)
        else:
            t += 4 * i.meta.get('states', 1)
        if k == 'barrier':
            marks.append(('bar', t))
        prev = i
    marks.append(('end', t))
    return marks
```

```python
import struct
import sys
from fw import *

NAME = "parallel_sum__sliding_local_dilated__dense_activation_relu__prompt_kernel"

F1, F2, F3, F4 = 0x1000, 0x2000, 0x3000, 0x5000
ST = 0x8000
WQ = 0x10000
WQJ = 163840
W2P = 0x290000
W2C = 348160
ACT = 0x540000
ACTB = 278528
STAMP = 0xE00000
WS_SIZE = 0x1000000
OOB = 0x7ffffff0

HALO = 0
XR = 20480
W1R = 86016
P0A = 135168
P0B = 147456
CSF = 159744
CSQ = CSF + 512
ZERO = CSF + 1024
DUMMY = CSF + 2048
KV = W1R
KVR, KVC, KVH = 136, 9792, 19584
RED, REDR, REDT, REDW = 0, 336, 5440, 21760
LDS_SIZE = 163840

SX, SWQKV, SWO, SW1, SW2, SOUT, SWS = (S(n, 4) for n in (4, 8, 12, 16, 20, 24, 28))
sW, sB, sJ, sTB, sC, sTAG = (S(n) for n in range(32, 38))
sXb, sXl, sW1, sW1l, sWQ, sAP = (S(n) for n in range(38, 44))
sHS = [S(44), S(45), S(46)]
sOA, sOB, sAh, sAo, sAb, sWh, sWo, sWb = (S(n) for n in range(47, 55))
sT = [S(n) for n in range(55, 68)]
sROT, sCNT = S(68), S(69)
sROW0 = S(70, 2)
sU1, sU2, sU3 = S(72, 2), S(74, 2), S(76, 2)
sSCL = S(78)
sCMP = S(81)
sLO16 = S(0, 2)
sLA, sLW = S(79), S(80)
sKP, sXs, sW1b, sG, sWQb, sR, sR2 = (S(n) for n in range(85, 92))
STAMP0 = 82

vL, vL16, vL16b = V(1), V(2), V(3)
vXa = [V(4), V(5), V(28), V(29)]
vXr = [V(6), V(7)]
vW1a = [V(8), V(9), V(10)]
vW1r = [V(n) for n in range(11, 17)]
vHr = [V(17), V(18)]
vWr = [V(n) for n in range(19, 23)]
vPOLL, vPA, vFA, vJUNK, vTAG = V(23), V(24), V(25), V(26), V(27)
vMEAN = [V(28), V(29)]
vRSTD = [V(30), V(31)]
vKVw = [V(n) for n in range(8, 12)]
vHKw, vKr, vK4, vVr, vV4 = V(12), V(13), V(14), V(15), V(16)
vQr, vQ4, vCQr, vCQw = V(4), V(5), V(6), V(7)
MASK = 32
WF = 40
FACC, RS, SS, CS = 64, 112, 120, 128
vMEANH, vRSTDH, vOB = V(61), V(62), V(63)
vSA, vSH = V(126), V(127)
ACC = [136, 64]
OKEEP = 128
T = 172
WSLOT = [A(160 + 20 * i, 1) for i in range(4)]
aONES = A(240, 4)
aRES = 244
P2ACC = 40


def f2u(x):
    return struct.unpack('<I', struct.pack('<f', x))[0]


def X(s, p):
    return A(8 * s + 4 * p, 4)


def wslot(i, n):
    i %= 7
    return A(160 + 20 * i + 4 * n, 4) if i < 4 else V(196 + 20 * (i - 4) + 4 * n, 4)


def aslot(i, t):
    return A(16 * (i % 10) + 4 * t, 4)


LIGHT = ('start', 'B0', 'B5', 'B10', 'B15', 'gemm1', 'attn', 'S5', 'S11', 'gemm2', 'end')


class Gen:
    def __init__(self, stamps=False, **opt):
        self.stamps = stamps
        self.nstamp = 0
        self.stamp_names = []
        self.slow = []
        self.opt = dict(rot=4, rot2=0, npro=2, catch=2, pro_every=99, rawA=-1, haloL=0, packA=1, pub1=3, halo=4, statL=7, srow=0, statC=1, poll1=6, chk1=8,
                        rawB=3, packB=7, pub2=10, poll2=13, chk2=16, w_end=39, ff_end=12, f3_step=21, poll3=18, chk3=20,
                        kv_end=30, pre2=45, snake=1, outfl=0, nA_p1b=1, nA_att=8, att_every=8, ld_end=270, f4_step=4, poll4=7, chk4=9)
        self.opt.update(opt)

    def stamp(self, name):
        if not self.stamps or (self.stamps == 1 and name not in LIGHT):
            return []
        k = self.nstamp
        assert k < 61
        self.nstamp += 1
        self.stamp_names.append(name)
        rt = self.stamps == 1
        return [Group([raw("s_memtime s[82:83]", wr=['s82', 's83'])] +
                      ([raw("s_memrealtime s[100:101]", wr=['s100', 's101'])] if rt else []) +
                      [raw("s_waitcnt lgkmcnt(0)", drains_lgkm=True),
                       raw(f"v_writelane_b32 {vJUNK}, s82, {k}", rd=['s82'], kind='salu')] +
                      ([raw(f"v_writelane_b32 {vJUNK}, s100, {32 + k}", rd=['s100'], kind='salu')] if rt else []))]

    def check(self, name):
        self.slow.append(f"""L_slow_{name}:
{f"    s_add_u32 s84, s84, {1 << (4 * len(self.slow))}" if self.stamps else ""}
    s_mov_b32 {sCNT}, 0x8000
L_spin_{name}:
    s_sleep 2
    buffer_load_dword {vPOLL}, {vPA}, {SWS}, 0 offen sc1
    s_waitcnt vmcnt(0)
    v_cmp_ne_u32 vcc, {sCMP}, {vPOLL}
    s_sub_u32 {sCNT}, {sCNT}, 1
    s_cbranch_scc1 L_ok_{name}
    s_cbranch_vccnz L_spin_{name}
    s_branch L_ok_{name}
""")
        return Group([valu('v_cmp_ne_u32', 'vcc', sCMP, vPOLL),
                      raw(f"s_cbranch_vccnz L_slow_{name}", rd=['vcc'], kind='branch'),
                      raw(f"L_ok_{name}:", kind='label', states=0)])

    def divc(self, dst, src, d, maxv):
        for sh in range(8, 24):
            m = -(-(1 << sh) // d)
            if m * maxv < (1 << 32) and m < (1 << 24) and all((v * m) >> sh == v // d for v in range(maxv + 1)):
                return [valu('v_mul_u32_u24', dst, m, src), valu('v_lshrrev_b32', dst, sh, dst)]
        raise ValueError

    def rstats(self, vs, vq, dst, t):
        inv = f2u(1.0 / 640.0)
        return [valu('v_mul_f32', vs, inv, vs),
                valu('v_mul_f32', t, inv, vq),
                valu('v_fma_f32', t, '-' + vs, vs, t),
                valu('v_max_f32', t, 0, t),
                valu('v_cvt_pk_bf16_f32', t, t, t),
                valu('v_lshlrev_b32', t, 16, t),
                valu('v_add_f32', t, f2u(1e-5), t),
                valu('v_cvt_pk_bf16_f32', t, t, t),
                valu('v_lshlrev_b32', t, 16, t),
                valu('v_sqrt_f32', t, t),
                valu('v_cvt_pk_bf16_f32', dst, vs, t)]

    def stat_loads(self):
        return [bload(V(RS, 4), vSA, SWS, 0, 0, 'sc1'), bload(V(RS + 4, 2), vSH, SWS, 0, 0, 'sc1')]

    def check_stats(self):
        t = V(RS + 6)
        test = [valu('v_xor_b32', t, vTAG, V(RS + 1)), valu('v_xor_b32', V(RS + 7), vTAG, V(RS + 3)),
                valu('v_xor_b32', V(RS + 5), vTAG, V(RS + 5)), valu('v_or3_b32', t, t, V(RS + 7), V(RS + 5)),
                valu('v_cmp_ne_u32', 'vcc', 0, t)]
        body = "\n".join("    " + i.text for i in self.stat_loads()) + "\n    s_waitcnt vmcnt(0)\n" + \
            "\n".join("    " + i.text for i in test)
        self.slow.append(f"""L_slow_st:
{f"    s_add_u32 s84, s84, {1 << (4 * len(self.slow))}" if self.stamps else ""}
    s_mov_b32 {sCNT}, 0x8000
L_spin_st:
    s_sleep 2
{body}
    s_sub_u32 {sCNT}, {sCNT}, 1
    s_cbranch_scc1 L_ok_st
    s_cbranch_vccnz L_spin_st
    s_branch L_ok_st
""")
        return test[:-1] + [Group([test[-1], raw("s_cbranch_vccnz L_slow_st", rd=['vcc'], kind='branch'),
                                   raw("L_ok_st:", kind='label', states=0)])]

    def stage_dma(self, R):
        slot, out = R & 3, []
        if R < 10:
            for k in range(4):
                out.append(Group([bdma(vXa[k], SX, sXs, k * 1024)]))
            for m in range(3):
                out.append(Group([bdma(vW1a[m], SW1, sW1, m * 1024)]))
            self.stage_pre[R] = {0: [salu('s_add_u32', 'm0', sXl, slot * 4096)],
                                 4: [salu('s_add_u32', 'm0', sW1l, slot * 12288)],
                                 7: [salu('s_add_u32', sKP, sKP, 1),
                                     Group([salu('s_cmp_eq_u32', sKP, 10), salu('s_cselect_b32', sKP, 0, sKP)]),
                                     salu('s_lshl_b32', sXs, sKP, 7), salu('s_add_u32', sXs, sXs, sXb),
                                     salu('s_mul_i32', sW1, sKP, 64 * 3072), salu('s_add_u32', sW1, sW1, sW1b)] if R < 9 else []}
        else:
            for m in range(4):
                out.append(Group([bdma(vL16, SWS, sWQ, m * 1024, 'sc1')]))
            self.stage_pre[R] = {0: [salu('s_add_u32', 'm0', sXl, slot * 4096)],
                                 4: [salu('s_add_u32', sG, sG, 4),
                                     Group([salu('s_cmp_ge_u32', sG, 20), salu('s_cselect_b32', sWQ, 20, 0)]),
                                     salu('s_sub_u32', sG, sG, sWQ), salu('s_lshl_b32', sWQ, sG, 12),
                                     salu('s_add_u32', sWQ, sWQ, sWQb)] +
                                    ([salu('s_add_u32', sWQ, sWQ, 81920)] if R >= 14 else []) if R < 19 else []}
        self.stage_ops[R] = [i for g in out for i in g if i.kind == 'dma']
        return out

    def inline_stage(self, R):
        out, pre = self.stage_dma(R), self.stage_pre[R]
        for k, ins in pre.items():
            ins = flatten(ins)
            if k < len(out):
                out[k][:0] = ins
            else:
                out[-1].extend(ins)
        return out

    def place_mem(self, w, seq, start, end):
        n = sum(1 for g, _ in seq if g)
        first = start + len(seq[0][1])
        last = end - (min(len(seq[-1][1]), 3) if seq[-1][0] is None else 0) - 1
        prev, k, carry = start - 1, 0, []
        for g, pre in seq + [(None, None)]:
            if pre is not None:
                carry += pre
            if g is None and pre is not None:
                continue
            if g is not None:
                lo = min(max(prev + 1, first + (last - first) * k // n), end - 1)
                hi = min(max(lo + 1, first + (last - first) * (k + 1) // n - 1), end)
                at = min(range(lo, hi), key=lambda x: (max(gcost(w.v[x] + vcost(g), w.s[x] + scost(g)) - w.cap, 0), x))
                k += 1
            else:
                at = end
            room = at - prev - 1
            if room <= 0:
                if g is not None:
                    w.at(at, Group(flatten(carry) + flatten([g])))
                elif carry:
                    w.at(prev, Group(flatten(carry)))
            else:
                for j, c in enumerate(carry):
                    w.at(prev + 1 + (j if len(carry) <= room else j * room // len(carry)), c)
                if g is not None:
                    w.at(at, g)
            carry, prev = [], at

    def ring_barrier(self, R, extra_vm=()):
        return Group([wait(vm=self.stage_ops[R] + list(extra_vm), all_lgkm=True), barrier()])

    def p2_steps(self):
        return [(sAh, sWh, i) for i in range(12)] + [(sAo, sWo, i) for i in range(4)] + [(sAb, sWb, 0)]

    def step_base(self, dst, base, k, stride, i):
        m = self.opt['rot2']
        if i == 16 or not m or (m == 12 and i >= 12):
            return [salu('s_add_u32', dst, base, k * stride)]
        if m in (2, 4):
            return [salu('s_add_u32', dst, sR2, k & (m - 1)), salu('s_and_b32', dst, dst, m - 1), salu('s_mul_i32', dst, dst, stride),
                    salu('s_add_u32', dst, dst, base)] + ([salu('s_add_u32', dst, dst, (k & ~(m - 1)) * stride)] if k >= m else [])
        return [salu('s_cmp_ge_u32', sR2, 12 - k), salu('s_cselect_b32', dst, (k - 12) & 0xffffffff, k),
                salu('s_add_u32', dst, dst, sR2), salu('s_mul_i32', dst, dst, stride), salu('s_add_u32', dst, dst, base)]

    def w_loads(self, i):
        _, sw, k = self.p2_steps()[i]
        out = []
        for n in range(5):
            g = [bload(wslot(i, n), vL16 if n < 4 else vL16b, SWS, sLW, (n & 3) * 1024, 'sc1')]
            if n == 0:
                g[:0] = self.step_base(sLW, sw, k, 5120, i)
            out.append(Group(g))
        return out

    def a_loads(self, i):
        sa, _, k = self.p2_steps()[i]
        out = []
        for t in range(4):
            g = [bload(aslot(i, t), vL16, SWS, sLA, t * 1024, 'sc1')]
            if t == 0:
                g[:0] = self.step_base(sLA, sa, k, 4096, i)
            out.append(Group(g))
        return out

    def startup(self):
        t = [V(n) for n in range(136, 256)]
        vQ, vZ, vOOB, vU, vHu, vR, vCC, vPs = t[5], t[7], t[14], t[15], t[16], t[17], t[18], t[19]
        rdA, soA = [t[20], t[21], t[22]], [sT[8], sT[9], sT[10]]
        rdB, stB, ldB = [t[23], t[24], t[25]], [t[26], t[27], t[28]], [t[29], t[30], t[31]]
        s6T, s5T, sW2c = sT[6], sT[7], sT[11]
        H, PK = 200, 176
        p = []
        e = p.append
        x = p.extend
        e(salu('s_cmp_ge_u32', 's2', 256))
        e(raw("s_cbranch_scc1 L_end", rd=['scc'], kind='branch'))
        e(salu('s_getpc_b64', S(56, 2)))
        e(raw("L_pc:", kind='label', states=0))
        for r, off in ((4, 0), (16, 32), (8, 8), (28, 64), (12, 16), (20, 40), (24, 48)):
            e(raw(f"s_load_dwordx2 {S(r, 2)}, s[0:1], {off}", wr=regs(S(r, 2))))
        if self.opt.get('dbg'):
            e(raw("s_load_dwordx2 s[98:99], s[0:1], 56", wr=['s98', 's99']))
        e(salu('s_lshr_b32', sT[0], 's2', 3))
        e(salu('s_lshl_b32', sT[4], sT[0], 4))
        e(valu('v_lshrrev_b32', t[0], 6, 'v0'))
        e(valu('v_and_b32', t[1], 3, 'v0'))
        e(valu('v_lshl_add_u32', t[1], t[0], 2, t[1]))
        e(valu('v_add_lshl_u32', t[1], sT[4], t[1], 7))
        e(valu('v_min_u32', t[1], 'L_last-L_pc-4', t[1]))
        e(valu('v_mov_b32', t[3], 's57'))
        e(I(f"v_add_co_u32 {t[2]}, vcc, s56, {t[1]}", 'valu', ['s56', t[1]], [t[2], 'vcc']))
        e(valu('v_readfirstlane_b32', sW, t[0]))
        e(valu('v_and_b32', vL, 63, 'v0'))
        e(I(f"v_addc_co_u32 {t[3]}, vcc, 0, {t[3]}, vcc", 'valu', [t[3], 'vcc'], [t[3], 'vcc']))
        e(I(f"global_load_dword v255, {V(138, 2)}, off", 'vld', [t[2], t[3]], ['v255']))
        x(self.stamp('start'))
        if self.stamps:
            e(salu('s_mov_b32', 's84', 0))
            e(raw("s_memrealtime s[82:83]", wr=['s82', 's83']))
            e(raw("s_waitcnt lgkmcnt(0)"))
            e(raw(f"v_writelane_b32 {vJUNK}, s82, 61", rd=['s82'], kind='salu'))
        e(salu('s_and_b32', sT[3], 's2', 7))
        e(salu('s_lshr_b32', sT[4], sT[3], 1))
        e(salu('s_and_b32', sT[3], sT[3], 1))
        e(salu('s_and_b32', sB, sT[0], 3))
        e(salu('s_lshl2_add_u32', sB, sT[4], sB))
        e(valu('v_lshrrev_b32', t[4], 3, vL))
        e(valu('v_lshrrev_b32', vQ, 4, vL))
        e(valu('v_and_b32', t[6], 7, vL))
        e(valu('v_xor_b32', t[6], t[6], vQ))
        e(valu('v_lshlrev_b32', t[6], 4, t[6]))
        e(valu('v_mul_u32_u24', vXa[0], 2560, t[4]))
        e(valu('v_add_u32', vXa[0], vXa[0], t[6]))
        e(valu('v_xor_b32', vXa[2], 64, vXa[0]))
        e(valu('v_add_u32', vXa[1], 1280 - 1024, vXa[0]))
        e(valu('v_add_u32', vXa[3], 20480 + 1280 - 3072, vXa[2]))
        e(valu('v_add_u32', vXa[2], 20480 - 2048, vXa[2]))
        rot = self.opt['rot']
        if rot == 1:
            e(salu('s_and_b32', sR, sT[0], 3))
            e(salu('s_mul_i32', sR, sR, 5))
            e(salu('s_lshr_b32', sR, sR, 1))
            e(salu('s_lshr_b32', sKP, sT[0], 2))
            e(salu('s_add_u32', sR, sR, sKP))
            e(salu('s_cmp_ge_u32', sR, 10))
            e(salu('s_cselect_b32', sKP, 10, 0))
            e(salu('s_sub_u32', sR, sR, sKP))
        elif rot == 2:
            e(salu('s_lshr_b32', sR, sT[0], 2))
            e(salu('s_xor_b32', sR, sR, sT[0]))
            e(salu('s_and_b32', sR, sR, 1))
            e(salu('s_mul_i32', sR, sR, 5))
        elif rot == 4:
            e(salu('s_lshr_b32', sR, sT[0], 2))
            e(salu('s_add_u32', sR, sR, sT[0]))
            e(salu('s_and_b32', sR, sR, 3))
            e(salu('s_mul_i32', sR, sR, 5))
            e(salu('s_lshr_b32', sR, sR, 1))
        elif rot in (5, 6):
            e(salu('s_and_b32', sR, sT[0], 3))
            e(salu('s_mul_i32', sR, sR, 5))
            e(salu('s_lshr_b32', sR, sR, 1))
            if rot == 5:
                e(salu('s_lshr_b32', sKP, sT[0], 2))
            else:
                e(salu('s_lshr_b32', sKP, sT[0], 2))
                e(salu('s_and_b32', sKP, sKP, 3))
                e(salu('s_mul_i32', sKP, sKP, 5))
                e(salu('s_lshr_b32', sKP, sKP, 1))
            e(salu('s_add_u32', sR, sR, sKP))
            e(salu('s_mul_i32', sKP, sT[3], 5 if rot == 5 else 1))
            e(salu('s_add_u32', sR, sR, sKP))
            e(salu('s_add_u32', sR, sR, sT[4]))
            e(salu('s_mul_i32', sKP, sR, 26))
            e(salu('s_lshr_b32', sKP, sKP, 8))
            e(salu('s_mul_i32', sKP, sKP, 10))
            e(salu('s_sub_u32', sR, sR, sKP))
        else:
            e(salu('s_mov_b32', sR, 0))
        e(salu('s_mov_b32', sKP, sR))
        e(salu('s_lshl2_add_u32', sXb, sB, sW))
        e(salu('s_mul_i32', sXb, sXb, 32 * 1280))
        e(salu('s_lshl_b32', sXs, sKP, 7))
        e(salu('s_add_u32', sXs, sXs, sXb))
        e(salu('s_lshl_b32', sXl, sW, 14))
        e(salu('s_add_u32', sXl, sXl, XR))
        for r, size in ((4, 2621440), (16, 1966080)):
            e(salu('s_mov_b32', S(r + 2), size))
            e(salu('s_mov_b32', S(r + 3), 0x20000))
        e(salu('s_lshr_b32', sJ, sT[0], 2))
        e(salu('s_lshl3_add_u32', sJ, sT[3], sJ))
        e(salu('s_mul_i32', sW1b, sW, 16 * 3072))
        e(salu('s_mul_i32', sT[1], sJ, 192))
        e(salu('s_add_u32', sW1b, sW1b, sT[1]))
        e(salu('s_mul_i32', sW1, sKP, 64 * 3072))
        e(salu('s_add_u32', sW1, sW1, sW1b))
        e(salu('s_mul_i32', sW1l, sW, 3072))
        e(salu('s_add_u32', sW1l, sW1l, W1R))
        e(salu('s_mov_b32', S(30), WS_SIZE))
        e(salu('s_mov_b32', S(31), 0x20000))
        vSr, vSt, SR = V(232), V(233), 236
        e(valu('v_mov_b32', vZ, 0))
        e(valu('v_mov_b32', vOOB, OOB))
        e(salu('s_lshl2_add_u32', sT[1], sJ, sW))
        e(salu('s_lshl_b32', sT[1], sT[1], 1))
        e(salu('s_lshl_b32', sT[2], sB, 7))
        e(salu('s_add_u32', sT[1], sT[1], sT[2]))
        e(valu('v_lshrrev_b32', vSt, 5, vL))
        e(valu('v_add_u32', vSt, sT[1], vSt))
        e(valu('v_and_b32', t[8], 31, vL))
        e(valu('v_cmp_gt_u32', 'vcc', 16, t[8]))
        e(valu('v_mul_u32_u24', vSr, 1280, vSt))
        e(valu('v_lshl_add_u32', vSr, t[8], 4, vSr))
        e(valu('v_cndmask_b32', V(234), vOOB, vSr, 'vcc'))
        e(raw("s_waitcnt lgkmcnt(0)", drains_lgkm=True))
        x(self.stamp('karg'))
        srow = [bload(V(SR, 4), vSr, SX), bload(V(SR + 4, 4), vSr, SX, 0, 512), bload(V(SR + 8, 4), V(234), SX, 0, 1024),
                bload(vTAG, vZ, SWS, 0, 0, 'sc1')]
        if self.opt['srow'] == 0:
            x(srow)
        npro = self.opt['npro']
        st = [self.inline_stage(R) for R in range(npro)]

        def w1_addr(m):
            return [valu('v_add_u32', t[8], 64 * m, vL)] + self.divc(t[9], t[8], 12, 191) + [
                valu('v_mul_u32_u24', t[10], 12, t[9]), valu('v_sub_u32', t[8], t[8], t[10]),
                valu('v_lshrrev_b32', t[10], 2, t[9]), valu('v_and_b32', t[10], 2, t[10]),
                valu('v_xor_b32', t[8], t[8], t[10]), valu('v_mul_u32_u24', t[9], 3072, t[9]),
                valu('v_lshl_add_u32', vW1a[m], t[8], 4, t[9])] + (
                [valu('v_subrev_u32', vW1a[m], 1024 * m, vW1a[m])] if m else [])
        e(st[0][0])
        e(st[0][1])
        x(w1_addr(0))
        e(st[0][2])
        x(w1_addr(1))
        e(st[0][3])
        x(self.stamp('st0x'))
        x(w1_addr(2))
        e(st[0][4])
        e(salu('s_and_b32', sTB, sT[0], 7))
        e(salu('s_lshl3_add_u32', sTB, sT[4], sTB))
        e(salu('s_lshr_b32', sC, sT[0], 3))
        e(salu('s_lshl2_add_u32', sC, sT[3], sC))
        for r, size in ((8, 2457600), (12, 819200), (20, 1966080), (24, 2621440)):
            e(salu('s_mov_b32', S(r + 2), size))
            e(salu('s_mov_b32', S(r + 3), 0x20000))
        e(st[0][5])
        e(st[0][6])
        x(self.stamp('st0w'))
        if self.opt['srow'] == 1:
            x(srow)
        self.p0a, self.rawA = [], []
        early = self.opt['rawA'] < 0
        ldA, sA = [V(229), V(230), V(231)], S(97)
        later = []
        e_, x_ = (e, x) if early else (later.append, later.extend)
        e_(salu('s_mul_i32', sA, sB, 40 * 3840))
        e_(salu('s_mul_i32', sT[2], sJ, 80))
        e_(salu('s_add_u32', sA, sA, sT[2]))
        e_(salu('s_mul_i32', sT[2], sW, 192))
        for m in range(3):
            e_(valu('v_add_u32', t[8], sT[2], vL))
            if m:
                e_(valu('v_add_u32', t[8], 64 * m, t[8]))
            x_(self.divc(t[9], t[8], 15, 767))
            e_(valu('v_mul_u32_u24', t[10], 15, t[9]))
            e_(valu('v_sub_u32', t[10], t[8], t[10]))
            e_(valu('v_cmp_gt_u32', 'vcc', 600, t[8]))
            x_(self.divc(t[11], t[10], 5, 14))
            e_(valu('v_mul_u32_u24', t[9], 3840, t[9]))
            e_(valu('v_mul_u32_u24', t[11], 1200, t[11]))
            e_(valu('v_lshlrev_b32', t[10], 4, t[10]))
            e_(valu('v_add3_u32', t[9], t[9], t[10], t[11]))
            e_(valu('v_cndmask_b32', ldA[m], vOOB, t[9], 'vcc'))
            d = bdma(ldA[m], SWQKV, sA)
            g_ = Group([salu('s_mul_i32', sT[5], sW, 3072), salu('s_add_u32', 'm0', sT[5], P0A + 1024 * m), d])
            self.p0a.append(d)
            if early:
                e(g_)
            else:
                self.rawA.append(g_)
        x(self.stamp('p0a'))

        q = later
        e = q.append
        x = q.extend
        vHa = t[32]
        e(valu('v_and_b32', vU, 15, vL))
        e(valu('v_bfe_u32', vR, vL, 2, 2))
        e(valu('v_and_b32', vCC, 3, vL))
        e(salu('s_and_b32', sT[1], sW, 1))
        e(salu('s_lshl_b32', sT[2], sT[1], 3))
        e(valu('v_lshrrev_b32', vHu, 3, vL))
        e(valu('v_add_u32', vHu, sT[2], vHu))
        e(salu('s_lshl_b32', sT[2], sB, 7))
        e(salu('s_sub_u32', sT[2], sT[2], 16))
        e(valu('v_add_u32', vHa, sT[2], vHu))
        e(valu('v_cmp_le_i32', 'vcc', 0, vHa))
        e(valu('v_lshrrev_b32', t[8], 1, vHu))
        e(valu('v_xor_b32', t[8], t[8], vL))
        e(valu('v_and_b32', t[8], 7, t[8]))
        e(valu('v_mul_u32_u24', vHa, 1280, vHa))
        e(valu('v_lshl_add_u32', vHa, t[8], 4, vHa))
        e(valu('v_cndmask_b32', vHa, vOOB, vHa, 'vcc'))
        e(valu('v_cmp_lt_u32', 'vcc', 1, vHu))
        e(valu('v_cndmask_b32', vHa, vOOB, vHa, 'vcc'))
        sHk, sHl = S(94), S(95)
        e(salu('s_lshr_b32', sT[2], sW, 1))
        e(salu('s_mul_i32', sT[2], sT[2], 5))
        e(salu('s_lshl_b32', sHl, sT[2], 11))
        e(salu('s_lshl_b32', sT[1], sT[1], 10))
        e(salu('s_add_u32', sHl, sHl, sT[1]))
        e(salu('s_add_u32', sHk, sT[2], sR))
        halo_loads = []
        for i5 in range(5):
            halo_loads.append(Group([salu('s_cmp_ge_u32', sHk, 10 - i5), salu('s_cselect_b32', sT[5], (i5 - 10) & 0xffffffff, i5),
                                     salu('s_add_u32', sT[5], sT[5], sHk), salu('s_lshl_b32', sT[5], sT[5], 7),
                                     salu('s_add_u32', 'm0', sHl, HALO + 2048 * i5), bdma(vHa, SX, sT[5])]))
        self.halo_ops = [g_[-1] for g_ in halo_loads]
        e(salu('s_lshl2_add_u32', sT[1], sB, sW))
        e(salu('s_lshl_b32', sT[1], sT[1], 8))
        e(salu('s_add_u32', sT[1], sT[1], ST))
        e(valu('v_lshl_add_u32', vSA, vU, 4, sT[1]))
        e(salu('s_lshl_b32', sT[1], sB, 10))
        e(salu('s_max_u32', sT[1], sT[1], 128))
        e(salu('s_add_u32', sT[1], sT[1], ST - 128))
        e(valu('v_lshl_add_u32', vSH, vU, 3, sT[1]))
        e(valu('v_lshlrev_b32', vL16, 4, vL))
        e(valu('v_add_u32', vL16b, 4096, vL16))
        e(valu('v_lshrrev_b32', t[8], 1, vU))
        e(valu('v_xor_b32', t[8], t[8], vQ))
        e(valu('v_lshlrev_b32', t[8], 4, t[8]))
        e(valu('v_lshl_add_u32', vHr[0], vU, 7, t[8]))
        e(valu('v_xor_b32', vHr[1], 64, vHr[0]))
        e(valu('v_and_b32', t[8], 8, vU))
        e(valu('v_lshlrev_b32', t[8], 7, t[8]))
        e(valu('v_add3_u32', vXr[0], sXl, vHr[0], t[8]))
        e(valu('v_xor_b32', vXr[1], 64, vXr[0]))
        e(valu('v_lshl_add_u32', t[8], vQ, 3, vR))
        e(valu('v_mul_u32_u24', t[8], 192, t[8]))
        e(valu('v_lshl_add_u32', t[8], vCC, 3, t[8]))
        e(valu('v_and_b32', t[9], 1, vQ))
        e(valu('v_lshl_add_u32', t[8], t[9], 5, t[8]))
        e(salu('s_cmp_eq_u32', sW, 3))
        e(salu('s_cselect_b32', sROT, 0, sW))
        e(salu('s_lshl_b32', sT[1], sB, 1))
        e(salu('s_lshr_b32', sT[2], sW, 1))
        e(salu('s_add_u32', sT[12], sT[1], sT[2]))
        e(salu('s_mul_i32', sAP, sT[12], ACTB))
        e(salu('s_and_b32', sT[2], sW, 1))
        e(salu('s_lshl_b32', sT[2], sT[2], 11))
        e(salu('s_add_u32', sAP, sAP, sT[2]))
        e(salu('s_add_u32', sAP, sAP, ACT))
        for m in range(3):
            e(salu('s_add_u32', sT[1], sROT, m))
            e(salu('s_cmp_ge_u32', sT[1], 3))
            e(salu('s_cselect_b32', sT[2], 3, 0))
            e(salu('s_sub_u32', sT[1], sT[1], sT[2]))
            e(salu('s_lshl_b32', sT[2], sT[1], 6))
            e(salu('s_add_u32', sT[2], sT[2], W1R))
            e(valu('v_add_u32', vW1r[2 * m], sT[2], t[8]))
            e(valu('v_xor_b32', vW1r[2 * m + 1], 32, vW1r[2 * m]))
            e(salu('s_mul_i32', sT[2], sJ, 3))
            e(salu('s_add_u32', sT[1], sT[1], sT[2]))
            e(salu('s_lshl_b32', sT[1], sT[1], 12))
            e(salu('s_add_u32', sHS[m], sT[1], sAP))
        e(valu('v_mov_b32', t[8], 0x3f803f80))
        for r in range(4):
            e(valu('v_accvgpr_write_b32', A(240 + r), t[8]))
        e(valu('v_lshlrev_b32', vPs, 4, vU))
        e(valu('v_lshl_add_u32', vPs, vQ, 10, vPs))
        e(valu('v_mul_u32_u24', t[8], 80, vQ))
        e(valu('v_cmp_ne_u32', 'vcc', 3, vCC))
        e(valu('v_lshl_add_u32', t[8], vCC, 3, t[8]))
        e(valu('v_mul_u32_u24', t[9], 80, vCC))
        e(valu('v_cndmask_b32', t[9], 0, t[9], 'vcc'))
        e(valu('v_cmp_ne_u32', 'vcc', 3, vQ))
        e(valu('v_add_u32', t[9], 32, t[9]))
        e(valu('v_mul_u32_u24', t[10], 240, vR))
        e(valu('v_cndmask_b32', t[8], t[9], t[8], 'vcc'))
        e(valu('v_add_u32', t[8], t[8], t[10]))
        for k in range(3):
            e(salu('s_add_u32', sT[1], sW, 4 * k))
            e(salu('s_min_u32', sT[1], sT[1], 9))
            e(salu('s_and_b32', sT[2], sT[1], 1))
            e(salu('s_lshr_b32', sT[1], sT[1], 1))
            e(salu('s_mul_i32', sT[3], sT[1], 1920))
            e(salu('s_mul_i32', sT[4], sT[2], 40))
            e(salu('s_add_u32', sT[3], sT[3], sT[4]))
            e(salu('s_add_u32', sT[3], sT[3], P0A))
            e(valu('v_add_u32', rdA[k], sT[3], t[8]))
            e(salu('s_mul_i32', sT[3], sB, 5))
            e(salu('s_add_u32', sT[1], sT[1], sT[3]))
            e(salu('s_mul_i32', sT[2], sT[2], 20))
            e(salu('s_lshr_b32', sT[3], sT[1], 2))
            e(salu('s_add_u32', sT[2], sT[2], sT[3]))
            e(salu('s_lshl_b32', sT[2], sT[2], 12))
            e(salu('s_and_b32', sT[1], sT[1], 3))
            e(salu('s_lshl_b32', sT[1], sT[1], 8))
            e(salu('s_add_u32', sT[1], sT[1], sT[2]))
            e(salu('s_mul_i32', sT[2], sJ, WQJ))
            e(salu('s_add_u32', sT[1], sT[1], sT[2]))
            e(salu('s_add_u32', soA[k], sT[1], WQ))
        vPs2 = t[33]
        e(salu('s_cmp_lt_u32', sW, 2))
        e(salu('s_cselect_b64', 'vcc', -1, 0))
        e(valu('v_cndmask_b32', vPs2, vOOB, vPs, 'vcc'))
        e(salu('s_mul_i32', s6T, sTB, 6))
        e(salu('s_mul_i32', s5T, sTB, 5))
        e(salu('s_lshr_b32', s5T, s5T, 1))
        for m in range(3):
            e(salu('s_lshl_b32', sT[2], sW, 7 if m < 2 else 6))
            e(valu('v_add_u32', t[8], sT[2], vL))
            if m == 1:
                e(valu('v_add_u32', t[8], 64, t[8]))
            x(self.divc(t[9], t[8], 80, 511))
            e(valu('v_mul_u32_u24', t[10], 80, t[9]))
            e(valu('v_sub_u32', t[10], t[8], t[10]))
            x(self.divc(t[11], t[10], 10, 79))
            e(valu('v_mul_u32_u24', t[12], 10, t[11]))
            e(valu('v_sub_u32', t[10], t[10], t[12]))
            e(valu('v_and_b32', t[12], 3, t[11]))
            e(valu('v_lshrrev_b32', t[11], 2, t[11]))
            if m < 2:
                e(valu('v_lshl_add_u32', t[11], t[11], 4, t[12]))
                e(valu('v_add_u32', t[9], s6T, t[9]))
                e(valu('v_and_b32', t[12], 3, t[9]))
                e(valu('v_lshl_add_u32', t[11], t[12], 2, t[11]))
                e(valu('v_lshrrev_b32', t[9], 2, t[9]))
                e(valu('v_lshl_add_u32', t[11], t[9], 5, t[11]))
            else:
                e(valu('v_mad_u32_u24', t[11], t[11], 20, t[12]))
                e(valu('v_add_u32', t[9], s5T, t[9]))
                e(valu('v_min_u32', t[9], 79, t[9]))
                e(valu('v_cmp_gt_u32', 'vcc', 64, t[9]))
                e(valu('v_lshrrev_b32', t[12], 2, t[9]))
                e(valu('v_mul_u32_u24', t[12], 40, t[12]))
                e(valu('v_and_b32', t[13], 3, t[9]))
                e(valu('v_lshl_add_u32', t[12], t[13], 2, t[12]))
                e(valu('v_mul_u32_u24', t[13], 40, t[9]))
                e(valu('v_subrev_u32', t[13], 40 * 64 - 16, t[13]))
                e(valu('v_cndmask_b32', t[12], t[13], t[12], 'vcc'))
                e(valu('v_add_u32', t[11], t[11], t[12]))
            e(valu('v_cmp_gt_u32', 'vcc', 480 if m < 2 else 240, t[8]))
            e(valu('v_mul_u32_u24', t[11], 1280, t[11]))
            e(valu('v_lshl_add_u32', t[11], t[10], 4, t[11]))
            e(valu('v_cndmask_b32', ldB[m], vOOB, t[11], 'vcc'))
        e(valu('v_mul_u32_u24', t[8], 160, vR))
        e(valu('v_lshl_add_u32', t[8], vCC, 3, t[8]))
        for k in range(3):
            if k < 2:
                e(salu('s_lshl_b32', sT[1], sW, 3))
                e(salu('s_add_u32', sT[1], sT[1], 4 * k))
            else:
                e(salu('s_lshl_b32', sT[1], sW, 2))
            e(valu('v_add_u32', t[13], sT[1], vQ))
            e(valu('v_min_u32', t[9], 29 if k < 2 else 14, t[13]))
            e(valu('v_cmp_eq_u32', 'vcc', t[9], t[13]))
            x(self.divc(t[10], t[9], 5, 31))
            e(valu('v_mul_u32_u24', t[11], 5, t[10]))
            e(valu('v_sub_u32', t[9], t[9], t[11]))
            e(valu('v_mul_u32_u24', t[11], 1280, t[10]))
            e(valu('v_lshl_add_u32', t[11], t[9], 5, t[11]))
            e(valu('v_add_u32', t[11], (P0B if k < 2 else P0B + 8192), t[11]))
            e(valu('v_add_u32', rdB[k], t[11], t[8]))
            e(valu('v_add_u32', t[10], s6T if k < 2 else s5T, t[10]))
            if k == 2:
                e(valu('v_min_u32', t[10], 79, t[10]))
                e(valu('v_add_u32', t[10], 192, t[10]))
            e(valu('v_lshrrev_b32', t[11], 2, t[10]))
            e(valu('v_mul_u32_u24', t[11], 5120, t[11]))
            e(valu('v_lshl_add_u32', t[11], t[9], 10, t[11]))
            e(valu('v_and_b32', t[10], 3, t[10]))
            e(valu('v_lshl_add_u32', t[11], t[10], 8, t[11]))
            e(valu('v_lshl_add_u32', t[11], vU, 4, t[11]))
            e(valu('v_cndmask_b32', stB[k], vOOB, t[11], 'vcc'))
        e(salu('s_mul_i32', sW2c, sC, W2C))
        e(salu('s_add_u32', sW2c, sW2c, W2P))
        vHw = t[34]
        e(salu('s_mul_i32', sT[1], sW, 20))
        e(valu('v_add_u32', t[8], sT[1], vL))
        e(valu('v_cmp_gt_u32', 'vcc', 20, vL))
        e(valu('v_lshrrev_b32', t[9], 3, t[8]))
        e(valu('v_and_b32', t[8], 7, t[8]))
        e(valu('v_lshlrev_b32', t[8], 4, t[8]))
        e(valu('v_lshl_add_u32', t[8], t[9], 11, t[8]))
        e(valu('v_add_u32', t[9], DUMMY, vL16))
        e(valu('v_cndmask_b32', vHw, t[9], t[8], 'vcc'))
        e(salu('s_lshl_b32', sT[1], sJ, 6))
        e(salu('s_add_u32', sT[1], sT[1], F1))
        e(salu('s_lshl2_add_u32', sT[3], sB, sT[1]))
        e(valu('v_cmp_eq_u32', 'vcc', 0, 'v0'))
        e(valu('v_mov_b32', t[8], sT[3]))
        e(valu('v_cndmask_b32', vFA, vOOB, t[8], 'vcc'))
        x(self.poll_addr(sJ, F1, 6, t[9], 15))
        e(salu('s_mul_i32', sWQb, sJ, WQJ))
        e(salu('s_add_u32', sWQb, sWQb, WQ))
        e(salu('s_lshl1_add_u32', sG, sR, sW))
        e(salu('s_cmp_ge_u32', sG, 20))
        e(salu('s_cselect_b32', sWQ, 20, 0))
        e(salu('s_sub_u32', sG, sG, sWQ))
        e(salu('s_lshl_b32', sWQ, sG, 12))
        e(salu('s_add_u32', sWQ, sWQ, sWQb))
        e(salu('s_lshr_b32', sT[1], 's2', 3))
        e(salu('s_and_b32', sT[2], sT[1], 7))
        e(salu('s_mul_i32', sT[2], sT[2], 3))
        e(salu('s_lshr_b32', sT[2], sT[2], 1))
        e(salu('s_lshr_b32', sT[1], sT[1], 3))
        e(salu('s_mul_i32', sT[1], sT[1], 3))
        e(salu('s_add_u32', sR2, sT[1], sT[2]))
        e(salu('s_cmp_ge_u32', sR2, 12))
        e(salu('s_cselect_b32', sT[1], 12, 0))
        e(salu('s_sub_u32', sR2, sR2, sT[1]))
        if self.opt['rot2'] in (2, 4):
            e(salu('s_lshr_b32', sT[1], 's2', 3))
            e(salu('s_lshr_b32', sT[2], 's2', 6))
            e(salu('s_add_u32', sR2, sT[1], sT[2]))
        e(salu('s_mul_i32', sT[1], sTB, ACTB))
        e(salu('s_add_u32', sT[1], sT[1], ACT))
        e(salu('s_mul_i32', sT[2], sW, 12 * 4096))
        e(salu('s_add_u32', sAh, sT[1], sT[2]))
        e(salu('s_lshl_b32', sT[2], sW, 14))
        e(salu('s_add_u32', sAo, sT[1], sT[2]))
        e(salu('s_add_u32', sAo, sAo, 48 * 4096))
        e(salu('s_lshl_b32', sT[2], sW, 12))
        e(salu('s_add_u32', sAb, sT[1], sT[2]))
        e(salu('s_add_u32', sAb, sAb, 64 * 4096))
        e(salu('s_mul_i32', sT[2], sW, 12 * 5120))
        e(salu('s_add_u32', sWh, sW2c, sT[2]))
        e(salu('s_mul_i32', sT[2], sW, 4 * 5120))
        e(salu('s_add_u32', sWo, sW2c, sT[2]))
        e(salu('s_add_u32', sWo, sWo, 48 * 5120))
        e(salu('s_mul_i32', sT[2], sW, 5120))
        e(salu('s_add_u32', sWb, sW2c, sT[2]))
        e(salu('s_add_u32', sWb, sWb, 64 * 5120))
        e(salu('s_add_u32', sT[1], sJ, 48))
        e(salu('s_lshl_b32', sT[1], sT[1], 12))
        e(salu('s_add_u32', sOA, sT[1], sAP))
        e(salu('s_lshr_b32', sT[1], sJ, 2))
        e(salu('s_add_u32', sT[1], sT[1], 64))
        e(salu('s_lshl_b32', sT[1], sT[1], 12))
        e(salu('s_and_b32', sT[2], sJ, 3))
        e(salu('s_lshl_b32', sT[2], sT[2], 8))
        e(salu('s_add_u32', sT[1], sT[1], sT[2]))
        e(salu('s_add_u32', sOB, sT[1], sAP))
        e(salu('s_mov_b64', sLO16, 0xffff))
        e(salu('s_mov_b32', 's70', 0x00010001))
        e(salu('s_mov_b32', 's71', 0x00010001))
        for k, r in enumerate((72, 74, 76)):
            e(salu('s_mov_b32', S(r), 0x11111111 << (k + 1)))
            e(salu('s_mov_b32', S(r + 1), 0x11111111 << (k + 1)))
        e(salu('s_mov_b32', sSCL, f2u(20 ** -0.5 * 1.4426950408889634)))
        for i in range(4):
            e(salu('s_add_u32', sT[1], sW, i))
            e(salu('s_and_b32', sT[1], sT[1], 3))
            e(salu('s_lshl_b32', sT[1], sT[1], 10))
            e(salu('s_add_u32', sT[1], sT[1], XR))
            e(valu('v_add_u32', vWr[i], sT[1], vL16))
        e(valu('v_lshlrev_b32', t[8], 2, vQ))
        e(valu('v_sub_u32', t[8], vU, t[8]))
        e(valu('v_mov_b32', t[10], f2u(-1e30)))
        e(salu('s_or_b32', sT[1], sB, sW))
        e(salu('s_cmp_eq_u32', sT[1], 0))
        e(salu('s_cselect_b32', sT[1], 0, 2))
        e(valu('v_cmp_gt_u32', 'vcc', sT[1], vQ))
        e(valu('v_cndmask_b32', t[11], t[10], vZ, 'vcc'))
        for r in range(4):
            e(valu('v_subrev_u32', t[9], r, t[8]))
            e(valu('v_cmp_gt_u32', 'vcc', 8, t[9]))
            e(valu('v_cmp_gt_i32', S(56, 2), 0, t[9]))
            e(valu('v_cndmask_b32', V(MASK + 4 + r), t[10], vZ, 'vcc'))
            e(valu('v_cndmask_b32', V(MASK + r), t[10], t[11], S(56, 2)))
        e(valu('v_mov_b32', t[8], ZERO))
        e(valu('v_mov_b32', t[10], 0))
        e(valu('v_mov_b32', t[11], 0))
        e(ds_write('ds_write_b64', t[8], V(146, 2)))
        e(salu('s_mul_i32', sT[12], sC, 160))
        loads = st[1] + (halo_loads if npro > 2 else []) + [x_ for r_ in st[2:] for x_ in r_]
        self.halo_loads = [] if npro > 2 else halo_loads
        p += self.sprinkle(q, loads, max(1, min(self.opt['pro_every'], (len(q) - 16) // len(loads))), start=0)
        p += self.stamp('setup')
        shadow = self.opt['srow'] >= 2
        hs, hq, ht, h3, h4, h5 = (V(n) for n in range(224, 229)) if False else (V(248), V(249), V(250), V(251), V(252), V(253))
        z = [valu('v_readfirstlane_b32', sTAG, vTAG), valu('v_mov_b32', ht, 0x3f803f80),
             salu('s_mul_i32', sTAG, sTAG, 0x19660d), salu('s_add_u32', sTAG, sTAG, 0x3c6ef35f),
             salu('s_cmp_eq_u32', sW, 0), salu('s_cselect_b32', sCMP, sTAG, 0), valu('v_mov_b32', vTAG, sTAG)]
        for i in range(12):
            if not shadow:
                z += [valu('v_dot2_f32_bf16', hs, V(SR + i), ht, hs if i else 0),
                      valu('v_dot2_f32_bf16', hq, V(SR + i), V(SR + i), hq if i else 0)]
                continue
            z += [valu('v_lshlrev_b32', h4, 16, V(SR + i)), valu('v_and_b32', h5, 0xffff0000, V(SR + i))]
            z += [valu('v_add_f32', hs, h4, h5), valu('v_mul_f32', hq, h4, h4)] if i == 0 else \
                [valu('v_add_f32', hs, hs, h4), valu('v_fmac_f32', hq, h4, h4), valu('v_add_f32', hs, hs, h5)]
            z.append(valu('v_fmac_f32', hq, h5, h5))
        z += [valu('v_and_b32', h3, 31, vL), valu('v_cmp_eq_u32', S(98, 2) if not self.opt.get('dbg') else 'vcc', 0, h3),
              valu('v_lshlrev_b32', h3, 3, vSt), valu('v_add_u32', h3, ST, h3)]
        for sh in (8, 4, 2, 1):
            z.append(Skip(1))
            for r in (hs, hq):
                z.append(valu('v_add_f32_dpp', r, r, r, mods=f'row_ror:{sh} row_mask:0xf bank_mask:0xf'))
        z += [valu('v_mov_b32', h4, hs), valu('v_mov_b32', h5, hq),
              valu('v_cndmask_b32', h3, vOOB, h3, S(98, 2) if not self.opt.get('dbg') else 'vcc'), Skip(1),
              valu('v_permlane16_swap_b32', hs, h4), valu('v_permlane16_swap_b32', hq, h5),
              valu('v_add_f32', hs, hs, h4), valu('v_add_f32', hq, hq, h5)]
        z += self.rstats(hs, hq, V(SR), ht) + [valu('v_mov_b32', V(SR + 1), sTAG), bstore(V(SR, 2), h3, SWS, 0, 0, 'sc1')]
        self.srow, self.stats = (srow, z) if shadow else ([], [])
        if not shadow:
            p += z
        p += self.stamp('stats')
        p.append(Group([wait(vm=self.stage_ops[0]), barrier()]))
        p += self.stamp('B0')

        def pack(rd, k0, half, dst):
            o_ = []
            for k in range(3):
                o_ += [ds_read('ds_read_b64_tr_b16', V(PK + 4 * (k0 + k) + 2 * h, 2), rd[k], h * half) for h in range(2)]
            sts = [bstore(V(PK + 4 * (k0 + k), 4), dst[k][0], SWS, dst[k][1], 0, 'sc1') for k in range(3)]
            return o_, sts
        self.packA = pack(rdA, 0, 960, [(vPs, soA[0]), (vPs, soA[1]), (vPs2, soA[2])])
        self.packB = pack(rdB, 3, 640, [(stB[k], sW2c) for k in range(3)])
        self.rawB = []
        for m in range(3):
            self.rawB.append(Group([salu('s_lshl_b32', sT[5], sW, 11 if m < 2 else 10),
                                    salu('s_add_u32', 'm0', sT[5], P0B + (1024 * m if m < 2 else 8192)),
                                    bdma(ldB[m], SW2 if m < 2 else SWO, sT[12])]))
        self.f2_pub = [salu('s_lshl_b32', sT[2], sC, 7), salu('s_add_u32', sT[2], sT[2], F2),
                       salu('s_lshl2_add_u32', sT[4], sTB, sT[2]), valu('v_mov_b32', t[35], sT[4]),
                       valu('v_cmp_eq_u32', S(92, 2), 0, 'v0'), Skip(1), valu('v_cndmask_b32', vFA, vOOB, t[35], S(92, 2))]
        self.ones = [valu('v_mov_b32', V(220 + r), 0x3f803f80) for r in range(4)] + \
            [ds_write('ds_write_b128', vHw, V(220, 4), HALO)]
        return p

    def x_reads(self, s):
        i, h = s >> 1, s & 1
        return [ds_read('ds_read_b128', X(s, p), vXr[h], (i & 3) * 4096 + p * 1024) for p in range(2)]

    def w1_reads(self, s, n):
        i, h = s >> 1, s & 1
        return [ds_read('ds_read_b64_tr_b16', V(WF + 4 * n + 2 * e_, 2), vW1r[n], (i & 3) * 12288 + (32 * h + 4 * e_) * 192)
                for e_ in range(2)]

    def wq_read(self, g, n):
        k, sg = g >> 2, g & 3
        return ds_read('ds_read_b128', V(WF + 4 * n, 4), vWr[n], sg * 16384 + ((10 + k) & 3) * 4096)

    def halo_read(self, g):
        s = g % 20
        return ds_read('ds_read_b128', V(WF + 16, 4), vHr[s & 1], HALO + (s >> 1) * 2048)

    def late_addresses(self):
        t = [V(T + n) for n in range(24)]
        vQ, vU, vR, vCC = t[0], t[1], t[2], t[3]
        p = [valu('v_lshrrev_b32', vQ, 4, vL), valu('v_and_b32', vU, 15, vL),
             valu('v_bfe_u32', vR, vL, 2, 2), valu('v_and_b32', vCC, 3, vL),
             salu('s_mul_i32', sT[1], sW, 16 * KVR), salu('s_add_u32', sT[1], sT[1], KV),
             valu('v_mul_u32_u24', t[4], KVR, vU),
             valu('v_add_u32', t[4], sT[1], t[4]),
             valu('v_add_u32', vK4, 72, t[4]),
             valu('v_lshl_add_u32', t[5], vQ, 3, t[4]),
             valu('v_add_u32', vKr, 40, t[5]),
             valu('v_add_u32', vQr, 8 * KVR, t[5]),
             valu('v_add_u32', t[6], 8 * KVR + 32, t[4]),
             valu('v_mov_b32', t[7], ZERO),
             valu('v_cmp_eq_u32', S(92, 2), 0, vQ),
             valu('v_cndmask_b32', vQ4, t[7], t[6], S(92, 2)),
             valu('v_lshl_add_u32', t[6], vQ, 2, vR),
             valu('v_mul_u32_u24', t[6], KVR, t[6]),
             valu('v_add_u32', t[6], sT[1], t[6]),
             valu('v_add_u32', vV4, 112, t[6]),
             valu('v_lshl_add_u32', t[6], vCC, 3, t[6]),
             valu('v_add_u32', vVr, 80, t[6]),
             valu('v_mul_u32_u24', t[6], 40, vQ),
             valu('v_add_u32', t[6], 32, t[6]),
             valu('v_min_u32', t[6], 120, t[6]),
             valu('v_lshlrev_b32', t[7], 3, vQ),
             valu('v_and_b32', t[8], 1, vU),
             valu('v_mul_u32_u24', t[8], KVC, t[8]),
             valu('v_lshrrev_b32', t[9], 1, vU),
             valu('v_mul_u32_u24', t[9], KVR, t[9]),
             valu('v_add_u32', t[8], t[8], t[9]),
             valu('v_add_u32', t[8], KV, t[8])]
        for i in range(4):
            p += [salu('s_add_u32', sT[2], sW, i), salu('s_and_b32', sT[2], sT[2], 3),
                  salu('s_mul_i32', sT[3], sT[2], 40),
                  salu('s_cmp_eq_u32', sT[2], 3), salu('s_cselect_b64', S(92, 2), -1, 0),
                  valu('v_add_u32', t[9], sT[3], t[7]),
                  valu('v_cndmask_b32', t[9], t[9], t[6], S(92, 2))]
            if i == 0:
                p.append(valu('v_add_u32', vHKw, t[8], t[9]))
            p += [valu('v_add_u32', t[9], t[4], t[9]), valu('v_add_u32', vKVw[i], 8 * KVR, t[9])]
        p += [salu('s_lshl_b32', sT[2], sW, 6), salu('s_add_u32', sT[2], sT[2], CSQ),
              valu('v_lshl_add_u32', vCQw, vQ, 4, sT[2]),
              valu('v_lshlrev_b32', vCQr, 4, vQ),
              valu('v_lshlrev_b32', t[4], 4, vU), valu('v_lshl_add_u32', t[4], vQ, 10, t[4]), valu('v_mov_b32', t[5], OOB),
              valu('v_cmp_gt_u32', S(92, 2), 32, vL), Skip(1), valu('v_cndmask_b32', vOB, t[5], t[4], S(92, 2))]
        return p

    def flag_addr(self, base):
        t0, t1 = V(T + 22), V(T + 23)
        return [salu('s_lshl_b32', sT[1], sB, 1), salu('s_lshr_b32', sT[2], sW, 1), salu('s_add_u32', sT[1], sT[1], sT[2]),
                salu('s_lshl_b32', sT[1], sT[1], 7), salu('s_and_b32', sT[2], sW, 1), salu('s_lshl1_add_u32', sT[2], sJ, sT[2]),
                salu('s_lshl2_add_u32', sT[1], sT[2], sT[1]), salu('s_add_u32', sT[1], sT[1], base),
                valu('v_mov_b32', t0, sT[1]), valu('v_mov_b32', t1, OOB),
                valu('v_cmp_eq_u32', S(92, 2), 0, vL), valu('v_cndmask_b32', vFA, t1, t0, S(92, 2))]

    def poll_addr(self, idx, base, shift, t0, mask):
        return [salu('s_lshl_b32', 's96', idx, shift), salu('s_add_u32', 's96', 's96', base),
                salu('s_cmp_eq_u32', sW, 0), salu('s_cselect_b32', 's96', 's96', OOB),
                valu('v_and_b32', t0, mask, vL), valu('v_lshl_add_u32', vPA, t0, 2, 's96')]

    def lanes0(self, ins):
        return Group([salu('s_mov_b64', 'exec', sROW0), ins, salu('s_mov_b64', 'exec', -1)])

    def ff_pre(self):
        t = [V(T + n) for n in range(24)]
        p = [valu('v_lshrrev_b32', t[0], 4, vL), salu('s_lshl_b32', sT[1], sROT, 7), salu('s_add_u32', sT[1], sT[1], CSF),
             valu('v_lshl_add_u32', t[0], t[0], 4, sT[1]),
             self.lanes0(ds_write('ds_write_b128', t[0], V(CS, 4), 0)),
             self.lanes0(ds_write('ds_write_b128', t[0], V(CS + 4, 4), 64))]
        for src, mean, rstd in ((RS, vMEAN[0], vRSTD[0]), (RS + 2, vMEAN[1], vRSTD[1]), (RS + 4, vMEANH, vRSTDH)):
            p += [valu('v_and_b32', rstd, 0xffff0000, V(src)), valu('v_lshlrev_b32', mean, 16, V(src)),
                  valu('v_rcp_f32', rstd, rstd)]
        return p

    def ff_post(self):
        t = [V(T + n) for n in range(24)]
        p = [valu('v_lshrrev_b32', V(RS), 4, vL), valu('v_lshlrev_b32', V(RS), 4, V(RS))]
        for m in range(3):
            p += [salu('s_add_u32', sT[1], sROT, m), salu('s_cmp_ge_u32', sT[1], 3), salu('s_cselect_b32', sT[2], 3, 0),
                  salu('s_sub_u32', sT[1], sT[1], sT[2]), salu('s_lshl_b32', sT[1], sT[1], 7), salu('s_add_u32', sT[1], sT[1], CSF),
                  valu('v_add_u32', V(RS + 1), sT[1], V(RS)),
                  ds_read('ds_read_b128', V(T + 8 * m, 4), V(RS + 1), 0),
                  ds_read('ds_read_b128', V(T + 8 * m + 4, 4), V(RS + 1), 64)]
        p.append(Skip(2))
        self.h_stores = []
        for m in range(3):
            for q in range(2):
                dst = SS + 4 * ((2 * m + q) & 1)
                for n in (2 * m, 2 * m + 1):
                    a = FACC + 8 * n + 4 * q
                    for r in range(4):
                        p.append(valu('v_fma_f32', V(a + r), '-' + vMEAN[q], V(T + 4 * n + r), V(a + r)))
                    for r in range(4):
                        p.append(valu('v_mul_f32', V(a + r), V(a + r), vRSTD[q]))
                    for hh in range(2):
                        p.append(valu('v_cvt_pk_bf16_f32', V(dst + 2 * (n & 1) + hh), V(a + 2 * hh), V(a + 2 * hh + 1)))
                for r in range(4):
                    p.append(valu('v_pk_max_i16', V(dst + r), V(dst + r), 0))
                s_ = bstore(V(dst, 4), vL16, SWS, sHS[m], q * 1024, 'sc1')
                self.h_stores.append(s_)
                p.append(s_)
        return p

    def qkv_pre(self, hd, packed):
        a = ACC[hd]
        t = [V(T + n) for n in range(24)]
        p = [self.lanes0(ds_write('ds_write_b128', vCQw, V(a + 32, 4), hd * 256))]
        self.qkv_pub = [i for g in p for i in (g if isinstance(g, Group) else [g]) if i.kind == 'dsw']
        q = []
        for cls in range(2):
            q.append(valu('v_mul_f32', t[18 + cls], vMEAN[cls], vRSTD[cls]))
        for n in range(4):
            for cls in range(2):
                b = a + 8 * n + 4 * cls
                if packed:
                    for r in (0, 2):
                        q.append(I(f"v_pk_mul_f32 {V(b + r, 2)}, {V(b + r, 2)}, {V(30, 2)} op_sel:[0,{cls}] op_sel_hi:[1,{cls}]",
                                   'valu', regs(V(b + r, 2)) + regs(V(30, 2)), regs(V(b + r, 2))))
                else:
                    for r in range(4):
                        q.append(valu('v_mul_f32', V(b + r), V(b + r), vRSTD[cls]))
        return p, q

    def qkv_post(self, hd, packed):
        a = ACC[hd]
        t = [V(T + n) for n in range(24)]
        p = []
        for n in range(4):
            p += [salu('s_add_u32', sT[1], sW, n), salu('s_and_b32', sT[1], sT[1], 3), salu('s_lshl_b32', sT[1], sT[1], 6),
                  salu('s_add_u32', sT[1], sT[1], CSQ + 256 * hd), valu('v_add_u32', t[20], sT[1], vCQr),
                  ds_read('ds_read_b128', V(T + 4 * n, 4), t[20], 0)]
        p.append(Skip(2))
        p += [valu('v_fma_f32', V(a + 32 + r), '-' + vMEANH, V(T + r), V(a + 32 + r)) for r in range(4)]
        p += [valu('v_mul_f32', V(a + 32 + r), V(a + 32 + r), vRSTDH) for r in range(4)]
        p += [valu('v_cvt_pk_bf16_f32', t[16], V(a + 32), V(a + 33)), valu('v_cvt_pk_bf16_f32', t[17], V(a + 34), V(a + 35))]
        self.kv_writes = [ds_write('ds_write_b64', vHKw, V(T + 16, 2), hd * KVH)]
        p += self.kv_writes
        for n in range(4):
            for cls in range(2):
                b = a + 8 * n + 4 * cls
                if packed:
                    for r in (0, 2):
                        p.append(I(f"v_pk_fma_f32 {V(b + r, 2)}, {V(T + 4 * n + r, 2)}, {V(T + 18, 2)}, {V(b + r, 2)} "
                                   f"op_sel:[0,{cls},0] op_sel_hi:[1,{cls},1] neg_lo:[1,0,0] neg_hi:[1,0,0]", 'valu',
                                   regs(V(b + r, 2)) + regs(V(T + 4 * n + r, 2)) + regs(V(T + 18, 2)), regs(V(b + r, 2))))
                else:
                    for r in range(4):
                        p.append(valu('v_fma_f32', V(b + r), '-' + t[18 + cls], V(T + 4 * n + r), V(b + r)))
                p += [valu('v_cvt_pk_bf16_f32', V(b), V(b), V(b + 1)), valu('v_cvt_pk_bf16_f32', V(b + 1), V(b + 2), V(b + 3))]
                w_ = ds_write('ds_write_b64', vKVw[n], V(b, 2), hd * KVH + cls * KVC)
                self.kv_writes.append(w_)
                p.append(w_)
        return p

    def attention(self, hd):
        a = ACC[hd]
        streams = []
        for cls in range(2):
            off = hd * KVH + cls * KVC
            b = a + 16 * cls
            u = T + 12 * cls
            Kf = [V(b, 4), V(b + 4, 4)]
            Qf, Sf = V(b + 8, 4), [V(u, 4), V(u + 4, 4)]
            Vf = Kf
            Pf = Qf
            O0, O1, L = V(u, 4), V(u + 4, 4), V(b + 12, 4)
            m, m2 = V(u + 8), V(u + 9)
            p = [ds_read('ds_read_b64', V(b + 8, 2), vQr, off)]
            p.append(I(f"ds_read_b64 {V(b + 10, 2)}, {V(u + 10)}", 'dsr', [V(u + 10)], regs(V(b + 10, 2))))
            p.insert(0, valu('v_cndmask_b32', V(u + 10), vQ4, V(u + 11), sLO16))
            for k in range(2):
                p += [ds_read('ds_read_b64', V(b + 4 * k, 2), vKr, off + k * 8 * KVR),
                      ds_read('ds_read_b64', V(b + 4 * k + 2, 2), vK4, off + k * 8 * KVR)]
            p.append(Skip(2))
            p += [mfma(Sf[k], Kf[k], Qf, V(MASK + 4 * k, 4)) for k in range(2)]
            for k in range(2):
                p += [ds_read('ds_read_b64_tr_b16', V(b + 2 * k, 2), vVr, off + k * 8 * KVR),
                      ds_read('ds_read_b64_tr_b16', V(b + 4 + 2 * k, 2), vV4, off + k * 8 * KVR)]
            p.append(Skip(1))
            p += [valu('v_max3_f32', m, V(u), V(u + 1), V(u + 2)), valu('v_max3_f32', m2, V(u + 3), V(u + 4), V(u + 5)),
                  valu('v_max3_f32', m, m, V(u + 6), V(u + 7)), valu('v_max_f32', m, m, m2)]
            for sw in ('v_permlane16_swap_b32', 'v_permlane32_swap_b32'):
                p += [valu('v_mov_b32', m2, m), valu(sw, m, m2), valu('v_max_f32', m, m, m2)]
            p.append(valu('v_mul_f32', m, sSCL, m))
            p += [valu('v_fma_f32', V(u + r), V(u + r), sSCL, '-' + m) for r in range(8)]
            p += [valu('v_exp_f32', V(u + r), V(u + r)) for r in range(8)]
            p += [valu('v_cvt_pk_bf16_f32', V(b + 8 + r), V(u + 2 * r), V(u + 2 * r + 1)) for r in range(4)]
            p += [mfma(L, aONES, Pf, 0), mfma(O0, Vf[0], Pf, 0), mfma(O1, Vf[1], Pf, 0), Skip(2)]
            p.append(valu('v_rcp_f32', m, V(b + 12)))
            p += [valu('v_mul_f32', V(u + r), V(u + r), m) for r in range(8)]
            for k in range(2):
                for hh in range(2):
                    p.append(valu('v_cvt_pk_bf16_f32', V(self.oreg(cls, k) + 2 * hd + hh), V(u + 4 * k + 2 * hh), V(u + 4 * k + 2 * hh + 1)))
            streams.append(p)
        pre = []
        for cls in range(2):
            pre.append(valu('v_add_u32', V(T + 12 * cls + 11), hd * KVH + cls * KVC, vQ4))
        out = pre
        for i, j in zip(*streams):
            out += [i] if isinstance(i, Skip) else [i, j]
        return out

    def oreg(self, cls, k):
        return 112 + 8 * cls + 4 * k

    def phase1(self):
        o = self.opt
        main, pos = [], {}
        for s in range(20):
            for n in range(6):
                for q in ((1, 0) if o['snake'] and n & 1 else (0, 1)):
                    d = V(FACC + 8 * n + 4 * q, 4)
                    main.append(mfma(d, V(WF + 4 * n, 4), X(s, q), d if s else 0))
                if n < 2:
                    d = V(CS + 4 * n, 4)
                    main.append(mfma(d, V(WF + 4 * n, 4), aONES, d if s else 0))
                pos['a', s, n] = len(main) - 1
        for g in range(40):
            hd, s = divmod(g, 20)
            a = ACC[hd]
            for n in range(4):
                for q in ((1, 0) if o['snake'] and n & 1 else (0, 1)):
                    d = V(a + 8 * n + 4 * q, 4)
                    main.append(mfma(d, V(WF + 4 * n, 4), X(s, q), d if s else 0))
                if n == 0:
                    d = V(a + 32, 4)
                    main.append(mfma(d, V(WF, 4), V(WF + 16, 4), d if s else 0))
                pos['b', g, n] = len(main) - 1
        w = Weave(main)
        first_b = pos['a', 19, 5] + 1
        stepb = lambda g: first_b + 9 * g
        bar = {}
        dma = {R: self.stage_dma(R) for R in range(o['npro'], 20)}
        for i in range(10):
            bar[i + 1] = pos['a', 2 * i + 1, 1]
        for k in range(9):
            bar[11 + k] = pos['b', 4 * k + 3, 1]
        rawb = [i for g_ in self.rawB for i in g_ if i.kind == 'dma']
        extra = {}
        for key, ops in (('packA', self.p0a), ('pub1', self.packA[1]), ('packB', rawb), ('pub2', self.packB[1]),
                         ('halo', self.halo_ops)):
            extra.setdefault(o[key], []).extend(ops)
        checks = {o['chk1']: 'f1', o['chk2']: 'f2', o['chk3']: 'f3'}
        assert len(checks) == 3
        for R, gb in bar.items():
            if R in checks:
                w.at(gb, self.check(checks[R]))
            w.at(gb, self.ring_barrier(R, extra.get(R, ())))
            w.at(gb, *self.stamp(f'B{R}'))
            if R in (o['pub1'], o['pub2']):
                w.at(gb, bstore(vTAG, vFA, SWS, 0, 0, 'sc1'))
            if R in (o['poll1'], o['poll2'], o['poll3']):
                w.at(gb, bload(vPOLL, vPA, SWS, 0, 0, 'sc1'))
        for s in range(20):
            start = bar[(s >> 1) + 1] if s & 1 else 0
            nxt = 14 * (s + 1)
            if s < 19:
                lim = len(main) if s & 1 else bar[(s >> 1) + 1]
                w.stream(self.x_reads(s + 1), max(start, pos['a', s, 0] - 2), nxt - 1)
                for n in range(6):
                    w.stream(self.w1_reads(s + 1, n), max(start, pos['a', s, n]), min(lim, pos['a', s + 1, n] - 4))
            else:
                for n in range(4):
                    w.stream([self.wq_read(0, n)], max(start, pos['a', s, n]), nxt - 1)
                w.stream([self.halo_read(0)], pos['a', s, 4], nxt - 1)
        for g in range(39):
            start = bar[11 + (g >> 2)] if g & 3 == 3 else 0
            lim = bar.get(11 + (g >> 2), len(main)) if g & 3 == 2 else len(main)
            w.stream([self.wq_read(g + 1, 0), self.halo_read(g + 1)], max(start, pos['b', g, 0]), stepb(g + 1) - 1)
            for n in range(1, 4):
                w.stream([self.wq_read(g + 1, n)], max(start, pos['b', g, n]), min(lim, pos['b', g + 1, n] - 3))
        nxt, plan = o['npro'], []
        for R, gb in [(0, 0)] + list(bar.items()):
            lim = min(R + 3, 9 if R < o['chk1'] else 19, nxt + o['catch'] - 1)
            todo = list(range(nxt, lim + 1))
            nxt = max(nxt, lim + 1)
            seq = []
            for r_ in todo:
                pre = self.stage_pre[r_]
                seq += [(x_, pre.get(k, [])) for k, x_ in enumerate(dma[r_])] + [(None, pre[len(dma[r_])])]
            if R == o['haloL']:
                seq += [(Group([x_[-1]]), [Group(x_[:2])] + x_[2:-1]) for x_ in self.halo_loads]
            if R == o['srow'] - 2:
                seq += [(x_, []) for x_ in self.srow]
            if R == o['rawA']:
                seq += [(Group([x_[-1]]), x_[:-1]) for x_ in self.rawA]
            if R == o['rawB']:
                seq += [(Group([x_[-1]]), x_[:-1]) for x_ in self.rawB]
            for name, pk in (('packA', self.packA), ('packB', self.packB)):
                if R == o[name]:
                    w.stream(pk[0], gb + 1, gb + 11)
                    k = min(len(seq), 4)
                    seq = seq[:k] + [(x_, []) for x_ in pk[1]] + seq[k:]
            if seq:
                plan.append((seq, gb + (1 if len(seq) > 3 else 13), bar[R + 1]))
        annotate([x for seq, _, _ in plan for g_, pre in seq for x in list(pre) + ([g_] if g_ else [])])
        for seq, a_, b_ in plan:
            self.place_mem(w, seq, a_, b_)
        assert o['rawA'] < o['packA'] and 1 <= o['packA'] < o['pub1'] < o['pub2'] <= 14 and o['rawB'] < o['packB'] < o['pub2'] and o['packB'] <= 9
        assert o['poll1'] < o['chk1'] <= 9 and o['chk1'] < o['poll2'] < o['chk2'] < o['poll3'] < o['chk3'] <= 20
        assert o['haloL'] < o['halo'] <= 8 and o['statL'] <= 8
        if self.stats:
            assert o['srow'] - 2 < o['statC'] < o['pub1']
            w.stream(self.stats, bar[o['statC']] + 1, bar[o['pub1']])
        w.stream(self.f2_pub, bar[o['pub1']] + 1, bar[o['pub1']] + 12)
        w.stream(self.ones, bar[o['halo']] + 1, bar[o['halo'] + 1])
        w.spread(self.stat_loads(), bar[o['statL']] + 1, bar[o['statL']] + 8)
        w.stream(self.check_stats(), bar[10] + 1, first_b)
        tp = V(WF + 20)
        assert o['poll2'] >= 11
        w.stream(self.ff_pre() + self.poll_addr(sC, F2, 7, tp, 31), first_b + 4, bar[11])
        wl = [x_ for i in range(7) for x_ in self.w_loads(i)]
        w.spread(wl, bar[o['chk2']] + 2, stepb(o['w_end']))
        g = w.stream(self.ff_post(), bar[11] + 1, stepb(o['ff_end']))
        g = w.stream(self.late_addresses() + self.flag_addr(F3), max(g + 1, bar[o['pub2']] + 1), stepb(20) + 3)
        assert stepb(o['f3_step']) > g
        w.at(stepb(o['f3_step']), Group([wait(vm=self.h_stores), bstore(vTAG, vFA, SWS, 0, 0, 'sc1')]))
        w.stream(self.poll_addr(sTB, F3, 7, tp, 31), max(bar[o['chk2']] + 1, g + 1), bar[o['poll3']])
        if o['chk3'] < 20:
            nA = o['nA_p1b']
            for i in range(nA):
                lo = bar[o['chk3']] + 2 + (stepb(40) - bar[o['chk3']] - 2) * i // nA
                assert lo >= stepb(20 + 2 * i + 2)
                w.spread(self.a_loads(i), lo, bar[o['chk3']] + 2 + (stepb(40) - bar[o['chk3']] - 2) * (i + 1) // nA)
        pre, mul = self.qkv_pre(0, False)
        g = w.stream(pre, stepb(20) + 5)
        g = w.stream(mul[:12], g + 1)
        w.at(g + 1, Group([wait(lgkm=self.qkv_pub), barrier()]))
        g = w.stream(mul[12:] + self.qkv_post(0, False), g + 1, stepb(o['kv_end']))
        g = w.stream([Skip(3)] + [Group([wait(lgkm=self.kv_writes), barrier()])], g)
        w.stream(self.attention(0), g, len(main))
        self.ovf = (w.overflow(0, first_b), w.overflow(first_b, stepb(20)), w.overflow(stepb(20)))
        pro = self.x_reads(0) + [r for n in range(6) for r in self.w1_reads(0, n)]
        return pro + w.flat()

    @staticmethod
    def sprinkle(seq, extra, every, start=0):
        out, n, extra = [], -start, list(extra)
        seq = tie(seq)
        annotate(seq)
        annotate(extra)
        for i in seq:
            out.append(i)
            if isinstance(i, Skip):
                continue
            n += 1
            if extra and n >= every:
                out.append(extra.pop(0))
                n = 0
        return out + extra

    def tail1(self):
        o = self.opt
        p = self.stamp('gemm1')
        pre, mul = self.qkv_pre(1, True)
        late = o['chk3'] == 20
        head = pre + mul + ([self.check('f3')] if late else []) + [Group([wait(lgkm=self.qkv_pub), barrier()])]
        seq = self.qkv_post(1, True) + [Group([wait(lgkm=self.kv_writes), barrier()])] + self.attention(1)
        al = [x_ for i in range(0 if late else o['nA_p1b'], o['nA_att']) for x_ in self.a_loads(i)]
        p += head + self.sprinkle(seq, al, o['att_every']) if late else self.sprinkle(head + seq, al, o['att_every'])
        self.o_stores = [bstore(V(self.oreg(c, 0), 4), vL16, SWS, sOA, c * 1024, 'sc1') for c in range(2)]
        p += self.o_stores
        o0, o1 = self.oreg(0, 1), self.oreg(1, 1)
        p += [valu('v_cndmask_b32', V(o0 + r), V(o1 + r), V(o0 + r), sLO16) for r in range(4)]
        ob = bstore(V(o0, 4), vOB, SWS, sOB, 0, 'sc1')
        p.append(ob)
        self.o_stores.append(ob)
        p += self.flag_addr(F4) + self.poll_addr(sTB, F4, 7, V(T + 1), 31)
        return p + self.stamp('attn')

    def phase2(self):
        o = self.opt
        t = [V(136 + n) for n in range(60)]
        main = []
        tile = lambda n, k: V(P2ACC + 16 * n + 4 * k, 4)
        for i in range(15):
            for n in range(5):
                for k in ((3, 2, 1, 0) if o['snake'] and n & 1 else (0, 1, 2, 3)):
                    main.append(mfma(tile(n, k), wslot(i, n), aslot(i, k), tile(n, k) if i else 0))
        for n in range(5):
            for i in (15, 16):
                for k in range(4):
                    main.append(mfma(tile(n, k), wslot(i, n), aslot(i, k), tile(n, k)))
        w = Weave(main)
        pre = [salu('s_mul_i32', sT[1], sTB, 64 * 1280), salu('s_mul_i32', sT[2], sC, 160), salu('s_add_u32', sT[3], sT[1], sT[2])]
        vO, vRd = t[12:17], t[17:22]
        for r in range(5):
            pre += [valu('v_add_u32', t[6], 256 * r, 'v0')] + self.divc(t[7], t[6], 20, 1279)
            pre += [valu('v_mul_u32_u24', t[8], 20, t[7]), valu('v_sub_u32', t[8], t[6], t[8]),
                    valu('v_mul_u32_u24', vO[r], 1280, t[7]), valu('v_lshl_add_u32', vO[r], t[8], 3, vO[r]),
                    bload(A(aRES + 2 * r, 2), vO[r], SX, sT[3]),
                    valu('v_and_b32', t[6], 1, t[7]), valu('v_lshlrev_b32', t[6], 4, t[6]),
                    valu('v_and_b32', vRd[r], 32, t[7]), valu('v_add_u32', t[6], t[6], vRd[r]),
                    valu('v_bfe_u32', vRd[r], t[7], 1, 4), valu('v_add_u32', t[6], t[6], vRd[r]),
                    valu('v_and_b32', t[7], 0x30, t[6]), valu('v_mul_u32_u24', t[6], REDR, t[6]),
                    valu('v_lshl_add_u32', t[6], t[7], 2, t[6]), valu('v_lshl_add_u32', vRd[r], t[8], 4, t[6])]
        vRw = t[10]
        pre += [valu('v_and_b32', t[6], 15, vL), valu('v_mul_u32_u24', t[6], REDR, t[6]), valu('v_lshrrev_b32', t[7], 4, vL),
                valu('v_lshl_add_u32', t[6], t[7], 4, t[6]), salu('s_mul_i32', sT[1], sW, REDW),
                valu('v_add_u32', vRw, sT[1], t[6])]
        for i in range(15):
            w.at(20 * i, *self.stamp(f'S{i}'))
        w.at(20 * o['f4_step'], Group([wait(vm=self.o_stores), bstore(vTAG, vFA, SWS, 0, 0, 'sc1')]))
        w.at(20 * o['poll4'] + 1, bload(vPOLL, vPA, SWS, 0, 0, 'sc1'))
        chk = 20 * o['chk4'] + 19
        w.at(chk, self.check('f4'), barrier())
        pend = [('W', i) for i in range(7, 17)] + [('A', i) for i in range(o['nA_att'], 17)]
        total = sum(5 if k == 'W' else 4 for k, _ in pend)
        pace, pos_ = (o['ld_end'] - 3) / total, 3.0
        first_use = lambda i: 20 * min(i, 15)
        while pend:
            def earliest(x):
                k, i = x
                if k == 'W':
                    return 20 * (i - 7) + 3
                return max(20 * (i - 9) if i >= 10 else 0, chk + 1 if i >= 12 else 0)
            ok = [x for x in pend if earliest(x) <= pos_ + 2]
            x = min(ok, key=lambda x: (x[1], x[0] == 'A')) if ok else min(pend, key=earliest)
            pend.remove(x)
            pos_ = max(pos_, earliest(x))
            for n, ld in enumerate(self.w_loads(x[1]) if x[0] == 'W' else self.a_loads(x[1])):
                g = int(pos_)
                if x[0] == 'W':
                    g = max(g, 20 * (x[1] - 7) + 4 * n + 3)
                assert g < first_use(x[1]) - 4
                w.at(g, ld)
                left = sum(5 if k == 'W' else 4 for k, _ in pend) + (5 if x[0] == 'W' else 4) - n
                pos_ = max(pos_, g) + max(1.0, min(pace, (o['ld_end'] - g) / left))
        w.stream(pre, o['pre2'], 20 * 12)
        X0, p = 160, []
        for r in range(5):
            for k in range(2):
                p.append(valu('v_accvgpr_read_b32', V(X0 + 4 * r + 2 * k + 1), A(aRES + 2 * r + k)))
            for k in range(2):
                p += [valu('v_lshlrev_b32', V(X0 + 4 * r + 2 * k), 16, V(X0 + 4 * r + 2 * k + 1)),
                      valu('v_and_b32', V(X0 + 4 * r + 2 * k + 1), 0xffff0000, V(X0 + 4 * r + 2 * k + 1))]
        w.stream(p, 20 * 12, 20 * 15)
        ws_ = []
        for n in range(5):
            for k in range(4):
                ws_.append(ds_write('ds_write_b128', vRw, V(P2ACC + 16 * n + 4 * k, 4), RED + k * REDT + 64 * n))
        for m in range(16):
            w.at(300 + 8 * (m >> 2) + 8 + 2 * (m & 3), ws_[m])
        p = w.flat() + self.stamp('gemm2')
        p += ws_[16:] + [Group([wait(all_lgkm=True), barrier()])] + self.stamp('redbar')
        R0 = 40
        for r in range(5):
            for wv in range(4):
                p.append(ds_read('ds_read_b128', V(R0 + 16 * r + 4 * wv, 4), vRd[r], RED + wv * REDW))
        pk = lambda op, d, a_, b_: I(f"{op} {d}, {a_}, {b_}", 'valu', regs(a_) + regs(b_), regs(d))
        for r in range(5):
            b = R0 + 16 * r
            for k in range(2):
                p.append(pk('v_pk_add_f32', V(b + 2 * k, 2), V(b + 2 * k, 2), V(b + 4 + 2 * k, 2)))
            for k in range(2):
                p.append(pk('v_pk_add_f32', V(b + 8 + 2 * k, 2), V(b + 8 + 2 * k, 2), V(b + 12 + 2 * k, 2)))
            for k in range(2):
                p.append(pk('v_pk_add_f32', V(b + 2 * k, 2), V(b + 2 * k, 2), V(X0 + 4 * r + 2 * k, 2)))
            for k in range(2):
                p.append(pk('v_pk_add_f32', V(b + 2 * k, 2), V(b + 2 * k, 2), V(b + 8 + 2 * k, 2)))
            for k in range(2):
                p.append(valu('v_cvt_pk_bf16_f32', V(b + 4 + k), V(b + 2 * k), V(b + 2 * k + 1)))
            p.append(bstore(V(b + 4, 2), vO[r], SOUT, sT[3], 0, ('', 'sc1', 'nt', 'sc0 sc1')[o['outfl']]))
        p += [valu('v_mov_b32', t[6], OOB), valu('v_or_b32', t[7], 's2', 'v0'), valu('v_cmp_ne_u32', 'vcc', 0, t[7]),
              valu('v_cndmask_b32', t[6], 0, t[6], 'vcc'), bstore(vTAG, t[6], SWS, 0, 0, 'sc1')]
        return p

    def stamp_out(self):
        if not self.stamps:
            return []
        p = self.stamp('end')
        p += [raw("s_memrealtime s[82:83]", wr=['s82', 's83']), raw("s_waitcnt lgkmcnt(0)"),
              raw(f"v_writelane_b32 {vJUNK}, s82, 63", rd=['s82'], wr=[vJUNK], kind='valu'),
              raw(f"v_writelane_b32 {vJUNK}, s84, 62", rd=['s84'], wr=[vJUNK], kind='valu'),
              salu('s_lshl2_add_u32', sT[1], 's2', sW), salu('s_lshl_b32', sT[1], sT[1], 8), salu('s_add_u32', sT[1], sT[1], STAMP),
              valu('v_lshlrev_b32', V(140), 2, vL), bstore(vJUNK, V(140), SWS, sT[1])]
        if self.opt.get('dbg'):
            p += [raw(f"v_readlane_b32 s82, {vJUNK}, 0", rd=[vJUNK], wr=['s82'], kind='rdlane'),
                  raw(f"v_readlane_b32 s83, {vJUNK}, 61", rd=[vJUNK], wr=['s83'], kind='rdlane'),
                  raw(f"v_readlane_b32 s85, {vJUNK}, 63", rd=[vJUNK], wr=['s85'], kind='rdlane'),
                  valu('v_subrev_u32', V(141), 's82', vJUNK),
                  salu('s_sub_u32', 's85', 's85', 's83'),
                  raw("v_writelane_b32 v141, s85, 12", rd=['s85'], wr=['v141'], kind='valu'),
                  raw("v_writelane_b32 v141, s84, 13", rd=['s84'], wr=['v141'], kind='valu'),
                  salu('s_mov_b32', 's4', 's98'), salu('s_mov_b32', 's5', 's99'), salu('s_mov_b32', 's6', 64),
                  salu('s_lshl2_add_u32', sT[1], 's2', sW),
                  salu('s_cmp_eq_u32', sT[1], self.opt['dbg']), salu('s_cselect_b32', sT[1], 0, 256),
                  bstore(V(141), V(140), SX, sT[1])]
        return p

    def build(self):
        self.stage_ops = {}
        self.stage_pre = {}
        prog = self.startup() + self.phase1() + self.tail1() + self.phase2() + self.stamp_out()
        abl = self.opt.get('abl', 0)
        if abl:
            prog = flatten(prog)
            nb, keep = 0, []
            for i in prog:
                nb += i.kind == 'barrier'
                flag = i.kind == 'vst' and 'dwordx4' not in i.text
                drop = (abl & 1 and i.kind == 'dma' and nb >= 2) or (abl & 2 and i.kind == 'vst' and not flag) or \
                       (abl & 4 and i.kind == 'vld' and nb >= 2 and 'dwordx4' in i.text) or \
                       (abl & 8 and i.kind == 'mfma') or (abl & 16 and i.kind == 'dsr') or \
                       (abl & 32 and i.kind in VALUS and 2 <= nb <= 21 and 'v_cmp_ne_u32 vcc, s37' not in i.text
                        and i.wr and i.wr[0] not in ('v24', 'v25', 'v27', 's37', 'vcc', 'v144', 'v194', 'v195') and int(i.wr[0][1:]) >= 32)
                if not drop:
                    i.meta.pop('exp', None)
                    keep.append(i)
            prog = keep
        prog = finalize(prog, not abl)
        self.prog = prog
        body = "\n".join(("" if i.kind == 'label' else "    ") + i.text for i in prog)
        return f"""; Fused LayerNorm + sliding-window attention + ReLU FFN + residual, one workgroup per CU.
; @launch grid=(256,1,1) block=(256,1,1) lds={LDS_SIZE}
.amdgcn_target "amdgcn-amd-amdhsa--gfx950"
.text
.globl {NAME}
.p2align 8
.type {NAME},@function
{NAME}:
{body}
L_end:
    s_endpgm
{"".join(self.slow)}L_last:
.section .rodata,"a"
.p2align 6
.amdhsa_kernel {NAME}
  .amdhsa_next_free_vgpr 512
  .amdhsa_next_free_sgpr 102
  .amdhsa_accum_offset 256
  .amdhsa_group_segment_fixed_size 0
  .amdhsa_kernarg_size 72
  .amdhsa_user_sgpr_count 2
  .amdhsa_user_sgpr_kernarg_segment_ptr 1
  .amdhsa_system_sgpr_workgroup_id_x 1
.end_amdhsa_kernel
"""


if __name__ == "__main__":
    out = sys.argv[1]
    opts = dict(kv.split('=') for kv in sys.argv[2:])
    opts = {k: int(v) for k, v in opts.items()}
    g = Gen(stamps=opts.pop('stamps', 0), **opts)
    open(out, "w").write(g.build())
    print(stats(g.prog), g.ovf)
```

```python
import struct
import sys
from fw import *

NAME = "parallel_sum__sliding_local_dilated__dense_activation_relu__prompt_kernel"

F1, F2, F3, F4 = 0x1000, 0x2000, 0x3000, 0x5000
ST = 0x8000
WQ = 0x10000
WQJ = 163840
W2P = 0x290000
W2C = 348160
ACT = 0x540000
ACTB = 278528
STAMP = 0xE00000
WS_SIZE = 0x1000000
OOB = 0x7ffffff0

HALO = 0
XR = 20480
W1R = 86016
P0A = 135168
P0B = 147456
CSF = 159744
CSQ = CSF + 512
ZERO = CSF + 1024
DUMMY = CSF + 2048
KV = W1R
KVR, KVC, KVH = 136, 9792, 19584
RED, REDR, REDT, REDW = 0, 336, 5440, 21760
LDS_SIZE = 163840

SX, SWQKV, SWO, SW1, SW2, SOUT, SWS = (S(n, 4) for n in (4, 8, 12, 16, 20, 24, 28))
sW, sB, sJ, sTB, sC, sTAG = (S(n) for n in range(32, 38))
sXb, sXl, sW1, sW1l, sWQ, sAP = (S(n) for n in range(38, 44))
sHS = [S(44), S(45), S(46)]
sOA, sOB, sAh, sAo, sAb, sWh, sWo, sWb = (S(n) for n in range(47, 55))
sT = [S(n) for n in range(55, 68)]
sROT, sCNT = S(68), S(69)
sROW0 = S(70, 2)
sU1, sU2, sU3 = S(72, 2), S(74, 2), S(76, 2)
sSCL = S(78)
sCMP = S(81)
sLO16 = S(0, 2)
sLA, sLW = S(79), S(80)
sKP, sXs, sW1b, sG, sWQb, sR, sR2 = (S(n) for n in range(85, 92))
STAMP0 = 82

vL, vL16, vL16b = V(1), V(2), V(3)
vXa = [V(4), V(5), V(28), V(29)]
vXr = [V(6), V(7)]
vW1a = [V(8), V(9), V(10)]
vW1r = [V(n) for n in range(11, 17)]
vHr = [V(17), V(18)]
vWr = [V(n) for n in range(19, 23)]
vPOLL, vPA, vFA, vJUNK, vTAG = V(23), V(24), V(25), V(26), V(27)
vMEAN = [V(28), V(29)]
vRSTD = [V(30), V(31)]
vKVw = [V(n) for n in range(8, 12)]
vHKw, vKr, vK4, vVr, vV4 = V(12), V(13), V(14), V(15), V(16)
vQr, vQ4, vCQr, vCQw = V(4), V(5), V(6), V(7)
MASK = 32
WF = 40
FACC, RS, SS, CS = 64, 112, 120, 128
vMEANH, vRSTDH, vOB = V(61), V(62), V(63)
vSA, vSH = V(126), V(127)
ACC = [136, 64]
OKEEP = 128
T = 172
WSLOT = [A(160 + 20 * i, 1) for i in range(4)]
aONES = A(240, 4)
aRES = 244
P2ACC = 40


def f2u(x):
    return struct.unpack('<I', struct.pack('<f', x))[0]


def X(s, p):
    return A(8 * s + 4 * p, 4)


def wslot(i, n):
    i %= 7
    return A(160 + 20 * i + 4 * n, 4) if i < 4 else V(196 + 20 * (i - 4) + 4 * n, 4)


def aslot(i, t):
    return A(16 * (i % 10) + 4 * t, 4)


LIGHT = ('start', 'B0', 'B5', 'B10', 'B15', 'gemm1', 'attn', 'S5', 'S11', 'gemm2', 'end')


FL = ('', 'nt', 'sc1', 'sc0 sc1', 'sc0 sc1 nt')


class Gen:
    def __init__(self, stamps=False, **opt):
        self.stamps = stamps
        self.nstamp = 0
        self.stamp_names = []
        self.slow = []
        self.opt = dict(rot=4, rot2=0, npro=2, catch=2, pro_every=99, rawA=-1, haloL=0, packA=1, pub1=3, halo=4, statL=7, srow=0, statC=1, poll1=6, chk1=8,
                        rawB=3, packB=7, pub2=10, poll2=13, chk2=16, w_end=39, ff_end=12, f3_step=21, poll3=18, chk3=20,
                        kv_end=30, pre2=45, snake=1, flA=1, flB=1, flX=0, flS=2, outfl=0, nA_p1b=1, nA_att=10, att_every=8, ld_end=285, f4_step=4, poll4=7, chk4=9)
        self.opt.update(opt)

    def stamp(self, name):
        if not self.stamps or (self.stamps == 1 and name not in LIGHT):
            return []
        k = self.nstamp
        assert k < 61
        self.nstamp += 1
        self.stamp_names.append(name)
        rt = self.stamps == 1
        return [Group([raw("s_memtime s[82:83]", wr=['s82', 's83'])] +
                      ([raw("s_memrealtime s[100:101]", wr=['s100', 's101'])] if rt else []) +
                      [raw("s_waitcnt lgkmcnt(0)", drains_lgkm=True),
                       raw(f"v_writelane_b32 {vJUNK}, s82, {k}", rd=['s82'], kind='salu')] +
                      ([raw(f"v_writelane_b32 {vJUNK}, s100, {32 + k}", rd=['s100'], kind='salu')] if rt else []))]

    def check(self, name):
        self.slow.append(f"""L_slow_{name}:
{f"    s_add_u32 s84, s84, {1 << (4 * len(self.slow))}" if self.stamps else ""}
    s_mov_b32 {sCNT}, 0x8000
L_spin_{name}:
    s_sleep 2
    buffer_load_dword {vPOLL}, {vPA}, {SWS}, 0 offen sc1
    s_waitcnt vmcnt(0)
    v_cmp_ne_u32 vcc, {sCMP}, {vPOLL}
    s_sub_u32 {sCNT}, {sCNT}, 1
    s_cbranch_scc1 L_ok_{name}
    s_cbranch_vccnz L_spin_{name}
    s_branch L_ok_{name}
""")
        return Group([valu('v_cmp_ne_u32', 'vcc', sCMP, vPOLL),
                      raw(f"s_cbranch_vccnz L_slow_{name}", rd=['vcc'], kind='branch'),
                      raw(f"L_ok_{name}:", kind='label', states=0)])

    def divc(self, dst, src, d, maxv):
        for sh in range(8, 24):
            m = -(-(1 << sh) // d)
            if m * maxv < (1 << 32) and m < (1 << 24) and all((v * m) >> sh == v // d for v in range(maxv + 1)):
                return [valu('v_mul_u32_u24', dst, m, src), valu('v_lshrrev_b32', dst, sh, dst)]
        raise ValueError

    def rstats(self, vs, vq, dst, t):
        inv = f2u(1.0 / 640.0)
        return [valu('v_mul_f32', vs, inv, vs),
                valu('v_mul_f32', t, inv, vq),
                valu('v_fma_f32', t, '-' + vs, vs, t),
                valu('v_max_f32', t, 0, t),
                valu('v_cvt_pk_bf16_f32', t, t, t),
                valu('v_lshlrev_b32', t, 16, t),
                valu('v_add_f32', t, f2u(1e-5), t),
                valu('v_cvt_pk_bf16_f32', t, t, t),
                valu('v_lshlrev_b32', t, 16, t),
                valu('v_sqrt_f32', t, t),
                valu('v_cvt_pk_bf16_f32', dst, vs, t)]

    def stat_loads(self):
        return [bload(V(RS, 4), vSA, SWS, 0, 0, 'sc1'), bload(V(RS + 4, 2), vSH, SWS, 0, 0, 'sc1')]

    def check_stats(self):
        t = V(RS + 6)
        test = [valu('v_xor_b32', t, vTAG, V(RS + 1)), valu('v_xor_b32', V(RS + 7), vTAG, V(RS + 3)),
                valu('v_xor_b32', V(RS + 5), vTAG, V(RS + 5)), valu('v_or3_b32', t, t, V(RS + 7), V(RS + 5)),
                valu('v_cmp_ne_u32', 'vcc', 0, t)]
        body = "\n".join("    " + i.text for i in self.stat_loads()) + "\n    s_waitcnt vmcnt(0)\n" + \
            "\n".join("    " + i.text for i in test)
        self.slow.append(f"""L_slow_st:
{f"    s_add_u32 s84, s84, {1 << (4 * len(self.slow))}" if self.stamps else ""}
    s_mov_b32 {sCNT}, 0x8000
L_spin_st:
    s_sleep 2
{body}
    s_sub_u32 {sCNT}, {sCNT}, 1
    s_cbranch_scc1 L_ok_st
    s_cbranch_vccnz L_spin_st
    s_branch L_ok_st
""")
        return test[:-1] + [Group([test[-1], raw("s_cbranch_vccnz L_slow_st", rd=['vcc'], kind='branch'),
                                   raw("L_ok_st:", kind='label', states=0)])]

    def stage_dma(self, R):
        slot, out = R & 3, []
        if R < 10:
            for k in range(4):
                out.append(Group([bdma(vXa[k], SX, sXs, k * 1024, FL[self.opt['flX']])]))
            for m in range(3):
                out.append(Group([bdma(vW1a[m], SW1, sW1, m * 1024, FL[self.opt['flX']])]))
            self.stage_pre[R] = {0: [salu('s_add_u32', 'm0', sXl, slot * 4096)],
                                 4: [salu('s_add_u32', 'm0', sW1l, slot * 12288)],
                                 7: [salu('s_add_u32', sKP, sKP, 1),
                                     Group([salu('s_cmp_eq_u32', sKP, 10), salu('s_cselect_b32', sKP, 0, sKP)]),
                                     salu('s_lshl_b32', sXs, sKP, 7), salu('s_add_u32', sXs, sXs, sXb),
                                     salu('s_mul_i32', sW1, sKP, 64 * 3072), salu('s_add_u32', sW1, sW1, sW1b)] if R < 9 else []}
        else:
            for m in range(4):
                out.append(Group([bdma(vL16, SWS, sWQ, m * 1024, 'sc1')]))
            self.stage_pre[R] = {0: [salu('s_add_u32', 'm0', sXl, slot * 4096)],
                                 4: [salu('s_add_u32', sG, sG, 4),
                                     Group([salu('s_cmp_ge_u32', sG, 20), salu('s_cselect_b32', sWQ, 20, 0)]),
                                     salu('s_sub_u32', sG, sG, sWQ), salu('s_lshl_b32', sWQ, sG, 12),
                                     salu('s_add_u32', sWQ, sWQ, sWQb)] +
                                    ([salu('s_add_u32', sWQ, sWQ, 81920)] if R >= 14 else []) if R < 19 else []}
        self.stage_ops[R] = [i for g in out for i in g if i.kind == 'dma']
        return out

    def inline_stage(self, R):
        out, pre = self.stage_dma(R), self.stage_pre[R]
        for k, ins in pre.items():
            ins = flatten(ins)
            if k < len(out):
                out[k][:0] = ins
            else:
                out[-1].extend(ins)
        return out

    def place_mem(self, w, seq, start, end):
        n = sum(1 for g, _ in seq if g)
        first = start + len(seq[0][1])
        last = end - (min(len(seq[-1][1]), 3) if seq[-1][0] is None else 0) - 1
        prev, k, carry = start - 1, 0, []
        for g, pre in seq + [(None, None)]:
            if pre is not None:
                carry += pre
            if g is None and pre is not None:
                continue
            if g is not None:
                lo = min(max(prev + 1, first + (last - first) * k // n), end - 1)
                hi = min(max(lo + 1, first + (last - first) * (k + 1) // n - 1), end)
                at = min(range(lo, hi), key=lambda x: (max(gcost(w.v[x] + vcost(g), w.s[x] + scost(g)) - w.cap, 0), x))
                k += 1
            else:
                at = end
            room = at - prev - 1
            if room <= 0:
                if g is not None:
                    w.at(at, Group(flatten(carry) + flatten([g])))
                elif carry:
                    w.at(prev, Group(flatten(carry)))
            else:
                for j, c in enumerate(carry):
                    w.at(prev + 1 + (j if len(carry) <= room else j * room // len(carry)), c)
                if g is not None:
                    w.at(at, g)
            carry, prev = [], at

    def ring_barrier(self, R, extra_vm=()):
        return Group([wait(vm=self.stage_ops[R] + list(extra_vm), all_lgkm=True), barrier()])

    def p2_steps(self):
        return [(sAh, sWh, i) for i in range(12)] + [(sAo, sWo, i) for i in range(4)] + [(sAb, sWb, 0)]

    def step_base(self, dst, base, k, stride, i):
        m = self.opt['rot2']
        if i == 16 or not m or (m == 12 and i >= 12):
            return [salu('s_add_u32', dst, base, k * stride)]
        if m in (2, 4):
            return [salu('s_add_u32', dst, sR2, k & (m - 1)), salu('s_and_b32', dst, dst, m - 1), salu('s_mul_i32', dst, dst, stride),
                    salu('s_add_u32', dst, dst, base)] + ([salu('s_add_u32', dst, dst, (k & ~(m - 1)) * stride)] if k >= m else [])
        return [salu('s_cmp_ge_u32', sR2, 12 - k), salu('s_cselect_b32', dst, (k - 12) & 0xffffffff, k),
                salu('s_add_u32', dst, dst, sR2), salu('s_mul_i32', dst, dst, stride), salu('s_add_u32', dst, dst, base)]

    def w_loads(self, i):
        _, sw, k = self.p2_steps()[i]
        out = []
        for n in range(5):
            g = [bload(wslot(i, n), vL16 if n < 4 else vL16b, SWS, sLW, (n & 3) * 1024, 'sc1')]
            if n == 0:
                g[:0] = self.step_base(sLW, sw, k, 5120, i)
            out.append(Group(g))
        return out

    def a_loads(self, i):
        sa, _, k = self.p2_steps()[i]
        out = []
        for t in range(4):
            g = [bload(aslot(i, t), vL16, SWS, sLA, t * 1024, 'sc1')]
            if t == 0:
                g[:0] = self.step_base(sLA, sa, k, 4096, i)
            out.append(Group(g))
        return out

    def startup(self):
        t = [V(n) for n in range(136, 256)]
        vQ, vZ, vOOB, vU, vHu, vR, vCC, vPs = t[5], t[7], t[14], t[15], t[16], t[17], t[18], t[19]
        rdA, soA = [t[20], t[21], t[22]], [sT[8], sT[9], sT[10]]
        rdB, stB, ldB = [t[23], t[24], t[25]], [t[26], t[27], t[28]], [t[29], t[30], t[31]]
        s6T, s5T, sW2c = sT[6], sT[7], sT[11]
        H, PK = 200, 176
        p = []
        e = p.append
        x = p.extend
        e(salu('s_cmp_ge_u32', 's2', 256))
        e(raw("s_cbranch_scc1 L_end", rd=['scc'], kind='branch'))
        e(salu('s_getpc_b64', S(56, 2)))
        e(raw("L_pc:", kind='label', states=0))
        for r, off in ((4, 0), (16, 32), (8, 8), (28, 64), (12, 16), (20, 40), (24, 48)):
            e(raw(f"s_load_dwordx2 {S(r, 2)}, s[0:1], {off}", wr=regs(S(r, 2))))
        if self.opt.get('dbg'):
            e(raw("s_load_dwordx2 s[98:99], s[0:1], 56", wr=['s98', 's99']))
        e(salu('s_lshr_b32', sT[0], 's2', 3))
        e(salu('s_lshl_b32', sT[4], sT[0], 4))
        e(valu('v_lshrrev_b32', t[0], 6, 'v0'))
        e(valu('v_and_b32', t[1], 3, 'v0'))
        e(valu('v_lshl_add_u32', t[1], t[0], 2, t[1]))
        e(valu('v_add_lshl_u32', t[1], sT[4], t[1], 7))
        e(valu('v_min_u32', t[1], 'L_last-L_pc-4', t[1]))
        e(valu('v_mov_b32', t[3], 's57'))
        e(I(f"v_add_co_u32 {t[2]}, vcc, s56, {t[1]}", 'valu', ['s56', t[1]], [t[2], 'vcc']))
        e(valu('v_readfirstlane_b32', sW, t[0]))
        e(valu('v_and_b32', vL, 63, 'v0'))
        e(I(f"v_addc_co_u32 {t[3]}, vcc, 0, {t[3]}, vcc", 'valu', [t[3], 'vcc'], [t[3], 'vcc']))
        e(I(f"global_load_dword v255, {V(138, 2)}, off", 'vld', [t[2], t[3]], ['v255']))
        x(self.stamp('start'))
        if self.stamps:
            e(salu('s_mov_b32', 's84', 0))
            e(raw("s_memrealtime s[82:83]", wr=['s82', 's83']))
            e(raw("s_waitcnt lgkmcnt(0)"))
            e(raw(f"v_writelane_b32 {vJUNK}, s82, 61", rd=['s82'], kind='salu'))
        e(salu('s_and_b32', sT[3], 's2', 7))
        e(salu('s_lshr_b32', sT[4], sT[3], 1))
        e(salu('s_and_b32', sT[3], sT[3], 1))
        e(salu('s_and_b32', sB, sT[0], 3))
        e(salu('s_lshl2_add_u32', sB, sT[4], sB))
        e(valu('v_lshrrev_b32', t[4], 3, vL))
        e(valu('v_lshrrev_b32', vQ, 4, vL))
        e(valu('v_and_b32', t[6], 7, vL))
        e(valu('v_xor_b32', t[6], t[6], vQ))
        e(valu('v_lshlrev_b32', t[6], 4, t[6]))
        e(valu('v_mul_u32_u24', vXa[0], 2560, t[4]))
        e(valu('v_add_u32', vXa[0], vXa[0], t[6]))
        e(valu('v_xor_b32', vXa[2], 64, vXa[0]))
        e(valu('v_add_u32', vXa[1], 1280 - 1024, vXa[0]))
        e(valu('v_add_u32', vXa[3], 20480 + 1280 - 3072, vXa[2]))
        e(valu('v_add_u32', vXa[2], 20480 - 2048, vXa[2]))
        rot = self.opt['rot']
        if rot == 1:
            e(salu('s_and_b32', sR, sT[0], 3))
            e(salu('s_mul_i32', sR, sR, 5))
            e(salu('s_lshr_b32', sR, sR, 1))
            e(salu('s_lshr_b32', sKP, sT[0], 2))
            e(salu('s_add_u32', sR, sR, sKP))
            e(salu('s_cmp_ge_u32', sR, 10))
            e(salu('s_cselect_b32', sKP, 10, 0))
            e(salu('s_sub_u32', sR, sR, sKP))
        elif rot == 2:
            e(salu('s_lshr_b32', sR, sT[0], 2))
            e(salu('s_xor_b32', sR, sR, sT[0]))
            e(salu('s_and_b32', sR, sR, 1))
            e(salu('s_mul_i32', sR, sR, 5))
        elif rot == 4:
            e(salu('s_lshr_b32', sR, sT[0], 2))
            e(salu('s_add_u32', sR, sR, sT[0]))
            e(salu('s_and_b32', sR, sR, 3))
            e(salu('s_mul_i32', sR, sR, 5))
            e(salu('s_lshr_b32', sR, sR, 1))
        elif rot in (5, 6):
            e(salu('s_and_b32', sR, sT[0], 3))
            e(salu('s_mul_i32', sR, sR, 5))
            e(salu('s_lshr_b32', sR, sR, 1))
            if rot == 5:
                e(salu('s_lshr_b32', sKP, sT[0], 2))
            else:
                e(salu('s_lshr_b32', sKP, sT[0], 2))
                e(salu('s_and_b32', sKP, sKP, 3))
                e(salu('s_mul_i32', sKP, sKP, 5))
                e(salu('s_lshr_b32', sKP, sKP, 1))
            e(salu('s_add_u32', sR, sR, sKP))
            e(salu('s_mul_i32', sKP, sT[3], 5 if rot == 5 else 1))
            e(salu('s_add_u32', sR, sR, sKP))
            e(salu('s_add_u32', sR, sR, sT[4]))
            e(salu('s_mul_i32', sKP, sR, 26))
            e(salu('s_lshr_b32', sKP, sKP, 8))
            e(salu('s_mul_i32', sKP, sKP, 10))
            e(salu('s_sub_u32', sR, sR, sKP))
        else:
            e(salu('s_mov_b32', sR, 0))
        e(salu('s_mov_b32', sKP, sR))
        e(salu('s_lshl2_add_u32', sXb, sB, sW))
        e(salu('s_mul_i32', sXb, sXb, 32 * 1280))
        e(salu('s_lshl_b32', sXs, sKP, 7))
        e(salu('s_add_u32', sXs, sXs, sXb))
        e(salu('s_lshl_b32', sXl, sW, 14))
        e(salu('s_add_u32', sXl, sXl, XR))
        for r, size in ((4, 2621440), (16, 1966080)):
            e(salu('s_mov_b32', S(r + 2), size))
            e(salu('s_mov_b32', S(r + 3), 0x20000))
        e(salu('s_lshr_b32', sJ, sT[0], 2))
        e(salu('s_lshl3_add_u32', sJ, sT[3], sJ))
        e(salu('s_mul_i32', sW1b, sW, 16 * 3072))
        e(salu('s_mul_i32', sT[1], sJ, 192))
        e(salu('s_add_u32', sW1b, sW1b, sT[1]))
        e(salu('s_mul_i32', sW1, sKP, 64 * 3072))
        e(salu('s_add_u32', sW1, sW1, sW1b))
        e(salu('s_mul_i32', sW1l, sW, 3072))
        e(salu('s_add_u32', sW1l, sW1l, W1R))
        e(salu('s_mov_b32', S(30), WS_SIZE))
        e(salu('s_mov_b32', S(31), 0x20000))
        vSr, vSt, SR = V(232), V(233), 236
        e(valu('v_mov_b32', vZ, 0))
        e(valu('v_mov_b32', vOOB, OOB))
        e(salu('s_lshl2_add_u32', sT[1], sJ, sW))
        e(salu('s_lshl_b32', sT[1], sT[1], 1))
        e(salu('s_lshl_b32', sT[2], sB, 7))
        e(salu('s_add_u32', sT[1], sT[1], sT[2]))
        e(valu('v_lshrrev_b32', vSt, 5, vL))
        e(valu('v_add_u32', vSt, sT[1], vSt))
        e(valu('v_and_b32', t[8], 31, vL))
        e(valu('v_cmp_gt_u32', 'vcc', 16, t[8]))
        e(valu('v_mul_u32_u24', vSr, 1280, vSt))
        e(valu('v_lshl_add_u32', vSr, t[8], 4, vSr))
        e(valu('v_cndmask_b32', V(234), vOOB, vSr, 'vcc'))
        e(raw("s_waitcnt lgkmcnt(0)", drains_lgkm=True))
        x(self.stamp('karg'))
        srow = [bload(V(SR, 4), vSr, SX), bload(V(SR + 4, 4), vSr, SX, 0, 512), bload(V(SR + 8, 4), V(234), SX, 0, 1024),
                bload(vTAG, vZ, SWS, 0, 0, 'sc1')]
        if self.opt['srow'] == 0:
            x(srow)
        npro = self.opt['npro']
        st = [self.inline_stage(R) for R in range(npro)]

        def w1_addr(m):
            return [valu('v_add_u32', t[8], 64 * m, vL)] + self.divc(t[9], t[8], 12, 191) + [
                valu('v_mul_u32_u24', t[10], 12, t[9]), valu('v_sub_u32', t[8], t[8], t[10]),
                valu('v_lshrrev_b32', t[10], 2, t[9]), valu('v_and_b32', t[10], 2, t[10]),
                valu('v_xor_b32', t[8], t[8], t[10]), valu('v_mul_u32_u24', t[9], 3072, t[9]),
                valu('v_lshl_add_u32', vW1a[m], t[8], 4, t[9])] + (
                [valu('v_subrev_u32', vW1a[m], 1024 * m, vW1a[m])] if m else [])
        e(st[0][0])
        e(st[0][1])
        x(w1_addr(0))
        e(st[0][2])
        x(w1_addr(1))
        e(st[0][3])
        x(self.stamp('st0x'))
        x(w1_addr(2))
        e(st[0][4])
        e(salu('s_and_b32', sTB, sT[0], 7))
        e(salu('s_lshl3_add_u32', sTB, sT[4], sTB))
        e(salu('s_lshr_b32', sC, sT[0], 3))
        e(salu('s_lshl2_add_u32', sC, sT[3], sC))
        for r, size in ((8, 2457600), (12, 819200), (20, 1966080), (24, 2621440)):
            e(salu('s_mov_b32', S(r + 2), size))
            e(salu('s_mov_b32', S(r + 3), 0x20000))
        e(st[0][5])
        e(st[0][6])
        x(self.stamp('st0w'))
        if self.opt['srow'] == 1:
            x(srow)
        self.p0a, self.rawA = [], []
        early = self.opt['rawA'] < 0
        ldA, sA = [V(229), V(230), V(231)], S(97)
        later = []
        e_, x_ = (e, x) if early else (later.append, later.extend)
        e_(salu('s_mul_i32', sA, sB, 40 * 3840))
        e_(salu('s_mul_i32', sT[2], sJ, 80))
        e_(salu('s_add_u32', sA, sA, sT[2]))
        e_(salu('s_mul_i32', sT[2], sW, 192))
        for m in range(3):
            e_(valu('v_add_u32', t[8], sT[2], vL))
            if m:
                e_(valu('v_add_u32', t[8], 64 * m, t[8]))
            x_(self.divc(t[9], t[8], 15, 767))
            e_(valu('v_mul_u32_u24', t[10], 15, t[9]))
            e_(valu('v_sub_u32', t[10], t[8], t[10]))
            e_(valu('v_cmp_gt_u32', 'vcc', 600, t[8]))
            x_(self.divc(t[11], t[10], 5, 14))
            e_(valu('v_mul_u32_u24', t[9], 3840, t[9]))
            e_(valu('v_mul_u32_u24', t[11], 1200, t[11]))
            e_(valu('v_lshlrev_b32', t[10], 4, t[10]))
            e_(valu('v_add3_u32', t[9], t[9], t[10], t[11]))
            e_(valu('v_cndmask_b32', ldA[m], vOOB, t[9], 'vcc'))
            d = bdma(ldA[m], SWQKV, sA, 0, FL[self.opt['flA']])
            g_ = Group([salu('s_mul_i32', sT[5], sW, 3072), salu('s_add_u32', 'm0', sT[5], P0A + 1024 * m), d])
            self.p0a.append(d)
            if early:
                e(g_)
            else:
                self.rawA.append(g_)
        x(self.stamp('p0a'))

        q = later
        e = q.append
        x = q.extend
        vHa = t[32]
        e(valu('v_and_b32', vU, 15, vL))
        e(valu('v_bfe_u32', vR, vL, 2, 2))
        e(valu('v_and_b32', vCC, 3, vL))
        e(salu('s_and_b32', sT[1], sW, 1))
        e(salu('s_lshl_b32', sT[2], sT[1], 3))
        e(valu('v_lshrrev_b32', vHu, 3, vL))
        e(valu('v_add_u32', vHu, sT[2], vHu))
        e(salu('s_lshl_b32', sT[2], sB, 7))
        e(salu('s_sub_u32', sT[2], sT[2], 16))
        e(valu('v_add_u32', vHa, sT[2], vHu))
        e(valu('v_cmp_le_i32', 'vcc', 0, vHa))
        e(valu('v_lshrrev_b32', t[8], 1, vHu))
        e(valu('v_xor_b32', t[8], t[8], vL))
        e(valu('v_and_b32', t[8], 7, t[8]))
        e(valu('v_mul_u32_u24', vHa, 1280, vHa))
        e(valu('v_lshl_add_u32', vHa, t[8], 4, vHa))
        e(valu('v_cndmask_b32', vHa, vOOB, vHa, 'vcc'))
        e(valu('v_cmp_lt_u32', 'vcc', 1, vHu))
        e(valu('v_cndmask_b32', vHa, vOOB, vHa, 'vcc'))
        sHk, sHl = S(94), S(95)
        e(salu('s_lshr_b32', sT[2], sW, 1))
        e(salu('s_mul_i32', sT[2], sT[2], 5))
        e(salu('s_lshl_b32', sHl, sT[2], 11))
        e(salu('s_lshl_b32', sT[1], sT[1], 10))
        e(salu('s_add_u32', sHl, sHl, sT[1]))
        e(salu('s_add_u32', sHk, sT[2], sR))
        halo_loads = []
        for i5 in range(5):
            halo_loads.append(Group([salu('s_cmp_ge_u32', sHk, 10 - i5), salu('s_cselect_b32', sT[5], (i5 - 10) & 0xffffffff, i5),
                                     salu('s_add_u32', sT[5], sT[5], sHk), salu('s_lshl_b32', sT[5], sT[5], 7),
                                     salu('s_add_u32', 'm0', sHl, HALO + 2048 * i5), bdma(vHa, SX, sT[5])]))
        self.halo_ops = [g_[-1] for g_ in halo_loads]
        e(salu('s_lshl2_add_u32', sT[1], sB, sW))
        e(salu('s_lshl_b32', sT[1], sT[1], 8))
        e(salu('s_add_u32', sT[1], sT[1], ST))
        e(valu('v_lshl_add_u32', vSA, vU, 4, sT[1]))
        e(salu('s_lshl_b32', sT[1], sB, 10))
        e(salu('s_max_u32', sT[1], sT[1], 128))
        e(salu('s_add_u32', sT[1], sT[1], ST - 128))
        e(valu('v_lshl_add_u32', vSH, vU, 3, sT[1]))
        e(valu('v_lshlrev_b32', vL16, 4, vL))
        e(valu('v_add_u32', vL16b, 4096, vL16))
        e(valu('v_lshrrev_b32', t[8], 1, vU))
        e(valu('v_xor_b32', t[8], t[8], vQ))
        e(valu('v_lshlrev_b32', t[8], 4, t[8]))
        e(valu('v_lshl_add_u32', vHr[0], vU, 7, t[8]))
        e(valu('v_xor_b32', vHr[1], 64, vHr[0]))
        e(valu('v_and_b32', t[8], 8, vU))
        e(valu('v_lshlrev_b32', t[8], 7, t[8]))
        e(valu('v_add3_u32', vXr[0], sXl, vHr[0], t[8]))
        e(valu('v_xor_b32', vXr[1], 64, vXr[0]))
        e(valu('v_lshl_add_u32', t[8], vQ, 3, vR))
        e(valu('v_mul_u32_u24', t[8], 192, t[8]))
        e(valu('v_lshl_add_u32', t[8], vCC, 3, t[8]))
        e(valu('v_and_b32', t[9], 1, vQ))
        e(valu('v_lshl_add_u32', t[8], t[9], 5, t[8]))
        e(salu('s_cmp_eq_u32', sW, 3))
        e(salu('s_cselect_b32', sROT, 0, sW))
        e(salu('s_lshl_b32', sT[1], sB, 1))
        e(salu('s_lshr_b32', sT[2], sW, 1))
        e(salu('s_add_u32', sT[12], sT[1], sT[2]))
        e(salu('s_mul_i32', sAP, sT[12], ACTB))
        e(salu('s_and_b32', sT[2], sW, 1))
        e(salu('s_lshl_b32', sT[2], sT[2], 11))
        e(salu('s_add_u32', sAP, sAP, sT[2]))
        e(salu('s_add_u32', sAP, sAP, ACT))
        for m in range(3):
            e(salu('s_add_u32', sT[1], sROT, m))
            e(salu('s_cmp_ge_u32', sT[1], 3))
            e(salu('s_cselect_b32', sT[2], 3, 0))
            e(salu('s_sub_u32', sT[1], sT[1], sT[2]))
            e(salu('s_lshl_b32', sT[2], sT[1], 6))
            e(salu('s_add_u32', sT[2], sT[2], W1R))
            e(valu('v_add_u32', vW1r[2 * m], sT[2], t[8]))
            e(valu('v_xor_b32', vW1r[2 * m + 1], 32, vW1r[2 * m]))
            e(salu('s_mul_i32', sT[2], sJ, 3))
            e(salu('s_add_u32', sT[1], sT[1], sT[2]))
            e(salu('s_lshl_b32', sT[1], sT[1], 12))
            e(salu('s_add_u32', sHS[m], sT[1], sAP))
        e(valu('v_mov_b32', t[8], 0x3f803f80))
        for r in range(4):
            e(valu('v_accvgpr_write_b32', A(240 + r), t[8]))
        e(valu('v_lshlrev_b32', vPs, 4, vU))
        e(valu('v_lshl_add_u32', vPs, vQ, 10, vPs))
        e(valu('v_mul_u32_u24', t[8], 80, vQ))
        e(valu('v_cmp_ne_u32', 'vcc', 3, vCC))
        e(valu('v_lshl_add_u32', t[8], vCC, 3, t[8]))
        e(valu('v_mul_u32_u24', t[9], 80, vCC))
        e(valu('v_cndmask_b32', t[9], 0, t[9], 'vcc'))
        e(valu('v_cmp_ne_u32', 'vcc', 3, vQ))
        e(valu('v_add_u32', t[9], 32, t[9]))
        e(valu('v_mul_u32_u24', t[10], 240, vR))
        e(valu('v_cndmask_b32', t[8], t[9], t[8], 'vcc'))
        e(valu('v_add_u32', t[8], t[8], t[10]))
        for k in range(3):
            e(salu('s_add_u32', sT[1], sW, 4 * k))
            e(salu('s_min_u32', sT[1], sT[1], 9))
            e(salu('s_and_b32', sT[2], sT[1], 1))
            e(salu('s_lshr_b32', sT[1], sT[1], 1))
            e(salu('s_mul_i32', sT[3], sT[1], 1920))
            e(salu('s_mul_i32', sT[4], sT[2], 40))
            e(salu('s_add_u32', sT[3], sT[3], sT[4]))
            e(salu('s_add_u32', sT[3], sT[3], P0A))
            e(valu('v_add_u32', rdA[k], sT[3], t[8]))
            e(salu('s_mul_i32', sT[3], sB, 5))
            e(salu('s_add_u32', sT[1], sT[1], sT[3]))
            e(salu('s_mul_i32', sT[2], sT[2], 20))
            e(salu('s_lshr_b32', sT[3], sT[1], 2))
            e(salu('s_add_u32', sT[2], sT[2], sT[3]))
            e(salu('s_lshl_b32', sT[2], sT[2], 12))
            e(salu('s_and_b32', sT[1], sT[1], 3))
            e(salu('s_lshl_b32', sT[1], sT[1], 8))
            e(salu('s_add_u32', sT[1], sT[1], sT[2]))
            e(salu('s_mul_i32', sT[2], sJ, WQJ))
            e(salu('s_add_u32', sT[1], sT[1], sT[2]))
            e(salu('s_add_u32', soA[k], sT[1], WQ))
        vPs2 = t[33]
        e(salu('s_cmp_lt_u32', sW, 2))
        e(salu('s_cselect_b64', 'vcc', -1, 0))
        e(valu('v_cndmask_b32', vPs2, vOOB, vPs, 'vcc'))
        e(salu('s_mul_i32', s6T, sTB, 6))
        e(salu('s_mul_i32', s5T, sTB, 5))
        e(salu('s_lshr_b32', s5T, s5T, 1))
        for m in range(3):
            e(salu('s_lshl_b32', sT[2], sW, 7 if m < 2 else 6))
            e(valu('v_add_u32', t[8], sT[2], vL))
            if m == 1:
                e(valu('v_add_u32', t[8], 64, t[8]))
            x(self.divc(t[9], t[8], 80, 511))
            e(valu('v_mul_u32_u24', t[10], 80, t[9]))
            e(valu('v_sub_u32', t[10], t[8], t[10]))
            x(self.divc(t[11], t[10], 10, 79))
            e(valu('v_mul_u32_u24', t[12], 10, t[11]))
            e(valu('v_sub_u32', t[10], t[10], t[12]))
            e(valu('v_and_b32', t[12], 3, t[11]))
            e(valu('v_lshrrev_b32', t[11], 2, t[11]))
            if m < 2:
                e(valu('v_lshl_add_u32', t[11], t[11], 4, t[12]))
                e(valu('v_add_u32', t[9], s6T, t[9]))
                e(valu('v_and_b32', t[12], 3, t[9]))
                e(valu('v_lshl_add_u32', t[11], t[12], 2, t[11]))
                e(valu('v_lshrrev_b32', t[9], 2, t[9]))
                e(valu('v_lshl_add_u32', t[11], t[9], 5, t[11]))
            else:
                e(valu('v_mad_u32_u24', t[11], t[11], 20, t[12]))
                e(valu('v_add_u32', t[9], s5T, t[9]))
                e(valu('v_min_u32', t[9], 79, t[9]))
                e(valu('v_cmp_gt_u32', 'vcc', 64, t[9]))
                e(valu('v_lshrrev_b32', t[12], 2, t[9]))
                e(valu('v_mul_u32_u24', t[12], 40, t[12]))
                e(valu('v_and_b32', t[13], 3, t[9]))
                e(valu('v_lshl_add_u32', t[12], t[13], 2, t[12]))
                e(valu('v_mul_u32_u24', t[13], 40, t[9]))
                e(valu('v_subrev_u32', t[13], 40 * 64 - 16, t[13]))
                e(valu('v_cndmask_b32', t[12], t[13], t[12], 'vcc'))
                e(valu('v_add_u32', t[11], t[11], t[12]))
            e(valu('v_cmp_gt_u32', 'vcc', 480 if m < 2 else 240, t[8]))
            e(valu('v_mul_u32_u24', t[11], 1280, t[11]))
            e(valu('v_lshl_add_u32', t[11], t[10], 4, t[11]))
            e(valu('v_cndmask_b32', ldB[m], vOOB, t[11], 'vcc'))
        e(valu('v_mul_u32_u24', t[8], 160, vR))
        e(valu('v_lshl_add_u32', t[8], vCC, 3, t[8]))
        for k in range(3):
            if k < 2:
                e(salu('s_lshl_b32', sT[1], sW, 3))
                e(salu('s_add_u32', sT[1], sT[1], 4 * k))
            else:
                e(salu('s_lshl_b32', sT[1], sW, 2))
            e(valu('v_add_u32', t[13], sT[1], vQ))
            e(valu('v_min_u32', t[9], 29 if k < 2 else 14, t[13]))
            e(valu('v_cmp_eq_u32', 'vcc', t[9], t[13]))
            x(self.divc(t[10], t[9], 5, 31))
            e(valu('v_mul_u32_u24', t[11], 5, t[10]))
            e(valu('v_sub_u32', t[9], t[9], t[11]))
            e(valu('v_mul_u32_u24', t[11], 1280, t[10]))
            e(valu('v_lshl_add_u32', t[11], t[9], 5, t[11]))
            e(valu('v_add_u32', t[11], (P0B if k < 2 else P0B + 8192), t[11]))
            e(valu('v_add_u32', rdB[k], t[11], t[8]))
            e(valu('v_add_u32', t[10], s6T if k < 2 else s5T, t[10]))
            if k == 2:
                e(valu('v_min_u32', t[10], 79, t[10]))
                e(valu('v_add_u32', t[10], 192, t[10]))
            e(valu('v_lshrrev_b32', t[11], 2, t[10]))
            e(valu('v_mul_u32_u24', t[11], 5120, t[11]))
            e(valu('v_lshl_add_u32', t[11], t[9], 10, t[11]))
            e(valu('v_and_b32', t[10], 3, t[10]))
            e(valu('v_lshl_add_u32', t[11], t[10], 8, t[11]))
            e(valu('v_lshl_add_u32', t[11], vU, 4, t[11]))
            e(valu('v_cndmask_b32', stB[k], vOOB, t[11], 'vcc'))
        e(salu('s_mul_i32', sW2c, sC, W2C))
        e(salu('s_add_u32', sW2c, sW2c, W2P))
        vHw = t[34]
        e(salu('s_mul_i32', sT[1], sW, 20))
        e(valu('v_add_u32', t[8], sT[1], vL))
        e(valu('v_cmp_gt_u32', 'vcc', 20, vL))
        e(valu('v_lshrrev_b32', t[9], 3, t[8]))
        e(valu('v_and_b32', t[8], 7, t[8]))
        e(valu('v_lshlrev_b32', t[8], 4, t[8]))
        e(valu('v_lshl_add_u32', t[8], t[9], 11, t[8]))
        e(valu('v_add_u32', t[9], DUMMY, vL16))
        e(valu('v_cndmask_b32', vHw, t[9], t[8], 'vcc'))
        e(salu('s_lshl_b32', sT[1], sJ, 6))
        e(salu('s_add_u32', sT[1], sT[1], F1))
        e(salu('s_lshl2_add_u32', sT[3], sB, sT[1]))
        e(valu('v_cmp_eq_u32', 'vcc', 0, 'v0'))
        e(valu('v_mov_b32', t[8], sT[3]))
        e(valu('v_cndmask_b32', vFA, vOOB, t[8], 'vcc'))
        x(self.poll_addr(sJ, F1, 6, t[9], 15))
        e(salu('s_mul_i32', sWQb, sJ, WQJ))
        e(salu('s_add_u32', sWQb, sWQb, WQ))
        e(salu('s_lshl1_add_u32', sG, sR, sW))
        e(salu('s_cmp_ge_u32', sG, 20))
        e(salu('s_cselect_b32', sWQ, 20, 0))
        e(salu('s_sub_u32', sG, sG, sWQ))
        e(salu('s_lshl_b32', sWQ, sG, 12))
        e(salu('s_add_u32', sWQ, sWQ, sWQb))
        e(salu('s_lshr_b32', sT[1], 's2', 3))
        e(salu('s_and_b32', sT[2], sT[1], 7))
        e(salu('s_mul_i32', sT[2], sT[2], 3))
        e(salu('s_lshr_b32', sT[2], sT[2], 1))
        e(salu('s_lshr_b32', sT[1], sT[1], 3))
        e(salu('s_mul_i32', sT[1], sT[1], 3))
        e(salu('s_add_u32', sR2, sT[1], sT[2]))
        e(salu('s_cmp_ge_u32', sR2, 12))
        e(salu('s_cselect_b32', sT[1], 12, 0))
        e(salu('s_sub_u32', sR2, sR2, sT[1]))
        if self.opt['rot2'] in (2, 4):
            e(salu('s_lshr_b32', sT[1], 's2', 3))
            e(salu('s_lshr_b32', sT[2], 's2', 6))
            e(salu('s_add_u32', sR2, sT[1], sT[2]))
        e(salu('s_mul_i32', sT[1], sTB, ACTB))
        e(salu('s_add_u32', sT[1], sT[1], ACT))
        e(salu('s_mul_i32', sT[2], sW, 12 * 4096))
        e(salu('s_add_u32', sAh, sT[1], sT[2]))
        e(salu('s_lshl_b32', sT[2], sW, 14))
        e(salu('s_add_u32', sAo, sT[1], sT[2]))
        e(salu('s_add_u32', sAo, sAo, 48 * 4096))
        e(salu('s_lshl_b32', sT[2], sW, 12))
        e(salu('s_add_u32', sAb, sT[1], sT[2]))
        e(salu('s_add_u32', sAb, sAb, 64 * 4096))
        e(salu('s_mul_i32', sT[2], sW, 12 * 5120))
        e(salu('s_add_u32', sWh, sW2c, sT[2]))
        e(salu('s_mul_i32', sT[2], sW, 4 * 5120))
        e(salu('s_add_u32', sWo, sW2c, sT[2]))
        e(salu('s_add_u32', sWo, sWo, 48 * 5120))
        e(salu('s_mul_i32', sT[2], sW, 5120))
        e(salu('s_add_u32', sWb, sW2c, sT[2]))
        e(salu('s_add_u32', sWb, sWb, 64 * 5120))
        e(salu('s_add_u32', sT[1], sJ, 48))
        e(salu('s_lshl_b32', sT[1], sT[1], 12))
        e(salu('s_add_u32', sOA, sT[1], sAP))
        e(salu('s_lshr_b32', sT[1], sJ, 2))
        e(salu('s_add_u32', sT[1], sT[1], 64))
        e(salu('s_lshl_b32', sT[1], sT[1], 12))
        e(salu('s_and_b32', sT[2], sJ, 3))
        e(salu('s_lshl_b32', sT[2], sT[2], 8))
        e(salu('s_add_u32', sT[1], sT[1], sT[2]))
        e(salu('s_add_u32', sOB, sT[1], sAP))
        e(salu('s_mov_b64', sLO16, 0xffff))
        e(salu('s_mov_b32', 's70', 0x00010001))
        e(salu('s_mov_b32', 's71', 0x00010001))
        for k, r in enumerate((72, 74, 76)):
            e(salu('s_mov_b32', S(r), 0x11111111 << (k + 1)))
            e(salu('s_mov_b32', S(r + 1), 0x11111111 << (k + 1)))
        e(salu('s_mov_b32', sSCL, f2u(20 ** -0.5 * 1.4426950408889634)))
        for i in range(4):
            e(salu('s_add_u32', sT[1], sW, i))
            e(salu('s_and_b32', sT[1], sT[1], 3))
            e(salu('s_lshl_b32', sT[1], sT[1], 10))
            e(salu('s_add_u32', sT[1], sT[1], XR))
            e(valu('v_add_u32', vWr[i], sT[1], vL16))
        e(valu('v_lshlrev_b32', t[8], 2, vQ))
        e(valu('v_sub_u32', t[8], vU, t[8]))
        e(valu('v_mov_b32', t[10], f2u(-1e30)))
        e(salu('s_or_b32', sT[1], sB, sW))
        e(salu('s_cmp_eq_u32', sT[1], 0))
        e(salu('s_cselect_b32', sT[1], 0, 2))
        e(valu('v_cmp_gt_u32', 'vcc', sT[1], vQ))
        e(valu('v_cndmask_b32', t[11], t[10], vZ, 'vcc'))
        for r in range(4):
            e(valu('v_subrev_u32', t[9], r, t[8]))
            e(valu('v_cmp_gt_u32', 'vcc', 8, t[9]))
            e(valu('v_cmp_gt_i32', S(56, 2), 0, t[9]))
            e(valu('v_cndmask_b32', V(MASK + 4 + r), t[10], vZ, 'vcc'))
            e(valu('v_cndmask_b32', V(MASK + r), t[10], t[11], S(56, 2)))
        e(valu('v_mov_b32', t[8], ZERO))
        e(valu('v_mov_b32', t[10], 0))
        e(valu('v_mov_b32', t[11], 0))
        e(ds_write('ds_write_b64', t[8], V(146, 2)))
        e(salu('s_mul_i32', sT[12], sC, 160))
        loads = st[1] + (halo_loads if npro > 2 else []) + [x_ for r_ in st[2:] for x_ in r_]
        self.halo_loads = [] if npro > 2 else halo_loads
        p += self.sprinkle(q, loads, max(1, min(self.opt['pro_every'], (len(q) - 16) // len(loads))), start=0)
        p += self.stamp('setup')
        shadow = self.opt['srow'] >= 2
        hs, hq, ht, h3, h4, h5 = (V(n) for n in range(224, 229)) if False else (V(248), V(249), V(250), V(251), V(252), V(253))
        z = [valu('v_readfirstlane_b32', sTAG, vTAG), valu('v_mov_b32', ht, 0x3f803f80),
             salu('s_mul_i32', sTAG, sTAG, 0x19660d), salu('s_add_u32', sTAG, sTAG, 0x3c6ef35f),
             salu('s_cmp_eq_u32', sW, 0), salu('s_cselect_b32', sCMP, sTAG, 0), valu('v_mov_b32', vTAG, sTAG)]
        for i in range(12):
            if not shadow:
                z += [valu('v_dot2_f32_bf16', hs, V(SR + i), ht, hs if i else 0),
                      valu('v_dot2_f32_bf16', hq, V(SR + i), V(SR + i), hq if i else 0)]
                continue
            z += [valu('v_lshlrev_b32', h4, 16, V(SR + i)), valu('v_and_b32', h5, 0xffff0000, V(SR + i))]
            z += [valu('v_add_f32', hs, h4, h5), valu('v_mul_f32', hq, h4, h4)] if i == 0 else \
                [valu('v_add_f32', hs, hs, h4), valu('v_fmac_f32', hq, h4, h4), valu('v_add_f32', hs, hs, h5)]
            z.append(valu('v_fmac_f32', hq, h5, h5))
        z += [valu('v_and_b32', h3, 31, vL), valu('v_cmp_eq_u32', S(98, 2) if not self.opt.get('dbg') else 'vcc', 0, h3),
              valu('v_lshlrev_b32', h3, 3, vSt), valu('v_add_u32', h3, ST, h3)]
        for sh in (8, 4, 2, 1):
            z.append(Skip(1))
            for r in (hs, hq):
                z.append(valu('v_add_f32_dpp', r, r, r, mods=f'row_ror:{sh} row_mask:0xf bank_mask:0xf'))
        z += [valu('v_mov_b32', h4, hs), valu('v_mov_b32', h5, hq),
              valu('v_cndmask_b32', h3, vOOB, h3, S(98, 2) if not self.opt.get('dbg') else 'vcc'), Skip(1),
              valu('v_permlane16_swap_b32', hs, h4), valu('v_permlane16_swap_b32', hq, h5),
              valu('v_add_f32', hs, hs, h4), valu('v_add_f32', hq, hq, h5)]
        z += self.rstats(hs, hq, V(SR), ht) + [valu('v_mov_b32', V(SR + 1), sTAG), bstore(V(SR, 2), h3, SWS, 0, 0, 'sc1')]
        self.srow, self.stats = (srow, z) if shadow else ([], [])
        if not shadow:
            p += z
        p += self.stamp('stats')
        p.append(Group([wait(vm=self.stage_ops[0]), barrier()]))
        p += self.stamp('B0')

        def pack(rd, k0, half, dst):
            o_ = []
            for k in range(3):
                o_ += [ds_read('ds_read_b64_tr_b16', V(PK + 4 * (k0 + k) + 2 * h, 2), rd[k], h * half) for h in range(2)]
            sts = [bstore(V(PK + 4 * (k0 + k), 4), dst[k][0], SWS, dst[k][1], 0, FL[self.opt['flS']]) for k in range(3)]
            return o_, sts
        self.packA = pack(rdA, 0, 960, [(vPs, soA[0]), (vPs, soA[1]), (vPs2, soA[2])])
        self.packB = pack(rdB, 3, 640, [(stB[k], sW2c) for k in range(3)])
        self.rawB = []
        for m in range(3):
            self.rawB.append(Group([salu('s_lshl_b32', sT[5], sW, 11 if m < 2 else 10),
                                    salu('s_add_u32', 'm0', sT[5], P0B + (1024 * m if m < 2 else 8192)),
                                    bdma(ldB[m], SW2 if m < 2 else SWO, sT[12], 0, FL[self.opt['flB']])]))
        self.f2_pub = [salu('s_lshl_b32', sT[2], sC, 7), salu('s_add_u32', sT[2], sT[2], F2),
                       salu('s_lshl2_add_u32', sT[4], sTB, sT[2]), valu('v_mov_b32', t[35], sT[4]),
                       valu('v_cmp_eq_u32', S(92, 2), 0, 'v0'), Skip(1), valu('v_cndmask_b32', vFA, vOOB, t[35], S(92, 2))]
        self.ones = [valu('v_mov_b32', V(220 + r), 0x3f803f80) for r in range(4)] + \
            [ds_write('ds_write_b128', vHw, V(220, 4), HALO)]
        return p

    def x_reads(self, s):
        i, h = s >> 1, s & 1
        return [ds_read('ds_read_b128', X(s, p), vXr[h], (i & 3) * 4096 + p * 1024) for p in range(2)]

    def w1_reads(self, s, n):
        i, h = s >> 1, s & 1
        return [ds_read('ds_read_b64_tr_b16', V(WF + 4 * n + 2 * e_, 2), vW1r[n], (i & 3) * 12288 + (32 * h + 4 * e_) * 192)
                for e_ in range(2)]

    def wq_read(self, g, n):
        k, sg = g >> 2, g & 3
        return ds_read('ds_read_b128', V(WF + 4 * n, 4), vWr[n], sg * 16384 + ((10 + k) & 3) * 4096)

    def halo_read(self, g):
        s = g % 20
        return ds_read('ds_read_b128', V(WF + 16, 4), vHr[s & 1], HALO + (s >> 1) * 2048)

    def late_addresses(self):
        t = [V(T + n) for n in range(24)]
        vQ, vU, vR, vCC = t[0], t[1], t[2], t[3]
        p = [valu('v_lshrrev_b32', vQ, 4, vL), valu('v_and_b32', vU, 15, vL),
             valu('v_bfe_u32', vR, vL, 2, 2), valu('v_and_b32', vCC, 3, vL),
             salu('s_mul_i32', sT[1], sW, 16 * KVR), salu('s_add_u32', sT[1], sT[1], KV),
             valu('v_mul_u32_u24', t[4], KVR, vU),
             valu('v_add_u32', t[4], sT[1], t[4]),
             valu('v_add_u32', vK4, 72, t[4]),
             valu('v_lshl_add_u32', t[5], vQ, 3, t[4]),
             valu('v_add_u32', vKr, 40, t[5]),
             valu('v_add_u32', vQr, 8 * KVR, t[5]),
             valu('v_add_u32', t[6], 8 * KVR + 32, t[4]),
             valu('v_mov_b32', t[7], ZERO),
             valu('v_cmp_eq_u32', S(92, 2), 0, vQ),
             valu('v_cndmask_b32', vQ4, t[7], t[6], S(92, 2)),
             valu('v_lshl_add_u32', t[6], vQ, 2, vR),
             valu('v_mul_u32_u24', t[6], KVR, t[6]),
             valu('v_add_u32', t[6], sT[1], t[6]),
             valu('v_add_u32', vV4, 112, t[6]),
             valu('v_lshl_add_u32', t[6], vCC, 3, t[6]),
             valu('v_add_u32', vVr, 80, t[6]),
             valu('v_mul_u32_u24', t[6], 40, vQ),
             valu('v_add_u32', t[6], 32, t[6]),
             valu('v_min_u32', t[6], 120, t[6]),
             valu('v_lshlrev_b32', t[7], 3, vQ),
             valu('v_and_b32', t[8], 1, vU),
             valu('v_mul_u32_u24', t[8], KVC, t[8]),
             valu('v_lshrrev_b32', t[9], 1, vU),
             valu('v_mul_u32_u24', t[9], KVR, t[9]),
             valu('v_add_u32', t[8], t[8], t[9]),
             valu('v_add_u32', t[8], KV, t[8])]
        for i in range(4):
            p += [salu('s_add_u32', sT[2], sW, i), salu('s_and_b32', sT[2], sT[2], 3),
                  salu('s_mul_i32', sT[3], sT[2], 40),
                  salu('s_cmp_eq_u32', sT[2], 3), salu('s_cselect_b64', S(92, 2), -1, 0),
                  valu('v_add_u32', t[9], sT[3], t[7]),
                  valu('v_cndmask_b32', t[9], t[9], t[6], S(92, 2))]
            if i == 0:
                p.append(valu('v_add_u32', vHKw, t[8], t[9]))
            p += [valu('v_add_u32', t[9], t[4], t[9]), valu('v_add_u32', vKVw[i], 8 * KVR, t[9])]
        p += [salu('s_lshl_b32', sT[2], sW, 6), salu('s_add_u32', sT[2], sT[2], CSQ),
              valu('v_lshl_add_u32', vCQw, vQ, 4, sT[2]),
              valu('v_lshlrev_b32', vCQr, 4, vQ),
              valu('v_lshlrev_b32', t[4], 4, vU), valu('v_lshl_add_u32', t[4], vQ, 10, t[4]), valu('v_mov_b32', t[5], OOB),
              valu('v_cmp_gt_u32', S(92, 2), 32, vL), Skip(1), valu('v_cndmask_b32', vOB, t[5], t[4], S(92, 2))]
        return p

    def flag_addr(self, base):
        t0, t1 = V(T + 22), V(T + 23)
        return [salu('s_lshl_b32', sT[1], sB, 1), salu('s_lshr_b32', sT[2], sW, 1), salu('s_add_u32', sT[1], sT[1], sT[2]),
                salu('s_lshl_b32', sT[1], sT[1], 7), salu('s_and_b32', sT[2], sW, 1), salu('s_lshl1_add_u32', sT[2], sJ, sT[2]),
                salu('s_lshl2_add_u32', sT[1], sT[2], sT[1]), salu('s_add_u32', sT[1], sT[1], base),
                valu('v_mov_b32', t0, sT[1]), valu('v_mov_b32', t1, OOB),
                valu('v_cmp_eq_u32', S(92, 2), 0, vL), valu('v_cndmask_b32', vFA, t1, t0, S(92, 2))]

    def poll_addr(self, idx, base, shift, t0, mask):
        return [salu('s_lshl_b32', 's96', idx, shift), salu('s_add_u32', 's96', 's96', base),
                salu('s_cmp_eq_u32', sW, 0), salu('s_cselect_b32', 's96', 's96', OOB),
                valu('v_and_b32', t0, mask, vL), valu('v_lshl_add_u32', vPA, t0, 2, 's96')]

    def lanes0(self, ins):
        return Group([salu('s_mov_b64', 'exec', sROW0), ins, salu('s_mov_b64', 'exec', -1)])

    def ff_pre(self):
        t = [V(T + n) for n in range(24)]
        p = [valu('v_lshrrev_b32', t[0], 4, vL), salu('s_lshl_b32', sT[1], sROT, 7), salu('s_add_u32', sT[1], sT[1], CSF),
             valu('v_lshl_add_u32', t[0], t[0], 4, sT[1]),
             self.lanes0(ds_write('ds_write_b128', t[0], V(CS, 4), 0)),
             self.lanes0(ds_write('ds_write_b128', t[0], V(CS + 4, 4), 64))]
        for src, mean, rstd in ((RS, vMEAN[0], vRSTD[0]), (RS + 2, vMEAN[1], vRSTD[1]), (RS + 4, vMEANH, vRSTDH)):
            p += [valu('v_and_b32', rstd, 0xffff0000, V(src)), valu('v_lshlrev_b32', mean, 16, V(src)),
                  valu('v_rcp_f32', rstd, rstd)]
        return p

    def ff_post(self):
        t = [V(T + n) for n in range(24)]
        p = [valu('v_lshrrev_b32', V(RS), 4, vL), valu('v_lshlrev_b32', V(RS), 4, V(RS))]
        for m in range(3):
            p += [salu('s_add_u32', sT[1], sROT, m), salu('s_cmp_ge_u32', sT[1], 3), salu('s_cselect_b32', sT[2], 3, 0),
                  salu('s_sub_u32', sT[1], sT[1], sT[2]), salu('s_lshl_b32', sT[1], sT[1], 7), salu('s_add_u32', sT[1], sT[1], CSF),
                  valu('v_add_u32', V(RS + 1), sT[1], V(RS)),
                  ds_read('ds_read_b128', V(T + 8 * m, 4), V(RS + 1), 0),
                  ds_read('ds_read_b128', V(T + 8 * m + 4, 4), V(RS + 1), 64)]
        p.append(Skip(2))
        self.h_stores = []
        for m in range(3):
            for q in range(2):
                dst = SS + 4 * ((2 * m + q) & 1)
                for n in (2 * m, 2 * m + 1):
                    a = FACC + 8 * n + 4 * q
                    for r in range(4):
                        p.append(valu('v_fma_f32', V(a + r), '-' + vMEAN[q], V(T + 4 * n + r), V(a + r)))
                    for r in range(4):
                        p.append(valu('v_mul_f32', V(a + r), V(a + r), vRSTD[q]))
                    for hh in range(2):
                        p.append(valu('v_cvt_pk_bf16_f32', V(dst + 2 * (n & 1) + hh), V(a + 2 * hh), V(a + 2 * hh + 1)))
                for r in range(4):
                    p.append(valu('v_pk_max_i16', V(dst + r), V(dst + r), 0))
                s_ = bstore(V(dst, 4), vL16, SWS, sHS[m], q * 1024, FL[self.opt['flS']])
                self.h_stores.append(s_)
                p.append(s_)
        return p

    def qkv_pre(self, hd, packed):
        a = ACC[hd]
        t = [V(T + n) for n in range(24)]
        p = [self.lanes0(ds_write('ds_write_b128', vCQw, V(a + 32, 4), hd * 256))]
        self.qkv_pub = [i for g in p for i in (g if isinstance(g, Group) else [g]) if i.kind == 'dsw']
        q = []
        for cls in range(2):
            q.append(valu('v_mul_f32', t[18 + cls], vMEAN[cls], vRSTD[cls]))
        for n in range(4):
            for cls in range(2):
                b = a + 8 * n + 4 * cls
                if packed:
                    for r in (0, 2):
                        q.append(I(f"v_pk_mul_f32 {V(b + r, 2)}, {V(b + r, 2)}, {V(30, 2)} op_sel:[0,{cls}] op_sel_hi:[1,{cls}]",
                                   'valu', regs(V(b + r, 2)) + regs(V(30, 2)), regs(V(b + r, 2))))
                else:
                    for r in range(4):
                        q.append(valu('v_mul_f32', V(b + r), V(b + r), vRSTD[cls]))
        return p, q

    def qkv_post(self, hd, packed):
        a = ACC[hd]
        t = [V(T + n) for n in range(24)]
        p = []
        for n in range(4):
            p += [salu('s_add_u32', sT[1], sW, n), salu('s_and_b32', sT[1], sT[1], 3), salu('s_lshl_b32', sT[1], sT[1], 6),
                  salu('s_add_u32', sT[1], sT[1], CSQ + 256 * hd), valu('v_add_u32', t[20], sT[1], vCQr),
                  ds_read('ds_read_b128', V(T + 4 * n, 4), t[20], 0)]
        p.append(Skip(2))
        p += [valu('v_fma_f32', V(a + 32 + r), '-' + vMEANH, V(T + r), V(a + 32 + r)) for r in range(4)]
        p += [valu('v_mul_f32', V(a + 32 + r), V(a + 32 + r), vRSTDH) for r in range(4)]
        p += [valu('v_cvt_pk_bf16_f32', t[16], V(a + 32), V(a + 33)), valu('v_cvt_pk_bf16_f32', t[17], V(a + 34), V(a + 35))]
        self.kv_writes = [ds_write('ds_write_b64', vHKw, V(T + 16, 2), hd * KVH)]
        p += self.kv_writes
        for n in range(4):
            for cls in range(2):
                b = a + 8 * n + 4 * cls
                if packed:
                    for r in (0, 2):
                        p.append(I(f"v_pk_fma_f32 {V(b + r, 2)}, {V(T + 4 * n + r, 2)}, {V(T + 18, 2)}, {V(b + r, 2)} "
                                   f"op_sel:[0,{cls},0] op_sel_hi:[1,{cls},1] neg_lo:[1,0,0] neg_hi:[1,0,0]", 'valu',
                                   regs(V(b + r, 2)) + regs(V(T + 4 * n + r, 2)) + regs(V(T + 18, 2)), regs(V(b + r, 2))))
                else:
                    for r in range(4):
                        p.append(valu('v_fma_f32', V(b + r), '-' + t[18 + cls], V(T + 4 * n + r), V(b + r)))
                p += [valu('v_cvt_pk_bf16_f32', V(b), V(b), V(b + 1)), valu('v_cvt_pk_bf16_f32', V(b + 1), V(b + 2), V(b + 3))]
                w_ = ds_write('ds_write_b64', vKVw[n], V(b, 2), hd * KVH + cls * KVC)
                self.kv_writes.append(w_)
                p.append(w_)
        return p

    def attention(self, hd):
        a = ACC[hd]
        streams = []
        for cls in range(2):
            off = hd * KVH + cls * KVC
            b = a + 16 * cls
            u = T + 12 * cls
            Kf = [V(b, 4), V(b + 4, 4)]
            Qf, Sf = V(b + 8, 4), [V(u, 4), V(u + 4, 4)]
            Vf = Kf
            Pf = Qf
            O0, O1, L = V(u, 4), V(u + 4, 4), V(b + 12, 4)
            m, m2 = V(u + 8), V(u + 9)
            p = [ds_read('ds_read_b64', V(b + 8, 2), vQr, off)]
            p.append(I(f"ds_read_b64 {V(b + 10, 2)}, {V(u + 10)}", 'dsr', [V(u + 10)], regs(V(b + 10, 2))))
            p.insert(0, valu('v_cndmask_b32', V(u + 10), vQ4, V(u + 11), sLO16))
            for k in range(2):
                p += [ds_read('ds_read_b64', V(b + 4 * k, 2), vKr, off + k * 8 * KVR),
                      ds_read('ds_read_b64', V(b + 4 * k + 2, 2), vK4, off + k * 8 * KVR)]
            p.append(Skip(2))
            p += [mfma(Sf[k], Kf[k], Qf, V(MASK + 4 * k, 4)) for k in range(2)]
            for k in range(2):
                p += [ds_read('ds_read_b64_tr_b16', V(b + 2 * k, 2), vVr, off + k * 8 * KVR),
                      ds_read('ds_read_b64_tr_b16', V(b + 4 + 2 * k, 2), vV4, off + k * 8 * KVR)]
            p.append(Skip(1))
            p += [valu('v_max3_f32', m, V(u), V(u + 1), V(u + 2)), valu('v_max3_f32', m2, V(u + 3), V(u + 4), V(u + 5)),
                  valu('v_max3_f32', m, m, V(u + 6), V(u + 7)), valu('v_max_f32', m, m, m2)]
            for sw in ('v_permlane16_swap_b32', 'v_permlane32_swap_b32'):
                p += [valu('v_mov_b32', m2, m), valu(sw, m, m2), valu('v_max_f32', m, m, m2)]
            p.append(valu('v_mul_f32', m, sSCL, m))
            p += [valu('v_fma_f32', V(u + r), V(u + r), sSCL, '-' + m) for r in range(8)]
            p += [valu('v_exp_f32', V(u + r), V(u + r)) for r in range(8)]
            p += [valu('v_cvt_pk_bf16_f32', V(b + 8 + r), V(u + 2 * r), V(u + 2 * r + 1)) for r in range(4)]
            p += [mfma(L, aONES, Pf, 0), mfma(O0, Vf[0], Pf, 0), mfma(O1, Vf[1], Pf, 0), Skip(2)]
            p.append(valu('v_rcp_f32', m, V(b + 12)))
            p += [valu('v_mul_f32', V(u + r), V(u + r), m) for r in range(8)]
            for k in range(2):
                for hh in range(2):
                    p.append(valu('v_cvt_pk_bf16_f32', V(self.oreg(cls, k) + 2 * hd + hh), V(u + 4 * k + 2 * hh), V(u + 4 * k + 2 * hh + 1)))
            streams.append(p)
        pre = []
        for cls in range(2):
            pre.append(valu('v_add_u32', V(T + 12 * cls + 11), hd * KVH + cls * KVC, vQ4))
        out = pre
        for i, j in zip(*streams):
            out += [i] if isinstance(i, Skip) else [i, j]
        return out

    def oreg(self, cls, k):
        return 112 + 8 * cls + 4 * k

    def phase1(self):
        o = self.opt
        main, pos = [], {}
        for s in range(20):
            for n in range(6):
                for q in ((1, 0) if o['snake'] and n & 1 else (0, 1)):
                    d = V(FACC + 8 * n + 4 * q, 4)
                    main.append(mfma(d, V(WF + 4 * n, 4), X(s, q), d if s else 0))
                if n < 2:
                    d = V(CS + 4 * n, 4)
                    main.append(mfma(d, V(WF + 4 * n, 4), aONES, d if s else 0))
                pos['a', s, n] = len(main) - 1
        for g in range(40):
            hd, s = divmod(g, 20)
            a = ACC[hd]
            for n in range(4):
                for q in ((1, 0) if o['snake'] and n & 1 else (0, 1)):
                    d = V(a + 8 * n + 4 * q, 4)
                    main.append(mfma(d, V(WF + 4 * n, 4), X(s, q), d if s else 0))
                if n == 0:
                    d = V(a + 32, 4)
                    main.append(mfma(d, V(WF, 4), V(WF + 16, 4), d if s else 0))
                pos['b', g, n] = len(main) - 1
        w = Weave(main)
        first_b = pos['a', 19, 5] + 1
        stepb = lambda g: first_b + 9 * g
        bar = {}
        dma = {R: self.stage_dma(R) for R in range(o['npro'], 20)}
        for i in range(10):
            bar[i + 1] = pos['a', 2 * i + 1, 1]
        for k in range(9):
            bar[11 + k] = pos['b', 4 * k + 3, 1]
        rawb = [i for g_ in self.rawB for i in g_ if i.kind == 'dma']
        extra = {}
        for key, ops in (('packA', self.p0a), ('pub1', self.packA[1]), ('packB', rawb), ('pub2', self.packB[1]),
                         ('halo', self.halo_ops)):
            extra.setdefault(o[key], []).extend(ops)
        checks = {o['chk1']: 'f1', o['chk2']: 'f2', o['chk3']: 'f3'}
        assert len(checks) == 3
        for R, gb in bar.items():
            if R in checks:
                w.at(gb, self.check(checks[R]))
            w.at(gb, self.ring_barrier(R, extra.get(R, ())))
            w.at(gb, *self.stamp(f'B{R}'))
            if R in (o['pub1'], o['pub2']):
                w.at(gb, bstore(vTAG, vFA, SWS, 0, 0, 'sc1'))
            if R in (o['poll1'], o['poll2'], o['poll3']):
                w.at(gb, bload(vPOLL, vPA, SWS, 0, 0, 'sc1'))
        for s in range(20):
            start = bar[(s >> 1) + 1] if s & 1 else 0
            nxt = 14 * (s + 1)
            if s < 19:
                lim = len(main) if s & 1 else bar[(s >> 1) + 1]
                w.stream(self.x_reads(s + 1), max(start, pos['a', s, 0] - 2), nxt - 1)
                for n in range(6):
                    w.stream(self.w1_reads(s + 1, n), max(start, pos['a', s, n]), min(lim, pos['a', s + 1, n] - 4))
            else:
                for n in range(4):
                    w.stream([self.wq_read(0, n)], max(start, pos['a', s, n]), nxt - 1)
                w.stream([self.halo_read(0)], pos['a', s, 4], nxt - 1)
        for g in range(39):
            start = bar[11 + (g >> 2)] if g & 3 == 3 else 0
            lim = bar.get(11 + (g >> 2), len(main)) if g & 3 == 2 else len(main)
            w.stream([self.wq_read(g + 1, 0), self.halo_read(g + 1)], max(start, pos['b', g, 0]), stepb(g + 1) - 1)
            for n in range(1, 4):
                w.stream([self.wq_read(g + 1, n)], max(start, pos['b', g, n]), min(lim, pos['b', g + 1, n] - 3))
        nxt, plan = o['npro'], []
        for R, gb in [(0, 0)] + list(bar.items()):
            lim = min(R + 3, 9 if R < o['chk1'] else 19, nxt + o['catch'] - 1)
            todo = list(range(nxt, lim + 1))
            nxt = max(nxt, lim + 1)
            seq = []
            for r_ in todo:
                pre = self.stage_pre[r_]
                seq += [(x_, pre.get(k, [])) for k, x_ in enumerate(dma[r_])] + [(None, pre[len(dma[r_])])]
            if R == o['haloL']:
                seq += [(Group([x_[-1]]), [Group(x_[:2])] + x_[2:-1]) for x_ in self.halo_loads]
            if R == o['srow'] - 2:
                seq += [(x_, []) for x_ in self.srow]
            if R == o['rawA']:
                seq += [(Group([x_[-1]]), x_[:-1]) for x_ in self.rawA]
            if R == o['rawB']:
                seq += [(Group([x_[-1]]), x_[:-1]) for x_ in self.rawB]
            for name, pk in (('packA', self.packA), ('packB', self.packB)):
                if R == o[name]:
                    w.stream(pk[0], gb + 1, gb + 11)
                    k = min(len(seq), 4)
                    seq = seq[:k] + [(x_, []) for x_ in pk[1]] + seq[k:]
            if seq:
                plan.append((seq, gb + (1 if len(seq) > 3 else 13), bar[R + 1]))
        annotate([x for seq, _, _ in plan for g_, pre in seq for x in list(pre) + ([g_] if g_ else [])])
        for seq, a_, b_ in plan:
            self.place_mem(w, seq, a_, b_)
        assert o['rawA'] < o['packA'] and 1 <= o['packA'] < o['pub1'] < o['pub2'] <= 14 and o['rawB'] < o['packB'] < o['pub2'] and o['packB'] <= 9
        assert o['poll1'] < o['chk1'] <= 9 and o['chk1'] < o['poll2'] < o['chk2'] < o['poll3'] < o['chk3'] <= 20
        assert o['haloL'] < o['halo'] <= 8 and o['statL'] <= 8
        if self.stats:
            assert o['srow'] - 2 < o['statC'] < o['pub1']
            w.stream(self.stats, bar[o['statC']] + 1, bar[o['pub1']])
        w.stream(self.f2_pub, bar[o['pub1']] + 1, bar[o['pub1']] + 12)
        w.stream(self.ones, bar[o['halo']] + 1, bar[o['halo'] + 1])
        w.spread(self.stat_loads(), bar[o['statL']] + 1, bar[o['statL']] + 8)
        w.stream(self.check_stats(), bar[10] + 1, first_b)
        tp = V(WF + 20)
        assert o['poll2'] >= 11
        w.stream(self.ff_pre() + self.poll_addr(sC, F2, 7, tp, 31), first_b + 4, bar[11])
        wl = [x_ for i in range(7) for x_ in self.w_loads(i)]
        w.spread(wl, bar[o['chk2']] + 2, stepb(o['w_end']))
        g = w.stream(self.ff_post(), bar[11] + 1, stepb(o['ff_end']))
        g = w.stream(self.late_addresses() + self.flag_addr(F3), max(g + 1, bar[o['pub2']] + 1), stepb(20) + 3)
        assert stepb(o['f3_step']) > g
        w.at(stepb(o['f3_step']), Group([wait(vm=self.h_stores), bstore(vTAG, vFA, SWS, 0, 0, 'sc1')]))
        w.stream(self.poll_addr(sTB, F3, 7, tp, 31), max(bar[o['chk2']] + 1, g + 1), bar[o['poll3']])
        if o['chk3'] < 20:
            nA = o['nA_p1b']
            for i in range(nA):
                lo = bar[o['chk3']] + 2 + (stepb(40) - bar[o['chk3']] - 2) * i // nA
                assert lo >= stepb(20 + 2 * i + 2)
                w.spread(self.a_loads(i), lo, bar[o['chk3']] + 2 + (stepb(40) - bar[o['chk3']] - 2) * (i + 1) // nA)
        pre, mul = self.qkv_pre(0, False)
        g = w.stream(pre, stepb(20) + 5)
        g = w.stream(mul[:12], g + 1)
        w.at(g + 1, Group([wait(lgkm=self.qkv_pub), barrier()]))
        g = w.stream(mul[12:] + self.qkv_post(0, False), g + 1, stepb(o['kv_end']))
        g = w.stream([Skip(3)] + [Group([wait(lgkm=self.kv_writes), barrier()])], g)
        w.stream(self.attention(0), g, len(main))
        self.ovf = (w.overflow(0, first_b), w.overflow(first_b, stepb(20)), w.overflow(stepb(20)))
        pro = self.x_reads(0) + [r for n in range(6) for r in self.w1_reads(0, n)]
        return pro + w.flat()

    @staticmethod
    def sprinkle(seq, extra, every, start=0):
        out, n, extra = [], -start, list(extra)
        seq = tie(seq)
        annotate(seq)
        annotate(extra)
        for i in seq:
            out.append(i)
            if isinstance(i, Skip):
                continue
            n += 1
            if extra and n >= every:
                out.append(extra.pop(0))
                n = 0
        return out + extra

    def tail1(self):
        o = self.opt
        p = self.stamp('gemm1')
        pre, mul = self.qkv_pre(1, True)
        late = o['chk3'] == 20
        head = pre + mul + ([self.check('f3')] if late else []) + [Group([wait(lgkm=self.qkv_pub), barrier()])]
        seq = self.qkv_post(1, True) + [Group([wait(lgkm=self.kv_writes), barrier()])] + self.attention(1)
        al = [x_ for i in range(0 if late else o['nA_p1b'], o['nA_att']) for x_ in self.a_loads(i)]
        p += head + self.sprinkle(seq, al, o['att_every']) if late else self.sprinkle(head + seq, al, o['att_every'])
        self.o_stores = [bstore(V(self.oreg(c, 0), 4), vL16, SWS, sOA, c * 1024, 'sc1') for c in range(2)]
        p += self.o_stores
        o0, o1 = self.oreg(0, 1), self.oreg(1, 1)
        p += [valu('v_cndmask_b32', V(o0 + r), V(o1 + r), V(o0 + r), sLO16) for r in range(4)]
        ob = bstore(V(o0, 4), vOB, SWS, sOB, 0, 'sc1')
        p.append(ob)
        self.o_stores.append(ob)
        p += self.flag_addr(F4) + self.poll_addr(sTB, F4, 7, V(T + 1), 31)
        return p + self.stamp('attn')

    def phase2(self):
        o = self.opt
        t = [V(136 + n) for n in range(60)]
        main = []
        tile = lambda n, k: V(P2ACC + 16 * n + 4 * k, 4)
        for i in range(15):
            for n in range(5):
                for k in ((3, 2, 1, 0) if o['snake'] and n & 1 else (0, 1, 2, 3)):
                    main.append(mfma(tile(n, k), wslot(i, n), aslot(i, k), tile(n, k) if i else 0))
        for n in range(5):
            for i in (15, 16):
                for k in range(4):
                    main.append(mfma(tile(n, k), wslot(i, n), aslot(i, k), tile(n, k)))
        w = Weave(main)
        pre = [salu('s_mul_i32', sT[1], sTB, 64 * 1280), salu('s_mul_i32', sT[2], sC, 160), salu('s_add_u32', sT[3], sT[1], sT[2])]
        vO, vRd = t[12:17], t[17:22]
        for r in range(5):
            pre += [valu('v_add_u32', t[6], 256 * r, 'v0')] + self.divc(t[7], t[6], 20, 1279)
            pre += [valu('v_mul_u32_u24', t[8], 20, t[7]), valu('v_sub_u32', t[8], t[6], t[8]),
                    valu('v_mul_u32_u24', vO[r], 1280, t[7]), valu('v_lshl_add_u32', vO[r], t[8], 3, vO[r]),
                    bload(A(aRES + 2 * r, 2), vO[r], SX, sT[3]),
                    valu('v_and_b32', t[6], 1, t[7]), valu('v_lshlrev_b32', t[6], 4, t[6]),
                    valu('v_and_b32', vRd[r], 32, t[7]), valu('v_add_u32', t[6], t[6], vRd[r]),
                    valu('v_bfe_u32', vRd[r], t[7], 1, 4), valu('v_add_u32', t[6], t[6], vRd[r]),
                    valu('v_and_b32', t[7], 0x30, t[6]), valu('v_mul_u32_u24', t[6], REDR, t[6]),
                    valu('v_lshl_add_u32', t[6], t[7], 2, t[6]), valu('v_lshl_add_u32', vRd[r], t[8], 4, t[6])]
        vRw = t[10]
        pre += [valu('v_and_b32', t[6], 15, vL), valu('v_mul_u32_u24', t[6], REDR, t[6]), valu('v_lshrrev_b32', t[7], 4, vL),
                valu('v_lshl_add_u32', t[6], t[7], 4, t[6]), salu('s_mul_i32', sT[1], sW, REDW),
                valu('v_add_u32', vRw, sT[1], t[6])]
        for i in range(15):
            w.at(20 * i, *self.stamp(f'S{i}'))
        w.at(20 * o['f4_step'], Group([wait(vm=self.o_stores), bstore(vTAG, vFA, SWS, 0, 0, 'sc1')]))
        w.at(20 * o['poll4'] + 1, bload(vPOLL, vPA, SWS, 0, 0, 'sc1'))
        chk = 20 * o['chk4'] + 19
        w.at(chk, self.check('f4'), barrier())
        pend = [('W', i) for i in range(7, 17)] + [('A', i) for i in range(o['nA_att'], 17)]
        total = sum(5 if k == 'W' else 4 for k, _ in pend)
        pace, pos_ = (o['ld_end'] - 3) / total, 3.0
        first_use = lambda i: 20 * min(i, 15)
        while pend:
            def earliest(x):
                k, i = x
                if k == 'W':
                    return 20 * (i - 7) + 3
                return max(20 * (i - 9) if i >= 10 else 0, chk + 1 if i >= 12 else 0)
            ok = [x for x in pend if earliest(x) <= pos_ + 2]
            x = min(ok, key=lambda x: (x[1], x[0] == 'A')) if ok else min(pend, key=earliest)
            pend.remove(x)
            pos_ = max(pos_, earliest(x))
            for n, ld in enumerate(self.w_loads(x[1]) if x[0] == 'W' else self.a_loads(x[1])):
                g = int(pos_)
                if x[0] == 'W':
                    g = max(g, 20 * (x[1] - 7) + 4 * n + 3)
                assert g < first_use(x[1]) - 4
                w.at(g, ld)
                left = sum(5 if k == 'W' else 4 for k, _ in pend) + (5 if x[0] == 'W' else 4) - n
                pos_ = max(pos_, g) + max(1.0, min(pace, (o['ld_end'] - g) / left))
        w.stream(pre, o['pre2'], 20 * 12)
        X0, p = 160, []
        for r in range(5):
            for k in range(2):
                p.append(valu('v_accvgpr_read_b32', V(X0 + 4 * r + 2 * k + 1), A(aRES + 2 * r + k)))
            for k in range(2):
                p += [valu('v_lshlrev_b32', V(X0 + 4 * r + 2 * k), 16, V(X0 + 4 * r + 2 * k + 1)),
                      valu('v_and_b32', V(X0 + 4 * r + 2 * k + 1), 0xffff0000, V(X0 + 4 * r + 2 * k + 1))]
        w.stream(p, 20 * 12, 20 * 15)
        ws_ = []
        for n in range(5):
            for k in range(4):
                ws_.append(ds_write('ds_write_b128', vRw, V(P2ACC + 16 * n + 4 * k, 4), RED + k * REDT + 64 * n))
        for m in range(16):
            w.at(300 + 8 * (m >> 2) + 8 + 2 * (m & 3), ws_[m])
        p = w.flat() + self.stamp('gemm2')
        p += ws_[16:] + [Group([wait(all_lgkm=True), barrier()])] + self.stamp('redbar')
        R0 = 40
        for r in range(5):
            for wv in range(4):
                p.append(ds_read('ds_read_b128', V(R0 + 16 * r + 4 * wv, 4), vRd[r], RED + wv * REDW))
        pk = lambda op, d, a_, b_: I(f"{op} {d}, {a_}, {b_}", 'valu', regs(a_) + regs(b_), regs(d))
        for r in range(5):
            b = R0 + 16 * r
            for k in range(2):
                p.append(pk('v_pk_add_f32', V(b + 2 * k, 2), V(b + 2 * k, 2), V(b + 4 + 2 * k, 2)))
            for k in range(2):
                p.append(pk('v_pk_add_f32', V(b + 8 + 2 * k, 2), V(b + 8 + 2 * k, 2), V(b + 12 + 2 * k, 2)))
            for k in range(2):
                p.append(pk('v_pk_add_f32', V(b + 2 * k, 2), V(b + 2 * k, 2), V(X0 + 4 * r + 2 * k, 2)))
            for k in range(2):
                p.append(pk('v_pk_add_f32', V(b + 2 * k, 2), V(b + 2 * k, 2), V(b + 8 + 2 * k, 2)))
            for k in range(2):
                p.append(valu('v_cvt_pk_bf16_f32', V(b + 4 + k), V(b + 2 * k), V(b + 2 * k + 1)))
            p.append(bstore(V(b + 4, 2), vO[r], SOUT, sT[3], 0, ('', 'sc1', 'nt', 'sc0 sc1')[o['outfl']]))
        p += [valu('v_mov_b32', t[6], OOB), valu('v_or_b32', t[7], 's2', 'v0'), valu('v_cmp_ne_u32', 'vcc', 0, t[7]),
              valu('v_cndmask_b32', t[6], 0, t[6], 'vcc'), bstore(vTAG, t[6], SWS, 0, 0, 'sc1')]
        return p

    def stamp_out(self):
        if not self.stamps:
            return []
        p = self.stamp('end')
        p += [raw("s_memrealtime s[82:83]", wr=['s82', 's83']), raw("s_waitcnt lgkmcnt(0)"),
              raw(f"v_writelane_b32 {vJUNK}, s82, 63", rd=['s82'], wr=[vJUNK], kind='valu'),
              raw(f"v_writelane_b32 {vJUNK}, s84, 62", rd=['s84'], wr=[vJUNK], kind='valu'),
              salu('s_lshl2_add_u32', sT[1], 's2', sW), salu('s_lshl_b32', sT[1], sT[1], 8), salu('s_add_u32', sT[1], sT[1], STAMP),
              valu('v_lshlrev_b32', V(140), 2, vL), bstore(vJUNK, V(140), SWS, sT[1])]
        if self.opt.get('dbg'):
            p += [raw(f"v_readlane_b32 s82, {vJUNK}, 0", rd=[vJUNK], wr=['s82'], kind='rdlane'),
                  raw(f"v_readlane_b32 s83, {vJUNK}, 61", rd=[vJUNK], wr=['s83'], kind='rdlane'),
                  raw(f"v_readlane_b32 s85, {vJUNK}, 63", rd=[vJUNK], wr=['s85'], kind='rdlane'),
                  valu('v_subrev_u32', V(141), 's82', vJUNK),
                  salu('s_sub_u32', 's85', 's85', 's83'),
                  raw("v_writelane_b32 v141, s85, 12", rd=['s85'], wr=['v141'], kind='valu'),
                  raw("v_writelane_b32 v141, s84, 13", rd=['s84'], wr=['v141'], kind='valu'),
                  salu('s_mov_b32', 's4', 's98'), salu('s_mov_b32', 's5', 's99'), salu('s_mov_b32', 's6', 64),
                  salu('s_lshl2_add_u32', sT[1], 's2', sW),
                  salu('s_cmp_eq_u32', sT[1], self.opt['dbg']), salu('s_cselect_b32', sT[1], 0, 256),
                  bstore(V(141), V(140), SX, sT[1])]
        return p

    def build(self):
        self.stage_ops = {}
        self.stage_pre = {}
        prog = self.startup() + self.phase1() + self.tail1() + self.phase2() + self.stamp_out()
        abl = self.opt.get('abl', 0)
        if abl:
            prog = flatten(prog)
            nb, keep = 0, []
            for i in prog:
                nb += i.kind == 'barrier'
                flag = i.kind == 'vst' and 'dwordx4' not in i.text
                drop = (abl & 1 and i.kind == 'dma' and nb >= 2) or (abl & 2 and i.kind == 'vst' and not flag) or \
                       (abl & 4 and i.kind == 'vld' and nb >= 2 and 'dwordx4' in i.text) or \
                       (abl & 8 and i.kind == 'mfma') or (abl & 16 and i.kind == 'dsr') or \
                       (abl & 32 and i.kind in VALUS and 2 <= nb <= 21 and 'v_cmp_ne_u32 vcc, s37' not in i.text
                        and i.wr and i.wr[0] not in ('v24', 'v25', 'v27', 's37', 'vcc', 'v144', 'v194', 'v195') and int(i.wr[0][1:]) >= 32)
                if not drop:
                    i.meta.pop('exp', None)
                    keep.append(i)
            prog = keep
        prog = finalize(prog, not abl)
        self.prog = prog
        body = "\n".join(("" if i.kind == 'label' else "    ") + i.text for i in prog)
        return f"""; Fused LayerNorm + sliding-window attention + ReLU FFN + residual, one workgroup per CU.
; @launch grid=(256,1,1) block=(256,1,1) lds={LDS_SIZE}
.amdgcn_target "amdgcn-amd-amdhsa--gfx950"
.text
.globl {NAME}
.p2align 8
.type {NAME},@function
{NAME}:
{body}
L_end:
    s_endpgm
{"".join(self.slow)}L_last:
.section .rodata,"a"
.p2align 6
.amdhsa_kernel {NAME}
  .amdhsa_next_free_vgpr 512
  .amdhsa_next_free_sgpr 102
  .amdhsa_accum_offset 256
  .amdhsa_group_segment_fixed_size 0
  .amdhsa_kernarg_size 72
  .amdhsa_user_sgpr_count 2
  .amdhsa_user_sgpr_kernarg_segment_ptr 1
  .amdhsa_system_sgpr_workgroup_id_x 1
.end_amdhsa_kernel
"""


if __name__ == "__main__":
    out = sys.argv[1]
    opts = dict(kv.split('=') for kv in sys.argv[2:])
    opts = {k: int(v) for k, v in opts.items()}
    g = Gen(stamps=opts.pop('stamps', 0), **opts)
    open(out, "w").write(g.build())
    print(stats(g.prog), g.ovf)
```

```python
import functools
import struct
import sys
from fw import *

NAME = "parallel_sum__sliding_local_dilated__dense_activation_relu__prompt_kernel"

F1, F2, F3, F4 = 0x1000, 0x1400, 0x1800, 0x2800
ST = 0x3800
WQ = 0x10000
WQJ = 163840
W2P = 0x290000
W2C = 348160
ACT = 0x540000
ACTB = 278528
STAMP = 0xE00000
WS_SIZE = 0x1000000
OOB = 0x7ffffff0

HALO = 0
XR = 20480
W1R = 86016
P0A = 135168
P0B = 147456
CSF = 159744
CSQ = CSF + 512
ZERO = CSF + 1024
DUMMY = CSF + 2048
KV = W1R
KVR, KVC, KVH = 136, 9792, 19584
RED, REDR, REDT, REDW = 0, 336, 5440, 21760
LDS_SIZE = 163840

SX, SWQKV, SWO, SW1, SW2, SOUT, SWS = (S(n, 4) for n in (4, 8, 12, 16, 20, 24, 28))
sW, sB, sJ, sTB, sC, sTAG = (S(n) for n in range(32, 38))
sXb, sXl, sW1, sW1l, sWQ, sAP = (S(n) for n in range(38, 44))
sHS = [S(44), S(45), S(46)]
sOA, sOB, sAh, sAo, sAb, sWh, sWo, sWb = (S(n) for n in range(47, 55))
sT = [S(n) for n in range(55, 68)]
sROT, sCNT = S(68), S(69)
sROW0 = S(70, 2)
sU1, sU2, sU3 = S(72, 2), S(74, 2), S(76, 2)
sSCL = S(78)
sCMP = S(81)
sLO16 = S(0, 2)
sLA, sLW = S(79), S(80)
sKP, sXs, sW1b, sG, sWQb, sR, sR2 = (S(n) for n in range(85, 92))
STAMP0 = 82

vL, vL16, vL16b = V(1), V(2), V(3)
vXa = [V(4), V(5), V(28), V(29)]
vXr = [V(6), V(7)]
vW1a = [V(8), V(9), V(10)]
vW1r = [V(n) for n in range(11, 17)]
vHr = [V(17), V(18)]
vWr = [V(n) for n in range(19, 23)]
vPOLL, vPA, vFA, vJUNK, vTAG = V(23), V(24), V(25), V(26), V(27)
vMEAN = [V(28), V(29)]
vRSTD = [V(30), V(31)]
vKVw = [V(n) for n in range(8, 12)]
vHKw, vKr, vK4, vVr, vV4 = V(12), V(13), V(14), V(15), V(16)
vQr, vQ4, vCQr, vCQw = V(4), V(5), V(6), V(7)
MASK = 32
WF = 40
FACC, RS, SS, CS = 64, 112, 120, 128
vMEANH, vRSTDH, vOB = V(61), V(62), V(63)
vSA, vSH = V(126), V(127)
ACC = [136, 64]
OKEEP = 128
T = 172
WSLOT = [A(160 + 20 * i, 1) for i in range(4)]
aONES = A(240, 4)
aRES = 244
P2ACC = 40
P4 = 248


def f2u(x):
    return struct.unpack('<I', struct.pack('<f', x))[0]


def X(s, p):
    return A(8 * s + 4 * p, 4)


def wslot(i, n):
    i %= 7
    return A(160 + 20 * i + 4 * n, 4) if i < 4 else V(196 + 20 * (i - 4) + 4 * n, 4)


def aslot(i, t):
    return A(16 * (i % 10) + 4 * t, 4)


LIGHT = ('start', 'B0', 'B5', 'B10', 'B15', 'gemm1', 'attn', 'S5', 'S11', 'gemm2', 'end')


FL = ('', 'nt', 'sc1', 'sc0 sc1', 'sc0 sc1 nt')


class Gen:
    def __init__(self, stamps=False, **opt):
        self.stamps = stamps
        self.nstamp = 0
        self.stamp_names = []
        self.slow = []
        self.opt = dict(rot=4, rot2=0, npro=2, catch=2, pro_every=99, rawA=-1, haloL=0, packA=1, pub1=3, halo=4, statL=7, srow=1, statC=1, poll1=6, chk1=8,
                        rawB=3, packB=7, pub2=10, poll2=13, chk2=15, w_end=35, ff_end=15, f3_step=22, poll3=18, chk3=19,
                        kv_end=30, pre2=45, snake=1, kmaj=1, touch=1, tlb=0, touch2=0, fstride=4, padw=1, flR=0, flH=0, fast=4, pro_start=0, flA=1, flB=1, flX=0, flS=2, outfl=0, nA_p1b=2, nA_att=10, att_every=8, ld_end=300, f4_step=4, poll4=7, chk4=9)
        self.opt.update(opt)

    def stamp(self, name):
        if not self.stamps or (self.stamps == 1 and name not in LIGHT):
            return []
        k = self.nstamp
        assert k < 61
        self.nstamp += 1
        self.stamp_names.append(name)
        rt = self.stamps == 1
        return [Group([raw("s_memtime s[82:83]", wr=['s82', 's83'])] +
                      ([raw("s_memrealtime s[100:101]", wr=['s100', 's101'])] if rt else []) +
                      [raw("s_waitcnt lgkmcnt(0)", drains_lgkm=True),
                       raw(f"v_writelane_b32 {vJUNK}, s82, {k}", rd=['s82'], kind='salu')] +
                      ([raw(f"v_writelane_b32 {vJUNK}, s100, {32 + k}", rd=['s100'], kind='salu')] if rt else []))]

    def check(self, name):
        if name in ('f1', 'f2'):
            dst = V(P4, 4)
            test = [valu('v_xor_b32', V(P4 + r), sCMP, V(P4 + r)) for r in range(4)]
            test += [valu('v_or3_b32', V(P4), V(P4), V(P4 + 1), V(P4 + 2)), valu('v_or_b32', V(P4), V(P4), V(P4 + 3)),
                     valu('v_cmp_ne_u32', 'vcc', 0, V(P4))]
        else:
            dst, test = vPOLL, [valu('v_cmp_ne_u32', 'vcc', sCMP, vPOLL)]
        body = "\n".join("    " + i.text for i in test)
        self.slow.append(f"""L_slow_{name}:
{f"    s_add_u32 s84, s84, {1 << (4 * len(self.slow))}" if self.stamps else ""}
    s_mov_b32 {sCNT}, 0x8000
L_spin_{name}:
    s_sleep 2
    {bload(dst, vPA, SWS, 0, 0, 'sc1').text}
    s_waitcnt vmcnt(0)
{body}
    s_sub_u32 {sCNT}, {sCNT}, 1
    s_cbranch_scc1 L_ok_{name}
    s_cbranch_vccnz L_spin_{name}
    s_branch L_ok_{name}
""")
        return Group(test + [raw(f"s_cbranch_vccnz L_slow_{name}", rd=['vcc'], kind='branch'),
                             raw(f"L_ok_{name}:", kind='label', states=0)])

    def divc(self, dst, src, d, maxv):
        for sh in range(8, 24):
            m = -(-(1 << sh) // d)
            if m * maxv < (1 << 32) and m < (1 << 24) and all((v * m) >> sh == v // d for v in range(maxv + 1)):
                return [valu('v_mul_u32_u24', dst, m, src), valu('v_lshrrev_b32', dst, sh, dst)]
        raise ValueError

    def rstats(self, vs, vq, dst, t):
        inv = f2u(1.0 / 640.0)
        return [valu('v_mul_f32', vs, inv, vs),
                valu('v_mul_f32', t, inv, vq),
                valu('v_fma_f32', t, '-' + vs, vs, t),
                valu('v_max_f32', t, 0, t),
                valu('v_cvt_pk_bf16_f32', t, t, t),
                valu('v_lshlrev_b32', t, 16, t),
                valu('v_add_f32', t, f2u(1e-5), t),
                valu('v_cvt_pk_bf16_f32', t, t, t),
                valu('v_lshlrev_b32', t, 16, t),
                valu('v_sqrt_f32', t, t),
                valu('v_cvt_pk_bf16_f32', dst, vs, t)]

    def stat_loads(self):
        return [bload(V(RS, 4), vSA, SWS, 0, 0, 'sc1'), bload(V(RS + 4, 2), vSH, SWS, 0, 0, 'sc1')]

    def check_stats(self):
        t = V(RS + 6)
        test = [valu('v_xor_b32', t, vTAG, V(RS + 1)), valu('v_xor_b32', V(RS + 7), vTAG, V(RS + 3)),
                valu('v_xor_b32', V(RS + 5), vTAG, V(RS + 5)), valu('v_or3_b32', t, t, V(RS + 7), V(RS + 5)),
                valu('v_cmp_ne_u32', 'vcc', 0, t)]
        body = "\n".join("    " + i.text for i in self.stat_loads()) + "\n    s_waitcnt vmcnt(0)\n" + \
            "\n".join("    " + i.text for i in test)
        self.slow.append(f"""L_slow_st:
{f"    s_add_u32 s84, s84, {1 << (4 * len(self.slow))}" if self.stamps else ""}
    s_mov_b32 {sCNT}, 0x8000
L_spin_st:
    s_sleep 2
{body}
    s_sub_u32 {sCNT}, {sCNT}, 1
    s_cbranch_scc1 L_ok_st
    s_cbranch_vccnz L_spin_st
    s_branch L_ok_st
""")
        return test[:-1] + [Group([test[-1], raw("s_cbranch_vccnz L_slow_st", rd=['vcc'], kind='branch'),
                                   raw("L_ok_st:", kind='label', states=0)])]

    def stage_dma(self, R):
        slot, out = R & 3, []
        if R < 10:
            for k in range(4):
                out.append(Group([bdma(vXa[k], SX, sXs, k * 1024, FL[self.opt['flX']])]))
            for m in range(3):
                out.append(Group([bdma(vW1a[m], SW1, sW1, m * 1024, FL[self.opt['flX']])]))
            self.stage_pre[R] = {0: [salu('s_add_u32', 'm0', sXl, slot * 4096)],
                                 4: [salu('s_add_u32', 'm0', sW1l, slot * 12288)],
                                 7: [salu('s_add_u32', sKP, sKP, 1),
                                     Group([salu('s_cmp_eq_u32', sKP, 10), salu('s_cselect_b32', sKP, 0, sKP)]),
                                     salu('s_lshl_b32', sXs, sKP, 7), salu('s_add_u32', sXs, sXs, sXb),
                                     salu('s_mul_i32', sW1, sKP, 64 * 3072), salu('s_add_u32', sW1, sW1, sW1b)] if R < 9 else []}
        else:
            for m in range(4):
                out.append(Group([bdma(vL16, SWS, sWQ, m * 1024, 'sc1')]))
            self.stage_pre[R] = {0: [salu('s_add_u32', 'm0', sXl, slot * 4096)],
                                 4: [salu('s_add_u32', sG, sG, 4),
                                     Group([salu('s_cmp_ge_u32', sG, 20), salu('s_cselect_b32', sWQ, 20, 0)]),
                                     salu('s_sub_u32', sG, sG, sWQ), salu('s_lshl_b32', sWQ, sG, 12),
                                     salu('s_add_u32', sWQ, sWQ, sWQb)] +
                                    ([salu('s_add_u32', sWQ, sWQ, 81920)] if R >= 14 else []) if R < 19 else []}
        self.stage_ops[R] = [i for g in out for i in g if i.kind == 'dma']
        return out

    def inline_stage(self, R):
        out, pre = self.stage_dma(R), self.stage_pre[R]
        for k, ins in pre.items():
            ins = flatten(ins)
            if k < len(out):
                out[k][:0] = ins
            else:
                out[-1].extend(ins)
        return out

    def place_mem(self, w, seq, start, end):
        n = sum(1 for g, _ in seq if g)
        first = start + len(seq[0][1])
        last = end - (min(len(seq[-1][1]), 3) if seq[-1][0] is None else 0) - 1
        prev, k, carry = start - 1, 0, []
        for g, pre in seq + [(None, None)]:
            if pre is not None:
                carry += pre
            if g is None and pre is not None:
                continue
            if g is not None:
                lo = min(max(prev + 1, first + (last - first) * k // n), end - 1)
                hi = min(max(lo + 1, first + (last - first) * (k + 1) // n - 1), end)
                at = min(range(lo, hi), key=lambda x: (max(gcost(w.v[x] + vcost(g), w.s[x] + scost(g)) - w.cap, 0), x))
                k += 1
            else:
                at = end
            room = at - prev - 1
            if room <= 0:
                if g is not None:
                    w.at(at, Group(flatten(carry) + flatten([g])))
                elif carry:
                    w.at(prev, Group(flatten(carry)))
            else:
                for j, c in enumerate(carry):
                    w.at(prev + 1 + (j if len(carry) <= room else j * room // len(carry)), c)
                if g is not None:
                    w.at(at, g)
            carry, prev = [], at

    def ring_barrier(self, R, extra_vm=()):
        return Group([wait(vm=self.stage_ops[R] + list(extra_vm), all_lgkm=True), barrier()])

    def p2_steps(self):
        return [(sAh, sWh, i) for i in range(12)] + [(sAo, sWo, i) for i in range(4)] + [(sAb, sWb, 0)]

    def step_base(self, dst, base, k, stride, i):
        m = self.opt['rot2']
        if i == 16 or not m or (m == 12 and i >= 12):
            return [salu('s_add_u32', dst, base, k * stride)]
        if m in (2, 4):
            return [salu('s_add_u32', dst, sR2, k & (m - 1)), salu('s_and_b32', dst, dst, m - 1), salu('s_mul_i32', dst, dst, stride),
                    salu('s_add_u32', dst, dst, base)] + ([salu('s_add_u32', dst, dst, (k & ~(m - 1)) * stride)] if k >= m else [])
        return [salu('s_cmp_ge_u32', sR2, 12 - k), salu('s_cselect_b32', dst, (k - 12) & 0xffffffff, k),
                salu('s_add_u32', dst, dst, sR2), salu('s_mul_i32', dst, dst, stride), salu('s_add_u32', dst, dst, base)]

    @functools.lru_cache(None)
    def w_loads(self, i):
        _, sw, k = self.p2_steps()[i]
        out = []
        for n in range(5):
            g = [bload(wslot(i, n), vL16 if n < 4 else vL16b, SWS, sLW, (n & 3) * 1024, 'sc1')]
            if n == 0:
                g[:0] = self.step_base(sLW, sw, k, 5120, i)
            out.append(Group(g))
        return out

    @functools.lru_cache(None)
    def a_loads(self, i):
        sa, _, k = self.p2_steps()[i]
        out = []
        for t in range(4):
            g = [bload(aslot(i, t), vL16, SWS, sLA, t * 1024, 'sc1')]
            if t == 0:
                g[:0] = self.step_base(sLA, sa, k, 4096, i)
            out.append(Group(g))
        return out

    def startup(self):
        t = [V(n) for n in range(136, 256)]
        vQ, vZ, vOOB, vU, vHu, vR, vCC, vPs = t[5], t[7], t[14], t[15], t[16], t[17], t[18], t[19]
        rdA, soA = [t[20], t[21], t[22]], [sT[8], sT[9], sT[10]]
        rdB, stB, ldB = [t[23], t[24], t[25]], [t[26], t[27], t[28]], [t[29], t[30], t[31]]
        sW2c, sPB = sT[11], sT[12]
        H, PK = 200, 176
        p = []
        e = p.append
        x = p.extend
        e(salu('s_cmp_ge_u32', 's2', 256))
        e(raw("s_cbranch_scc1 L_end", rd=['scc'], kind='branch'))
        e(salu('s_getpc_b64', S(56, 2)))
        e(raw("L_pc:", kind='label', states=0))
        for r, off in ((4, 0), (16, 32), (8, 8), (28, 64), (12, 16), (20, 40), (24, 48)):
            e(raw(f"s_load_dwordx2 {S(r, 2)}, s[0:1], {off}", wr=regs(S(r, 2))))
        if self.opt.get('dbg'):
            e(raw("s_load_dwordx2 s[98:99], s[0:1], 56", wr=['s98', 's99']))
        e(salu('s_lshr_b32', sT[0], 's2', 3))
        e(salu('s_lshl_b32', sT[4], sT[0], 4))
        e(valu('v_lshrrev_b32', t[0], 6, 'v0'))
        e(valu('v_and_b32', t[1], 3, 'v0'))
        e(valu('v_lshl_add_u32', t[1], t[0], 2, t[1]))
        e(valu('v_add_lshl_u32', t[1], sT[4], t[1], 7))
        e(valu('v_min_u32', t[1], 'L_last-L_pc-4', t[1]))
        e(valu('v_mov_b32', t[3], 's57'))
        e(I(f"v_add_co_u32 {t[2]}, vcc, s56, {t[1]}", 'valu', ['s56', t[1]], [t[2], 'vcc']))
        e(valu('v_readfirstlane_b32', sW, t[0]))
        e(valu('v_and_b32', vL, 63, 'v0'))
        e(I(f"v_addc_co_u32 {t[3]}, vcc, 0, {t[3]}, vcc", 'valu', [t[3], 'vcc'], [t[3], 'vcc']))
        e(I(f"global_load_dword v255, {V(138, 2)}, off", 'vld', [t[2], t[3]], ['v255']))
        x(self.stamp('start'))
        if self.stamps:
            e(salu('s_mov_b32', 's84', 0))
            e(raw("s_memrealtime s[82:83]", wr=['s82', 's83']))
            e(raw("s_waitcnt lgkmcnt(0)"))
            e(raw(f"v_writelane_b32 {vJUNK}, s82, 61", rd=['s82'], kind='salu'))
        e(salu('s_and_b32', sT[3], 's2', 7))
        e(salu('s_lshr_b32', sT[4], sT[3], 1))
        e(salu('s_and_b32', sT[3], sT[3], 1))
        e(salu('s_and_b32', sB, sT[0], 3))
        e(salu('s_lshl2_add_u32', sB, sT[4], sB))
        e(valu('v_lshrrev_b32', t[4], 3, vL))
        e(valu('v_lshrrev_b32', vQ, 4, vL))
        e(valu('v_and_b32', t[6], 7, vL))
        e(valu('v_xor_b32', t[6], t[6], vQ))
        e(valu('v_lshlrev_b32', t[6], 4, t[6]))
        e(valu('v_mul_u32_u24', vXa[0], 2560, t[4]))
        e(valu('v_add_u32', vXa[0], vXa[0], t[6]))
        e(valu('v_xor_b32', vXa[2], 64, vXa[0]))
        e(valu('v_add_u32', vXa[1], 1280 - 1024, vXa[0]))
        e(valu('v_add_u32', vXa[3], 20480 + 1280 - 3072, vXa[2]))
        e(valu('v_add_u32', vXa[2], 20480 - 2048, vXa[2]))
        rot = self.opt['rot']
        if rot == 1:
            e(salu('s_and_b32', sR, sT[0], 3))
            e(salu('s_mul_i32', sR, sR, 5))
            e(salu('s_lshr_b32', sR, sR, 1))
            e(salu('s_lshr_b32', sKP, sT[0], 2))
            e(salu('s_add_u32', sR, sR, sKP))
            e(salu('s_cmp_ge_u32', sR, 10))
            e(salu('s_cselect_b32', sKP, 10, 0))
            e(salu('s_sub_u32', sR, sR, sKP))
        elif rot == 2:
            e(salu('s_lshr_b32', sR, sT[0], 2))
            e(salu('s_xor_b32', sR, sR, sT[0]))
            e(salu('s_and_b32', sR, sR, 1))
            e(salu('s_mul_i32', sR, sR, 5))
        elif rot == 4:
            e(salu('s_lshr_b32', sR, sT[0], 2))
            e(salu('s_add_u32', sR, sR, sT[0]))
            e(salu('s_and_b32', sR, sR, 3))
            e(salu('s_mul_i32', sR, sR, 5))
            e(salu('s_lshr_b32', sR, sR, 1))
        elif rot in (3, 7, 8, 9):
            g_, step = {3: (3, 3), 7: (5, 2), 8: (4, 0), 9: (5, 2)}[rot]
            e(salu('s_lshr_b32', sR, sT[0], 2))
            e(salu('s_and_b32', sKP, sT[0], 3))
            e(salu('s_add_u32', sR, sR, sKP))
            if rot in (8, 9):
                e(salu('s_add_u32', sR, sR, sT[4]))
                e(salu('s_lshl1_add_u32', sR, sT[3], sR))
            e(salu('s_mul_i32', sKP, sR, -(-256 // g_)))
            e(salu('s_lshr_b32', sKP, sKP, 8))
            e(salu('s_mul_i32', sKP, sKP, g_))
            e(salu('s_sub_u32', sR, sR, sKP))
            if step:
                e(salu('s_mul_i32', sR, sR, step))
            else:
                e(salu('s_mul_i32', sR, sR, 5))
                e(salu('s_lshr_b32', sR, sR, 1))
        elif rot in (5, 6):
            e(salu('s_and_b32', sR, sT[0], 3))
            e(salu('s_mul_i32', sR, sR, 5))
            e(salu('s_lshr_b32', sR, sR, 1))
            if rot == 5:
                e(salu('s_lshr_b32', sKP, sT[0], 2))
            else:
                e(salu('s_lshr_b32', sKP, sT[0], 2))
                e(salu('s_and_b32', sKP, sKP, 3))
                e(salu('s_mul_i32', sKP, sKP, 5))
                e(salu('s_lshr_b32', sKP, sKP, 1))
            e(salu('s_add_u32', sR, sR, sKP))
            e(salu('s_mul_i32', sKP, sT[3], 5 if rot == 5 else 1))
            e(salu('s_add_u32', sR, sR, sKP))
            e(salu('s_add_u32', sR, sR, sT[4]))
            e(salu('s_mul_i32', sKP, sR, 26))
            e(salu('s_lshr_b32', sKP, sKP, 8))
            e(salu('s_mul_i32', sKP, sKP, 10))
            e(salu('s_sub_u32', sR, sR, sKP))
        else:
            e(salu('s_mov_b32', sR, 0))
        e(salu('s_mov_b32', sKP, sR))
        e(salu('s_lshl2_add_u32', sXb, sB, sW))
        e(salu('s_mul_i32', sXb, sXb, 32 * 1280))
        e(salu('s_lshl_b32', sXs, sKP, 7))
        e(salu('s_add_u32', sXs, sXs, sXb))
        e(salu('s_lshl_b32', sXl, sW, 14))
        e(salu('s_add_u32', sXl, sXl, XR))
        e(salu('s_mov_b32', S(6), 2621440))
        e(salu('s_mov_b32', S(7), 0x20000))
        npro = self.opt['npro']
        st = [self.inline_stage(R) for R in range(npro)]
        fast = self.opt['fast']
        if fast:
            e(raw("s_waitcnt lgkmcnt(0)", drains_lgkm=True))
            x(st[0][:fast])
        for r, size in ((16, 1966080),):
            e(salu('s_mov_b32', S(r + 2), size))
            e(salu('s_mov_b32', S(r + 3), 0x20000))
        e(salu('s_lshr_b32', sJ, sT[0], 2))
        e(salu('s_lshl3_add_u32', sJ, sT[3], sJ))
        e(salu('s_mul_i32', sW1b, sW, 16 * 3072))
        e(salu('s_mul_i32', sT[1], sJ, 192))
        e(salu('s_add_u32', sW1b, sW1b, sT[1]))
        e(salu('s_mul_i32', sW1, sKP, 64 * 3072))
        e(salu('s_add_u32', sW1, sW1, sW1b))
        e(salu('s_mul_i32', sW1l, sW, 3072))
        e(salu('s_add_u32', sW1l, sW1l, W1R))
        e(salu('s_mov_b32', S(30), WS_SIZE))
        e(salu('s_mov_b32', S(31), 0x20000))
        vSr, vSt, SR = V(232), V(233), 236
        e(valu('v_mov_b32', vZ, 0))
        e(valu('v_mov_b32', vOOB, OOB))
        e(salu('s_lshl2_add_u32', sT[1], sJ, sW))
        e(salu('s_lshl_b32', sT[1], sT[1], 1))
        e(salu('s_lshl_b32', sT[2], sB, 7))
        e(salu('s_add_u32', sT[1], sT[1], sT[2]))
        e(valu('v_lshrrev_b32', vSt, 5, vL))
        e(valu('v_add_u32', vSt, sT[1], vSt))
        e(valu('v_and_b32', t[8], 31, vL))
        e(valu('v_cmp_gt_u32', 'vcc', 16, t[8]))
        e(valu('v_mul_u32_u24', vSr, 1280, vSt))
        e(valu('v_lshl_add_u32', vSr, t[8], 4, vSr))
        e(valu('v_cndmask_b32', V(234), vOOB, vSr, 'vcc'))
        if self.opt['touch']:
            e(salu('s_lshl_b32', sT[1], 's2', 7))
            e(salu('s_add_u32', sT[1], sT[1], F1))
            e(valu('v_cmp_eq_u32', 'vcc', 1, 'v0'))
            e(valu('v_mov_b32', V(235), sT[1]))
            e(valu('v_cndmask_b32', V(235), 0, V(235), 'vcc'))
            if self.opt['tlb']:
                e(valu('v_subrev_u32', t[9], 8, 'v0'))
                e(valu('v_cmp_gt_u32', 'vcc', 7, t[9]))
                e(valu('v_lshlrev_b32', t[9], 21, t[9]))
                e(valu('v_cndmask_b32', V(235), V(235), t[9], 'vcc'))
        e(raw("s_waitcnt lgkmcnt(0)", drains_lgkm=True))
        x(self.stamp('karg'))
        srow = [bload(V(SR, 4), vSr, SX), bload(V(SR + 4, 4), vSr, SX, 0, 512), bload(V(SR + 8, 4), V(234), SX, 0, 1024),
                bload(vTAG, V(235) if self.opt['touch'] else vZ, SWS, 0, 0, 'sc1')]
        if self.opt['srow'] == 0:
            x(srow)

        def w1_addr(m):
            return [valu('v_add_u32', t[8], 64 * m, vL)] + self.divc(t[9], t[8], 12, 191) + [
                valu('v_mul_u32_u24', t[10], 12, t[9]), valu('v_sub_u32', t[8], t[8], t[10]),
                valu('v_lshrrev_b32', t[10], 2, t[9]), valu('v_and_b32', t[10], 2, t[10]),
                valu('v_xor_b32', t[8], t[8], t[10]), valu('v_mul_u32_u24', t[9], 3072, t[9]),
                valu('v_lshl_add_u32', vW1a[m], t[8], 4, t[9])] + (
                [valu('v_subrev_u32', vW1a[m], 1024 * m, vW1a[m])] if m else [])
        x(st[0][fast:2])
        x(w1_addr(0))
        x(st[0][max(fast, 2):3])
        x(w1_addr(1))
        x(st[0][max(fast, 3):4])
        x(self.stamp('st0x'))
        x(w1_addr(2))
        e(st[0][4])
        e(salu('s_and_b32', sTB, sT[0], 7))
        e(salu('s_lshl3_add_u32', sTB, sT[4], sTB))
        e(salu('s_lshr_b32', sC, sT[0], 3))
        e(salu('s_lshl2_add_u32', sC, sT[3], sC))
        for r, size in ((8, 2457600), (12, 819200), (20, 1966080), (24, 2621440)):
            e(salu('s_mov_b32', S(r + 2), size))
            e(salu('s_mov_b32', S(r + 3), 0x20000))
        e(st[0][5])
        e(st[0][6])
        x(self.stamp('st0w'))
        if self.opt['srow'] == 1:
            x(srow)
        self.p0a, self.rawA = [], []
        early = self.opt['rawA'] < 0
        ldA, sA = [V(229), V(230), V(231)], S(97)
        later = []
        e_, x_ = (e, x) if early else (later.append, later.extend)
        sUA, sSec = sT[6], sT[7]
        e_(salu('s_mul_i32', sUA, 's2', 171))
        e_(salu('s_lshr_b32', sUA, sUA, 9))
        e_(salu('s_mul_i32', sSec, sUA, 3))
        e_(salu('s_sub_u32', sSec, 's2', sSec))
        e_(salu('s_mul_i32', sA, sUA, 8 * 3840))
        e_(salu('s_mul_i32', sT[2], sSec, 1280))
        e_(salu('s_add_u32', sA, sA, sT[2]))
        e_(salu('s_lshl_b32', sT[2], sW, 6))
        for m in range(3):
            e_(valu('v_add_u32', t[8], sT[2], vL))
            if m:
                e_(valu('v_add_u32', t[8], 256 * m, t[8]))
            x_(self.divc(t[9], t[8], 80, 767))
            if m == 2:
                e_(valu('v_cmp_gt_u32', 'vcc', 640, t[8]))
            e_(valu('v_mul_u32_u24', t[9], 3840 - 1280, t[9]))
            e_(valu('v_lshl_add_u32', ldA[m], t[8], 4, t[9]))
            if m == 2:
                e_(valu('v_cndmask_b32', ldA[m], vOOB, ldA[m], 'vcc'))
            d = bdma(ldA[m], SWQKV, sA, 0, FL[self.opt['flA']])
            g_ = Group([salu('s_lshl_b32', sT[5], sW, 10), salu('s_add_u32', 'm0', sT[5], P0A + 4096 * m), d])
            self.p0a.append(d)
            if early:
                e(g_)
            else:
                self.rawA.append(g_)
        if self.opt['touch2']:
            e(salu('s_lshr_b32', sT[1], sUA, 2))
            e(salu('s_lshl_b32', sT[1], sT[1], 12))
            e(salu('s_and_b32', sT[2], sUA, 3))
            e(salu('s_lshl_b32', sT[2], sT[2], 8))
            e(salu('s_add_u32', sT[1], sT[1], sT[2]))
            e(salu('s_add_u32', sT[1], sT[1], WQ + 3072))
            e(salu('s_lshl2_add_u32', sT[2], sSec, sW))
            e(salu('s_cmp_lt_u32', sT[2], 8))
            e(salu('s_cselect_b32', sT[1], sT[1], 0x70000000))
            e(salu('s_cmp_lt_u32', 's2', 240))
            e(salu('s_cselect_b32', sT[1], sT[1], 0x70000000))
            e(salu('s_mul_i32', sT[2], sT[2], 4 * 81920))
            e(salu('s_add_u32', sT[1], sT[1], sT[2]))
            e(valu('v_and_b32', t[8], 3, vL))
            e(valu('v_mul_u32_u24', t[8], 81920, t[8]))
            e(bload(V(254), t[8], SWS, sT[1]))
        if self.opt['tlb'] > 1:
            e(valu('v_lshlrev_b32', t[8], 20, 'v0'))
            e(valu('v_cmp_gt_u32', 'vcc', 3, 'v0'))
            e(valu('v_cndmask_b32', t[8], vOOB, t[8], 'vcc'))
            e(bload(V(254), t[8], SOUT))
        x(self.stamp('p0a'))

        q = later
        e = q.append
        x = q.extend
        vHa = t[32]
        e(valu('v_and_b32', vU, 15, vL))
        e(valu('v_bfe_u32', vR, vL, 2, 2))
        e(valu('v_and_b32', vCC, 3, vL))
        e(salu('s_and_b32', sT[1], sW, 1))
        e(salu('s_lshl_b32', sT[2], sT[1], 3))
        e(valu('v_lshrrev_b32', vHu, 3, vL))
        e(valu('v_add_u32', vHu, sT[2], vHu))
        e(salu('s_lshl_b32', sT[2], sB, 7))
        e(salu('s_sub_u32', sT[2], sT[2], 16))
        e(valu('v_add_u32', vHa, sT[2], vHu))
        e(valu('v_cmp_le_i32', 'vcc', 0, vHa))
        e(valu('v_lshrrev_b32', t[8], 1, vHu))
        e(valu('v_xor_b32', t[8], t[8], vL))
        e(valu('v_and_b32', t[8], 7, t[8]))
        e(valu('v_mul_u32_u24', vHa, 1280, vHa))
        e(valu('v_lshl_add_u32', vHa, t[8], 4, vHa))
        e(valu('v_cndmask_b32', vHa, vOOB, vHa, 'vcc'))
        e(valu('v_cmp_lt_u32', 'vcc', 1, vHu))
        e(valu('v_cndmask_b32', vHa, vOOB, vHa, 'vcc'))
        sHk, sHl = S(94), S(95)
        e(salu('s_lshr_b32', sT[2], sW, 1))
        e(salu('s_mul_i32', sT[2], sT[2], 5))
        e(salu('s_lshl_b32', sHl, sT[2], 11))
        e(salu('s_lshl_b32', sT[1], sT[1], 10))
        e(salu('s_add_u32', sHl, sHl, sT[1]))
        e(salu('s_add_u32', sHk, sT[2], sR))
        halo_loads = []
        for i5 in range(5):
            halo_loads.append(Group([salu('s_cmp_ge_u32', sHk, 10 - i5), salu('s_cselect_b32', sT[5], (i5 - 10) & 0xffffffff, i5),
                                     salu('s_add_u32', sT[5], sT[5], sHk), salu('s_lshl_b32', sT[5], sT[5], 7),
                                     salu('s_add_u32', 'm0', sHl, HALO + 2048 * i5), bdma(vHa, SX, sT[5], 0, FL[self.opt['flH']])]))
        self.halo_ops = [g_[-1] for g_ in halo_loads]
        e(salu('s_lshl2_add_u32', sT[1], sB, sW))
        e(salu('s_lshl_b32', sT[1], sT[1], 8))
        e(salu('s_add_u32', sT[1], sT[1], ST))
        e(valu('v_lshl_add_u32', vSA, vU, 4, sT[1]))
        e(salu('s_lshl_b32', sT[1], sB, 10))
        e(salu('s_max_u32', sT[1], sT[1], 128))
        e(salu('s_add_u32', sT[1], sT[1], ST - 128))
        e(valu('v_lshl_add_u32', vSH, vU, 3, sT[1]))
        e(valu('v_lshlrev_b32', vL16, 4, vL))
        e(valu('v_add_u32', vL16b, 4096, vL16))
        e(valu('v_lshrrev_b32', t[8], 1, vU))
        e(valu('v_xor_b32', t[8], t[8], vQ))
        e(valu('v_lshlrev_b32', t[8], 4, t[8]))
        e(valu('v_lshl_add_u32', vHr[0], vU, 7, t[8]))
        e(valu('v_xor_b32', vHr[1], 64, vHr[0]))
        e(valu('v_and_b32', t[8], 8, vU))
        e(valu('v_lshlrev_b32', t[8], 7, t[8]))
        e(valu('v_add3_u32', vXr[0], sXl, vHr[0], t[8]))
        e(valu('v_xor_b32', vXr[1], 64, vXr[0]))
        e(valu('v_lshl_add_u32', t[8], vQ, 3, vR))
        e(valu('v_mul_u32_u24', t[8], 192, t[8]))
        e(valu('v_lshl_add_u32', t[8], vCC, 3, t[8]))
        e(valu('v_and_b32', t[9], 1, vQ))
        e(valu('v_lshl_add_u32', t[8], t[9], 5, t[8]))
        e(salu('s_cmp_eq_u32', sW, 3))
        e(salu('s_cselect_b32', sROT, 0, sW))
        e(salu('s_lshl_b32', sT[1], sB, 1))
        e(salu('s_lshr_b32', sT[2], sW, 1))
        e(salu('s_add_u32', sT[12], sT[1], sT[2]))
        e(salu('s_mul_i32', sAP, sT[12], ACTB))
        e(salu('s_and_b32', sT[2], sW, 1))
        e(salu('s_lshl_b32', sT[2], sT[2], 11))
        e(salu('s_add_u32', sAP, sAP, sT[2]))
        e(salu('s_add_u32', sAP, sAP, ACT))
        for m in range(3):
            e(salu('s_add_u32', sT[1], sROT, m))
            e(salu('s_cmp_ge_u32', sT[1], 3))
            e(salu('s_cselect_b32', sT[2], 3, 0))
            e(salu('s_sub_u32', sT[1], sT[1], sT[2]))
            e(salu('s_lshl_b32', sT[2], sT[1], 6))
            e(salu('s_add_u32', sT[2], sT[2], W1R))
            e(valu('v_add_u32', vW1r[2 * m], sT[2], t[8]))
            e(valu('v_xor_b32', vW1r[2 * m + 1], 32, vW1r[2 * m]))
            e(salu('s_mul_i32', sT[2], sJ, 3))
            e(salu('s_add_u32', sT[1], sT[1], sT[2]))
            e(salu('s_lshl_b32', sT[1], sT[1], 12))
            e(salu('s_add_u32', sHS[m], sT[1], sAP))
        e(valu('v_mov_b32', t[8], 0x3f803f80))
        for r in range(4):
            e(valu('v_accvgpr_write_b32', A(240 + r), t[8]))
        stA = [vPs, t[33], t[35]]
        soA[:] = [sT[9], sT[9], sT[10]]
        e(salu('s_lshr_b32', sT[1], sUA, 2))
        e(salu('s_lshl_b32', sT[1], sT[1], 12))
        e(salu('s_and_b32', sT[2], sUA, 3))
        e(salu('s_lshl_b32', sT[2], sT[2], 8))
        e(salu('s_add_u32', sT[1], sT[1], sT[2]))
        e(salu('s_add_u32', sT[1], sT[1], WQ))
        e(salu('s_cmp_lt_u32', 's2', 240))
        e(salu('s_cselect_b32', sT[1], sT[1], 0x70000000))
        e(salu('s_lshl_b32', sT[2], sSec, 10))
        e(salu('s_add_u32', soA[0], sT[1], sT[2]))
        e(salu('s_lshl_b32', sT[2], sSec, 6))
        e(salu('s_add_u32', sT[2], sT[2], 3072))
        e(salu('s_add_u32', soA[2], sT[1], sT[2]))
        e(salu('s_cmp_eq_u32', sSec, 2))
        e(salu('s_cselect_b32', S(93), soA[2], 0x70000000))
        e(salu('s_mov_b32', sT[3], WQJ))
        e(salu('s_mov_b32', sT[4], 81920))
        e(valu('v_mul_u32_u24', t[8], 1280, vR))
        e(valu('v_add_u32', t[8], P0A, t[8]))
        for k in range(3):
            if k < 2:
                e(salu('s_lshl_b32', sT[1], sW, 2))
                e(salu('s_add_u32', sT[1], sT[1], 16 * k))
                e(valu('v_add_u32', t[9], sT[1], vQ))
                e(valu('v_mul_u32_u24', t[10], 40, t[9]))
                e(valu('v_lshl_add_u32', t[10], vCC, 3, t[10]))
                e(valu('v_add_u32', rdA[k], t[8], t[10]))
                e(valu('v_lshlrev_b32', t[11], 4, vU))
            else:
                e(salu('s_and_b32', sT[1], sW, 1))
                e(salu('s_lshl_b32', sT[1], sT[1], 4))
                e(valu('v_lshl_add_u32', t[12], vQ, 2, sT[1]))
                e(valu('v_add_u32', t[9], t[12], vCC))
                e(valu('v_mul_u32_u24', t[10], 40, t[9]))
                e(valu('v_add3_u32', rdA[k], t[8], t[10], 32))
                e(valu('v_add_u32', t[9], t[12], vR))
                e(valu('v_lshlrev_b32', t[11], 4, vCC))
            e(valu('v_lshrrev_b32', t[10], 1, t[9]))
            e(valu('v_mad_u32_u24', t[11], t[10], sT[3], t[11]))
            e(valu('v_and_b32', t[9], 1, t[9]))
            e(valu('v_mad_u32_u24', stA[k], t[9], sT[4], t[11]))
        e(salu('s_cmp_lt_u32', sW, 2))
        e(salu('s_cselect_b64', 'vcc', -1, 0))
        e(valu('v_cndmask_b32', stA[2], vOOB, stA[2], 'vcc'))
        sSrc, sDst = [S(76), S(77), S(3)], [sT[6], sT[7], sT[8]]
        e(valu('v_lshrrev_b32', t[12], 3, vL))
        e(valu('v_and_b32', t[13], 3, t[12]))
        e(valu('v_lshrrev_b32', t[12], 2, t[12]))
        e(valu('v_mul_u32_u24', t[13], 1280, t[13]))
        e(valu('v_and_b32', t[8], 7, vL))
        e(valu('v_lshl_add_u32', t[13], t[8], 4, t[13]))
        e(salu('s_mov_b32', sT[12], W2C))
        for m in range(3):
            e(salu('s_mul_i32', sT[1], sW, 768))
            e(salu('s_add_u32', sT[1], sT[1], 's2'))
            if m:
                e(salu('s_add_u32', sT[1], sT[1], 256 * m))
            e(salu('s_mul_i32', sT[2], sT[1], 6554))
            e(salu('s_lshr_b32', sT[2], sT[2], 16))
            e(salu('s_mul_i32', sT[3], sT[2], 10))
            e(salu('s_sub_u32', sT[3], sT[1], sT[3]))
            e(salu('s_lshr_b32', sT[4], sT[2], 2))
            e(salu('s_mul_i32', sDst[m], sT[4], 5120))
            e(salu('s_and_b32', sT[5], sT[2], 3))
            e(salu('s_lshl_b32', sSrc[m], sT[5], 8))
            e(salu('s_add_u32', sDst[m], sDst[m], sSrc[m]))
            e(salu('s_add_u32', sDst[m], sDst[m], W2P))
            e(salu('s_lshl_b32', sT[5], sT[5], 2))
            e(salu('s_lshl_b32', sSrc[m], sT[4], 5))
            e(salu('s_add_u32', sSrc[m], sSrc[m], sT[5]))
            e(salu('s_sub_u32', sT[4], sT[4], 48))
            e(salu('s_mul_i32', sT[4], sT[4], 40))
            e(salu('s_add_u32', sT[4], sT[4], sT[5]))
            e(salu('s_sub_u32', sT[5], sT[2], 256))
            e(salu('s_mul_i32', sT[5], sT[5], 40))
            e(salu('s_add_u32', sT[5], sT[5], 16))
            e(salu('s_cmp_lt_u32', sT[2], 256))
            e(salu('s_cselect_b32', sT[4], sT[4], sT[5]))
            e(salu('s_cmp_lt_u32', sT[2], 192))
            e(salu('s_cselect_b32', sSrc[m], sSrc[m], sT[4]))
            e(salu('s_cmp_lt_u32', sT[2], 192))
            e(salu('s_cselect_b32', sT[4], 16, 20))
            e(salu('s_mul_i32', sT[4], sT[4], 1280))
            e(valu('v_mad_u32_u24', ldB[m], t[12], sT[4], t[13]))
            e(salu('s_mul_i32', sSrc[m], sSrc[m], 1280))
            e(salu('s_lshl_b32', sT[4], sT[3], 7))
            e(salu('s_add_u32', sSrc[m], sSrc[m], sT[4]))
            e(salu('s_cmp_lt_u32', sT[1], 2720))
            e(salu('s_cselect_b32', sSrc[m], sSrc[m], 0x70000000))
            e(salu('s_cmp_lt_u32', sT[1], 2720))
            e(salu('s_cselect_b32', sDst[m], sDst[m], 0x70000000))
            e(salu('s_lshl_b32', sT[3], sT[3], 2))
            e(valu('v_add_u32', t[9], sT[3], vQ))
            x(self.divc(t[10], t[9], 5, 39))
            e(valu('v_mul_u32_u24', t[11], 5, t[10]))
            e(valu('v_sub_u32', t[9], t[9], t[11]))
            e(valu('v_lshlrev_b32', t[9], 10, t[9]))
            e(valu('v_lshl_add_u32', t[9], vU, 4, t[9]))
            e(valu('v_mad_u32_u24', stB[m], t[10], sT[12], t[9]))
        e(salu('s_mul_i32', sT[1], sW, 3072))
        e(salu('s_add_u32', sPB, sT[1], P0B))
        e(valu('v_lshlrev_b32', t[8], 7, vR))
        e(valu('v_lshl_add_u32', t[8], vQ, 5, t[8]))
        e(valu('v_lshl_add_u32', t[8], vCC, 3, t[8]))
        e(valu('v_add_u32', rdB[0], sPB, t[8]))
        e(salu('s_mov_b32', S(75), 0x20000))
        e(salu('s_mul_i32', sW2c, sC, W2C))
        e(salu('s_add_u32', sW2c, sW2c, W2P))
        vHw = t[34]
        e(salu('s_mul_i32', sT[1], sW, 20))
        e(valu('v_add_u32', t[8], sT[1], vL))
        e(valu('v_cmp_gt_u32', 'vcc', 20, vL))
        e(valu('v_lshrrev_b32', t[9], 3, t[8]))
        e(valu('v_and_b32', t[8], 7, t[8]))
        e(valu('v_lshlrev_b32', t[8], 4, t[8]))
        e(valu('v_lshl_add_u32', t[8], t[9], 11, t[8]))
        e(valu('v_add_u32', t[9], DUMMY, vL16))
        e(valu('v_cndmask_b32', vHw, t[9], t[8], 'vcc'))
        fs = self.opt['fstride']
        e(salu('s_lshr_b32', sT[3], 's2', 2))
        e(salu('s_lshl_b32', sT[3], sT[3], fs))
        e(salu('s_and_b32', sT[1], 's2', 3))
        e(salu('s_lshl2_add_u32', sT[3], sT[1], sT[3]))
        e(salu('s_add_u32', sT[3], sT[3], F1))
        e(valu('v_cmp_eq_u32', 'vcc', 0, 'v0'))
        e(valu('v_mov_b32', t[8], sT[3]))
        e(valu('v_cndmask_b32', vFA, vOOB, t[8], 'vcc'))
        x(self.poll_all(F1))
        e(salu('s_mul_i32', sWQb, sJ, WQJ))
        e(salu('s_add_u32', sWQb, sWQb, WQ))
        e(salu('s_lshl1_add_u32', sG, sR, sW))
        e(salu('s_cmp_ge_u32', sG, 20))
        e(salu('s_cselect_b32', sWQ, 20, 0))
        e(salu('s_sub_u32', sG, sG, sWQ))
        e(salu('s_lshl_b32', sWQ, sG, 12))
        e(salu('s_add_u32', sWQ, sWQ, sWQb))
        e(salu('s_lshr_b32', sT[1], 's2', 3))
        e(salu('s_and_b32', sT[2], sT[1], 7))
        e(salu('s_mul_i32', sT[2], sT[2], 3))
        e(salu('s_lshr_b32', sT[2], sT[2], 1))
        e(salu('s_lshr_b32', sT[1], sT[1], 3))
        e(salu('s_mul_i32', sT[1], sT[1], 3))
        e(salu('s_add_u32', sR2, sT[1], sT[2]))
        e(salu('s_cmp_ge_u32', sR2, 12))
        e(salu('s_cselect_b32', sT[1], 12, 0))
        e(salu('s_sub_u32', sR2, sR2, sT[1]))
        if self.opt['rot2'] in (2, 4):
            e(salu('s_lshr_b32', sT[1], 's2', 3))
            e(salu('s_lshr_b32', sT[2], 's2', 6))
            e(salu('s_add_u32', sR2, sT[1], sT[2]))
        e(salu('s_mul_i32', sT[1], sTB, ACTB))
        e(salu('s_add_u32', sT[1], sT[1], ACT))
        e(salu('s_mul_i32', sT[2], sW, 12 * 4096))
        e(salu('s_add_u32', sAh, sT[1], sT[2]))
        e(salu('s_lshl_b32', sT[2], sW, 14))
        e(salu('s_add_u32', sAo, sT[1], sT[2]))
        e(salu('s_add_u32', sAo, sAo, 48 * 4096))
        e(salu('s_lshl_b32', sT[2], sW, 12))
        e(salu('s_add_u32', sAb, sT[1], sT[2]))
        e(salu('s_add_u32', sAb, sAb, 64 * 4096))
        e(salu('s_mul_i32', sT[2], sW, 12 * 5120))
        e(salu('s_add_u32', sWh, sW2c, sT[2]))
        e(salu('s_mul_i32', sT[2], sW, 4 * 5120))
        e(salu('s_add_u32', sWo, sW2c, sT[2]))
        e(salu('s_add_u32', sWo, sWo, 48 * 5120))
        e(salu('s_mul_i32', sT[2], sW, 5120))
        e(salu('s_add_u32', sWb, sW2c, sT[2]))
        e(salu('s_add_u32', sWb, sWb, 64 * 5120))
        e(salu('s_add_u32', sT[1], sJ, 48))
        e(salu('s_lshl_b32', sT[1], sT[1], 12))
        e(salu('s_add_u32', sOA, sT[1], sAP))
        e(salu('s_lshr_b32', sT[1], sJ, 2))
        e(salu('s_add_u32', sT[1], sT[1], 64))
        e(salu('s_lshl_b32', sT[1], sT[1], 12))
        e(salu('s_and_b32', sT[2], sJ, 3))
        e(salu('s_lshl_b32', sT[2], sT[2], 8))
        e(salu('s_add_u32', sT[1], sT[1], sT[2]))
        e(salu('s_add_u32', sOB, sT[1], sAP))
        e(salu('s_mov_b64', sLO16, 0xffff))
        e(salu('s_mov_b32', 's70', 0x00010001))
        e(salu('s_mov_b32', 's71', 0x00010001))
        e(salu('s_mov_b32', sSCL, f2u(20 ** -0.5 * 1.4426950408889634)))
        for i in range(4):
            e(salu('s_add_u32', sT[1], sW, i))
            e(salu('s_and_b32', sT[1], sT[1], 3))
            e(salu('s_lshl_b32', sT[1], sT[1], 10))
            e(salu('s_add_u32', sT[1], sT[1], XR))
            e(valu('v_add_u32', vWr[i], sT[1], vL16))
        e(valu('v_lshlrev_b32', t[8], 2, vQ))
        e(valu('v_sub_u32', t[8], vU, t[8]))
        e(valu('v_mov_b32', t[10], f2u(-1e30)))
        e(salu('s_or_b32', sT[1], sB, sW))
        e(salu('s_cmp_eq_u32', sT[1], 0))
        e(salu('s_cselect_b32', sT[1], 0, 2))
        e(valu('v_cmp_gt_u32', 'vcc', sT[1], vQ))
        e(valu('v_cndmask_b32', t[11], t[10], vZ, 'vcc'))
        for r in range(4):
            e(valu('v_subrev_u32', t[9], r, t[8]))
            e(valu('v_cmp_gt_u32', 'vcc', 8, t[9]))
            e(valu('v_cmp_gt_i32', S(56, 2), 0, t[9]))
            e(valu('v_cndmask_b32', V(MASK + 4 + r), t[10], vZ, 'vcc'))
            e(valu('v_cndmask_b32', V(MASK + r), t[10], t[11], S(56, 2)))
        e(valu('v_mov_b32', t[8], ZERO))
        e(valu('v_mov_b32', t[10], 0))
        e(valu('v_mov_b32', t[11], 0))
        e(ds_write('ds_write_b64', t[8], V(146, 2)))
        loads = (st[1] if npro > 1 else []) + (halo_loads if npro > 2 else []) + [x_ for r_ in st[2:] for x_ in r_]
        self.halo_loads = [] if npro > 2 else halo_loads
        p += self.sprinkle(q, loads, max(1, min(self.opt['pro_every'], (len(q) - 16) // max(len(loads), 1))), start=self.opt['pro_start'])
        self.rawB = []
        for m in range(3):
            self.rawB.append(Group([Group([salu('s_cmp_lt_u32', sDst[m], W2P + 48 * 5120), salu('s_cselect_b64', S(72, 2), S(20, 2), S(12, 2)),
                                           salu('s_cselect_b32', S(74), S(22), S(14))]),
                                    salu('s_add_u32', 'm0', sPB, 1024 * m),
                                    bdma(ldB[m], S(72, 4), sSrc[m], 0, FL[self.opt['flB']])]))
        if self.opt['rawB'] < 0:
            p += flatten(self.rawB)
        p += self.stamp('setup')
        shadow = self.opt['srow'] >= 2
        hs, hq, ht, h3, h4, h5 = (V(n) for n in range(224, 229)) if False else (V(248), V(249), V(250), V(251), V(252), V(253))
        z = [valu('v_readfirstlane_b32', sTAG, vTAG), valu('v_mov_b32', ht, 0x3f803f80),
             salu('s_mul_i32', sTAG, sTAG, 0x19660d), salu('s_add_u32', sTAG, sTAG, 0x3c6ef35f),
             salu('s_cmp_eq_u32', sW, 0), salu('s_cselect_b32', sCMP, sTAG, 0), valu('v_mov_b32', vTAG, sTAG)]
        for i in range(12):
            if not shadow:
                z += [valu('v_dot2_f32_bf16', hs, V(SR + i), ht, hs if i else 0),
                      valu('v_dot2_f32_bf16', hq, V(SR + i), V(SR + i), hq if i else 0)]
                continue
            z += [valu('v_lshlrev_b32', h4, 16, V(SR + i)), valu('v_and_b32', h5, 0xffff0000, V(SR + i))]
            z += [valu('v_add_f32', hs, h4, h5), valu('v_mul_f32', hq, h4, h4)] if i == 0 else \
                [valu('v_add_f32', hs, hs, h4), valu('v_fmac_f32', hq, h4, h4), valu('v_add_f32', hs, hs, h5)]
            z.append(valu('v_fmac_f32', hq, h5, h5))
        z += [valu('v_and_b32', h3, 31, vL), valu('v_cmp_eq_u32', S(98, 2) if not self.opt.get('dbg') else 'vcc', 0, h3),
              valu('v_lshlrev_b32', h3, 3, vSt), valu('v_add_u32', h3, ST, h3)]
        for sh in (8, 4, 2, 1):
            z.append(Skip(1))
            for r in (hs, hq):
                z.append(valu('v_add_f32_dpp', r, r, r, mods=f'row_ror:{sh} row_mask:0xf bank_mask:0xf'))
        z += [valu('v_mov_b32', h4, hs), valu('v_mov_b32', h5, hq),
              valu('v_cndmask_b32', h3, vOOB, h3, S(98, 2) if not self.opt.get('dbg') else 'vcc'), Skip(1),
              valu('v_permlane16_swap_b32', hs, h4), valu('v_permlane16_swap_b32', hq, h5),
              valu('v_add_f32', hs, hs, h4), valu('v_add_f32', hq, hq, h5)]
        z += self.rstats(hs, hq, V(SR), ht) + [valu('v_mov_b32', V(SR + 1), sTAG), bstore(V(SR, 2), h3, SWS, 0, 0, 'sc1')]
        self.srow, self.stats = (srow, z) if shadow else ([], [])
        if not shadow:
            p += z
        p += self.stamp('stats')
        p.append(Group([wait(vm=self.stage_ops[0]), barrier()]))
        p += self.stamp('B0')

        def pack(rd, k0, dst):
            o_ = [ds_read('ds_read_b64_tr_b16', V(PK + 4 * (k0 + k) + 2 * h, 2), *rd(k, h)) for k in range(3) for h in range(2)]
            sts = [bstore(V(PK + 4 * (k0 + k), 4), dst[k][0], SWS, dst[k][1], 0, FL[self.opt['flS']]) for k in range(3)]
            return o_, sts
        self.packA = pack(lambda k, h: (rdA[k], 5120 * h), 0, list(zip(stA, soA)))
        if self.opt['padw']:
            self.packA[1].append(bstore(V(PK + 8, 4), stA[2], SWS, S(93), 64, FL[self.opt['flS']]))
        self.packB = pack(lambda k, h: (rdB[0], 1024 * k + 512 * h), 3, list(zip(stB, sDst)))
        self.f2_pub = [valu('v_add_u32', vFA, F2 - F1, vFA)]
        self.ones = [valu('v_mov_b32', V(220 + r), 0x3f803f80) for r in range(4)] + \
            [ds_write('ds_write_b128', vHw, V(220, 4), HALO)]
        return p

    @functools.lru_cache(None)
    def x_reads(self, s):
        i, h = s >> 1, s & 1
        return [ds_read('ds_read_b128', X(s, p), vXr[h], (i & 3) * 4096 + p * 1024) for p in range(2)]

    @functools.lru_cache(None)
    def w1_reads(self, s, n):
        i, h = s >> 1, s & 1
        return [ds_read('ds_read_b64_tr_b16', V(WF + 4 * n + 2 * e_, 2), vW1r[n], (i & 3) * 12288 + (32 * h + 4 * e_) * 192)
                for e_ in range(2)]

    @functools.lru_cache(None)
    def wq_read(self, g, n):
        k, sg = g >> 2, g & 3
        return ds_read('ds_read_b128', V(WF + 4 * n, 4), vWr[n], sg * 16384 + ((10 + k) & 3) * 4096)

    @functools.lru_cache(None)
    def halo_read(self, g):
        s = g % 20
        return ds_read('ds_read_b128', V(WF + 16, 4), vHr[s & 1], HALO + (s >> 1) * 2048)

    def late_addresses(self):
        t = [V(T + n) for n in range(24)]
        vQ, vU, vR, vCC = t[0], t[1], t[2], t[3]
        p = [valu('v_lshrrev_b32', vQ, 4, vL), valu('v_and_b32', vU, 15, vL),
             valu('v_bfe_u32', vR, vL, 2, 2), valu('v_and_b32', vCC, 3, vL),
             salu('s_mul_i32', sT[1], sW, 16 * KVR), salu('s_add_u32', sT[1], sT[1], KV),
             valu('v_mul_u32_u24', t[4], KVR, vU),
             valu('v_add_u32', t[4], sT[1], t[4]),
             valu('v_add_u32', vK4, 72, t[4]),
             valu('v_lshl_add_u32', t[5], vQ, 3, t[4]),
             valu('v_add_u32', vKr, 40, t[5]),
             valu('v_add_u32', vQr, 8 * KVR, t[5]),
             valu('v_add_u32', t[6], 8 * KVR + 32, t[4]),
             valu('v_mov_b32', t[7], ZERO),
             valu('v_cmp_eq_u32', S(92, 2), 0, vQ),
             valu('v_cndmask_b32', vQ4, t[7], t[6], S(92, 2)),
             valu('v_lshl_add_u32', t[6], vQ, 2, vR),
             valu('v_mul_u32_u24', t[6], KVR, t[6]),
             valu('v_add_u32', t[6], sT[1], t[6]),
             valu('v_add_u32', vV4, 112, t[6]),
             valu('v_lshl_add_u32', t[6], vCC, 3, t[6]),
             valu('v_add_u32', vVr, 80, t[6]),
             valu('v_mul_u32_u24', t[6], 40, vQ),
             valu('v_add_u32', t[6], 32, t[6]),
             valu('v_min_u32', t[6], 120, t[6]),
             valu('v_lshlrev_b32', t[7], 3, vQ),
             valu('v_and_b32', t[8], 1, vU),
             valu('v_mul_u32_u24', t[8], KVC, t[8]),
             valu('v_lshrrev_b32', t[9], 1, vU),
             valu('v_mul_u32_u24', t[9], KVR, t[9]),
             valu('v_add_u32', t[8], t[8], t[9]),
             valu('v_add_u32', t[8], KV, t[8])]
        for i in range(4):
            p += [salu('s_add_u32', sT[2], sW, i), salu('s_and_b32', sT[2], sT[2], 3),
                  salu('s_mul_i32', sT[3], sT[2], 40),
                  salu('s_cmp_eq_u32', sT[2], 3), salu('s_cselect_b64', S(92, 2), -1, 0),
                  valu('v_add_u32', t[9], sT[3], t[7]),
                  valu('v_cndmask_b32', t[9], t[9], t[6], S(92, 2))]
            if i == 0:
                p.append(valu('v_add_u32', vHKw, t[8], t[9]))
            p += [valu('v_add_u32', t[9], t[4], t[9]), valu('v_add_u32', vKVw[i], 8 * KVR, t[9])]
        p += [salu('s_lshl_b32', sT[2], sW, 6), salu('s_add_u32', sT[2], sT[2], CSQ),
              valu('v_lshl_add_u32', vCQw, vQ, 4, sT[2]),
              valu('v_lshlrev_b32', vCQr, 4, vQ),
              valu('v_lshlrev_b32', t[4], 4, vU), valu('v_lshl_add_u32', t[4], vQ, 10, t[4]), valu('v_mov_b32', t[5], OOB),
              valu('v_cmp_gt_u32', S(92, 2), 32, vL), Skip(1), valu('v_cndmask_b32', vOB, t[5], t[4], S(92, 2))]
        return p

    def flag_addr(self, base):
        t0, t1 = V(T + 22), V(T + 23)
        return [salu('s_lshl_b32', sT[1], sB, 1), salu('s_lshr_b32', sT[2], sW, 1), salu('s_add_u32', sT[1], sT[1], sT[2]),
                salu('s_lshl_b32', sT[1], sT[1], 7), salu('s_and_b32', sT[2], sW, 1), salu('s_lshl1_add_u32', sT[2], sJ, sT[2]),
                salu('s_lshl2_add_u32', sT[1], sT[2], sT[1]), salu('s_add_u32', sT[1], sT[1], base),
                valu('v_mov_b32', t0, sT[1]), valu('v_mov_b32', t1, OOB),
                valu('v_cmp_eq_u32', S(92, 2), 0, vL), valu('v_cndmask_b32', vFA, t1, t0, S(92, 2))]

    def poll_addr(self, idx, base, shift, t0, mask):
        return [salu('s_lshl_b32', 's96', idx, shift), salu('s_add_u32', 's96', 's96', base),
                salu('s_cmp_eq_u32', sW, 0), salu('s_cselect_b32', 's96', 's96', OOB),
                valu('v_and_b32', t0, mask, vL), valu('v_lshl_add_u32', vPA, t0, 2, 's96')]

    def poll_all(self, base):
        return [salu('s_cmp_eq_u32', sW, 0), salu('s_cselect_b32', 's96', 0, 0x70000000),
                salu('s_add_u32', 's96', 's96', base), valu('v_lshl_add_u32', vPA, vL, self.opt['fstride'], 's96')]

    def lanes0(self, ins):
        return Group([salu('s_mov_b64', 'exec', sROW0), ins, salu('s_mov_b64', 'exec', -1)])

    def ff_pre(self):
        t = [V(T + n) for n in range(24)]
        p = [valu('v_lshrrev_b32', t[0], 4, vL), salu('s_lshl_b32', sT[1], sROT, 7), salu('s_add_u32', sT[1], sT[1], CSF),
             valu('v_lshl_add_u32', t[0], t[0], 4, sT[1]),
             self.lanes0(ds_write('ds_write_b128', t[0], V(CS, 4), 0)),
             self.lanes0(ds_write('ds_write_b128', t[0], V(CS + 4, 4), 64))]
        for src, mean, rstd in ((RS, vMEAN[0], vRSTD[0]), (RS + 2, vMEAN[1], vRSTD[1]), (RS + 4, vMEANH, vRSTDH)):
            p += [valu('v_and_b32', rstd, 0xffff0000, V(src)), valu('v_lshlrev_b32', mean, 16, V(src)),
                  valu('v_rcp_f32', rstd, rstd)]
        return p

    def ff_post(self):
        t = [V(T + n) for n in range(24)]
        p = [valu('v_lshrrev_b32', V(RS), 4, vL), valu('v_lshlrev_b32', V(RS), 4, V(RS))]
        for m in range(3):
            p += [salu('s_add_u32', sT[1], sROT, m), salu('s_cmp_ge_u32', sT[1], 3), salu('s_cselect_b32', sT[2], 3, 0),
                  salu('s_sub_u32', sT[1], sT[1], sT[2]), salu('s_lshl_b32', sT[1], sT[1], 7), salu('s_add_u32', sT[1], sT[1], CSF),
                  valu('v_add_u32', V(RS + 1), sT[1], V(RS)),
                  ds_read('ds_read_b128', V(T + 8 * m, 4), V(RS + 1), 0),
                  ds_read('ds_read_b128', V(T + 8 * m + 4, 4), V(RS + 1), 64)]
        p.append(Skip(2))
        self.h_stores = []
        for m in range(3):
            for q in range(2):
                dst = SS + 4 * ((2 * m + q) & 1)
                for n in (2 * m, 2 * m + 1):
                    a = FACC + 8 * n + 4 * q
                    for r in range(4):
                        p.append(valu('v_fma_f32', V(a + r), '-' + vMEAN[q], V(T + 4 * n + r), V(a + r)))
                    for r in range(4):
                        p.append(valu('v_mul_f32', V(a + r), V(a + r), vRSTD[q]))
                    for hh in range(2):
                        p.append(valu('v_cvt_pk_bf16_f32', V(dst + 2 * (n & 1) + hh), V(a + 2 * hh), V(a + 2 * hh + 1)))
                for r in range(4):
                    p.append(valu('v_pk_max_i16', V(dst + r), V(dst + r), 0))
                s_ = bstore(V(dst, 4), vL16, SWS, sHS[m], q * 1024, FL[self.opt['flS']])
                self.h_stores.append(s_)
                p.append(s_)
        return p

    def qkv_pre(self, hd, packed):
        a = ACC[hd]
        t = [V(T + n) for n in range(24)]
        p = [self.lanes0(ds_write('ds_write_b128', vCQw, V(a + 32, 4), hd * 256))]
        self.qkv_pub = [i for g in p for i in (g if isinstance(g, Group) else [g]) if i.kind == 'dsw']
        q = []
        for cls in range(2):
            q.append(valu('v_mul_f32', t[18 + cls], vMEAN[cls], vRSTD[cls]))
        for n in range(4):
            for cls in range(2):
                b = a + 8 * n + 4 * cls
                if packed:
                    for r in (0, 2):
                        q.append(I(f"v_pk_mul_f32 {V(b + r, 2)}, {V(b + r, 2)}, {V(30, 2)} op_sel:[0,{cls}] op_sel_hi:[1,{cls}]",
                                   'valu', regs(V(b + r, 2)) + regs(V(30, 2)), regs(V(b + r, 2))))
                else:
                    for r in range(4):
                        q.append(valu('v_mul_f32', V(b + r), V(b + r), vRSTD[cls]))
        return p, q

    def qkv_post(self, hd, packed):
        a = ACC[hd]
        t = [V(T + n) for n in range(24)]
        p = []
        for n in range(4):
            p += [salu('s_add_u32', sT[1], sW, n), salu('s_and_b32', sT[1], sT[1], 3), salu('s_lshl_b32', sT[1], sT[1], 6),
                  salu('s_add_u32', sT[1], sT[1], CSQ + 256 * hd), valu('v_add_u32', t[20], sT[1], vCQr),
                  ds_read('ds_read_b128', V(T + 4 * n, 4), t[20], 0)]
        p.append(Skip(2))
        p += [valu('v_fma_f32', V(a + 32 + r), '-' + vMEANH, V(T + r), V(a + 32 + r)) for r in range(4)]
        p += [valu('v_mul_f32', V(a + 32 + r), V(a + 32 + r), vRSTDH) for r in range(4)]
        p += [valu('v_cvt_pk_bf16_f32', t[16], V(a + 32), V(a + 33)), valu('v_cvt_pk_bf16_f32', t[17], V(a + 34), V(a + 35))]
        self.kv_writes = [ds_write('ds_write_b64', vHKw, V(T + 16, 2), hd * KVH)]
        p += self.kv_writes
        for n in range(4):
            for cls in range(2):
                b = a + 8 * n + 4 * cls
                if packed:
                    for r in (0, 2):
                        p.append(I(f"v_pk_fma_f32 {V(b + r, 2)}, {V(T + 4 * n + r, 2)}, {V(T + 18, 2)}, {V(b + r, 2)} "
                                   f"op_sel:[0,{cls},0] op_sel_hi:[1,{cls},1] neg_lo:[1,0,0] neg_hi:[1,0,0]", 'valu',
                                   regs(V(b + r, 2)) + regs(V(T + 4 * n + r, 2)) + regs(V(T + 18, 2)), regs(V(b + r, 2))))
                else:
                    for r in range(4):
                        p.append(valu('v_fma_f32', V(b + r), '-' + t[18 + cls], V(T + 4 * n + r), V(b + r)))
                p += [valu('v_cvt_pk_bf16_f32', V(b), V(b), V(b + 1)), valu('v_cvt_pk_bf16_f32', V(b + 1), V(b + 2), V(b + 3))]
                w_ = ds_write('ds_write_b64', vKVw[n], V(b, 2), hd * KVH + cls * KVC)
                self.kv_writes.append(w_)
                p.append(w_)
        return p

    def attention(self, hd):
        a = ACC[hd]
        streams = []
        for cls in range(2):
            off = hd * KVH + cls * KVC
            b = a + 16 * cls
            u = T + 12 * cls
            Kf = [V(b, 4), V(b + 4, 4)]
            Qf, Sf = V(b + 8, 4), [V(u, 4), V(u + 4, 4)]
            Vf = Kf
            Pf = Qf
            O0, O1, L = V(u, 4), V(u + 4, 4), V(b + 12, 4)
            m, m2 = V(u + 8), V(u + 9)
            p = [ds_read('ds_read_b64', V(b + 8, 2), vQr, off)]
            p.append(I(f"ds_read_b64 {V(b + 10, 2)}, {V(u + 10)}", 'dsr', [V(u + 10)], regs(V(b + 10, 2))))
            p.insert(0, valu('v_cndmask_b32', V(u + 10), vQ4, V(u + 11), sLO16))
            for k in range(2):
                p += [ds_read('ds_read_b64', V(b + 4 * k, 2), vKr, off + k * 8 * KVR),
                      ds_read('ds_read_b64', V(b + 4 * k + 2, 2), vK4, off + k * 8 * KVR)]
            p.append(Skip(2))
            p += [mfma(Sf[k], Kf[k], Qf, V(MASK + 4 * k, 4)) for k in range(2)]
            for k in range(2):
                p += [ds_read('ds_read_b64_tr_b16', V(b + 2 * k, 2), vVr, off + k * 8 * KVR),
                      ds_read('ds_read_b64_tr_b16', V(b + 4 + 2 * k, 2), vV4, off + k * 8 * KVR)]
            p.append(Skip(1))
            p += [valu('v_max3_f32', m, V(u), V(u + 1), V(u + 2)), valu('v_max3_f32', m2, V(u + 3), V(u + 4), V(u + 5)),
                  valu('v_max3_f32', m, m, V(u + 6), V(u + 7)), valu('v_max_f32', m, m, m2)]
            for sw in ('v_permlane16_swap_b32', 'v_permlane32_swap_b32'):
                p += [valu('v_mov_b32', m2, m), valu(sw, m, m2), valu('v_max_f32', m, m, m2)]
            p.append(valu('v_mul_f32', m, sSCL, m))
            p += [valu('v_fma_f32', V(u + r), V(u + r), sSCL, '-' + m) for r in range(8)]
            p += [valu('v_exp_f32', V(u + r), V(u + r)) for r in range(8)]
            p += [valu('v_cvt_pk_bf16_f32', V(b + 8 + r), V(u + 2 * r), V(u + 2 * r + 1)) for r in range(4)]
            p += [mfma(L, aONES, Pf, 0), mfma(O0, Vf[0], Pf, 0), mfma(O1, Vf[1], Pf, 0), Skip(2)]
            p.append(valu('v_rcp_f32', m, V(b + 12)))
            p += [valu('v_mul_f32', V(u + r), V(u + r), m) for r in range(8)]
            for k in range(2):
                for hh in range(2):
                    p.append(valu('v_cvt_pk_bf16_f32', V(self.oreg(cls, k) + 2 * hd + hh), V(u + 4 * k + 2 * hh), V(u + 4 * k + 2 * hh + 1)))
            streams.append(p)
        pre = []
        for cls in range(2):
            pre.append(valu('v_add_u32', V(T + 12 * cls + 11), hd * KVH + cls * KVC, vQ4))
        out = pre
        for i, j in zip(*streams):
            out += [i] if isinstance(i, Skip) else [i, j]
        return out

    def oreg(self, cls, k):
        return 112 + 8 * cls + 4 * k

    def phase1(self):
        o = self.opt
        main, pos = [], {}
        for s in range(20):
            for n in range(6):
                for q in ((1, 0) if o['snake'] and n & 1 else (0, 1)):
                    d = V(FACC + 8 * n + 4 * q, 4)
                    main.append(mfma(d, V(WF + 4 * n, 4), X(s, q), d if s else 0))
                if n < 2:
                    d = V(CS + 4 * n, 4)
                    main.append(mfma(d, V(WF + 4 * n, 4), aONES, d if s else 0))
                pos['a', s, n] = len(main) - 1
        for g in range(40):
            hd, s = divmod(g, 20)
            a = ACC[hd]
            for n in range(4):
                for q in ((1, 0) if o['snake'] and n & 1 else (0, 1)):
                    d = V(a + 8 * n + 4 * q, 4)
                    main.append(mfma(d, V(WF + 4 * n, 4), X(s, q), d if s else 0))
                if n == 0:
                    d = V(a + 32, 4)
                    main.append(mfma(d, V(WF, 4), V(WF + 16, 4), d if s else 0))
                pos['b', g, n] = len(main) - 1
        w = Weave(main)
        first_b = pos['a', 19, 5] + 1
        logical = []
        for s in range(20):
            logical += self.x_reads(s) + [r for n in range(6) for r in self.w1_reads(s, n)] + main[14 * s:14 * s + 14]
        for g in range(40):
            logical += [self.wq_read(g, n) for n in range(4)] + [self.halo_read(g)] + main[first_b + 9 * g:first_b + 9 * g + 9]
        annotate(logical)
        annotate(self.packA[0] + self.packA[1])
        annotate(self.packB[0] + self.packB[1])
        stepb = lambda g: first_b + 9 * g
        bar = {}
        dma = {R: self.stage_dma(R) for R in range(o['npro'], 20)}
        for i in range(10):
            bar[i + 1] = pos['a', 2 * i + 1, 1]
        for k in range(9):
            bar[11 + k] = pos['b', 4 * k + 3, 1]
        rawb = [g_[-1] for g_ in self.rawB]
        extra = {}
        for key, ops in (('packA', self.p0a), ('pub1', self.packA[1]), ('packB', rawb), ('pub2', self.packB[1]),
                         ('halo', self.halo_ops)):
            extra.setdefault(o[key], []).extend(ops)
        checks = {o['chk1']: 'f1', o['chk2']: 'f2', o['chk3']: 'f3'}
        assert len(checks) == 3
        for R, gb in bar.items():
            if R in checks:
                w.at(gb, self.check(checks[R]))
            w.at(gb, self.ring_barrier(R, extra.get(R, ())))
            w.at(gb, *self.stamp(f'B{R}'))
            if R in (o['pub1'], o['pub2']):
                w.at(gb, bstore(vTAG, vFA, SWS, 0, 0, 'sc1'))
            if R in (o['poll1'], o['poll2'], o['poll3']):
                w.at(gb, bload(vPOLL if R == o['poll3'] else V(P4, 4), vPA, SWS, 0, 0, 'sc1'))
        for s in range(20):
            start = bar[(s >> 1) + 1] if s & 1 else 0
            nxt = 14 * (s + 1)
            if s < 19:
                lim = len(main) if s & 1 else bar[(s >> 1) + 1]
                w.stream(self.x_reads(s + 1), max(start, pos['a', s, 0] - 2), nxt - 1)
                for n in range(6):
                    w.stream(self.w1_reads(s + 1, n), max(start, pos['a', s, n]), min(lim, pos['a', s + 1, n] - 4))
            else:
                for n in range(4):
                    w.stream([self.wq_read(0, n)], max(start, pos['a', s, n]), nxt - 1)
                w.stream([self.halo_read(0)], pos['a', s, 4], nxt - 1)
        for g in range(39):
            start = bar[11 + (g >> 2)] if g & 3 == 3 else 0
            lim = bar.get(11 + (g >> 2), len(main)) if g & 3 == 2 else len(main)
            w.stream([self.wq_read(g + 1, 0), self.halo_read(g + 1)], max(start, pos['b', g, 0]), stepb(g + 1) - 1)
            for n in range(1, 4):
                w.stream([self.wq_read(g + 1, n)], max(start, pos['b', g, n]), min(lim, pos['b', g + 1, n] - 3))
        nxt, plan = o['npro'], []
        for R, gb in [(0, 0)] + list(bar.items()):
            lim = min(R + 3, 9 if R < o['chk1'] else 19, nxt + o['catch'] - 1)
            todo = list(range(nxt, lim + 1))
            nxt = max(nxt, lim + 1)
            seq = []
            for r_ in todo:
                pre = self.stage_pre[r_]
                seq += [(x_, pre.get(k, [])) for k, x_ in enumerate(dma[r_])] + [(None, pre[len(dma[r_])])]
            if R == o['haloL']:
                seq += [(Group([x_[-1]]), [Group(x_[:2])] + x_[2:-1]) for x_ in self.halo_loads]
            if R == o['srow'] - 2:
                seq += [(x_, []) for x_ in self.srow]
            if R == o['rawA']:
                seq += [(Group([x_[-1]]), x_[:-1]) for x_ in self.rawA]
            if R == o['rawB']:
                seq += [(Group([x_[-1]]), x_[:-1]) for x_ in self.rawB]
            for name, pk in (('packA', self.packA), ('packB', self.packB)):
                if R == o[name]:
                    w.stream(pk[0], gb + 1, gb + 11)
                    k = min(len(seq), 4 if len(seq) < 10 else 8)
                    seq = seq[:k] + [(x_, []) for x_ in pk[1]] + seq[k:]
            if seq:
                plan.append((seq, gb + (1 if len(seq) > 3 else 13), bar[R + 1]))
        annotate([x for seq, _, _ in plan for g_, pre in seq for x in list(pre) + ([g_] if g_ else [])])
        for seq, a_, b_ in plan:
            self.place_mem(w, seq, a_, b_)
        assert o['rawA'] < o['packA'] and 1 <= o['packA'] < o['pub1'] < o['pub2'] <= 14 and o['rawB'] < o['packB'] < o['pub2'] and o['packB'] <= 9
        assert o['poll1'] < o['chk1'] <= 9 and o['chk1'] < o['poll2'] < o['chk2'] < o['poll3'] < o['chk3'] <= 20
        assert o['haloL'] < o['halo'] <= 8 and o['statL'] <= 8
        if self.stats:
            assert o['srow'] - 2 < o['statC'] < o['pub1']
            w.stream(self.stats, bar[o['statC']] + 1, bar[o['pub1']])
        w.stream(self.f2_pub, bar[o['pub1']] + 1, bar[o['pub1']] + 12)
        w.stream(self.ones, bar[o['halo']] + 1, bar[o['halo'] + 1])
        sl_, sc_, fp_ = self.stat_loads(), self.check_stats(), self.ff_pre()
        annotate(sl_ + sc_ + fp_)
        w.spread(sl_, bar[o['statL']] + 1, bar[o['statL']] + 8)
        w.stream(sc_, bar[10] + 1, first_b)
        tp = V(WF + 20)
        assert o['poll2'] >= 11
        w.stream(fp_ + self.poll_all(F2), first_b + 4, bar[11])
        wl = [x_ for i in range(7) for x_ in self.w_loads(i)]
        w.spread(wl, bar[o['chk2']] + 2, stepb(o['w_end']))
        g = w.stream(self.ff_post(), bar[11] + 1, stepb(o['ff_end']))
        g = w.stream(self.late_addresses() + self.flag_addr(F3), max(g + 1, bar[o['pub2']] + 1), stepb(20) + 3)
        assert stepb(o['f3_step']) > g
        w.at(stepb(o['f3_step']), Group([wait(vm=self.h_stores), bstore(vTAG, vFA, SWS, 0, 0, 'sc1')]))
        w.stream(self.poll_addr(sTB, F3, 7, tp, 31), max(bar[o['chk2']] + 1, g + 1), bar[o['poll3']])
        if o['chk3'] < 20:
            nA = o['nA_p1b']
            for i in range(nA):
                lo = bar[o['chk3']] + 2 + (stepb(40) - bar[o['chk3']] - 2) * i // nA
                assert lo >= stepb(20 + 2 * i + 2)
                w.spread(self.a_loads(i), lo, bar[o['chk3']] + 2 + (stepb(40) - bar[o['chk3']] - 2) * (i + 1) // nA)
        pre, mul = self.qkv_pre(0, False)
        g = w.stream(pre, stepb(20) + 5)
        g = w.stream(mul[:12], g + 1)
        w.at(g + 1, Group([wait(lgkm=self.qkv_pub), barrier()]))
        g = w.stream(mul[12:] + self.qkv_post(0, False), g + 1, stepb(o['kv_end']))
        g = w.stream([Skip(3)] + [Group([wait(lgkm=self.kv_writes), barrier()])], g)
        w.stream(self.attention(0), g, len(main))
        self.ovf = (w.overflow(0, first_b), w.overflow(first_b, stepb(20)), w.overflow(stepb(20)))
        pro = self.x_reads(0) + [r for n in range(6) for r in self.w1_reads(0, n)]
        return pro + w.flat()

    @staticmethod
    def sprinkle(seq, extra, every, start=0):
        out, n, extra = [], -start, list(extra)
        seq = tie(seq)
        annotate(seq)
        annotate(extra)
        for i in seq:
            out.append(i)
            if isinstance(i, Skip):
                continue
            n += 1
            if extra and n >= every:
                out.append(extra.pop(0))
                n = 0
        return out + extra

    def tail1(self):
        o = self.opt
        p = self.stamp('gemm1')
        pre, mul = self.qkv_pre(1, True)
        late = o['chk3'] == 20
        head = pre + mul + ([self.check('f3')] if late else []) + [Group([wait(lgkm=self.qkv_pub), barrier()])]
        seq = self.qkv_post(1, True) + [Group([wait(lgkm=self.kv_writes), barrier()])] + self.attention(1)
        al = [x_ for i in range(0 if late else o['nA_p1b'], o['nA_att']) for x_ in self.a_loads(i)]
        p += head + self.sprinkle(seq, al, o['att_every']) if late else self.sprinkle(head + seq, al, o['att_every'])
        self.o_stores = [bstore(V(self.oreg(c, 0), 4), vL16, SWS, sOA, c * 1024, 'sc1') for c in range(2)]
        p += self.o_stores
        o0, o1 = self.oreg(0, 1), self.oreg(1, 1)
        p += [valu('v_cndmask_b32', V(o0 + r), V(o1 + r), V(o0 + r), sLO16) for r in range(4)]
        ob = bstore(V(o0, 4), vOB, SWS, sOB, 0, 'sc1')
        p.append(ob)
        self.o_stores.append(ob)
        p += self.flag_addr(F4) + self.poll_addr(sTB, F4, 7, V(T + 1), 31)
        return p + self.stamp('attn')

    def phase2(self):
        o = self.opt
        t = [V(136 + n) for n in range(60)]
        main = []
        tile = lambda n, k: V(P2ACC + 16 * n + 4 * k, 4)
        km = o['kmaj']
        for i in range(16 if km else 15):
            for n in range(5):
                for k in ((3, 2, 1, 0) if o['snake'] and n & 1 else (0, 1, 2, 3)):
                    main.append(mfma(tile(n, k), wslot(i, n), aslot(i, k), tile(n, k) if i else 0))
        if km:
            main += [mfma(tile(n, k), wslot(16, n), aslot(16, k), tile(n, k)) for k in range(4) for n in range(5)]
        else:
            for n in range(5):
                for i in (15, 16):
                    for k in range(4):
                        main.append(mfma(tile(n, k), wslot(i, n), aslot(i, k), tile(n, k)))
        w = Weave(main)
        annotate([x_ for i in range(15) for x_ in self.w_loads(i) + self.a_loads(i) + main[20 * i:20 * i + 20]] +
                 [x_ for i in (15, 16) for x_ in self.w_loads(i) + self.a_loads(i)] + main[300:])
        pre = [salu('s_mul_i32', sT[1], sTB, 64 * 1280), salu('s_mul_i32', sT[2], sC, 160), salu('s_add_u32', sT[3], sT[1], sT[2])]
        vO, vRd = t[12:17], t[17:22]
        for r in range(5):
            pre += [valu('v_add_u32', t[6], 256 * r, 'v0')] + self.divc(t[7], t[6], 20, 1279)
            pre += [valu('v_mul_u32_u24', t[8], 20, t[7]), valu('v_sub_u32', t[8], t[6], t[8]),
                    valu('v_mul_u32_u24', vO[r], 1280, t[7]), valu('v_lshl_add_u32', vO[r], t[8], 3, vO[r]),
                    bload(A(aRES + 2 * r, 2), vO[r], SX, sT[3], 0, FL[o['flR']]),
                    valu('v_and_b32', t[6], 1, t[7]), valu('v_lshlrev_b32', t[6], 4, t[6]),
                    valu('v_and_b32', vRd[r], 32, t[7]), valu('v_add_u32', t[6], t[6], vRd[r]),
                    valu('v_bfe_u32', vRd[r], t[7], 1, 4), valu('v_add_u32', t[6], t[6], vRd[r]),
                    valu('v_and_b32', t[7], 0x30, t[6]), valu('v_mul_u32_u24', t[6], REDR, t[6]),
                    valu('v_lshl_add_u32', t[6], t[7], 2, t[6]), valu('v_lshl_add_u32', vRd[r], t[8], 4, t[6])]
        vRw = t[10]
        pre += [valu('v_and_b32', t[6], 15, vL), valu('v_mul_u32_u24', t[6], REDR, t[6]), valu('v_lshrrev_b32', t[7], 4, vL),
                valu('v_lshl_add_u32', t[6], t[7], 4, t[6]), salu('s_mul_i32', sT[1], sW, REDW),
                valu('v_add_u32', vRw, sT[1], t[6])]
        for i in range(15):
            w.at(20 * i, *self.stamp(f'S{i}'))
        w.at(20 * o['f4_step'], Group([wait(vm=self.o_stores), bstore(vTAG, vFA, SWS, 0, 0, 'sc1')]))
        w.at(20 * o['poll4'] + 1, bload(vPOLL, vPA, SWS, 0, 0, 'sc1'))
        chk = 20 * o['chk4'] + 19
        w.at(chk, self.check('f4'), barrier())
        pend = [('W', i) for i in range(7, 17)] + [('A', i) for i in range(o['nA_att'], 17)]
        total = sum(5 if k == 'W' else 4 for k, _ in pend)
        pace, pos_ = (o['ld_end'] - 3) / total, 3.0
        first_use = lambda i: 20 * min(i, 16 if km else 15)
        while pend:
            def earliest(x):
                k, i = x
                if k == 'W':
                    return 20 * (i - 7) + 3
                return max(20 * (i - 9) if i >= 10 else 0, chk + 1 if i >= 12 else 0)
            ok = [x for x in pend if earliest(x) <= pos_ + 2]
            x = min(ok, key=lambda x: (x[1], x[0] == 'A')) if ok else min(pend, key=earliest)
            pend.remove(x)
            pos_ = max(pos_, earliest(x))
            for n, ld in enumerate(self.w_loads(x[1]) if x[0] == 'W' else self.a_loads(x[1])):
                g = int(pos_)
                if x[0] == 'W':
                    g = max(g, 20 * (x[1] - 7) + 4 * n + 3)
                assert g < first_use(x[1]) - 4
                w.at(g, ld)
                left = sum(5 if k == 'W' else 4 for k, _ in pend) + (5 if x[0] == 'W' else 4) - n
                pos_ = max(pos_, g) + max(1.0, min(pace, (o['ld_end'] - g) / left))
        pre += [valu('v_mov_b32', t[6], OOB), valu('v_or_b32', t[7], 's2', 'v0'), valu('v_cmp_ne_u32', S(92, 2), 0, t[7]),
                Skip(1), valu('v_cndmask_b32', t[6], 0, t[6], S(92, 2)), bstore(vTAG, t[6], SWS, 0, 0, 'sc1')]
        w.stream(pre, o['pre2'], 20 * 12)
        X0, p = 160, []
        for r in range(5):
            for k in range(2):
                p.append(valu('v_accvgpr_read_b32', V(X0 + 4 * r + 2 * k + 1), A(aRES + 2 * r + k)))
            for k in range(2):
                p += [valu('v_lshlrev_b32', V(X0 + 4 * r + 2 * k), 16, V(X0 + 4 * r + 2 * k + 1)),
                      valu('v_and_b32', V(X0 + 4 * r + 2 * k + 1), 0xffff0000, V(X0 + 4 * r + 2 * k + 1))]
        w.stream(p, 20 * 12, 20 * 15)
        ws_ = []
        for n in range(5):
            for k in range(4):
                ws_.append(ds_write('ds_write_b128', vRw, V(P2ACC + 16 * n + 4 * k, 4), RED + k * REDT + 64 * n))
        if km:
            ws_ = [ws_[4 * n + k] for k in range(4) for n in range(5)]
            for m in range(15):
                w.at(325 + m, ws_[m])
            ws_ = ws_[15:]
        else:
            for m in range(16):
                w.at(300 + 8 * (m >> 2) + 8 + 2 * (m & 3), ws_[m])
            ws_ = ws_[16:]
        p = w.flat() + self.stamp('gemm2')
        p += ws_ + [Group([wait(all_lgkm=True), barrier()])] + self.stamp('redbar')
        R0 = 40
        for r in range(5):
            for wv in range(4):
                p.append(ds_read('ds_read_b128', V(R0 + 16 * r + 4 * wv, 4), vRd[r], RED + wv * REDW))
        pk = lambda op, d, a_, b_: I(f"{op} {d}, {a_}, {b_}", 'valu', regs(a_) + regs(b_), regs(d))
        for r in range(5):
            b = R0 + 16 * r
            for k in range(2):
                p.append(pk('v_pk_add_f32', V(b + 2 * k, 2), V(b + 2 * k, 2), V(b + 4 + 2 * k, 2)))
            for k in range(2):
                p.append(pk('v_pk_add_f32', V(b + 8 + 2 * k, 2), V(b + 8 + 2 * k, 2), V(b + 12 + 2 * k, 2)))
            for k in range(2):
                p.append(pk('v_pk_add_f32', V(b + 2 * k, 2), V(b + 2 * k, 2), V(X0 + 4 * r + 2 * k, 2)))
            for k in range(2):
                p.append(pk('v_pk_add_f32', V(b + 2 * k, 2), V(b + 2 * k, 2), V(b + 8 + 2 * k, 2)))
            for k in range(2):
                p.append(valu('v_cvt_pk_bf16_f32', V(b + 4 + k), V(b + 2 * k), V(b + 2 * k + 1)))
            p.append(bstore(V(b + 4, 2), vO[r], SOUT, sT[3], 0, ('', 'sc1', 'nt', 'sc0 sc1')[o['outfl']]))
        return p

    def stamp_out(self):
        if not self.stamps:
            return []
        p = self.stamp('end')
        p += [raw("s_memrealtime s[82:83]", wr=['s82', 's83']), raw("s_waitcnt lgkmcnt(0)"),
              raw(f"v_writelane_b32 {vJUNK}, s82, 63", rd=['s82'], wr=[vJUNK], kind='valu'),
              raw(f"v_writelane_b32 {vJUNK}, s84, 62", rd=['s84'], wr=[vJUNK], kind='valu'),
              salu('s_lshl2_add_u32', sT[1], 's2', sW), salu('s_lshl_b32', sT[1], sT[1], 8), salu('s_add_u32', sT[1], sT[1], STAMP),
              valu('v_lshlrev_b32', V(140), 2, vL), bstore(vJUNK, V(140), SWS, sT[1])]
        if self.opt.get('dbg'):
            p += [raw(f"v_readlane_b32 s82, {vJUNK}, 0", rd=[vJUNK], wr=['s82'], kind='rdlane'),
                  raw(f"v_readlane_b32 s83, {vJUNK}, 61", rd=[vJUNK], wr=['s83'], kind='rdlane'),
                  raw(f"v_readlane_b32 s85, {vJUNK}, 63", rd=[vJUNK], wr=['s85'], kind='rdlane'),
                  valu('v_subrev_u32', V(141), 's82', vJUNK),
                  salu('s_sub_u32', 's85', 's85', 's83'),
                  raw("v_writelane_b32 v141, s85, 12", rd=['s85'], wr=['v141'], kind='valu'),
                  raw("v_writelane_b32 v141, s84, 13", rd=['s84'], wr=['v141'], kind='valu'),
                  salu('s_mov_b32', 's4', 's98'), salu('s_mov_b32', 's5', 's99'), salu('s_mov_b32', 's6', 64),
                  salu('s_lshl2_add_u32', sT[1], 's2', sW),
                  salu('s_cmp_eq_u32', sT[1], self.opt['dbg']), salu('s_cselect_b32', sT[1], 0, 256),
                  bstore(V(141), V(140), SX, sT[1])]
        return p

    def build(self):
        self.stage_ops = {}
        self.stage_pre = {}
        prog = self.startup() + self.phase1() + self.tail1() + self.phase2() + self.stamp_out()
        jit = self.opt.get('jitter', 0)
        if jit:
            import random
            rnd = random.Random(jit)
            out, k = [], 0
            for i in flatten(prog):
                out.append(i)
                if (i.kind == 'barrier' or i.kind == 'vst' or i.kind == 'label' and 'L_ok' in i.text) and rnd.random() < 0.5:
                    k += 1
                    out.append(raw(f"s_lshl2_add_u32 s100, s2, s32\n    s_mul_i32 s100, s100, {rnd.randrange(1 << 20) | 1}\n"
                                   f"    s_bitcmp1_b32 s100, {rnd.randrange(3, 12)}\n    s_cbranch_scc0 L_jit{k}\n"
                                   f"    s_bitcmp1_b32 s100, {rnd.randrange(12, 18)}\n    s_cbranch_scc0 L_jit{k}\n"
                                   f"    s_sleep {rnd.choice((2, 8, 30, 90))}\nL_jit{k}:", wr=['s100']))
            prog = out
        abl = self.opt.get('abl', 0)
        if abl:
            prog = flatten(prog)
            nb, keep = 0, []
            for i in prog:
                nb += i.kind == 'barrier'
                flag = i.kind == 'vst' and 'dwordx4' not in i.text
                drop = (abl & 1 and i.kind == 'dma' and nb >= 2) or (abl & 2 and i.kind == 'vst' and not flag) or \
                       (abl & 4 and i.kind == 'vld' and nb >= 2 and 'dwordx4' in i.text) or \
                       (abl & 8 and i.kind == 'mfma') or (abl & 16 and i.kind == 'dsr') or \
                       (abl & 64 and (i.kind == 'mfma' and 'v[56:59], v[' in i.text.split('], ', 2)[-1] + ' ' and 'v[40:43], v[56:59]' in i.text
                                      or i.kind == 'dsr' and i.rd[0] in ('v17', 'v18'))) or \
                       (abl & 128 and i.kind == 'mfma' and 'a[240:243]' in i.text and nb < 12) or \
                       (abl & 256 and i.kind in ('valu', 'trans') and 11 <= nb <= 21 and i.text.split()[0] in (
                           'v_fma_f32', 'v_mul_f32', 'v_cvt_pk_bf16_f32', 'v_pk_max_i16', 'v_exp_f32', 'v_max3_f32')) or \
                       (abl & 512 and i.kind == 'mfma' and nb >= 24) or (abl & 1024 and i.kind == 'mfma' and 11 <= nb <= 21)
                if not drop:
                    i.meta.pop('exp', None)
                    keep.append(i)
            prog = keep
        prog = finalize(prog, not abl)
        self.prog = prog
        body = "\n".join(("" if i.kind == 'label' else "    ") + i.text for i in prog)
        return f"""; Fused LayerNorm + sliding-window attention + ReLU FFN + residual, one workgroup per CU.
; @launch grid=(256,1,1) block=(256,1,1) lds={LDS_SIZE}
.amdgcn_target "amdgcn-amd-amdhsa--gfx950"
.text
.globl {NAME}
.p2align 8
.type {NAME},@function
{NAME}:
{body}
L_end:
    s_endpgm
{"".join(self.slow)}L_last:
.section .rodata,"a"
.p2align 6
.amdhsa_kernel {NAME}
  .amdhsa_next_free_vgpr 512
  .amdhsa_next_free_sgpr 102
  .amdhsa_accum_offset 256
  .amdhsa_group_segment_fixed_size 0
  .amdhsa_kernarg_size 72
  .amdhsa_user_sgpr_count 2
  .amdhsa_user_sgpr_kernarg_segment_ptr 1
  .amdhsa_system_sgpr_workgroup_id_x 1
.end_amdhsa_kernel
"""


if __name__ == "__main__":
    out = sys.argv[1]
    opts = dict(kv.split('=') for kv in sys.argv[2:])
    opts = {k: int(v) for k, v in opts.items()}
    g = Gen(stamps=opts.pop('stamps', 0), **opts)
    open(out, "w").write(g.build())
    print(stats(g.prog), g.ovf)
```

```python
import functools
import struct
import sys
from fw import *

NAME = "parallel_sum__sliding_local_dilated__dense_activation_relu__prompt_kernel"

F1, F2, F3, F4 = 0x1000, 0x1400, 0x1800, 0x2800
ST = 0x3800
WQ = 0x10000
WQJ = 163840
W2P = 0x290000
W2C = 348160
ACT = 0x540000
ACTB = 278528
STAMP = 0xE00000
WS_SIZE = 0x1000000
OOB = 0x7ffffff0

HALO = 0
XR = 20480
W1R = 86016
P0A = 135168
P0B = 147456
CSF = 159744
CSQ = CSF + 512
ZERO = CSF + 1024
DUMMY = CSF + 2048
KV = W1R
KVR, KVC, KVH = 136, 9792, 19584
RED, REDR, REDT, REDW = 0, 336, 5440, 21760
LDS_SIZE = 163840

SX, SWQKV, SWO, SW1, SW2, SOUT, SWS = (S(n, 4) for n in (4, 8, 12, 16, 20, 24, 28))
sW, sB, sJ, sTB, sC, sTAG = (S(n) for n in range(32, 38))
sXb, sXl, sW1, sW1l, sWQ, sAP = (S(n) for n in range(38, 44))
sHS = [S(44), S(45), S(46)]
sOA, sOB, sAh, sAo, sAb, sWh, sWo, sWb = (S(n) for n in range(47, 55))
sT = [S(n) for n in range(55, 68)]
sROT, sCNT = S(68), S(69)
sROW0 = S(70, 2)
sU1, sU2, sU3 = S(72, 2), S(74, 2), S(76, 2)
sSCL = S(78)
sCMP = S(81)
sLO16 = S(0, 2)
sLA, sLW = S(79), S(80)
sKP, sXs, sW1b, sG, sWQb, sR, sR2 = (S(n) for n in range(85, 92))
STAMP0 = 82

vL, vL16, vL16b = V(1), V(2), V(3)
vXa = [V(4), V(5), V(28), V(29)]
vXr = [V(6), V(7)]
vW1a = [V(8), V(9), V(10)]
vW1r = [V(n) for n in range(11, 17)]
vHr = [V(17), V(18)]
vWr = [V(n) for n in range(19, 23)]
vPOLL, vPA, vFA, vJUNK, vTAG = V(23), V(24), V(25), V(26), V(27)
vMEAN = [V(28), V(29)]
vRSTD = [V(30), V(31)]
vKVw = [V(n) for n in range(8, 12)]
vHKw, vKr, vK4, vVr, vV4 = V(12), V(13), V(14), V(15), V(16)
vQr, vQ4, vCQr, vCQw = V(4), V(5), V(6), V(7)
MASK = 32
WF = 40
FACC, RS, SS, CS = 64, 112, 120, 128
vMEANH, vRSTDH, vOB = V(61), V(62), V(63)
vSA, vSH = V(126), V(127)
ACC = [136, 64]
OKEEP = 128
T = 172
WSLOT = [A(160 + 20 * i, 1) for i in range(4)]
aONES = A(240, 4)
aRES = 244
P2ACC = 40
P4 = 248


def f2u(x):
    return struct.unpack('<I', struct.pack('<f', x))[0]


def X(s, p):
    return A(8 * s + 4 * p, 4)


def wslot(i, n):
    i %= 7
    return A(160 + 20 * i + 4 * n, 4) if i < 4 else V(196 + 20 * (i - 4) + 4 * n, 4)


def aslot(i, t):
    return A(16 * (i % 10) + 4 * t, 4)


LIGHT = ('start', 'B0', 'B5', 'B10', 'B15', 'gemm1', 'attn', 'S5', 'S11', 'gemm2', 'end')


FL = ('', 'nt', 'sc1', 'sc0 sc1', 'sc0 sc1 nt')


class Gen:
    def __init__(self, stamps=False, **opt):
        self.stamps = stamps
        self.nstamp = 0
        self.stamp_names = []
        self.slow = []
        self.opt = dict(rot=4, rot2=0, npro=2, catch=2, pro_every=99, rawA=-1, haloL=1, packA=1, pub1=3, halo=4, statL=7, srow=1, statC=1, poll1=7, chk1=8,
                        rawB=3, packB=7, pub2=10, poll2=14, chk2=16, w_end=37, ff_end=13, f3_step=21, poll3=18, chk3=19,
                        kv_end=30, pre2=45, snake=1, kmaj=1, touch=1, backoff=2, tlb=0, touch2=0, fstride=4, padw=1, flR=0, flH=0, fast=4, pro_start=0, flA=1, flB=0, flX=0, flS=2, outfl=0, nA_p1b=2, nA_att=9, att_every=8, ld_end=300, f4_step=3, poll4=7, chk4=9)
        self.opt.update(opt)

    def stamp(self, name):
        if not self.stamps or (self.stamps == 1 and name not in LIGHT):
            return []
        k = self.nstamp
        assert k < 61
        self.nstamp += 1
        self.stamp_names.append(name)
        rt = self.stamps == 1
        return [Group([raw("s_memtime s[82:83]", wr=['s82', 's83'])] +
                      ([raw("s_memrealtime s[100:101]", wr=['s100', 's101'])] if rt else []) +
                      [raw("s_waitcnt lgkmcnt(0)", drains_lgkm=True),
                       raw(f"v_writelane_b32 {vJUNK}, s82, {k}", rd=['s82'], kind='salu')] +
                      ([raw(f"v_writelane_b32 {vJUNK}, s100, {32 + k}", rd=['s100'], kind='salu')] if rt else []))]

    def check(self, name):
        if name in ('f1', 'f2'):
            dst = V(P4, 4)
            test = [valu('v_xor_b32', V(P4 + r), sCMP, V(P4 + r)) for r in range(4)]
            test += [valu('v_or3_b32', V(P4), V(P4), V(P4 + 1), V(P4 + 2)), valu('v_or_b32', V(P4), V(P4), V(P4 + 3)),
                     valu('v_cmp_ne_u32', 'vcc', 0, V(P4))]
        else:
            dst, test = vPOLL, [valu('v_cmp_ne_u32', 'vcc', sCMP, vPOLL)]
        body = "\n".join("    " + i.text for i in test)
        self.slow.append(f"""L_slow_{name}:
{f"    s_add_u32 s84, s84, {1 << (4 * len(self.slow))}" if self.stamps else ""}
    s_mov_b32 {sCNT}, 0x8000
L_spin_{name}:
    s_sleep {self.opt['backoff']}
    {bload(dst, vPA, SWS, 0, 0, 'sc1').text}
    s_waitcnt vmcnt(0)
{body}
    s_sub_u32 {sCNT}, {sCNT}, 1
    s_cbranch_scc1 L_ok_{name}
    s_cbranch_vccnz L_spin_{name}
    s_branch L_ok_{name}
""")
        return Group(test + [raw(f"s_cbranch_vccnz L_slow_{name}", rd=['vcc'], kind='branch'),
                             raw(f"L_ok_{name}:", kind='label', states=0)])

    def divc(self, dst, src, d, maxv):
        for sh in range(8, 24):
            m = -(-(1 << sh) // d)
            if m * maxv < (1 << 32) and m < (1 << 24) and all((v * m) >> sh == v // d for v in range(maxv + 1)):
                return [valu('v_mul_u32_u24', dst, m, src), valu('v_lshrrev_b32', dst, sh, dst)]
        raise ValueError

    def rstats(self, vs, vq, dst, t):
        inv = f2u(1.0 / 640.0)
        return [valu('v_mul_f32', vs, inv, vs),
                valu('v_mul_f32', t, inv, vq),
                valu('v_fma_f32', t, '-' + vs, vs, t),
                valu('v_max_f32', t, 0, t),
                valu('v_cvt_pk_bf16_f32', t, t, t),
                valu('v_lshlrev_b32', t, 16, t),
                valu('v_add_f32', t, f2u(1e-5), t),
                valu('v_cvt_pk_bf16_f32', t, t, t),
                valu('v_lshlrev_b32', t, 16, t),
                valu('v_sqrt_f32', t, t),
                valu('v_cvt_pk_bf16_f32', dst, vs, t)]

    def stat_loads(self):
        return [bload(V(RS, 4), vSA, SWS, 0, 0, 'sc1'), bload(V(RS + 4, 2), vSH, SWS, 0, 0, 'sc1')]

    def check_stats(self):
        t = V(RS + 6)
        test = [valu('v_xor_b32', t, vTAG, V(RS + 1)), valu('v_xor_b32', V(RS + 7), vTAG, V(RS + 3)),
                valu('v_xor_b32', V(RS + 5), vTAG, V(RS + 5)), valu('v_or3_b32', t, t, V(RS + 7), V(RS + 5)),
                valu('v_cmp_ne_u32', 'vcc', 0, t)]
        body = "\n".join("    " + i.text for i in self.stat_loads()) + "\n    s_waitcnt vmcnt(0)\n" + \
            "\n".join("    " + i.text for i in test)
        self.slow.append(f"""L_slow_st:
{f"    s_add_u32 s84, s84, {1 << (4 * len(self.slow))}" if self.stamps else ""}
    s_mov_b32 {sCNT}, 0x8000
L_spin_st:
    s_sleep {self.opt['backoff']}
{body}
    s_sub_u32 {sCNT}, {sCNT}, 1
    s_cbranch_scc1 L_ok_st
    s_cbranch_vccnz L_spin_st
    s_branch L_ok_st
""")
        return test[:-1] + [Group([test[-1], raw("s_cbranch_vccnz L_slow_st", rd=['vcc'], kind='branch'),
                                   raw("L_ok_st:", kind='label', states=0)])]

    def stage_dma(self, R):
        slot, out = R & 3, []
        if R < 10:
            for k in range(4):
                out.append(Group([bdma(vXa[k], SX, sXs, k * 1024, FL[self.opt['flX']])]))
            for m in range(3):
                out.append(Group([bdma(vW1a[m], SW1, sW1, m * 1024, FL[self.opt['flX']])]))
            self.stage_pre[R] = {0: [salu('s_add_u32', 'm0', sXl, slot * 4096)],
                                 4: [salu('s_add_u32', 'm0', sW1l, slot * 12288)],
                                 7: [salu('s_add_u32', sKP, sKP, 1),
                                     Group([salu('s_cmp_eq_u32', sKP, 10), salu('s_cselect_b32', sKP, 0, sKP)]),
                                     salu('s_lshl_b32', sXs, sKP, 7), salu('s_add_u32', sXs, sXs, sXb),
                                     salu('s_mul_i32', sW1, sKP, 64 * 3072), salu('s_add_u32', sW1, sW1, sW1b)] if R < 9 else []}
        else:
            for m in range(4):
                out.append(Group([bdma(vL16, SWS, sWQ, m * 1024, 'sc1')]))
            self.stage_pre[R] = {0: [salu('s_add_u32', 'm0', sXl, slot * 4096)],
                                 4: [salu('s_add_u32', sG, sG, 4),
                                     Group([salu('s_cmp_ge_u32', sG, 20), salu('s_cselect_b32', sWQ, 20, 0)]),
                                     salu('s_sub_u32', sG, sG, sWQ), salu('s_lshl_b32', sWQ, sG, 12),
                                     salu('s_add_u32', sWQ, sWQ, sWQb)] +
                                    ([salu('s_add_u32', sWQ, sWQ, 81920)] if R >= 14 else []) if R < 19 else []}
        self.stage_ops[R] = [i for g in out for i in g if i.kind == 'dma']
        return out

    def inline_stage(self, R):
        out, pre = self.stage_dma(R), self.stage_pre[R]
        for k, ins in pre.items():
            ins = flatten(ins)
            if k < len(out):
                out[k][:0] = ins
            else:
                out[-1].extend(ins)
        return out

    def place_mem(self, w, seq, start, end):
        n = sum(1 for g, _ in seq if g)
        first = start + len(seq[0][1])
        last = end - (min(len(seq[-1][1]), 3) if seq[-1][0] is None else 0) - 1
        prev, k, carry = start - 1, 0, []
        for g, pre in seq + [(None, None)]:
            if pre is not None:
                carry += pre
            if g is None and pre is not None:
                continue
            if g is not None:
                lo = min(max(prev + 1, first + (last - first) * k // n), end - 1)
                hi = min(max(lo + 1, first + (last - first) * (k + 1) // n - 1), end)
                at = min(range(lo, hi), key=lambda x: (max(gcost(w.v[x] + vcost(g), w.s[x] + scost(g)) - w.cap, 0), x))
                k += 1
            else:
                at = end
            room = at - prev - 1
            if room <= 0:
                if g is not None:
                    w.at(at, Group(flatten(carry) + flatten([g])))
                elif carry:
                    w.at(prev, Group(flatten(carry)))
            else:
                for j, c in enumerate(carry):
                    w.at(prev + 1 + (j if len(carry) <= room else j * room // len(carry)), c)
                if g is not None:
                    w.at(at, g)
            carry, prev = [], at

    def ring_barrier(self, R, extra_vm=()):
        return Group([wait(vm=self.stage_ops[R] + list(extra_vm), all_lgkm=True), barrier()])

    def p2_steps(self):
        return [(sAh, sWh, i) for i in range(12)] + [(sAo, sWo, i) for i in range(4)] + [(sAb, sWb, 0)]

    def step_base(self, dst, base, k, stride, i):
        m = self.opt['rot2']
        if i == 16 or not m or (m == 12 and i >= 12):
            return [salu('s_add_u32', dst, base, k * stride)]
        if m in (2, 4):
            return [salu('s_add_u32', dst, sR2, k & (m - 1)), salu('s_and_b32', dst, dst, m - 1), salu('s_mul_i32', dst, dst, stride),
                    salu('s_add_u32', dst, dst, base)] + ([salu('s_add_u32', dst, dst, (k & ~(m - 1)) * stride)] if k >= m else [])
        return [salu('s_cmp_ge_u32', sR2, 12 - k), salu('s_cselect_b32', dst, (k - 12) & 0xffffffff, k),
                salu('s_add_u32', dst, dst, sR2), salu('s_mul_i32', dst, dst, stride), salu('s_add_u32', dst, dst, base)]

    @functools.lru_cache(None)
    def w_loads(self, i):
        _, sw, k = self.p2_steps()[i]
        out = []
        for n in range(5):
            g = [bload(wslot(i, n), vL16 if n < 4 else vL16b, SWS, sLW, (n & 3) * 1024, 'sc1')]
            if n == 0:
                g[:0] = self.step_base(sLW, sw, k, 5120, i)
            out.append(Group(g))
        return out

    @functools.lru_cache(None)
    def a_loads(self, i):
        sa, _, k = self.p2_steps()[i]
        out = []
        for t in range(4):
            g = [bload(aslot(i, t), vL16, SWS, sLA, t * 1024, 'sc1')]
            if t == 0:
                g[:0] = self.step_base(sLA, sa, k, 4096, i)
            out.append(Group(g))
        return out

    def startup(self):
        t = [V(n) for n in range(136, 256)]
        vQ, vZ, vOOB, vU, vHu, vR, vCC, vPs = t[5], t[7], t[14], t[15], t[16], t[17], t[18], t[19]
        rdA, soA = [t[20], t[21], t[22]], [sT[8], sT[9], sT[10]]
        rdB, stB, ldB = [t[23], t[24], t[25]], [t[26], t[27], t[28]], [t[29], t[30], t[31]]
        sW2c, sPB = sT[11], sT[12]
        H, PK = 200, 176
        p = []
        e = p.append
        x = p.extend
        e(salu('s_cmp_ge_u32', 's2', 256))
        e(raw("s_cbranch_scc1 L_end", rd=['scc'], kind='branch'))
        e(salu('s_getpc_b64', S(56, 2)))
        e(raw("L_pc:", kind='label', states=0))
        for r, off in ((4, 0), (16, 32), (8, 8), (28, 64), (12, 16), (20, 40), (24, 48)):
            e(raw(f"s_load_dwordx2 {S(r, 2)}, s[0:1], {off}", wr=regs(S(r, 2))))
        if self.opt.get('dbg'):
            e(raw("s_load_dwordx2 s[98:99], s[0:1], 56", wr=['s98', 's99']))
        e(salu('s_lshr_b32', sT[0], 's2', 3))
        e(salu('s_lshl_b32', sT[4], sT[0], 4))
        e(valu('v_lshrrev_b32', t[0], 6, 'v0'))
        e(valu('v_and_b32', t[1], 3, 'v0'))
        e(valu('v_lshl_add_u32', t[1], t[0], 2, t[1]))
        e(valu('v_add_lshl_u32', t[1], sT[4], t[1], 7))
        e(valu('v_min_u32', t[1], 'L_last-L_pc-4', t[1]))
        e(valu('v_mov_b32', t[3], 's57'))
        e(I(f"v_add_co_u32 {t[2]}, vcc, s56, {t[1]}", 'valu', ['s56', t[1]], [t[2], 'vcc']))
        e(valu('v_readfirstlane_b32', sW, t[0]))
        e(valu('v_and_b32', vL, 63, 'v0'))
        e(I(f"v_addc_co_u32 {t[3]}, vcc, 0, {t[3]}, vcc", 'valu', [t[3], 'vcc'], [t[3], 'vcc']))
        e(I(f"global_load_dword v255, {V(138, 2)}, off", 'vld', [t[2], t[3]], ['v255']))
        x(self.stamp('start'))
        if self.stamps:
            e(salu('s_mov_b32', 's84', 0))
            e(raw("s_memrealtime s[82:83]", wr=['s82', 's83']))
            e(raw("s_waitcnt lgkmcnt(0)"))
            e(raw(f"v_writelane_b32 {vJUNK}, s82, 61", rd=['s82'], kind='salu'))
        e(salu('s_and_b32', sT[3], 's2', 7))
        e(salu('s_lshr_b32', sT[4], sT[3], 1))
        e(salu('s_and_b32', sT[3], sT[3], 1))
        e(salu('s_and_b32', sB, sT[0], 3))
        e(salu('s_lshl2_add_u32', sB, sT[4], sB))
        e(valu('v_lshrrev_b32', t[4], 3, vL))
        e(valu('v_lshrrev_b32', vQ, 4, vL))
        e(valu('v_and_b32', t[6], 7, vL))
        e(valu('v_xor_b32', t[6], t[6], vQ))
        e(valu('v_lshlrev_b32', t[6], 4, t[6]))
        e(valu('v_mul_u32_u24', vXa[0], 2560, t[4]))
        e(valu('v_add_u32', vXa[0], vXa[0], t[6]))
        e(valu('v_xor_b32', vXa[2], 64, vXa[0]))
        e(valu('v_add_u32', vXa[1], 1280 - 1024, vXa[0]))
        e(valu('v_add_u32', vXa[3], 20480 + 1280 - 3072, vXa[2]))
        e(valu('v_add_u32', vXa[2], 20480 - 2048, vXa[2]))
        rot = self.opt['rot']
        if rot == 1:
            e(salu('s_and_b32', sR, sT[0], 3))
            e(salu('s_mul_i32', sR, sR, 5))
            e(salu('s_lshr_b32', sR, sR, 1))
            e(salu('s_lshr_b32', sKP, sT[0], 2))
            e(salu('s_add_u32', sR, sR, sKP))
            e(salu('s_cmp_ge_u32', sR, 10))
            e(salu('s_cselect_b32', sKP, 10, 0))
            e(salu('s_sub_u32', sR, sR, sKP))
        elif rot == 2:
            e(salu('s_lshr_b32', sR, sT[0], 2))
            e(salu('s_xor_b32', sR, sR, sT[0]))
            e(salu('s_and_b32', sR, sR, 1))
            e(salu('s_mul_i32', sR, sR, 5))
        elif rot == 4:
            e(salu('s_lshr_b32', sR, sT[0], 2))
            e(salu('s_add_u32', sR, sR, sT[0]))
            e(salu('s_and_b32', sR, sR, 3))
            e(salu('s_mul_i32', sR, sR, 5))
            e(salu('s_lshr_b32', sR, sR, 1))
        elif rot in (3, 7, 8, 9):
            g_, step = {3: (3, 3), 7: (5, 2), 8: (4, 0), 9: (5, 2)}[rot]
            e(salu('s_lshr_b32', sR, sT[0], 2))
            e(salu('s_and_b32', sKP, sT[0], 3))
            e(salu('s_add_u32', sR, sR, sKP))
            if rot in (8, 9):
                e(salu('s_add_u32', sR, sR, sT[4]))
                e(salu('s_lshl1_add_u32', sR, sT[3], sR))
            e(salu('s_mul_i32', sKP, sR, -(-256 // g_)))
            e(salu('s_lshr_b32', sKP, sKP, 8))
            e(salu('s_mul_i32', sKP, sKP, g_))
            e(salu('s_sub_u32', sR, sR, sKP))
            if step:
                e(salu('s_mul_i32', sR, sR, step))
            else:
                e(salu('s_mul_i32', sR, sR, 5))
                e(salu('s_lshr_b32', sR, sR, 1))
        elif rot in (5, 6):
            e(salu('s_and_b32', sR, sT[0], 3))
            e(salu('s_mul_i32', sR, sR, 5))
            e(salu('s_lshr_b32', sR, sR, 1))
            if rot == 5:
                e(salu('s_lshr_b32', sKP, sT[0], 2))
            else:
                e(salu('s_lshr_b32', sKP, sT[0], 2))
                e(salu('s_and_b32', sKP, sKP, 3))
                e(salu('s_mul_i32', sKP, sKP, 5))
                e(salu('s_lshr_b32', sKP, sKP, 1))
            e(salu('s_add_u32', sR, sR, sKP))
            e(salu('s_mul_i32', sKP, sT[3], 5 if rot == 5 else 1))
            e(salu('s_add_u32', sR, sR, sKP))
            e(salu('s_add_u32', sR, sR, sT[4]))
            e(salu('s_mul_i32', sKP, sR, 26))
            e(salu('s_lshr_b32', sKP, sKP, 8))
            e(salu('s_mul_i32', sKP, sKP, 10))
            e(salu('s_sub_u32', sR, sR, sKP))
        else:
            e(salu('s_mov_b32', sR, 0))
        e(salu('s_mov_b32', sKP, sR))
        e(salu('s_lshl2_add_u32', sXb, sB, sW))
        e(salu('s_mul_i32', sXb, sXb, 32 * 1280))
        e(salu('s_lshl_b32', sXs, sKP, 7))
        e(salu('s_add_u32', sXs, sXs, sXb))
        e(salu('s_lshl_b32', sXl, sW, 14))
        e(salu('s_add_u32', sXl, sXl, XR))
        e(salu('s_mov_b32', S(6), 2621440))
        e(salu('s_mov_b32', S(7), 0x20000))
        npro = self.opt['npro']
        st = [self.inline_stage(R) for R in range(npro)]
        fast = self.opt['fast']
        if fast:
            e(raw("s_waitcnt lgkmcnt(0)", drains_lgkm=True))
            x(st[0][:fast])
        for r, size in ((16, 1966080),):
            e(salu('s_mov_b32', S(r + 2), size))
            e(salu('s_mov_b32', S(r + 3), 0x20000))
        e(salu('s_lshr_b32', sJ, sT[0], 2))
        e(salu('s_lshl3_add_u32', sJ, sT[3], sJ))
        e(salu('s_mul_i32', sW1b, sW, 16 * 3072))
        e(salu('s_mul_i32', sT[1], sJ, 192))
        e(salu('s_add_u32', sW1b, sW1b, sT[1]))
        e(salu('s_mul_i32', sW1, sKP, 64 * 3072))
        e(salu('s_add_u32', sW1, sW1, sW1b))
        e(salu('s_mul_i32', sW1l, sW, 3072))
        e(salu('s_add_u32', sW1l, sW1l, W1R))
        e(salu('s_mov_b32', S(30), WS_SIZE))
        e(salu('s_mov_b32', S(31), 0x20000))
        vSr, vSt, SR = V(232), V(233), 236
        e(valu('v_mov_b32', vZ, 0))
        e(valu('v_mov_b32', vOOB, OOB))
        e(salu('s_lshl2_add_u32', sT[1], sJ, sW))
        e(salu('s_lshl_b32', sT[1], sT[1], 1))
        e(salu('s_lshl_b32', sT[2], sB, 7))
        e(salu('s_add_u32', sT[1], sT[1], sT[2]))
        e(valu('v_lshrrev_b32', vSt, 5, vL))
        e(valu('v_add_u32', vSt, sT[1], vSt))
        e(valu('v_and_b32', t[8], 31, vL))
        e(valu('v_cmp_gt_u32', 'vcc', 16, t[8]))
        e(valu('v_mul_u32_u24', vSr, 1280, vSt))
        e(valu('v_lshl_add_u32', vSr, t[8], 4, vSr))
        e(valu('v_cndmask_b32', V(234), vOOB, vSr, 'vcc'))
        if self.opt['touch']:
            e(salu('s_lshl_b32', sT[1], 's2', 7))
            e(salu('s_add_u32', sT[1], sT[1], F1))
            e(valu('v_cmp_eq_u32', 'vcc', 1, 'v0'))
            e(valu('v_mov_b32', V(235), sT[1]))
            e(valu('v_cndmask_b32', V(235), 0, V(235), 'vcc'))
            if self.opt['tlb']:
                e(valu('v_subrev_u32', t[9], 8, 'v0'))
                e(valu('v_cmp_gt_u32', 'vcc', 7, t[9]))
                e(valu('v_lshlrev_b32', t[9], 21, t[9]))
                e(valu('v_cndmask_b32', V(235), V(235), t[9], 'vcc'))
        e(raw("s_waitcnt lgkmcnt(0)", drains_lgkm=True))
        x(self.stamp('karg'))
        srow = [bload(V(SR, 4), vSr, SX), bload(V(SR + 4, 4), vSr, SX, 0, 512), bload(V(SR + 8, 4), V(234), SX, 0, 1024),
                bload(vTAG, V(235) if self.opt['touch'] else vZ, SWS, 0, 0, 'sc1')]
        if self.opt['srow'] == 0:
            x(srow)

        def w1_addr(m):
            return [valu('v_add_u32', t[8], 64 * m, vL)] + self.divc(t[9], t[8], 12, 191) + [
                valu('v_mul_u32_u24', t[10], 12, t[9]), valu('v_sub_u32', t[8], t[8], t[10]),
                valu('v_lshrrev_b32', t[10], 2, t[9]), valu('v_and_b32', t[10], 2, t[10]),
                valu('v_xor_b32', t[8], t[8], t[10]), valu('v_mul_u32_u24', t[9], 3072, t[9]),
                valu('v_lshl_add_u32', vW1a[m], t[8], 4, t[9])] + (
                [valu('v_subrev_u32', vW1a[m], 1024 * m, vW1a[m])] if m else [])
        x(st[0][fast:2])
        x(w1_addr(0))
        x(st[0][max(fast, 2):3])
        x(w1_addr(1))
        x(st[0][max(fast, 3):4])
        x(self.stamp('st0x'))
        x(w1_addr(2))
        e(st[0][4])
        e(salu('s_and_b32', sTB, sT[0], 7))
        e(salu('s_lshl3_add_u32', sTB, sT[4], sTB))
        e(salu('s_lshr_b32', sC, sT[0], 3))
        e(salu('s_lshl2_add_u32', sC, sT[3], sC))
        for r, size in ((8, 2457600), (12, 819200), (20, 1966080), (24, 2621440)):
            e(salu('s_mov_b32', S(r + 2), size))
            e(salu('s_mov_b32', S(r + 3), 0x20000))
        e(st[0][5])
        e(st[0][6])
        x(self.stamp('st0w'))
        if self.opt['srow'] == 1:
            x(srow)
        self.p0a, self.rawA = [], []
        early = self.opt['rawA'] < 0
        ldA, sA = [V(229), V(230), V(231)], S(97)
        later = []
        e_, x_ = (e, x) if early else (later.append, later.extend)
        sUA, sSec = sT[6], sT[7]
        e_(salu('s_mul_i32', sUA, 's2', 171))
        e_(salu('s_lshr_b32', sUA, sUA, 9))
        e_(salu('s_mul_i32', sSec, sUA, 3))
        e_(salu('s_sub_u32', sSec, 's2', sSec))
        e_(salu('s_mul_i32', sA, sUA, 8 * 3840))
        e_(salu('s_mul_i32', sT[2], sSec, 1280))
        e_(salu('s_add_u32', sA, sA, sT[2]))
        e_(salu('s_lshl_b32', sT[2], sW, 6))
        for m in range(3):
            e_(valu('v_add_u32', t[8], sT[2], vL))
            if m:
                e_(valu('v_add_u32', t[8], 256 * m, t[8]))
            x_(self.divc(t[9], t[8], 80, 767))
            if m == 2:
                e_(valu('v_cmp_gt_u32', 'vcc', 640, t[8]))
            e_(valu('v_mul_u32_u24', t[9], 3840 - 1280, t[9]))
            e_(valu('v_lshl_add_u32', ldA[m], t[8], 4, t[9]))
            if m == 2:
                e_(valu('v_cndmask_b32', ldA[m], vOOB, ldA[m], 'vcc'))
            d = bdma(ldA[m], SWQKV, sA, 0, FL[self.opt['flA']])
            g_ = Group([salu('s_lshl_b32', sT[5], sW, 10), salu('s_add_u32', 'm0', sT[5], P0A + 4096 * m), d])
            self.p0a.append(d)
            if early:
                e(g_)
            else:
                self.rawA.append(g_)
        if self.opt['touch2']:
            e(salu('s_lshr_b32', sT[1], sUA, 2))
            e(salu('s_lshl_b32', sT[1], sT[1], 12))
            e(salu('s_and_b32', sT[2], sUA, 3))
            e(salu('s_lshl_b32', sT[2], sT[2], 8))
            e(salu('s_add_u32', sT[1], sT[1], sT[2]))
            e(salu('s_add_u32', sT[1], sT[1], WQ + 3072))
            e(salu('s_lshl2_add_u32', sT[2], sSec, sW))
            e(salu('s_cmp_lt_u32', sT[2], 8))
            e(salu('s_cselect_b32', sT[1], sT[1], 0x70000000))
            e(salu('s_cmp_lt_u32', 's2', 240))
            e(salu('s_cselect_b32', sT[1], sT[1], 0x70000000))
            e(salu('s_mul_i32', sT[2], sT[2], 4 * 81920))
            e(salu('s_add_u32', sT[1], sT[1], sT[2]))
            e(valu('v_and_b32', t[8], 3, vL))
            e(valu('v_mul_u32_u24', t[8], 81920, t[8]))
            e(bload(V(254), t[8], SWS, sT[1]))
        if self.opt['tlb'] > 1:
            e(valu('v_lshlrev_b32', t[8], 20, 'v0'))
            e(valu('v_cmp_gt_u32', 'vcc', 3, 'v0'))
            e(valu('v_cndmask_b32', t[8], vOOB, t[8], 'vcc'))
            e(bload(V(254), t[8], SOUT))
        x(self.stamp('p0a'))

        q = later
        e = q.append
        x = q.extend
        vHa = t[32]
        e(valu('v_and_b32', vU, 15, vL))
        e(valu('v_bfe_u32', vR, vL, 2, 2))
        e(valu('v_and_b32', vCC, 3, vL))
        e(salu('s_and_b32', sT[1], sW, 1))
        e(salu('s_lshl_b32', sT[2], sT[1], 3))
        e(valu('v_lshrrev_b32', vHu, 3, vL))
        e(valu('v_add_u32', vHu, sT[2], vHu))
        e(salu('s_lshl_b32', sT[2], sB, 7))
        e(salu('s_sub_u32', sT[2], sT[2], 16))
        e(valu('v_add_u32', vHa, sT[2], vHu))
        e(valu('v_cmp_le_i32', 'vcc', 0, vHa))
        e(valu('v_lshrrev_b32', t[8], 1, vHu))
        e(valu('v_xor_b32', t[8], t[8], vL))
        e(valu('v_and_b32', t[8], 7, t[8]))
        e(valu('v_mul_u32_u24', vHa, 1280, vHa))
        e(valu('v_lshl_add_u32', vHa, t[8], 4, vHa))
        e(valu('v_cndmask_b32', vHa, vOOB, vHa, 'vcc'))
        e(valu('v_cmp_lt_u32', 'vcc', 1, vHu))
        e(valu('v_cndmask_b32', vHa, vOOB, vHa, 'vcc'))
        sHk, sHl = S(94), S(95)
        e(salu('s_lshr_b32', sT[2], sW, 1))
        e(salu('s_mul_i32', sT[2], sT[2], 5))
        e(salu('s_lshl_b32', sHl, sT[2], 11))
        e(salu('s_lshl_b32', sT[1], sT[1], 10))
        e(salu('s_add_u32', sHl, sHl, sT[1]))
        e(salu('s_add_u32', sHk, sT[2], sR))
        halo_loads = []
        for i5 in range(5):
            halo_loads.append(Group([salu('s_cmp_ge_u32', sHk, 10 - i5), salu('s_cselect_b32', sT[5], (i5 - 10) & 0xffffffff, i5),
                                     salu('s_add_u32', sT[5], sT[5], sHk), salu('s_lshl_b32', sT[5], sT[5], 7),
                                     salu('s_add_u32', 'm0', sHl, HALO + 2048 * i5), bdma(vHa, SX, sT[5], 0, FL[self.opt['flH']])]))
        self.halo_ops = [g_[-1] for g_ in halo_loads]
        e(salu('s_lshl2_add_u32', sT[1], sB, sW))
        e(salu('s_lshl_b32', sT[1], sT[1], 8))
        e(salu('s_add_u32', sT[1], sT[1], ST))
        e(valu('v_lshl_add_u32', vSA, vU, 4, sT[1]))
        e(salu('s_lshl_b32', sT[1], sB, 10))
        e(salu('s_max_u32', sT[1], sT[1], 128))
        e(salu('s_add_u32', sT[1], sT[1], ST - 128))
        e(valu('v_lshl_add_u32', vSH, vU, 3, sT[1]))
        e(valu('v_lshlrev_b32', vL16, 4, vL))
        e(valu('v_add_u32', vL16b, 4096, vL16))
        e(valu('v_lshrrev_b32', t[8], 1, vU))
        e(valu('v_xor_b32', t[8], t[8], vQ))
        e(valu('v_lshlrev_b32', t[8], 4, t[8]))
        e(valu('v_lshl_add_u32', vHr[0], vU, 7, t[8]))
        e(valu('v_xor_b32', vHr[1], 64, vHr[0]))
        e(valu('v_and_b32', t[8], 8, vU))
        e(valu('v_lshlrev_b32', t[8], 7, t[8]))
        e(valu('v_add3_u32', vXr[0], sXl, vHr[0], t[8]))
        e(valu('v_xor_b32', vXr[1], 64, vXr[0]))
        e(valu('v_lshl_add_u32', t[8], vQ, 3, vR))
        e(valu('v_mul_u32_u24', t[8], 192, t[8]))
        e(valu('v_lshl_add_u32', t[8], vCC, 3, t[8]))
        e(valu('v_and_b32', t[9], 1, vQ))
        e(valu('v_lshl_add_u32', t[8], t[9], 5, t[8]))
        e(salu('s_cmp_eq_u32', sW, 3))
        e(salu('s_cselect_b32', sROT, 0, sW))
        e(salu('s_lshl_b32', sT[1], sB, 1))
        e(salu('s_lshr_b32', sT[2], sW, 1))
        e(salu('s_add_u32', sT[12], sT[1], sT[2]))
        e(salu('s_mul_i32', sAP, sT[12], ACTB))
        e(salu('s_and_b32', sT[2], sW, 1))
        e(salu('s_lshl_b32', sT[2], sT[2], 11))
        e(salu('s_add_u32', sAP, sAP, sT[2]))
        e(salu('s_add_u32', sAP, sAP, ACT))
        for m in range(3):
            e(salu('s_add_u32', sT[1], sROT, m))
            e(salu('s_cmp_ge_u32', sT[1], 3))
            e(salu('s_cselect_b32', sT[2], 3, 0))
            e(salu('s_sub_u32', sT[1], sT[1], sT[2]))
            e(salu('s_lshl_b32', sT[2], sT[1], 6))
            e(salu('s_add_u32', sT[2], sT[2], W1R))
            e(valu('v_add_u32', vW1r[2 * m], sT[2], t[8]))
            e(valu('v_xor_b32', vW1r[2 * m + 1], 32, vW1r[2 * m]))
            e(salu('s_mul_i32', sT[2], sJ, 3))
            e(salu('s_add_u32', sT[1], sT[1], sT[2]))
            e(salu('s_lshl_b32', sT[1], sT[1], 12))
            e(salu('s_add_u32', sHS[m], sT[1], sAP))
        e(valu('v_mov_b32', t[8], 0x3f803f80))
        for r in range(4):
            e(valu('v_accvgpr_write_b32', A(240 + r), t[8]))
        stA = [vPs, t[33], t[35]]
        soA[:] = [sT[9], sT[9], sT[10]]
        e(salu('s_lshr_b32', sT[1], sUA, 2))
        e(salu('s_lshl_b32', sT[1], sT[1], 12))
        e(salu('s_and_b32', sT[2], sUA, 3))
        e(salu('s_lshl_b32', sT[2], sT[2], 8))
        e(salu('s_add_u32', sT[1], sT[1], sT[2]))
        e(salu('s_add_u32', sT[1], sT[1], WQ))
        e(salu('s_cmp_lt_u32', 's2', 240))
        e(salu('s_cselect_b32', sT[1], sT[1], 0x70000000))
        e(salu('s_lshl_b32', sT[2], sSec, 10))
        e(salu('s_add_u32', soA[0], sT[1], sT[2]))
        e(salu('s_lshl_b32', sT[2], sSec, 6))
        e(salu('s_add_u32', sT[2], sT[2], 3072))
        e(salu('s_add_u32', soA[2], sT[1], sT[2]))
        e(salu('s_cmp_eq_u32', sSec, 2))
        e(salu('s_cselect_b32', S(93), soA[2], 0x70000000))
        e(salu('s_mov_b32', sT[3], WQJ))
        e(salu('s_mov_b32', sT[4], 81920))
        e(valu('v_mul_u32_u24', t[8], 1280, vR))
        e(valu('v_add_u32', t[8], P0A, t[8]))
        for k in range(3):
            if k < 2:
                e(salu('s_lshl_b32', sT[1], sW, 2))
                e(salu('s_add_u32', sT[1], sT[1], 16 * k))
                e(valu('v_add_u32', t[9], sT[1], vQ))
                e(valu('v_mul_u32_u24', t[10], 40, t[9]))
                e(valu('v_lshl_add_u32', t[10], vCC, 3, t[10]))
                e(valu('v_add_u32', rdA[k], t[8], t[10]))
                e(valu('v_lshlrev_b32', t[11], 4, vU))
            else:
                e(salu('s_and_b32', sT[1], sW, 1))
                e(salu('s_lshl_b32', sT[1], sT[1], 4))
                e(valu('v_lshl_add_u32', t[12], vQ, 2, sT[1]))
                e(valu('v_add_u32', t[9], t[12], vCC))
                e(valu('v_mul_u32_u24', t[10], 40, t[9]))
                e(valu('v_add3_u32', rdA[k], t[8], t[10], 32))
                e(valu('v_add_u32', t[9], t[12], vR))
                e(valu('v_lshlrev_b32', t[11], 4, vCC))
            e(valu('v_lshrrev_b32', t[10], 1, t[9]))
            e(valu('v_mad_u32_u24', t[11], t[10], sT[3], t[11]))
            e(valu('v_and_b32', t[9], 1, t[9]))
            e(valu('v_mad_u32_u24', stA[k], t[9], sT[4], t[11]))
        e(salu('s_cmp_lt_u32', sW, 2))
        e(salu('s_cselect_b64', 'vcc', -1, 0))
        e(valu('v_cndmask_b32', stA[2], vOOB, stA[2], 'vcc'))
        sSrc, sDst = [S(76), S(77), S(3)], [sT[6], sT[7], sT[8]]
        e(valu('v_lshrrev_b32', t[12], 3, vL))
        e(valu('v_and_b32', t[13], 3, t[12]))
        e(valu('v_lshrrev_b32', t[12], 2, t[12]))
        e(valu('v_mul_u32_u24', t[13], 1280, t[13]))
        e(valu('v_and_b32', t[8], 7, vL))
        e(valu('v_lshl_add_u32', t[13], t[8], 4, t[13]))
        e(salu('s_mov_b32', sT[12], W2C))
        for m in range(3):
            e(salu('s_mul_i32', sT[1], sW, 768))
            e(salu('s_add_u32', sT[1], sT[1], 's2'))
            if m:
                e(salu('s_add_u32', sT[1], sT[1], 256 * m))
            e(salu('s_mul_i32', sT[2], sT[1], 6554))
            e(salu('s_lshr_b32', sT[2], sT[2], 16))
            e(salu('s_mul_i32', sT[3], sT[2], 10))
            e(salu('s_sub_u32', sT[3], sT[1], sT[3]))
            e(salu('s_lshr_b32', sT[4], sT[2], 2))
            e(salu('s_mul_i32', sDst[m], sT[4], 5120))
            e(salu('s_and_b32', sT[5], sT[2], 3))
            e(salu('s_lshl_b32', sSrc[m], sT[5], 8))
            e(salu('s_add_u32', sDst[m], sDst[m], sSrc[m]))
            e(salu('s_add_u32', sDst[m], sDst[m], W2P))
            e(salu('s_lshl_b32', sT[5], sT[5], 2))
            e(salu('s_lshl_b32', sSrc[m], sT[4], 5))
            e(salu('s_add_u32', sSrc[m], sSrc[m], sT[5]))
            e(salu('s_sub_u32', sT[4], sT[4], 48))
            e(salu('s_mul_i32', sT[4], sT[4], 40))
            e(salu('s_add_u32', sT[4], sT[4], sT[5]))
            e(salu('s_sub_u32', sT[5], sT[2], 256))
            e(salu('s_mul_i32', sT[5], sT[5], 40))
            e(salu('s_add_u32', sT[5], sT[5], 16))
            e(salu('s_cmp_lt_u32', sT[2], 256))
            e(salu('s_cselect_b32', sT[4], sT[4], sT[5]))
            e(salu('s_cmp_lt_u32', sT[2], 192))
            e(salu('s_cselect_b32', sSrc[m], sSrc[m], sT[4]))
            e(salu('s_cmp_lt_u32', sT[2], 192))
            e(salu('s_cselect_b32', sT[4], 16, 20))
            e(salu('s_mul_i32', sT[4], sT[4], 1280))
            e(valu('v_mad_u32_u24', ldB[m], t[12], sT[4], t[13]))
            e(salu('s_mul_i32', sSrc[m], sSrc[m], 1280))
            e(salu('s_lshl_b32', sT[4], sT[3], 7))
            e(salu('s_add_u32', sSrc[m], sSrc[m], sT[4]))
            e(salu('s_cmp_lt_u32', sT[1], 2720))
            e(salu('s_cselect_b32', sSrc[m], sSrc[m], 0x70000000))
            e(salu('s_cmp_lt_u32', sT[1], 2720))
            e(salu('s_cselect_b32', sDst[m], sDst[m], 0x70000000))
            e(salu('s_lshl_b32', sT[3], sT[3], 2))
            e(valu('v_add_u32', t[9], sT[3], vQ))
            x(self.divc(t[10], t[9], 5, 39))
            e(valu('v_mul_u32_u24', t[11], 5, t[10]))
            e(valu('v_sub_u32', t[9], t[9], t[11]))
            e(valu('v_lshlrev_b32', t[9], 10, t[9]))
            e(valu('v_lshl_add_u32', t[9], vU, 4, t[9]))
            e(valu('v_mad_u32_u24', stB[m], t[10], sT[12], t[9]))
        e(salu('s_mul_i32', sT[1], sW, 3072))
        e(salu('s_add_u32', sPB, sT[1], P0B))
        e(valu('v_lshlrev_b32', t[8], 7, vR))
        e(valu('v_lshl_add_u32', t[8], vQ, 5, t[8]))
        e(valu('v_lshl_add_u32', t[8], vCC, 3, t[8]))
        e(valu('v_add_u32', rdB[0], sPB, t[8]))
        e(salu('s_mov_b32', S(75), 0x20000))
        e(salu('s_mul_i32', sW2c, sC, W2C))
        e(salu('s_add_u32', sW2c, sW2c, W2P))
        vHw = t[34]
        e(salu('s_mul_i32', sT[1], sW, 20))
        e(valu('v_add_u32', t[8], sT[1], vL))
        e(valu('v_cmp_gt_u32', 'vcc', 20, vL))
        e(valu('v_lshrrev_b32', t[9], 3, t[8]))
        e(valu('v_and_b32', t[8], 7, t[8]))
        e(valu('v_lshlrev_b32', t[8], 4, t[8]))
        e(valu('v_lshl_add_u32', t[8], t[9], 11, t[8]))
        e(valu('v_add_u32', t[9], DUMMY, vL16))
        e(valu('v_cndmask_b32', vHw, t[9], t[8], 'vcc'))
        fs = self.opt['fstride']
        e(salu('s_lshr_b32', sT[3], 's2', 2))
        e(salu('s_lshl_b32', sT[3], sT[3], fs))
        e(salu('s_and_b32', sT[1], 's2', 3))
        e(salu('s_lshl2_add_u32', sT[3], sT[1], sT[3]))
        e(salu('s_add_u32', sT[3], sT[3], F1))
        e(valu('v_cmp_eq_u32', 'vcc', 0, 'v0'))
        e(valu('v_mov_b32', t[8], sT[3]))
        e(valu('v_cndmask_b32', vFA, vOOB, t[8], 'vcc'))
        x(self.poll_all(F1))
        e(salu('s_mul_i32', sWQb, sJ, WQJ))
        e(salu('s_add_u32', sWQb, sWQb, WQ))
        e(salu('s_lshl1_add_u32', sG, sR, sW))
        e(salu('s_cmp_ge_u32', sG, 20))
        e(salu('s_cselect_b32', sWQ, 20, 0))
        e(salu('s_sub_u32', sG, sG, sWQ))
        e(salu('s_lshl_b32', sWQ, sG, 12))
        e(salu('s_add_u32', sWQ, sWQ, sWQb))
        e(salu('s_lshr_b32', sT[1], 's2', 3))
        e(salu('s_and_b32', sT[2], sT[1], 7))
        e(salu('s_mul_i32', sT[2], sT[2], 3))
        e(salu('s_lshr_b32', sT[2], sT[2], 1))
        e(salu('s_lshr_b32', sT[1], sT[1], 3))
        e(salu('s_mul_i32', sT[1], sT[1], 3))
        e(salu('s_add_u32', sR2, sT[1], sT[2]))
        e(salu('s_cmp_ge_u32', sR2, 12))
        e(salu('s_cselect_b32', sT[1], 12, 0))
        e(salu('s_sub_u32', sR2, sR2, sT[1]))
        if self.opt['rot2'] in (2, 4):
            e(salu('s_lshr_b32', sT[1], 's2', 3))
            e(salu('s_lshr_b32', sT[2], 's2', 6))
            e(salu('s_add_u32', sR2, sT[1], sT[2]))
        e(salu('s_mul_i32', sT[1], sTB, ACTB))
        e(salu('s_add_u32', sT[1], sT[1], ACT))
        e(salu('s_mul_i32', sT[2], sW, 12 * 4096))
        e(salu('s_add_u32', sAh, sT[1], sT[2]))
        e(salu('s_lshl_b32', sT[2], sW, 14))
        e(salu('s_add_u32', sAo, sT[1], sT[2]))
        e(salu('s_add_u32', sAo, sAo, 48 * 4096))
        e(salu('s_lshl_b32', sT[2], sW, 12))
        e(salu('s_add_u32', sAb, sT[1], sT[2]))
        e(salu('s_add_u32', sAb, sAb, 64 * 4096))
        e(salu('s_mul_i32', sT[2], sW, 12 * 5120))
        e(salu('s_add_u32', sWh, sW2c, sT[2]))
        e(salu('s_mul_i32', sT[2], sW, 4 * 5120))
        e(salu('s_add_u32', sWo, sW2c, sT[2]))
        e(salu('s_add_u32', sWo, sWo, 48 * 5120))
        e(salu('s_mul_i32', sT[2], sW, 5120))
        e(salu('s_add_u32', sWb, sW2c, sT[2]))
        e(salu('s_add_u32', sWb, sWb, 64 * 5120))
        e(salu('s_add_u32', sT[1], sJ, 48))
        e(salu('s_lshl_b32', sT[1], sT[1], 12))
        e(salu('s_add_u32', sOA, sT[1], sAP))
        e(salu('s_lshr_b32', sT[1], sJ, 2))
        e(salu('s_add_u32', sT[1], sT[1], 64))
        e(salu('s_lshl_b32', sT[1], sT[1], 12))
        e(salu('s_and_b32', sT[2], sJ, 3))
        e(salu('s_lshl_b32', sT[2], sT[2], 8))
        e(salu('s_add_u32', sT[1], sT[1], sT[2]))
        e(salu('s_add_u32', sOB, sT[1], sAP))
        e(salu('s_mov_b64', sLO16, 0xffff))
        e(salu('s_mov_b32', 's70', 0x00010001))
        e(salu('s_mov_b32', 's71', 0x00010001))
        e(salu('s_mov_b32', sSCL, f2u(20 ** -0.5 * 1.4426950408889634)))
        for i in range(4):
            e(salu('s_add_u32', sT[1], sW, i))
            e(salu('s_and_b32', sT[1], sT[1], 3))
            e(salu('s_lshl_b32', sT[1], sT[1], 10))
            e(salu('s_add_u32', sT[1], sT[1], XR))
            e(valu('v_add_u32', vWr[i], sT[1], vL16))
        e(valu('v_lshlrev_b32', t[8], 2, vQ))
        e(valu('v_sub_u32', t[8], vU, t[8]))
        e(valu('v_mov_b32', t[10], f2u(-1e30)))
        e(salu('s_or_b32', sT[1], sB, sW))
        e(salu('s_cmp_eq_u32', sT[1], 0))
        e(salu('s_cselect_b32', sT[1], 0, 2))
        e(valu('v_cmp_gt_u32', 'vcc', sT[1], vQ))
        e(valu('v_cndmask_b32', t[11], t[10], vZ, 'vcc'))
        for r in range(4):
            e(valu('v_subrev_u32', t[9], r, t[8]))
            e(valu('v_cmp_gt_u32', 'vcc', 8, t[9]))
            e(valu('v_cmp_gt_i32', S(56, 2), 0, t[9]))
            e(valu('v_cndmask_b32', V(MASK + 4 + r), t[10], vZ, 'vcc'))
            e(valu('v_cndmask_b32', V(MASK + r), t[10], t[11], S(56, 2)))
        e(valu('v_mov_b32', t[8], ZERO))
        e(valu('v_mov_b32', t[10], 0))
        e(valu('v_mov_b32', t[11], 0))
        e(ds_write('ds_write_b64', t[8], V(146, 2)))
        loads = (st[1] if npro > 1 else []) + (halo_loads if npro > 2 else []) + [x_ for r_ in st[2:] for x_ in r_]
        self.halo_loads = [] if npro > 2 else halo_loads
        p += self.sprinkle(q, loads, max(1, min(self.opt['pro_every'], (len(q) - 16) // max(len(loads), 1))), start=self.opt['pro_start'])
        self.rawB = []
        for m in range(3):
            self.rawB.append(Group([Group([salu('s_cmp_lt_u32', sDst[m], W2P + 48 * 5120), salu('s_cselect_b64', S(72, 2), S(20, 2), S(12, 2)),
                                           salu('s_cselect_b32', S(74), S(22), S(14))]),
                                    salu('s_add_u32', 'm0', sPB, 1024 * m),
                                    bdma(ldB[m], S(72, 4), sSrc[m], 0, FL[self.opt['flB']])]))
        if self.opt['rawB'] < 0:
            p += flatten(self.rawB)
        p += self.stamp('setup')
        shadow = self.opt['srow'] >= 2
        hs, hq, ht, h3, h4, h5 = (V(n) for n in range(224, 229)) if False else (V(248), V(249), V(250), V(251), V(252), V(253))
        z = [valu('v_readfirstlane_b32', sTAG, vTAG), valu('v_mov_b32', ht, 0x3f803f80),
             salu('s_mul_i32', sTAG, sTAG, 0x19660d), salu('s_add_u32', sTAG, sTAG, 0x3c6ef35f),
             salu('s_cmp_eq_u32', sW, 0), salu('s_cselect_b32', sCMP, sTAG, 0), valu('v_mov_b32', vTAG, sTAG)]
        for i in range(12):
            if not shadow:
                z += [valu('v_dot2_f32_bf16', hs, V(SR + i), ht, hs if i else 0),
                      valu('v_dot2_f32_bf16', hq, V(SR + i), V(SR + i), hq if i else 0)]
                continue
            z += [valu('v_lshlrev_b32', h4, 16, V(SR + i)), valu('v_and_b32', h5, 0xffff0000, V(SR + i))]
            z += [valu('v_add_f32', hs, h4, h5), valu('v_mul_f32', hq, h4, h4)] if i == 0 else \
                [valu('v_add_f32', hs, hs, h4), valu('v_fmac_f32', hq, h4, h4), valu('v_add_f32', hs, hs, h5)]
            z.append(valu('v_fmac_f32', hq, h5, h5))
        z += [valu('v_and_b32', h3, 31, vL), valu('v_cmp_eq_u32', S(98, 2) if not self.opt.get('dbg') else 'vcc', 0, h3),
              valu('v_lshlrev_b32', h3, 3, vSt), valu('v_add_u32', h3, ST, h3)]
        for sh in (8, 4, 2, 1):
            z.append(Skip(1))
            for r in (hs, hq):
                z.append(valu('v_add_f32_dpp', r, r, r, mods=f'row_ror:{sh} row_mask:0xf bank_mask:0xf'))
        z += [valu('v_mov_b32', h4, hs), valu('v_mov_b32', h5, hq),
              valu('v_cndmask_b32', h3, vOOB, h3, S(98, 2) if not self.opt.get('dbg') else 'vcc'), Skip(1),
              valu('v_permlane16_swap_b32', hs, h4), valu('v_permlane16_swap_b32', hq, h5),
              valu('v_add_f32', hs, hs, h4), valu('v_add_f32', hq, hq, h5)]
        z += self.rstats(hs, hq, V(SR), ht) + [valu('v_mov_b32', V(SR + 1), sTAG), bstore(V(SR, 2), h3, SWS, 0, 0, 'sc1')]
        self.srow, self.stats = (srow, z) if shadow else ([], [])
        if not shadow:
            p += z
        p += self.stamp('stats')
        p.append(Group([wait(vm=self.stage_ops[0]), barrier()]))
        p += self.stamp('B0')

        def pack(rd, k0, dst):
            o_ = [ds_read('ds_read_b64_tr_b16', V(PK + 4 * (k0 + k) + 2 * h, 2), *rd(k, h)) for k in range(3) for h in range(2)]
            sts = [bstore(V(PK + 4 * (k0 + k), 4), dst[k][0], SWS, dst[k][1], 0, FL[self.opt['flS']]) for k in range(3)]
            return o_, sts
        self.packA = pack(lambda k, h: (rdA[k], 5120 * h), 0, list(zip(stA, soA)))
        if self.opt['padw']:
            self.packA[1].append(bstore(V(PK + 8, 4), stA[2], SWS, S(93), 64, FL[self.opt['flS']]))
        self.packB = pack(lambda k, h: (rdB[0], 1024 * k + 512 * h), 3, list(zip(stB, sDst)))
        self.f2_pub = [valu('v_add_u32', vFA, F2 - F1, vFA)]
        self.ones = [valu('v_mov_b32', V(220 + r), 0x3f803f80) for r in range(4)] + \
            [ds_write('ds_write_b128', vHw, V(220, 4), HALO)]
        return p

    @functools.lru_cache(None)
    def x_reads(self, s):
        i, h = s >> 1, s & 1
        return [ds_read('ds_read_b128', X(s, p), vXr[h], (i & 3) * 4096 + p * 1024) for p in range(2)]

    @functools.lru_cache(None)
    def w1_reads(self, s, n):
        i, h = s >> 1, s & 1
        return [ds_read('ds_read_b64_tr_b16', V(WF + 4 * n + 2 * e_, 2), vW1r[n], (i & 3) * 12288 + (32 * h + 4 * e_) * 192)
                for e_ in range(2)]

    @functools.lru_cache(None)
    def wq_read(self, g, n):
        k, sg = g >> 2, g & 3
        return ds_read('ds_read_b128', V(WF + 4 * n, 4), vWr[n], sg * 16384 + ((10 + k) & 3) * 4096)

    @functools.lru_cache(None)
    def halo_read(self, g):
        s = g % 20
        return ds_read('ds_read_b128', V(WF + 16, 4), vHr[s & 1], HALO + (s >> 1) * 2048)

    def late_addresses(self):
        t = [V(T + n) for n in range(24)]
        vQ, vU, vR, vCC = t[0], t[1], t[2], t[3]
        p = [valu('v_lshrrev_b32', vQ, 4, vL), valu('v_and_b32', vU, 15, vL),
             valu('v_bfe_u32', vR, vL, 2, 2), valu('v_and_b32', vCC, 3, vL),
             salu('s_mul_i32', sT[1], sW, 16 * KVR), salu('s_add_u32', sT[1], sT[1], KV),
             valu('v_mul_u32_u24', t[4], KVR, vU),
             valu('v_add_u32', t[4], sT[1], t[4]),
             valu('v_add_u32', vK4, 72, t[4]),
             valu('v_lshl_add_u32', t[5], vQ, 3, t[4]),
             valu('v_add_u32', vKr, 40, t[5]),
             valu('v_add_u32', vQr, 8 * KVR, t[5]),
             valu('v_add_u32', t[6], 8 * KVR + 32, t[4]),
             valu('v_mov_b32', t[7], ZERO),
             valu('v_cmp_eq_u32', S(92, 2), 0, vQ),
             valu('v_cndmask_b32', vQ4, t[7], t[6], S(92, 2)),
             valu('v_lshl_add_u32', t[6], vQ, 2, vR),
             valu('v_mul_u32_u24', t[6], KVR, t[6]),
             valu('v_add_u32', t[6], sT[1], t[6]),
             valu('v_add_u32', vV4, 112, t[6]),
             valu('v_lshl_add_u32', t[6], vCC, 3, t[6]),
             valu('v_add_u32', vVr, 80, t[6]),
             valu('v_mul_u32_u24', t[6], 40, vQ),
             valu('v_add_u32', t[6], 32, t[6]),
             valu('v_min_u32', t[6], 120, t[6]),
             valu('v_lshlrev_b32', t[7], 3, vQ),
             valu('v_and_b32', t[8], 1, vU),
             valu('v_mul_u32_u24', t[8], KVC, t[8]),
             valu('v_lshrrev_b32', t[9], 1, vU),
             valu('v_mul_u32_u24', t[9], KVR, t[9]),
             valu('v_add_u32', t[8], t[8], t[9]),
             valu('v_add_u32', t[8], KV, t[8])]
        for i in range(4):
            p += [salu('s_add_u32', sT[2], sW, i), salu('s_and_b32', sT[2], sT[2], 3),
                  salu('s_mul_i32', sT[3], sT[2], 40),
                  salu('s_cmp_eq_u32', sT[2], 3), salu('s_cselect_b64', S(92, 2), -1, 0),
                  valu('v_add_u32', t[9], sT[3], t[7]),
                  valu('v_cndmask_b32', t[9], t[9], t[6], S(92, 2))]
            if i == 0:
                p.append(valu('v_add_u32', vHKw, t[8], t[9]))
            p += [valu('v_add_u32', t[9], t[4], t[9]), valu('v_add_u32', vKVw[i], 8 * KVR, t[9])]
        p += [salu('s_lshl_b32', sT[2], sW, 6), salu('s_add_u32', sT[2], sT[2], CSQ),
              valu('v_lshl_add_u32', vCQw, vQ, 4, sT[2]),
              valu('v_lshlrev_b32', vCQr, 4, vQ),
              valu('v_lshlrev_b32', t[4], 4, vU), valu('v_lshl_add_u32', t[4], vQ, 10, t[4]), valu('v_mov_b32', t[5], OOB),
              valu('v_cmp_gt_u32', S(92, 2), 32, vL), Skip(1), valu('v_cndmask_b32', vOB, t[5], t[4], S(92, 2))]
        return p

    def flag_addr(self, base):
        t0, t1 = V(T + 22), V(T + 23)
        return [salu('s_lshl_b32', sT[1], sB, 1), salu('s_lshr_b32', sT[2], sW, 1), salu('s_add_u32', sT[1], sT[1], sT[2]),
                salu('s_lshl_b32', sT[1], sT[1], 7), salu('s_and_b32', sT[2], sW, 1), salu('s_lshl1_add_u32', sT[2], sJ, sT[2]),
                salu('s_lshl2_add_u32', sT[1], sT[2], sT[1]), salu('s_add_u32', sT[1], sT[1], base),
                valu('v_mov_b32', t0, sT[1]), valu('v_mov_b32', t1, OOB),
                valu('v_cmp_eq_u32', S(92, 2), 0, vL), valu('v_cndmask_b32', vFA, t1, t0, S(92, 2))]

    def poll_addr(self, idx, base, shift, t0, mask):
        return [salu('s_lshl_b32', 's96', idx, shift), salu('s_add_u32', 's96', 's96', base),
                salu('s_cmp_eq_u32', sW, 0), salu('s_cselect_b32', 's96', 's96', OOB),
                valu('v_and_b32', t0, mask, vL), valu('v_lshl_add_u32', vPA, t0, 2, 's96')]

    def poll_all(self, base):
        return [salu('s_cmp_eq_u32', sW, 0), salu('s_cselect_b32', 's96', 0, 0x70000000),
                salu('s_add_u32', 's96', 's96', base), valu('v_lshl_add_u32', vPA, vL, self.opt['fstride'], 's96')]

    def lanes0(self, ins):
        return Group([salu('s_mov_b64', 'exec', sROW0), ins, salu('s_mov_b64', 'exec', -1)])

    def ff_pre(self):
        t = [V(T + n) for n in range(24)]
        p = [valu('v_lshrrev_b32', t[0], 4, vL), salu('s_lshl_b32', sT[1], sROT, 7), salu('s_add_u32', sT[1], sT[1], CSF),
             valu('v_lshl_add_u32', t[0], t[0], 4, sT[1]),
             self.lanes0(ds_write('ds_write_b128', t[0], V(CS, 4), 0)),
             self.lanes0(ds_write('ds_write_b128', t[0], V(CS + 4, 4), 64))]
        for src, mean, rstd in ((RS, vMEAN[0], vRSTD[0]), (RS + 2, vMEAN[1], vRSTD[1]), (RS + 4, vMEANH, vRSTDH)):
            p += [valu('v_and_b32', rstd, 0xffff0000, V(src)), valu('v_lshlrev_b32', mean, 16, V(src)),
                  valu('v_rcp_f32', rstd, rstd)]
        return p

    def ff_post(self):
        t = [V(T + n) for n in range(24)]
        p = [valu('v_lshrrev_b32', V(RS), 4, vL), valu('v_lshlrev_b32', V(RS), 4, V(RS))]
        for m in range(3):
            p += [salu('s_add_u32', sT[1], sROT, m), salu('s_cmp_ge_u32', sT[1], 3), salu('s_cselect_b32', sT[2], 3, 0),
                  salu('s_sub_u32', sT[1], sT[1], sT[2]), salu('s_lshl_b32', sT[1], sT[1], 7), salu('s_add_u32', sT[1], sT[1], CSF),
                  valu('v_add_u32', V(RS + 1), sT[1], V(RS)),
                  ds_read('ds_read_b128', V(T + 8 * m, 4), V(RS + 1), 0),
                  ds_read('ds_read_b128', V(T + 8 * m + 4, 4), V(RS + 1), 64)]
        p.append(Skip(2))
        self.h_stores = []
        for m in range(3):
            for q in range(2):
                dst = SS + 4 * ((2 * m + q) & 1)
                for n in (2 * m, 2 * m + 1):
                    a = FACC + 8 * n + 4 * q
                    for r in range(4):
                        p.append(valu('v_fma_f32', V(a + r), '-' + vMEAN[q], V(T + 4 * n + r), V(a + r)))
                    for r in range(4):
                        p.append(valu('v_mul_f32', V(a + r), V(a + r), vRSTD[q]))
                    for hh in range(2):
                        p.append(valu('v_cvt_pk_bf16_f32', V(dst + 2 * (n & 1) + hh), V(a + 2 * hh), V(a + 2 * hh + 1)))
                for r in range(4):
                    p.append(valu('v_pk_max_i16', V(dst + r), V(dst + r), 0))
                s_ = bstore(V(dst, 4), vL16, SWS, sHS[m], q * 1024, FL[self.opt['flS']])
                self.h_stores.append(s_)
                p.append(s_)
        return p

    def qkv_pre(self, hd, packed):
        a = ACC[hd]
        t = [V(T + n) for n in range(24)]
        p = [self.lanes0(ds_write('ds_write_b128', vCQw, V(a + 32, 4), hd * 256))]
        self.qkv_pub = [i for g in p for i in (g if isinstance(g, Group) else [g]) if i.kind == 'dsw']
        q = []
        for cls in range(2):
            q.append(valu('v_mul_f32', t[18 + cls], vMEAN[cls], vRSTD[cls]))
        for n in range(4):
            for cls in range(2):
                b = a + 8 * n + 4 * cls
                if packed:
                    for r in (0, 2):
                        q.append(I(f"v_pk_mul_f32 {V(b + r, 2)}, {V(b + r, 2)}, {V(30, 2)} op_sel:[0,{cls}] op_sel_hi:[1,{cls}]",
                                   'valu', regs(V(b + r, 2)) + regs(V(30, 2)), regs(V(b + r, 2))))
                else:
                    for r in range(4):
                        q.append(valu('v_mul_f32', V(b + r), V(b + r), vRSTD[cls]))
        return p, q

    def qkv_post(self, hd, packed):
        a = ACC[hd]
        t = [V(T + n) for n in range(24)]
        p = []
        for n in range(4):
            p += [salu('s_add_u32', sT[1], sW, n), salu('s_and_b32', sT[1], sT[1], 3), salu('s_lshl_b32', sT[1], sT[1], 6),
                  salu('s_add_u32', sT[1], sT[1], CSQ + 256 * hd), valu('v_add_u32', t[20], sT[1], vCQr),
                  ds_read('ds_read_b128', V(T + 4 * n, 4), t[20], 0)]
        p.append(Skip(2))
        p += [valu('v_fma_f32', V(a + 32 + r), '-' + vMEANH, V(T + r), V(a + 32 + r)) for r in range(4)]
        p += [valu('v_mul_f32', V(a + 32 + r), V(a + 32 + r), vRSTDH) for r in range(4)]
        p += [valu('v_cvt_pk_bf16_f32', t[16], V(a + 32), V(a + 33)), valu('v_cvt_pk_bf16_f32', t[17], V(a + 34), V(a + 35))]
        self.kv_writes = [ds_write('ds_write_b64', vHKw, V(T + 16, 2), hd * KVH)]
        p += self.kv_writes
        for n in range(4):
            for cls in range(2):
                b = a + 8 * n + 4 * cls
                if packed:
                    for r in (0, 2):
                        p.append(I(f"v_pk_fma_f32 {V(b + r, 2)}, {V(T + 4 * n + r, 2)}, {V(T + 18, 2)}, {V(b + r, 2)} "
                                   f"op_sel:[0,{cls},0] op_sel_hi:[1,{cls},1] neg_lo:[1,0,0] neg_hi:[1,0,0]", 'valu',
                                   regs(V(b + r, 2)) + regs(V(T + 4 * n + r, 2)) + regs(V(T + 18, 2)), regs(V(b + r, 2))))
                else:
                    for r in range(4):
                        p.append(valu('v_fma_f32', V(b + r), '-' + t[18 + cls], V(T + 4 * n + r), V(b + r)))
                p += [valu('v_cvt_pk_bf16_f32', V(b), V(b), V(b + 1)), valu('v_cvt_pk_bf16_f32', V(b + 1), V(b + 2), V(b + 3))]
                w_ = ds_write('ds_write_b64', vKVw[n], V(b, 2), hd * KVH + cls * KVC)
                self.kv_writes.append(w_)
                p.append(w_)
        return p

    def attention(self, hd):
        a = ACC[hd]
        streams = []
        for cls in range(2):
            off = hd * KVH + cls * KVC
            b = a + 16 * cls
            u = T + 12 * cls
            Kf = [V(b, 4), V(b + 4, 4)]
            Qf, Sf = V(b + 8, 4), [V(u, 4), V(u + 4, 4)]
            Vf = Kf
            Pf = Qf
            O0, O1, L = V(u, 4), V(u + 4, 4), V(b + 12, 4)
            m, m2 = V(u + 8), V(u + 9)
            p = [ds_read('ds_read_b64', V(b + 8, 2), vQr, off)]
            p.append(I(f"ds_read_b64 {V(b + 10, 2)}, {V(u + 10)}", 'dsr', [V(u + 10)], regs(V(b + 10, 2))))
            p.insert(0, valu('v_cndmask_b32', V(u + 10), vQ4, V(u + 11), sLO16))
            for k in range(2):
                p += [ds_read('ds_read_b64', V(b + 4 * k, 2), vKr, off + k * 8 * KVR),
                      ds_read('ds_read_b64', V(b + 4 * k + 2, 2), vK4, off + k * 8 * KVR)]
            p.append(Skip(2))
            p += [mfma(Sf[k], Kf[k], Qf, V(MASK + 4 * k, 4)) for k in range(2)]
            for k in range(2):
                p += [ds_read('ds_read_b64_tr_b16', V(b + 2 * k, 2), vVr, off + k * 8 * KVR),
                      ds_read('ds_read_b64_tr_b16', V(b + 4 + 2 * k, 2), vV4, off + k * 8 * KVR)]
            p.append(Skip(1))
            p += [valu('v_max3_f32', m, V(u), V(u + 1), V(u + 2)), valu('v_max3_f32', m2, V(u + 3), V(u + 4), V(u + 5)),
                  valu('v_max3_f32', m, m, V(u + 6), V(u + 7)), valu('v_max_f32', m, m, m2)]
            for sw in ('v_permlane16_swap_b32', 'v_permlane32_swap_b32'):
                p += [valu('v_mov_b32', m2, m), valu(sw, m, m2), valu('v_max_f32', m, m, m2)]
            p.append(valu('v_mul_f32', m, sSCL, m))
            p += [valu('v_fma_f32', V(u + r), V(u + r), sSCL, '-' + m) for r in range(8)]
            p += [valu('v_exp_f32', V(u + r), V(u + r)) for r in range(8)]
            p += [valu('v_cvt_pk_bf16_f32', V(b + 8 + r), V(u + 2 * r), V(u + 2 * r + 1)) for r in range(4)]
            p += [mfma(L, aONES, Pf, 0), mfma(O0, Vf[0], Pf, 0), mfma(O1, Vf[1], Pf, 0), Skip(2)]
            p.append(valu('v_rcp_f32', m, V(b + 12)))
            p += [valu('v_mul_f32', V(u + r), V(u + r), m) for r in range(8)]
            for k in range(2):
                for hh in range(2):
                    p.append(valu('v_cvt_pk_bf16_f32', V(self.oreg(cls, k) + 2 * hd + hh), V(u + 4 * k + 2 * hh), V(u + 4 * k + 2 * hh + 1)))
            streams.append(p)
        pre = []
        for cls in range(2):
            pre.append(valu('v_add_u32', V(T + 12 * cls + 11), hd * KVH + cls * KVC, vQ4))
        out = pre
        for i, j in zip(*streams):
            out += [i] if isinstance(i, Skip) else [i, j]
        return out

    def oreg(self, cls, k):
        return 112 + 8 * cls + 4 * k

    def phase1(self):
        o = self.opt
        main, pos = [], {}
        for s in range(20):
            for n in range(6):
                for q in ((1, 0) if o['snake'] and n & 1 else (0, 1)):
                    d = V(FACC + 8 * n + 4 * q, 4)
                    main.append(mfma(d, V(WF + 4 * n, 4), X(s, q), d if s else 0))
                if n < 2:
                    d = V(CS + 4 * n, 4)
                    main.append(mfma(d, V(WF + 4 * n, 4), aONES, d if s else 0))
                pos['a', s, n] = len(main) - 1
        for g in range(40):
            hd, s = divmod(g, 20)
            a = ACC[hd]
            for n in range(4):
                for q in ((1, 0) if o['snake'] and n & 1 else (0, 1)):
                    d = V(a + 8 * n + 4 * q, 4)
                    main.append(mfma(d, V(WF + 4 * n, 4), X(s, q), d if s else 0))
                if n == 0:
                    d = V(a + 32, 4)
                    main.append(mfma(d, V(WF, 4), V(WF + 16, 4), d if s else 0))
                pos['b', g, n] = len(main) - 1
        w = Weave(main)
        first_b = pos['a', 19, 5] + 1
        logical = []
        for s in range(20):
            logical += self.x_reads(s) + [r for n in range(6) for r in self.w1_reads(s, n)] + main[14 * s:14 * s + 14]
        for g in range(40):
            logical += [self.wq_read(g, n) for n in range(4)] + [self.halo_read(g)] + main[first_b + 9 * g:first_b + 9 * g + 9]
        annotate(logical)
        annotate(self.packA[0] + self.packA[1])
        annotate(self.packB[0] + self.packB[1])
        stepb = lambda g: first_b + 9 * g
        bar = {}
        dma = {R: self.stage_dma(R) for R in range(o['npro'], 20)}
        for i in range(10):
            bar[i + 1] = pos['a', 2 * i + 1, 1]
        for k in range(9):
            bar[11 + k] = pos['b', 4 * k + 3, 1]
        rawb = [g_[-1] for g_ in self.rawB]
        extra = {}
        for key, ops in (('packA', self.p0a), ('pub1', self.packA[1]), ('packB', rawb), ('pub2', self.packB[1]),
                         ('halo', self.halo_ops)):
            extra.setdefault(o[key], []).extend(ops)
        checks = {o['chk1']: 'f1', o['chk2']: 'f2', o['chk3']: 'f3'}
        assert len(checks) == 3
        for R, gb in bar.items():
            if R in checks:
                w.at(gb, self.check(checks[R]))
            w.at(gb, self.ring_barrier(R, extra.get(R, ())))
            w.at(gb, *self.stamp(f'B{R}'))
            if R in (o['pub1'], o['pub2']):
                w.at(gb, bstore(vTAG, vFA, SWS, 0, 0, 'sc1'))
            if R in (o['poll1'], o['poll2'], o['poll3']):
                w.at(gb, bload(vPOLL if R == o['poll3'] else V(P4, 4), vPA, SWS, 0, 0, 'sc1'))
        for s in range(20):
            start = bar[(s >> 1) + 1] if s & 1 else 0
            nxt = 14 * (s + 1)
            if s < 19:
                lim = len(main) if s & 1 else bar[(s >> 1) + 1]
                w.stream(self.x_reads(s + 1), max(start, pos['a', s, 0] - 2), nxt - 1)
                for n in range(6):
                    w.stream(self.w1_reads(s + 1, n), max(start, pos['a', s, n]), min(lim, pos['a', s + 1, n] - 4))
            else:
                for n in range(4):
                    w.stream([self.wq_read(0, n)], max(start, pos['a', s, n]), nxt - 1)
                w.stream([self.halo_read(0)], pos['a', s, 4], nxt - 1)
        for g in range(39):
            start = bar[11 + (g >> 2)] if g & 3 == 3 else 0
            lim = bar.get(11 + (g >> 2), len(main)) if g & 3 == 2 else len(main)
            w.stream([self.wq_read(g + 1, 0), self.halo_read(g + 1)], max(start, pos['b', g, 0]), stepb(g + 1) - 1)
            for n in range(1, 4):
                w.stream([self.wq_read(g + 1, n)], max(start, pos['b', g, n]), min(lim, pos['b', g + 1, n] - 3))
        nxt, plan = o['npro'], []
        for R, gb in [(0, 0)] + list(bar.items()):
            lim = min(R + 3, 9 if R < o['chk1'] else 19, nxt + o['catch'] - 1)
            todo = list(range(nxt, lim + 1))
            nxt = max(nxt, lim + 1)
            seq = []
            for r_ in todo:
                pre = self.stage_pre[r_]
                seq += [(x_, pre.get(k, [])) for k, x_ in enumerate(dma[r_])] + [(None, pre[len(dma[r_])])]
            if R == o['haloL']:
                seq += [(Group([x_[-1]]), [Group(x_[:2])] + x_[2:-1]) for x_ in self.halo_loads]
            if R == o['srow'] - 2:
                seq += [(x_, []) for x_ in self.srow]
            if R == o['rawA']:
                seq += [(Group([x_[-1]]), x_[:-1]) for x_ in self.rawA]
            if R == o['rawB']:
                seq += [(Group([x_[-1]]), x_[:-1]) for x_ in self.rawB]
            for name, pk in (('packA', self.packA), ('packB', self.packB)):
                if R == o[name]:
                    w.stream(pk[0], gb + 1, gb + 11)
                    k = min(len(seq), 4 if len(seq) < 10 else 8)
                    seq = seq[:k] + [(x_, []) for x_ in pk[1]] + seq[k:]
            if seq:
                plan.append((seq, gb + (1 if len(seq) > 3 else 13), bar[R + 1]))
        annotate([x for seq, _, _ in plan for g_, pre in seq for x in list(pre) + ([g_] if g_ else [])])
        for seq, a_, b_ in plan:
            self.place_mem(w, seq, a_, b_)
        assert o['rawA'] < o['packA'] and 1 <= o['packA'] < o['pub1'] < o['pub2'] <= 14 and o['rawB'] < o['packB'] < o['pub2'] and o['packB'] <= 9
        assert o['poll1'] < o['chk1'] <= 9 and o['chk1'] < o['poll2'] < o['chk2'] < o['poll3'] < o['chk3'] <= 20
        assert o['haloL'] < o['halo'] <= 8 and o['statL'] <= 8
        if self.stats:
            assert o['srow'] - 2 < o['statC'] < o['pub1']
            w.stream(self.stats, bar[o['statC']] + 1, bar[o['pub1']])
        w.stream(self.f2_pub, bar[o['pub1']] + 1, bar[o['pub1']] + 12)
        w.stream(self.ones, bar[o['halo']] + 1, bar[o['halo'] + 1])
        sl_, sc_, fp_ = self.stat_loads(), self.check_stats(), self.ff_pre()
        annotate(sl_ + sc_ + fp_)
        w.spread(sl_, bar[o['statL']] + 1, bar[o['statL']] + 8)
        w.stream(sc_, bar[10] + 1, first_b)
        tp = V(WF + 20)
        assert o['poll2'] >= 11
        w.stream(fp_ + self.poll_all(F2), first_b + 4, bar[11])
        wl = [x_ for i in range(7) for x_ in self.w_loads(i)]
        w.spread(wl, bar[o['chk2']] + 2, stepb(o['w_end']))
        g = w.stream(self.ff_post(), bar[11] + 1, stepb(o['ff_end']))
        g = w.stream(self.late_addresses() + self.flag_addr(F3), max(g + 1, bar[o['pub2']] + 1), stepb(20) + 3)
        assert stepb(o['f3_step']) > g
        w.at(stepb(o['f3_step']), Group([wait(vm=self.h_stores), bstore(vTAG, vFA, SWS, 0, 0, 'sc1')]))
        w.stream(self.poll_addr(sTB, F3, 7, tp, 31), max(bar[o['chk2']] + 1, g + 1), bar[o['poll3']])
        if o['chk3'] < 20:
            nA = o['nA_p1b']
            for i in range(nA):
                lo = bar[o['chk3']] + 2 + (stepb(40) - bar[o['chk3']] - 2) * i // nA
                assert lo >= stepb(20 + 2 * i + 2)
                w.spread(self.a_loads(i), lo, bar[o['chk3']] + 2 + (stepb(40) - bar[o['chk3']] - 2) * (i + 1) // nA)
        pre, mul = self.qkv_pre(0, False)
        g = w.stream(pre, stepb(20) + 5)
        g = w.stream(mul[:12], g + 1)
        w.at(g + 1, Group([wait(lgkm=self.qkv_pub), barrier()]))
        g = w.stream(mul[12:] + self.qkv_post(0, False), g + 1, stepb(o['kv_end']))
        g = w.stream([Skip(3)] + [Group([wait(lgkm=self.kv_writes), barrier()])], g)
        w.stream(self.attention(0), g, len(main))
        self.ovf = (w.overflow(0, first_b), w.overflow(first_b, stepb(20)), w.overflow(stepb(20)))
        pro = self.x_reads(0) + [r for n in range(6) for r in self.w1_reads(0, n)]
        return pro + w.flat()

    @staticmethod
    def sprinkle(seq, extra, every, start=0):
        out, n, extra = [], -start, list(extra)
        seq = tie(seq)
        annotate(seq)
        annotate(extra)
        for i in seq:
            out.append(i)
            if isinstance(i, Skip):
                continue
            n += 1
            if extra and n >= every:
                out.append(extra.pop(0))
                n = 0
        return out + extra

    def tail1(self):
        o = self.opt
        p = self.stamp('gemm1')
        pre, mul = self.qkv_pre(1, True)
        late = o['chk3'] == 20
        head = pre + mul + ([self.check('f3')] if late else []) + [Group([wait(lgkm=self.qkv_pub), barrier()])]
        seq = self.qkv_post(1, True) + [Group([wait(lgkm=self.kv_writes), barrier()])] + self.attention(1)
        al = [x_ for i in range(0 if late else o['nA_p1b'], o['nA_att']) for x_ in self.a_loads(i)]
        p += head + self.sprinkle(seq, al, o['att_every']) if late else self.sprinkle(head + seq, al, o['att_every'])
        self.o_stores = [bstore(V(self.oreg(c, 0), 4), vL16, SWS, sOA, c * 1024, 'sc1') for c in range(2)]
        p += self.o_stores
        o0, o1 = self.oreg(0, 1), self.oreg(1, 1)
        p += [valu('v_cndmask_b32', V(o0 + r), V(o1 + r), V(o0 + r), sLO16) for r in range(4)]
        ob = bstore(V(o0, 4), vOB, SWS, sOB, 0, 'sc1')
        p.append(ob)
        self.o_stores.append(ob)
        p += self.flag_addr(F4) + self.poll_addr(sTB, F4, 7, V(T + 1), 31)
        return p + self.stamp('attn')

    def phase2(self):
        o = self.opt
        t = [V(136 + n) for n in range(60)]
        main = []
        tile = lambda n, k: V(P2ACC + 16 * n + 4 * k, 4)
        km = o['kmaj']
        for i in range(16 if km else 15):
            for n in range(5):
                for k in ((3, 2, 1, 0) if o['snake'] and n & 1 else (0, 1, 2, 3)):
                    main.append(mfma(tile(n, k), wslot(i, n), aslot(i, k), tile(n, k) if i else 0))
        if km:
            main += [mfma(tile(n, k), wslot(16, n), aslot(16, k), tile(n, k)) for k in range(4) for n in range(5)]
        else:
            for n in range(5):
                for i in (15, 16):
                    for k in range(4):
                        main.append(mfma(tile(n, k), wslot(i, n), aslot(i, k), tile(n, k)))
        w = Weave(main)
        annotate([x_ for i in range(15) for x_ in self.w_loads(i) + self.a_loads(i) + main[20 * i:20 * i + 20]] +
                 [x_ for i in (15, 16) for x_ in self.w_loads(i) + self.a_loads(i)] + main[300:])
        pre = [salu('s_mul_i32', sT[1], sTB, 64 * 1280), salu('s_mul_i32', sT[2], sC, 160), salu('s_add_u32', sT[3], sT[1], sT[2])]
        vO, vRd = t[12:17], t[17:22]
        for r in range(5):
            pre += [valu('v_add_u32', t[6], 256 * r, 'v0')] + self.divc(t[7], t[6], 20, 1279)
            pre += [valu('v_mul_u32_u24', t[8], 20, t[7]), valu('v_sub_u32', t[8], t[6], t[8]),
                    valu('v_mul_u32_u24', vO[r], 1280, t[7]), valu('v_lshl_add_u32', vO[r], t[8], 3, vO[r]),
                    bload(A(aRES + 2 * r, 2), vO[r], SX, sT[3], 0, FL[o['flR']]),
                    valu('v_and_b32', t[6], 1, t[7]), valu('v_lshlrev_b32', t[6], 4, t[6]),
                    valu('v_and_b32', vRd[r], 32, t[7]), valu('v_add_u32', t[6], t[6], vRd[r]),
                    valu('v_bfe_u32', vRd[r], t[7], 1, 4), valu('v_add_u32', t[6], t[6], vRd[r]),
                    valu('v_and_b32', t[7], 0x30, t[6]), valu('v_mul_u32_u24', t[6], REDR, t[6]),
                    valu('v_lshl_add_u32', t[6], t[7], 2, t[6]), valu('v_lshl_add_u32', vRd[r], t[8], 4, t[6])]
        vRw = t[10]
        pre += [valu('v_and_b32', t[6], 15, vL), valu('v_mul_u32_u24', t[6], REDR, t[6]), valu('v_lshrrev_b32', t[7], 4, vL),
                valu('v_lshl_add_u32', t[6], t[7], 4, t[6]), salu('s_mul_i32', sT[1], sW, REDW),
                valu('v_add_u32', vRw, sT[1], t[6])]
        for i in range(15):
            w.at(20 * i, *self.stamp(f'S{i}'))
        w.at(20 * o['f4_step'], Group([wait(vm=self.o_stores), bstore(vTAG, vFA, SWS, 0, 0, 'sc1')]))
        w.at(20 * o['poll4'] + 1, bload(vPOLL, vPA, SWS, 0, 0, 'sc1'))
        chk = 20 * o['chk4'] + 19
        w.at(chk, self.check('f4'), barrier())
        pend = [('W', i) for i in range(7, 17)] + [('A', i) for i in range(o['nA_att'], 17)]
        total = sum(5 if k == 'W' else 4 for k, _ in pend)
        pace, pos_ = (o['ld_end'] - 3) / total, 3.0
        first_use = lambda i: 20 * min(i, 16 if km else 15)
        while pend:
            def earliest(x):
                k, i = x
                if k == 'W':
                    return 20 * (i - 7) + 3
                return max(20 * (i - 9) if i >= 10 else 0, chk + 1 if i >= 12 else 0)
            ok = [x for x in pend if earliest(x) <= pos_ + 2]
            x = min(ok, key=lambda x: (x[1], x[0] == 'A')) if ok else min(pend, key=earliest)
            pend.remove(x)
            pos_ = max(pos_, earliest(x))
            for n, ld in enumerate(self.w_loads(x[1]) if x[0] == 'W' else self.a_loads(x[1])):
                g = int(pos_)
                if x[0] == 'W':
                    g = max(g, 20 * (x[1] - 7) + 4 * n + 3)
                assert g < first_use(x[1]) - 4
                w.at(g, ld)
                left = sum(5 if k == 'W' else 4 for k, _ in pend) + (5 if x[0] == 'W' else 4) - n
                pos_ = max(pos_, g) + max(1.0, min(pace, (o['ld_end'] - g) / left))
        pre += [valu('v_mov_b32', t[6], OOB), valu('v_or_b32', t[7], 's2', 'v0'), valu('v_cmp_ne_u32', S(92, 2), 0, t[7]),
                Skip(1), valu('v_cndmask_b32', t[6], 0, t[6], S(92, 2)), bstore(vTAG, t[6], SWS, 0, 0, 'sc1')]
        w.stream(pre, o['pre2'], 20 * 12)
        X0, p = 160, []
        for r in range(5):
            for k in range(2):
                p.append(valu('v_accvgpr_read_b32', V(X0 + 4 * r + 2 * k + 1), A(aRES + 2 * r + k)))
            for k in range(2):
                p += [valu('v_lshlrev_b32', V(X0 + 4 * r + 2 * k), 16, V(X0 + 4 * r + 2 * k + 1)),
                      valu('v_and_b32', V(X0 + 4 * r + 2 * k + 1), 0xffff0000, V(X0 + 4 * r + 2 * k + 1))]
        w.stream(p, 20 * 12, 20 * 15)
        ws_ = []
        for n in range(5):
            for k in range(4):
                ws_.append(ds_write('ds_write_b128', vRw, V(P2ACC + 16 * n + 4 * k, 4), RED + k * REDT + 64 * n))
        if km:
            ws_ = [ws_[4 * n + k] for k in range(4) for n in range(5)]
            for m in range(15):
                w.at(325 + m, ws_[m])
            ws_ = ws_[15:]
        else:
            for m in range(16):
                w.at(300 + 8 * (m >> 2) + 8 + 2 * (m & 3), ws_[m])
            ws_ = ws_[16:]
        p = w.flat() + self.stamp('gemm2')
        p += ws_ + [Group([wait(all_lgkm=True), barrier()])] + self.stamp('redbar')
        R0 = 40
        for r in range(5):
            for wv in range(4):
                p.append(ds_read('ds_read_b128', V(R0 + 16 * r + 4 * wv, 4), vRd[r], RED + wv * REDW))
        pk = lambda op, d, a_, b_: I(f"{op} {d}, {a_}, {b_}", 'valu', regs(a_) + regs(b_), regs(d))
        for r in range(5):
            b = R0 + 16 * r
            for k in range(2):
                p.append(pk('v_pk_add_f32', V(b + 2 * k, 2), V(b + 2 * k, 2), V(b + 4 + 2 * k, 2)))
            for k in range(2):
                p.append(pk('v_pk_add_f32', V(b + 8 + 2 * k, 2), V(b + 8 + 2 * k, 2), V(b + 12 + 2 * k, 2)))
            for k in range(2):
                p.append(pk('v_pk_add_f32', V(b + 2 * k, 2), V(b + 2 * k, 2), V(X0 + 4 * r + 2 * k, 2)))
            for k in range(2):
                p.append(pk('v_pk_add_f32', V(b + 2 * k, 2), V(b + 2 * k, 2), V(b + 8 + 2 * k, 2)))
            for k in range(2):
                p.append(valu('v_cvt_pk_bf16_f32', V(b + 4 + k), V(b + 2 * k), V(b + 2 * k + 1)))
            p.append(bstore(V(b + 4, 2), vO[r], SOUT, sT[3], 0, ('', 'sc1', 'nt', 'sc0 sc1')[o['outfl']]))
        return p

    def stamp_out(self):
        if not self.stamps:
            return []
        p = self.stamp('end')
        p += [raw("s_memrealtime s[82:83]", wr=['s82', 's83']), raw("s_waitcnt lgkmcnt(0)"),
              raw(f"v_writelane_b32 {vJUNK}, s82, 63", rd=['s82'], wr=[vJUNK], kind='valu'),
              raw(f"v_writelane_b32 {vJUNK}, s84, 62", rd=['s84'], wr=[vJUNK], kind='valu'),
              salu('s_lshl2_add_u32', sT[1], 's2', sW), salu('s_lshl_b32', sT[1], sT[1], 8), salu('s_add_u32', sT[1], sT[1], STAMP),
              valu('v_lshlrev_b32', V(140), 2, vL), bstore(vJUNK, V(140), SWS, sT[1])]
        if self.opt.get('dbg'):
            p += [raw(f"v_readlane_b32 s82, {vJUNK}, 0", rd=[vJUNK], wr=['s82'], kind='rdlane'),
                  raw(f"v_readlane_b32 s83, {vJUNK}, 61", rd=[vJUNK], wr=['s83'], kind='rdlane'),
                  raw(f"v_readlane_b32 s85, {vJUNK}, 63", rd=[vJUNK], wr=['s85'], kind='rdlane'),
                  valu('v_subrev_u32', V(141), 's82', vJUNK),
                  salu('s_sub_u32', 's85', 's85', 's83'),
                  raw("v_writelane_b32 v141, s85, 12", rd=['s85'], wr=['v141'], kind='valu'),
                  raw("v_writelane_b32 v141, s84, 13", rd=['s84'], wr=['v141'], kind='valu'),
                  salu('s_mov_b32', 's4', 's98'), salu('s_mov_b32', 's5', 's99'), salu('s_mov_b32', 's6', 64),
                  salu('s_lshl2_add_u32', sT[1], 's2', sW),
                  salu('s_cmp_eq_u32', sT[1], self.opt['dbg']), salu('s_cselect_b32', sT[1], 0, 256),
                  bstore(V(141), V(140), SX, sT[1])]
        return p

    def build(self):
        self.stage_ops = {}
        self.stage_pre = {}
        prog = self.startup() + self.phase1() + self.tail1() + self.phase2() + self.stamp_out()
        jit = self.opt.get('jitter', 0)
        if jit:
            import random
            rnd = random.Random(jit)
            out, k = [], 0
            for i in flatten(prog):
                out.append(i)
                if (i.kind == 'barrier' or i.kind == 'vst' or i.kind == 'label' and 'L_ok' in i.text) and rnd.random() < 0.5:
                    k += 1
                    out.append(raw(f"s_lshl2_add_u32 s100, s2, s32\n    s_mul_i32 s100, s100, {rnd.randrange(1 << 20) | 1}\n"
                                   f"    s_bitcmp1_b32 s100, {rnd.randrange(3, 12)}\n    s_cbranch_scc0 L_jit{k}\n"
                                   f"    s_bitcmp1_b32 s100, {rnd.randrange(12, 18)}\n    s_cbranch_scc0 L_jit{k}\n"
                                   f"    s_sleep {rnd.choice((2, 8, 30, 90))}\nL_jit{k}:", wr=['s100']))
            prog = out
        abl = self.opt.get('abl', 0)
        if abl:
            prog = flatten(prog)
            nb, keep = 0, []
            for i in prog:
                nb += i.kind == 'barrier'
                flag = i.kind == 'vst' and 'dwordx4' not in i.text
                drop = (abl & 1 and i.kind == 'dma' and nb >= 2) or (abl & 2 and i.kind == 'vst' and not flag) or \
                       (abl & 4 and i.kind == 'vld' and nb >= 2 and 'dwordx4' in i.text) or \
                       (abl & 8 and i.kind == 'mfma') or (abl & 16 and i.kind == 'dsr') or \
                       (abl & 64 and (i.kind == 'mfma' and 'v[56:59], v[' in i.text.split('], ', 2)[-1] + ' ' and 'v[40:43], v[56:59]' in i.text
                                      or i.kind == 'dsr' and i.rd[0] in ('v17', 'v18'))) or \
                       (abl & 128 and i.kind == 'mfma' and 'a[240:243]' in i.text and nb < 12) or \
                       (abl & 256 and i.kind in ('valu', 'trans') and 11 <= nb <= 21 and i.text.split()[0] in (
                           'v_fma_f32', 'v_mul_f32', 'v_cvt_pk_bf16_f32', 'v_pk_max_i16', 'v_exp_f32', 'v_max3_f32')) or \
                       (abl & 512 and i.kind == 'mfma' and nb >= 24) or (abl & 1024 and i.kind == 'mfma' and 11 <= nb <= 21)
                if not drop:
                    i.meta.pop('exp', None)
                    keep.append(i)
            prog = keep
        prog = finalize(prog, not abl)
        self.prog = prog
        body = "\n".join(("" if i.kind == 'label' else "    ") + i.text for i in prog)
        return f"""; Fused LayerNorm + sliding-window attention + ReLU FFN + residual, one workgroup per CU.
; @launch grid=(256,1,1) block=(256,1,1) lds={LDS_SIZE}
.amdgcn_target "amdgcn-amd-amdhsa--gfx950"
.text
.globl {NAME}
.p2align 8
.type {NAME},@function
{NAME}:
{body}
L_end:
    s_endpgm
{"".join(self.slow)}L_last:
.section .rodata,"a"
.p2align 6
.amdhsa_kernel {NAME}
  .amdhsa_next_free_vgpr 512
  .amdhsa_next_free_sgpr 102
  .amdhsa_accum_offset 256
  .amdhsa_group_segment_fixed_size 0
  .amdhsa_kernarg_size 72
  .amdhsa_user_sgpr_count 2
  .amdhsa_user_sgpr_kernarg_segment_ptr 1
  .amdhsa_system_sgpr_workgroup_id_x 1
.end_amdhsa_kernel
"""


if __name__ == "__main__":
    out = sys.argv[1]
    opts = dict(kv.split('=') for kv in sys.argv[2:])
    opts = {k: int(v) for k, v in opts.items()}
    g = Gen(stamps=opts.pop('stamps', 0), **opts)
    open(out, "w").write(g.build())
    print(stats(g.prog), g.ovf)
```

```python
import functools
import struct
import sys
from fw import *

NAME = "parallel_sum__sliding_local_dilated__dense_activation_relu__prompt_kernel"

F1, F2, F3, F4 = 0x1000, 0x1400, 0x1800, 0x2800
ST = 0x3800
WQ = 0x10000
WQJ = 163840
W2P = 0x290000
W2C = 348160
ACT = 0x540000
ACTB = 278528
STAMP = 0xE00000
WS_SIZE = 0x1000000
OOB = 0x7ffffff0

HALO = 0
XR = 20480
W1R = 86016
P0A = 135168
P0B = 147456
CSF = 159744
CSQ = CSF + 512
ZERO = CSF + 1024
DUMMY = CSF + 2048
KV = W1R
KVR, KVC, KVH = 136, 9792, 19584
RED, REDR, REDT, REDW = 0, 336, 5440, 21760
LDS_SIZE = 163840

SX, SWQKV, SWO, SW1, SW2, SOUT, SWS = (S(n, 4) for n in (4, 8, 12, 16, 20, 24, 28))
sW, sB, sJ, sTB, sC, sTAG = (S(n) for n in range(32, 38))
sXb, sXl, sW1, sW1l, sWQ, sAP = (S(n) for n in range(38, 44))
sHS = [S(44), S(45), S(46)]
sOA, sOB, sAh, sAo, sAb, sWh, sWo, sWb = (S(n) for n in range(47, 55))
sT = [S(n) for n in range(55, 68)]
sROT, sCNT = S(68), S(69)
sROW0 = S(70, 2)
sU1, sU2, sU3 = S(72, 2), S(74, 2), S(76, 2)
sSCL = S(78)
sCMP = S(81)
sLO16 = S(0, 2)
sLA, sLW = S(79), S(80)
sKP, sXs, sW1b, sG, sWQb, sR, sR2 = (S(n) for n in range(85, 92))
STAMP0 = 82

vL, vL16, vL16b = V(1), V(2), V(3)
vXa = [V(4), V(5), V(28), V(29)]
vXr = [V(6), V(7)]
vW1a = [V(8), V(9), V(10)]
vW1r = [V(n) for n in range(11, 17)]
vHr = [V(17), V(18)]
vWr = [V(n) for n in range(19, 23)]
vPOLL, vPA, vFA, vJUNK, vTAG = V(23), V(24), V(25), V(26), V(27)
vMEAN = [V(28), V(29)]
vRSTD = [V(30), V(31)]
vKVw = [V(n) for n in range(8, 12)]
vHKw, vKr, vK4, vVr, vV4 = V(12), V(13), V(14), V(15), V(16)
vQr, vQ4, vCQr, vCQw = V(4), V(5), V(6), V(7)
MASK = 32
WF = 40
FACC, RS, SS, CS = 64, 112, 120, 128
vMEANH, vRSTDH, vOB = V(61), V(62), V(63)
vSA, vSH = V(126), V(127)
ACC = [136, 64]
OKEEP = 128
T = 172
WSLOT = [A(160 + 20 * i, 1) for i in range(4)]
aONES = A(240, 4)
aRES = 244
P2ACC = 40
P4 = 248


def f2u(x):
    return struct.unpack('<I', struct.pack('<f', x))[0]


def X(s, p):
    return A(8 * s + 4 * p, 4)


def wslot(i, n):
    i %= 7
    return A(160 + 20 * i + 4 * n, 4) if i < 4 else V(196 + 20 * (i - 4) + 4 * n, 4)


def aslot(i, t):
    return A(16 * (i % 10) + 4 * t, 4)


LIGHT = ('start', 'B0', 'B5', 'B10', 'B15', 'gemm1', 'attn', 'S5', 'S11', 'gemm2', 'end')


FL = ('', 'nt', 'sc1', 'sc0 sc1', 'sc0 sc1 nt')


class Gen:
    def __init__(self, stamps=False, **opt):
        self.stamps = stamps
        self.nstamp = 0
        self.stamp_names = []
        self.slow = []
        self.opt = dict(rot=4, rot2=0, npro=2, catch=2, pro_every=99, rawA=-1, haloL=1, packA=1, pub1=3, halo=4, statL=7, srow=1, statC=1, poll1=7, chk1=8,
                        rawB=3, packB=7, pub2=10, poll2=14, chk2=16, w_end=37, ff_end=13, f3_step=21, poll3=18, chk3=19,
                        kv_end=30, pre2=45, snake=1, kmaj=1, touch=1, shift=0, age=6, tlb=0, touch2=0, fstride=4, padw=1, flR=0, flH=0, fast=4, pro_start=0, flA=1, flB=0, flX=0, flS=2, outfl=0, nA_p1b=2, nA_att=9, att_every=8, ld_end=300, f4_step=3, poll4=7, chk4=9)
        self.opt.update(opt)

    def stamp(self, name):
        if not self.stamps or (self.stamps == 1 and name not in LIGHT):
            return []
        k = self.nstamp
        assert k < 61
        self.nstamp += 1
        self.stamp_names.append(name)
        rt = self.stamps == 1
        return [Group([raw("s_memtime s[82:83]", wr=['s82', 's83'])] +
                      ([raw("s_memrealtime s[100:101]", wr=['s100', 's101'])] if rt else []) +
                      [raw("s_waitcnt lgkmcnt(0)", drains_lgkm=True),
                       raw(f"v_writelane_b32 {vJUNK}, s82, {k}", rd=['s82'], kind='salu')] +
                      ([raw(f"v_writelane_b32 {vJUNK}, s100, {32 + k}", rd=['s100'], kind='salu')] if rt else []))]

    def check(self, name):
        if name in ('f1', 'f2'):
            dst = V(P4, 4)
            test = [valu('v_xor_b32', V(P4 + r), sCMP, V(P4 + r)) for r in range(4)]
            test += [valu('v_or3_b32', V(P4), V(P4), V(P4 + 1), V(P4 + 2)), valu('v_or_b32', V(P4), V(P4), V(P4 + 3)),
                     valu('v_cmp_ne_u32', 'vcc', 0, V(P4))]
        else:
            dst, test = vPOLL, [valu('v_cmp_ne_u32', 'vcc', sCMP, vPOLL)]
        body = "\n".join("    " + i.text for i in test)
        self.slow.append(f"""L_slow_{name}:
{f"    s_add_u32 s84, s84, {1 << (4 * len(self.slow))}{chr(10)}" if self.stamps else ""}    s_mov_b32 {sCNT}, 0x8000
L_spin_{name}:
    {bload(dst, vPA, SWS, 0, 0, 'sc1').text}
    s_waitcnt vmcnt(0)
{body}
    s_sub_u32 {sCNT}, {sCNT}, 1
    s_cbranch_scc1 L_ok_{name}
    s_cbranch_vccnz L_spin_{name}
    s_branch L_ok_{name}
""")
        return Group(test + [raw(f"s_cbranch_vccnz L_slow_{name}", rd=['vcc'], kind='branch'),
                             raw(f"L_ok_{name}:", kind='label', states=0)])

    def divc(self, dst, src, d, maxv):
        for sh in range(8, 24):
            m = -(-(1 << sh) // d)
            if m * maxv < (1 << 32) and m < (1 << 24) and all((v * m) >> sh == v // d for v in range(maxv + 1)):
                return [valu('v_mul_u32_u24', dst, m, src), valu('v_lshrrev_b32', dst, sh, dst)]
        raise ValueError

    def rstats(self, vs, vq, dst, t):
        inv = f2u(1.0 / 640.0)
        return [valu('v_mul_f32', vs, inv, vs),
                valu('v_mul_f32', t, inv, vq),
                valu('v_fma_f32', t, '-' + vs, vs, t),
                valu('v_max_f32', t, 0, t),
                valu('v_cvt_pk_bf16_f32', t, t, t),
                valu('v_lshlrev_b32', t, 16, t),
                valu('v_add_f32', t, f2u(1e-5), t),
                valu('v_cvt_pk_bf16_f32', t, t, t),
                valu('v_lshlrev_b32', t, 16, t),
                valu('v_sqrt_f32', t, t),
                valu('v_cvt_pk_bf16_f32', dst, vs, t)]

    def stat_loads(self):
        return [bload(V(RS, 4), vSA, SWS, 0, 0, 'sc1'), bload(V(RS + 4, 2), vSH, SWS, 0, 0, 'sc1')]

    def check_stats(self):
        t = V(RS + 6)
        test = [valu('v_xor_b32', t, vTAG, V(RS + 1)), valu('v_xor_b32', V(RS + 7), vTAG, V(RS + 3)),
                valu('v_xor_b32', V(RS + 5), vTAG, V(RS + 5)), valu('v_or3_b32', t, t, V(RS + 7), V(RS + 5)),
                valu('v_cmp_ne_u32', 'vcc', 0, t)]
        body = "\n".join("    " + i.text for i in self.stat_loads()) + "\n    s_waitcnt vmcnt(0)\n" + \
            "\n".join("    " + i.text for i in test)
        self.slow.append(f"""L_slow_st:
{f"    s_add_u32 s84, s84, {1 << (4 * len(self.slow))}{chr(10)}" if self.stamps else ""}    s_mov_b32 {sCNT}, 0x8000
L_spin_st:
{body}
    s_sub_u32 {sCNT}, {sCNT}, 1
    s_cbranch_scc1 L_ok_st
    s_cbranch_vccnz L_spin_st
    s_branch L_ok_st
""")
        return test[:-1] + [Group([test[-1], raw("s_cbranch_vccnz L_slow_st", rd=['vcc'], kind='branch'),
                                   raw("L_ok_st:", kind='label', states=0)])]

    def stage_dma(self, R):
        slot, out = R & 3, []
        if R < 10:
            for k in range(4):
                out.append(Group([bdma(vXa[k], SX, sXs, k * 1024, FL[self.opt['flX']])]))
            for m in range(3):
                out.append(Group([bdma(vW1a[m], SW1, sW1, m * 1024, FL[self.opt['flX']])]))
            self.stage_pre[R] = {0: [salu('s_add_u32', 'm0', sXl, slot * 4096)],
                                 4: [salu('s_add_u32', 'm0', sW1l, slot * 12288)],
                                 7: [salu('s_add_u32', sKP, sKP, 1),
                                     Group([salu('s_cmp_eq_u32', sKP, 10), salu('s_cselect_b32', sKP, 0, sKP)]),
                                     salu('s_lshl_b32', sXs, sKP, 7), salu('s_add_u32', sXs, sXs, sXb),
                                     salu('s_mul_i32', sW1, sKP, 64 * 3072), salu('s_add_u32', sW1, sW1, sW1b)] if R < 9 else []}
        else:
            for m in range(4):
                out.append(Group([bdma(vL16, SWS, sWQ, m * 1024, 'sc1')]))
            self.stage_pre[R] = {0: [salu('s_add_u32', 'm0', sXl, slot * 4096)],
                                 4: [salu('s_add_u32', sG, sG, 4),
                                     Group([salu('s_cmp_ge_u32', sG, 20), salu('s_cselect_b32', sWQ, 20, 0)]),
                                     salu('s_sub_u32', sG, sG, sWQ), salu('s_lshl_b32', sWQ, sG, 12),
                                     salu('s_add_u32', sWQ, sWQ, sWQb)] +
                                    ([salu('s_add_u32', sWQ, sWQ, 81920)] if R >= 14 else []) if R < 19 else []}
        self.stage_ops[R] = [i for g in out for i in g if i.kind == 'dma']
        return out

    def inline_stage(self, R):
        out, pre = self.stage_dma(R), self.stage_pre[R]
        for k, ins in pre.items():
            ins = flatten(ins)
            if k < len(out):
                out[k][:0] = ins
            else:
                out[-1].extend(ins)
        return out

    def place_mem(self, w, seq, start, end):
        n = sum(1 for g, _ in seq if g)
        first = start + len(seq[0][1])
        last = end - (min(len(seq[-1][1]), 3) if seq[-1][0] is None else 0) - 1
        prev, k, carry = start - 1, 0, []
        for g, pre in seq + [(None, None)]:
            if pre is not None:
                carry += pre
            if g is None and pre is not None:
                continue
            if g is not None:
                lo = min(max(prev + 1, first + (last - first) * k // n), end - 1)
                hi = min(max(lo + 1, first + (last - first) * (k + 1) // n - 1), end)
                at = min(range(lo, hi), key=lambda x: (max(gcost(w.v[x] + vcost(g), w.s[x] + scost(g)) - w.cap, 0), x))
                k += 1
            else:
                at = end
            room = at - prev - 1
            if room <= 0:
                if g is not None:
                    w.at(at, Group(flatten(carry) + flatten([g])))
                elif carry:
                    w.at(prev, Group(flatten(carry)))
            else:
                for j, c in enumerate(carry):
                    w.at(prev + 1 + (j if len(carry) <= room else j * room // len(carry)), c)
                if g is not None:
                    w.at(at, g)
            carry, prev = [], at

    def ring_barrier(self, R, extra_vm=()):
        return Group([wait(vm=self.stage_ops[R] + list(extra_vm), all_lgkm=True), barrier()])

    def p2_steps(self):
        return [(sAh, sWh, i) for i in range(12)] + [(sAo, sWo, i) for i in range(4)] + [(sAb, sWb, 0)]

    def step_base(self, dst, base, k, stride, i):
        m = self.opt['rot2']
        if i == 16 or not m or (m == 12 and i >= 12):
            return [salu('s_add_u32', dst, base, k * stride)]
        if m in (2, 4):
            return [salu('s_add_u32', dst, sR2, k & (m - 1)), salu('s_and_b32', dst, dst, m - 1), salu('s_mul_i32', dst, dst, stride),
                    salu('s_add_u32', dst, dst, base)] + ([salu('s_add_u32', dst, dst, (k & ~(m - 1)) * stride)] if k >= m else [])
        return [salu('s_cmp_ge_u32', sR2, 12 - k), salu('s_cselect_b32', dst, (k - 12) & 0xffffffff, k),
                salu('s_add_u32', dst, dst, sR2), salu('s_mul_i32', dst, dst, stride), salu('s_add_u32', dst, dst, base)]

    @functools.lru_cache(None)
    def w_loads(self, i):
        _, sw, k = self.p2_steps()[i]
        out = []
        for n in range(5):
            g = [bload(wslot(i, n), vL16 if n < 4 else vL16b, SWS, sLW, (n & 3) * 1024, 'sc1')]
            if n == 0:
                g[:0] = self.step_base(sLW, sw, k, 5120, i)
            out.append(Group(g))
        return out

    @functools.lru_cache(None)
    def a_loads(self, i):
        sa, _, k = self.p2_steps()[i]
        out = []
        for t in range(4):
            g = [bload(aslot(i, t), vL16, SWS, sLA, t * 1024, 'sc1')]
            if t == 0:
                g[:0] = self.step_base(sLA, sa, k, 4096, i)
            out.append(Group(g))
        return out

    def startup(self):
        t = [V(n) for n in range(136, 256)]
        vQ, vZ, vOOB, vU, vHu, vR, vCC, vPs = t[5], t[7], t[14], t[15], t[16], t[17], t[18], t[19]
        rdA, soA = [t[20], t[21], t[22]], [sT[8], sT[9], sT[10]]
        rdB, stB, ldB = [t[23], t[24], t[25]], [t[26], t[27], t[28]], [t[29], t[30], t[31]]
        sW2c, sPB = sT[11], sT[12]
        H, PK = 200, 176
        p = []
        e = p.append
        x = p.extend
        e(salu('s_cmp_ge_u32', 's2', 256))
        e(raw("s_cbranch_scc1 L_end", rd=['scc'], kind='branch'))
        e(salu('s_getpc_b64', S(56, 2)))
        e(raw("L_pc:", kind='label', states=0))
        for r, off in ((4, 0), (16, 32), (8, 8), (28, 64), (12, 16), (20, 40), (24, 48)):
            e(raw(f"s_load_dwordx2 {S(r, 2)}, s[0:1], {off}", wr=regs(S(r, 2))))
        if self.opt.get('dbg'):
            e(raw("s_load_dwordx2 s[98:99], s[0:1], 56", wr=['s98', 's99']))
        e(salu('s_lshr_b32', sT[0], 's2', 3))
        e(salu('s_lshl_b32', sT[4], sT[0], 4))
        e(valu('v_lshrrev_b32', t[0], 6, 'v0'))
        e(valu('v_and_b32', t[1], 3, 'v0'))
        e(valu('v_lshl_add_u32', t[1], t[0], 2, t[1]))
        e(valu('v_add_lshl_u32', t[1], sT[4], t[1], 7))
        e(valu('v_min_u32', t[1], 'L_last-L_pc-4', t[1]))
        e(valu('v_mov_b32', t[3], 's57'))
        e(I(f"v_add_co_u32 {t[2]}, vcc, s56, {t[1]}", 'valu', ['s56', t[1]], [t[2], 'vcc']))
        e(valu('v_readfirstlane_b32', sW, t[0]))
        e(valu('v_and_b32', vL, 63, 'v0'))
        e(I(f"v_addc_co_u32 {t[3]}, vcc, 0, {t[3]}, vcc", 'valu', [t[3], 'vcc'], [t[3], 'vcc']))
        e(I(f"global_load_dword v255, {V(138, 2)}, off", 'vld', [t[2], t[3]], ['v255']))
        x(self.stamp('start'))
        if self.stamps:
            e(salu('s_mov_b32', 's84', 0))
            e(raw("s_memrealtime s[82:83]", wr=['s82', 's83']))
            e(raw("s_waitcnt lgkmcnt(0)"))
            e(raw(f"v_writelane_b32 {vJUNK}, s82, 61", rd=['s82'], kind='salu'))
        e(salu('s_and_b32', sT[3], 's2', 7))
        e(salu('s_lshr_b32', sT[4], sT[3], 1))
        e(salu('s_and_b32', sT[3], sT[3], 1))
        e(salu('s_and_b32', sB, sT[0], 3))
        e(salu('s_lshl2_add_u32', sB, sT[4], sB))
        e(valu('v_lshrrev_b32', t[4], 3, vL))
        e(valu('v_lshrrev_b32', vQ, 4, vL))
        e(valu('v_and_b32', t[6], 7, vL))
        e(valu('v_xor_b32', t[6], t[6], vQ))
        e(valu('v_lshlrev_b32', t[6], 4, t[6]))
        e(valu('v_mul_u32_u24', vXa[0], 2560, t[4]))
        e(valu('v_add_u32', vXa[0], vXa[0], t[6]))
        e(valu('v_xor_b32', vXa[2], 64, vXa[0]))
        e(valu('v_add_u32', vXa[1], 1280 - 1024, vXa[0]))
        e(valu('v_add_u32', vXa[3], 20480 + 1280 - 3072, vXa[2]))
        e(valu('v_add_u32', vXa[2], 20480 - 2048, vXa[2]))
        rot = self.opt['rot']
        if rot == 1:
            e(salu('s_and_b32', sR, sT[0], 3))
            e(salu('s_mul_i32', sR, sR, 5))
            e(salu('s_lshr_b32', sR, sR, 1))
            e(salu('s_lshr_b32', sKP, sT[0], 2))
            e(salu('s_add_u32', sR, sR, sKP))
            e(salu('s_cmp_ge_u32', sR, 10))
            e(salu('s_cselect_b32', sKP, 10, 0))
            e(salu('s_sub_u32', sR, sR, sKP))
        elif rot == 2:
            e(salu('s_lshr_b32', sR, sT[0], 2))
            e(salu('s_xor_b32', sR, sR, sT[0]))
            e(salu('s_and_b32', sR, sR, 1))
            e(salu('s_mul_i32', sR, sR, 5))
        elif rot == 4:
            e(salu('s_lshr_b32', sR, sT[0], 2))
            e(salu('s_add_u32', sR, sR, sT[0]))
            e(salu('s_and_b32', sR, sR, 3))
            e(salu('s_mul_i32', sR, sR, 5))
            e(salu('s_lshr_b32', sR, sR, 1))
        elif rot in (3, 7, 8, 9):
            g_, step = {3: (3, 3), 7: (5, 2), 8: (4, 0), 9: (5, 2)}[rot]
            e(salu('s_lshr_b32', sR, sT[0], 2))
            e(salu('s_and_b32', sKP, sT[0], 3))
            e(salu('s_add_u32', sR, sR, sKP))
            if rot in (8, 9):
                e(salu('s_add_u32', sR, sR, sT[4]))
                e(salu('s_lshl1_add_u32', sR, sT[3], sR))
            e(salu('s_mul_i32', sKP, sR, -(-256 // g_)))
            e(salu('s_lshr_b32', sKP, sKP, 8))
            e(salu('s_mul_i32', sKP, sKP, g_))
            e(salu('s_sub_u32', sR, sR, sKP))
            if step:
                e(salu('s_mul_i32', sR, sR, step))
            else:
                e(salu('s_mul_i32', sR, sR, 5))
                e(salu('s_lshr_b32', sR, sR, 1))
        elif rot in (5, 6):
            e(salu('s_and_b32', sR, sT[0], 3))
            e(salu('s_mul_i32', sR, sR, 5))
            e(salu('s_lshr_b32', sR, sR, 1))
            if rot == 5:
                e(salu('s_lshr_b32', sKP, sT[0], 2))
            else:
                e(salu('s_lshr_b32', sKP, sT[0], 2))
                e(salu('s_and_b32', sKP, sKP, 3))
                e(salu('s_mul_i32', sKP, sKP, 5))
                e(salu('s_lshr_b32', sKP, sKP, 1))
            e(salu('s_add_u32', sR, sR, sKP))
            e(salu('s_mul_i32', sKP, sT[3], 5 if rot == 5 else 1))
            e(salu('s_add_u32', sR, sR, sKP))
            e(salu('s_add_u32', sR, sR, sT[4]))
            e(salu('s_mul_i32', sKP, sR, 26))
            e(salu('s_lshr_b32', sKP, sKP, 8))
            e(salu('s_mul_i32', sKP, sKP, 10))
            e(salu('s_sub_u32', sR, sR, sKP))
        else:
            e(salu('s_mov_b32', sR, 0))
        e(salu('s_mov_b32', sKP, sR))
        e(salu('s_lshl2_add_u32', sXb, sB, sW))
        e(salu('s_mul_i32', sXb, sXb, 32 * 1280))
        e(salu('s_lshl_b32', sXs, sKP, 7))
        e(salu('s_add_u32', sXs, sXs, sXb))
        e(salu('s_lshl_b32', sXl, sW, 14))
        e(salu('s_add_u32', sXl, sXl, XR))
        e(salu('s_mov_b32', S(6), 2621440))
        e(salu('s_mov_b32', S(7), 0x20000))
        npro = self.opt['npro']
        st = [self.inline_stage(R) for R in range(npro)]
        fast = self.opt['fast']
        if fast:
            e(raw("s_waitcnt lgkmcnt(0)", drains_lgkm=True))
            x(st[0][:fast])
        for r, size in ((16, 1966080),):
            e(salu('s_mov_b32', S(r + 2), size))
            e(salu('s_mov_b32', S(r + 3), 0x20000))
        e(salu('s_lshr_b32', sJ, sT[0], 2))
        e(salu('s_lshl3_add_u32', sJ, sT[3], sJ))
        e(salu('s_mul_i32', sW1b, sW, 16 * 3072))
        e(salu('s_mul_i32', sT[1], sJ, 192))
        e(salu('s_add_u32', sW1b, sW1b, sT[1]))
        e(salu('s_mul_i32', sW1, sKP, 64 * 3072))
        e(salu('s_add_u32', sW1, sW1, sW1b))
        e(salu('s_mul_i32', sW1l, sW, 3072))
        e(salu('s_add_u32', sW1l, sW1l, W1R))
        e(salu('s_mov_b32', S(30), WS_SIZE))
        e(salu('s_mov_b32', S(31), 0x20000))
        vSr, vSt, SR = V(232), V(233), 236
        e(valu('v_mov_b32', vZ, 0))
        e(valu('v_mov_b32', vOOB, OOB))
        e(salu('s_lshl2_add_u32', sT[1], sJ, sW))
        e(salu('s_lshl_b32', sT[1], sT[1], 1))
        e(salu('s_lshl_b32', sT[2], sB, 7))
        e(salu('s_add_u32', sT[1], sT[1], sT[2]))
        e(valu('v_lshrrev_b32', vSt, 5, vL))
        e(valu('v_add_u32', vSt, sT[1], vSt))
        e(valu('v_and_b32', t[8], 31, vL))
        e(valu('v_cmp_gt_u32', 'vcc', 16, t[8]))
        e(valu('v_mul_u32_u24', vSr, 1280, vSt))
        e(valu('v_lshl_add_u32', vSr, t[8], 4, vSr))
        e(valu('v_cndmask_b32', V(234), vOOB, vSr, 'vcc'))
        if self.opt['touch']:
            e(salu('s_lshl_b32', sT[1], 's2', 7))
            e(salu('s_add_u32', sT[1], sT[1], F1))
            e(valu('v_cmp_eq_u32', 'vcc', 1, 'v0'))
            e(valu('v_mov_b32', V(235), sT[1]))
            e(valu('v_cndmask_b32', V(235), 0, V(235), 'vcc'))
            if self.opt['tlb']:
                e(valu('v_subrev_u32', t[9], 8, 'v0'))
                e(valu('v_cmp_gt_u32', 'vcc', 7, t[9]))
                e(valu('v_lshlrev_b32', t[9], 21, t[9]))
                e(valu('v_cndmask_b32', V(235), V(235), t[9], 'vcc'))
        e(raw("s_waitcnt lgkmcnt(0)", drains_lgkm=True))
        x(self.stamp('karg'))
        srow = [bload(V(SR, 4), vSr, SX), bload(V(SR + 4, 4), vSr, SX, 0, 512), bload(V(SR + 8, 4), V(234), SX, 0, 1024),
                bload(vTAG, V(235) if self.opt['touch'] else vZ, SWS, 0, 0, 'sc1')]
        if self.opt['srow'] == 0:
            x(srow)

        def w1_addr(m):
            return [valu('v_add_u32', t[8], 64 * m, vL)] + self.divc(t[9], t[8], 12, 191) + [
                valu('v_mul_u32_u24', t[10], 12, t[9]), valu('v_sub_u32', t[8], t[8], t[10]),
                valu('v_lshrrev_b32', t[10], 2, t[9]), valu('v_and_b32', t[10], 2, t[10]),
                valu('v_xor_b32', t[8], t[8], t[10]), valu('v_mul_u32_u24', t[9], 3072, t[9]),
                valu('v_lshl_add_u32', vW1a[m], t[8], 4, t[9])] + (
                [valu('v_subrev_u32', vW1a[m], 1024 * m, vW1a[m])] if m else [])
        x(st[0][fast:2])
        x(w1_addr(0))
        x(st[0][max(fast, 2):3])
        x(w1_addr(1))
        x(st[0][max(fast, 3):4])
        x(self.stamp('st0x'))
        x(w1_addr(2))
        e(st[0][4])
        e(salu('s_and_b32', sTB, sT[0], 7))
        e(salu('s_lshl3_add_u32', sTB, sT[4], sTB))
        e(salu('s_lshr_b32', sC, sT[0], 3))
        e(salu('s_lshl2_add_u32', sC, sT[3], sC))
        for r, size in ((8, 2457600), (12, 819200), (20, 1966080), (24, 2621440)):
            e(salu('s_mov_b32', S(r + 2), size))
            e(salu('s_mov_b32', S(r + 3), 0x20000))
        e(st[0][5])
        e(st[0][6])
        x(self.stamp('st0w'))
        if self.opt['srow'] == 1:
            x(srow)
        self.p0a, self.rawA = [], []
        early = self.opt['rawA'] < 0
        ldA, sA = [V(229), V(230), V(231)], S(97)
        later = []
        e_, x_ = (e, x) if early else (later.append, later.extend)
        sUA, sSec = sT[6], sT[7]
        e_(salu('s_mul_i32', sUA, 's2', 171))
        e_(salu('s_lshr_b32', sUA, sUA, 9))
        e_(salu('s_mul_i32', sSec, sUA, 3))
        e_(salu('s_sub_u32', sSec, 's2', sSec))
        e_(salu('s_mul_i32', sA, sUA, 8 * 3840))
        e_(salu('s_mul_i32', sT[2], sSec, 1280))
        e_(salu('s_add_u32', sA, sA, sT[2]))
        e_(salu('s_lshl_b32', sT[2], sW, 6))
        for m in range(3):
            e_(valu('v_add_u32', t[8], sT[2], vL))
            if m:
                e_(valu('v_add_u32', t[8], 256 * m, t[8]))
            x_(self.divc(t[9], t[8], 80, 767))
            if m == 2:
                e_(valu('v_cmp_gt_u32', 'vcc', 640, t[8]))
            e_(valu('v_mul_u32_u24', t[9], 3840 - 1280, t[9]))
            e_(valu('v_lshl_add_u32', ldA[m], t[8], 4, t[9]))
            if m == 2:
                e_(valu('v_cndmask_b32', ldA[m], vOOB, ldA[m], 'vcc'))
            d = bdma(ldA[m], SWQKV, sA, 0, FL[self.opt['flA']])
            g_ = Group([salu('s_lshl_b32', sT[5], sW, 10), salu('s_add_u32', 'm0', sT[5], P0A + 4096 * m), d])
            self.p0a.append(d)
            if early:
                e(g_)
            else:
                self.rawA.append(g_)
        if self.opt['touch2']:
            e(salu('s_lshr_b32', sT[1], sUA, 2))
            e(salu('s_lshl_b32', sT[1], sT[1], 12))
            e(salu('s_and_b32', sT[2], sUA, 3))
            e(salu('s_lshl_b32', sT[2], sT[2], 8))
            e(salu('s_add_u32', sT[1], sT[1], sT[2]))
            e(salu('s_add_u32', sT[1], sT[1], WQ + 3072))
            e(salu('s_lshl2_add_u32', sT[2], sSec, sW))
            e(salu('s_cmp_lt_u32', sT[2], 8))
            e(salu('s_cselect_b32', sT[1], sT[1], 0x70000000))
            e(salu('s_cmp_lt_u32', 's2', 240))
            e(salu('s_cselect_b32', sT[1], sT[1], 0x70000000))
            e(salu('s_mul_i32', sT[2], sT[2], 4 * 81920))
            e(salu('s_add_u32', sT[1], sT[1], sT[2]))
            e(valu('v_and_b32', t[8], 3, vL))
            e(valu('v_mul_u32_u24', t[8], 81920, t[8]))
            e(bload(V(254), t[8], SWS, sT[1]))
        if self.opt['tlb'] > 1:
            e(valu('v_lshlrev_b32', t[8], 20, 'v0'))
            e(valu('v_cmp_gt_u32', 'vcc', 3, 'v0'))
            e(valu('v_cndmask_b32', t[8], vOOB, t[8], 'vcc'))
            e(bload(V(254), t[8], SOUT))
        x(self.stamp('p0a'))

        q = later
        e = q.append
        x = q.extend
        vHa = t[32]
        e(valu('v_and_b32', vU, 15, vL))
        e(valu('v_bfe_u32', vR, vL, 2, 2))
        e(valu('v_and_b32', vCC, 3, vL))
        e(salu('s_and_b32', sT[1], sW, 1))
        e(salu('s_lshl_b32', sT[2], sT[1], 3))
        e(valu('v_lshrrev_b32', vHu, 3, vL))
        e(valu('v_add_u32', vHu, sT[2], vHu))
        e(salu('s_lshl_b32', sT[2], sB, 7))
        e(salu('s_sub_u32', sT[2], sT[2], 16))
        e(valu('v_add_u32', vHa, sT[2], vHu))
        e(valu('v_cmp_le_i32', 'vcc', 0, vHa))
        e(valu('v_lshrrev_b32', t[8], 1, vHu))
        e(valu('v_xor_b32', t[8], t[8], vL))
        e(valu('v_and_b32', t[8], 7, t[8]))
        e(valu('v_mul_u32_u24', vHa, 1280, vHa))
        e(valu('v_lshl_add_u32', vHa, t[8], 4, vHa))
        e(valu('v_cndmask_b32', vHa, vOOB, vHa, 'vcc'))
        e(valu('v_cmp_lt_u32', 'vcc', 1, vHu))
        e(valu('v_cndmask_b32', vHa, vOOB, vHa, 'vcc'))
        sHk, sHl = S(94), S(95)
        e(salu('s_lshr_b32', sT[2], sW, 1))
        e(salu('s_mul_i32', sT[2], sT[2], 5))
        e(salu('s_lshl_b32', sHl, sT[2], 11))
        e(salu('s_lshl_b32', sT[1], sT[1], 10))
        e(salu('s_add_u32', sHl, sHl, sT[1]))
        e(salu('s_add_u32', sHk, sT[2], sR))
        halo_loads = []
        for i5 in range(5):
            halo_loads.append(Group([salu('s_cmp_ge_u32', sHk, 10 - i5), salu('s_cselect_b32', sT[5], (i5 - 10) & 0xffffffff, i5),
                                     salu('s_add_u32', sT[5], sT[5], sHk), salu('s_lshl_b32', sT[5], sT[5], 7),
                                     salu('s_add_u32', 'm0', sHl, HALO + 2048 * i5), bdma(vHa, SX, sT[5], 0, FL[self.opt['flH']])]))
        self.halo_ops = [g_[-1] for g_ in halo_loads]
        e(salu('s_lshl2_add_u32', sT[1], sB, sW))
        e(salu('s_lshl_b32', sT[1], sT[1], 8))
        e(salu('s_add_u32', sT[1], sT[1], ST))
        e(valu('v_lshl_add_u32', vSA, vU, 4, sT[1]))
        e(salu('s_lshl_b32', sT[1], sB, 10))
        e(salu('s_max_u32', sT[1], sT[1], 128))
        e(salu('s_add_u32', sT[1], sT[1], ST - 128))
        e(valu('v_lshl_add_u32', vSH, vU, 3, sT[1]))
        e(valu('v_lshlrev_b32', vL16, 4, vL))
        e(valu('v_add_u32', vL16b, 4096, vL16))
        e(valu('v_lshrrev_b32', t[8], 1, vU))
        e(valu('v_xor_b32', t[8], t[8], vQ))
        e(valu('v_lshlrev_b32', t[8], 4, t[8]))
        e(valu('v_lshl_add_u32', vHr[0], vU, 7, t[8]))
        e(valu('v_xor_b32', vHr[1], 64, vHr[0]))
        e(valu('v_and_b32', t[8], 8, vU))
        e(valu('v_lshlrev_b32', t[8], 7, t[8]))
        e(valu('v_add3_u32', vXr[0], sXl, vHr[0], t[8]))
        e(valu('v_xor_b32', vXr[1], 64, vXr[0]))
        e(valu('v_lshl_add_u32', t[8], vQ, 3, vR))
        e(valu('v_mul_u32_u24', t[8], 192, t[8]))
        e(valu('v_lshl_add_u32', t[8], vCC, 3, t[8]))
        e(valu('v_and_b32', t[9], 1, vQ))
        e(valu('v_lshl_add_u32', t[8], t[9], 5, t[8]))
        e(salu('s_cmp_eq_u32', sW, 3))
        e(salu('s_cselect_b32', sROT, 0, sW))
        e(salu('s_lshl_b32', sT[1], sB, 1))
        e(salu('s_lshr_b32', sT[2], sW, 1))
        e(salu('s_add_u32', sT[12], sT[1], sT[2]))
        e(salu('s_mul_i32', sAP, sT[12], ACTB))
        e(salu('s_and_b32', sT[2], sW, 1))
        e(salu('s_lshl_b32', sT[2], sT[2], 11))
        e(salu('s_add_u32', sAP, sAP, sT[2]))
        e(salu('s_add_u32', sAP, sAP, ACT))
        for m in range(3):
            e(salu('s_add_u32', sT[1], sROT, m))
            e(salu('s_cmp_ge_u32', sT[1], 3))
            e(salu('s_cselect_b32', sT[2], 3, 0))
            e(salu('s_sub_u32', sT[1], sT[1], sT[2]))
            e(salu('s_lshl_b32', sT[2], sT[1], 6))
            e(salu('s_add_u32', sT[2], sT[2], W1R))
            e(valu('v_add_u32', vW1r[2 * m], sT[2], t[8]))
            e(valu('v_xor_b32', vW1r[2 * m + 1], 32, vW1r[2 * m]))
            e(salu('s_mul_i32', sT[2], sJ, 3))
            e(salu('s_add_u32', sT[1], sT[1], sT[2]))
            e(salu('s_lshl_b32', sT[1], sT[1], 12))
            e(salu('s_add_u32', sHS[m], sT[1], sAP))
        e(valu('v_mov_b32', t[8], 0x3f803f80))
        for r in range(4):
            e(valu('v_accvgpr_write_b32', A(240 + r), t[8]))
        stA = [vPs, t[33], t[35]]
        soA[:] = [sT[9], sT[9], sT[10]]
        e(salu('s_lshr_b32', sT[1], sUA, 2))
        e(salu('s_lshl_b32', sT[1], sT[1], 12))
        e(salu('s_and_b32', sT[2], sUA, 3))
        e(salu('s_lshl_b32', sT[2], sT[2], 8))
        e(salu('s_add_u32', sT[1], sT[1], sT[2]))
        e(salu('s_add_u32', sT[1], sT[1], WQ))
        e(salu('s_cmp_lt_u32', 's2', 240))
        e(salu('s_cselect_b32', sT[1], sT[1], 0x70000000))
        e(salu('s_lshl_b32', sT[2], sSec, 10))
        e(salu('s_add_u32', soA[0], sT[1], sT[2]))
        e(salu('s_lshl_b32', sT[2], sSec, 6))
        e(salu('s_add_u32', sT[2], sT[2], 3072))
        e(salu('s_add_u32', soA[2], sT[1], sT[2]))
        e(salu('s_cmp_eq_u32', sSec, 2))
        e(salu('s_cselect_b32', S(93), soA[2], 0x70000000))
        e(salu('s_mov_b32', sT[3], WQJ))
        e(salu('s_mov_b32', sT[4], 81920))
        e(valu('v_mul_u32_u24', t[8], 1280, vR))
        e(valu('v_add_u32', t[8], P0A, t[8]))
        for k in range(3):
            if k < 2:
                e(salu('s_lshl_b32', sT[1], sW, 2))
                e(salu('s_add_u32', sT[1], sT[1], 16 * k))
                e(valu('v_add_u32', t[9], sT[1], vQ))
                e(valu('v_mul_u32_u24', t[10], 40, t[9]))
                e(valu('v_lshl_add_u32', t[10], vCC, 3, t[10]))
                e(valu('v_add_u32', rdA[k], t[8], t[10]))
                e(valu('v_lshlrev_b32', t[11], 4, vU))
            else:
                e(salu('s_and_b32', sT[1], sW, 1))
                e(salu('s_lshl_b32', sT[1], sT[1], 4))
                e(valu('v_lshl_add_u32', t[12], vQ, 2, sT[1]))
                e(valu('v_add_u32', t[9], t[12], vCC))
                e(valu('v_mul_u32_u24', t[10], 40, t[9]))
                e(valu('v_add3_u32', rdA[k], t[8], t[10], 32))
                e(valu('v_add_u32', t[9], t[12], vR))
                e(valu('v_lshlrev_b32', t[11], 4, vCC))
            e(valu('v_lshrrev_b32', t[10], 1, t[9]))
            e(valu('v_mad_u32_u24', t[11], t[10], sT[3], t[11]))
            e(valu('v_and_b32', t[9], 1, t[9]))
            e(valu('v_mad_u32_u24', stA[k], t[9], sT[4], t[11]))
        e(salu('s_cmp_lt_u32', sW, 2))
        e(salu('s_cselect_b64', 'vcc', -1, 0))
        e(valu('v_cndmask_b32', stA[2], vOOB, stA[2], 'vcc'))
        sSrc, sDst = [S(76), S(77), S(3)], [sT[6], sT[7], sT[8]]
        e(valu('v_lshrrev_b32', t[12], 3, vL))
        e(valu('v_and_b32', t[13], 3, t[12]))
        e(valu('v_lshrrev_b32', t[12], 2, t[12]))
        e(valu('v_mul_u32_u24', t[13], 1280, t[13]))
        e(valu('v_and_b32', t[8], 7, vL))
        e(valu('v_lshl_add_u32', t[13], t[8], 4, t[13]))
        e(salu('s_mov_b32', sT[12], W2C))
        for m in range(3):
            e(salu('s_mul_i32', sT[1], sW, 768))
            e(salu('s_add_u32', sT[1], sT[1], 's2'))
            if m:
                e(salu('s_add_u32', sT[1], sT[1], 256 * m))
            e(salu('s_mul_i32', sT[2], sT[1], 6554))
            e(salu('s_lshr_b32', sT[2], sT[2], 16))
            e(salu('s_mul_i32', sT[3], sT[2], 10))
            e(salu('s_sub_u32', sT[3], sT[1], sT[3]))
            e(salu('s_lshr_b32', sT[4], sT[2], 2))
            e(salu('s_mul_i32', sDst[m], sT[4], 5120))
            e(salu('s_and_b32', sT[5], sT[2], 3))
            e(salu('s_lshl_b32', sSrc[m], sT[5], 8))
            e(salu('s_add_u32', sDst[m], sDst[m], sSrc[m]))
            e(salu('s_add_u32', sDst[m], sDst[m], W2P))
            e(salu('s_lshl_b32', sT[5], sT[5], 2))
            e(salu('s_lshl_b32', sSrc[m], sT[4], 5))
            e(salu('s_add_u32', sSrc[m], sSrc[m], sT[5]))
            e(salu('s_sub_u32', sT[4], sT[4], 48))
            e(salu('s_mul_i32', sT[4], sT[4], 40))
            e(salu('s_add_u32', sT[4], sT[4], sT[5]))
            e(salu('s_sub_u32', sT[5], sT[2], 256))
            e(salu('s_mul_i32', sT[5], sT[5], 40))
            e(salu('s_add_u32', sT[5], sT[5], 16))
            e(salu('s_cmp_lt_u32', sT[2], 256))
            e(salu('s_cselect_b32', sT[4], sT[4], sT[5]))
            e(salu('s_cmp_lt_u32', sT[2], 192))
            e(salu('s_cselect_b32', sSrc[m], sSrc[m], sT[4]))
            e(salu('s_cmp_lt_u32', sT[2], 192))
            e(salu('s_cselect_b32', sT[4], 16, 20))
            e(salu('s_mul_i32', sT[4], sT[4], 1280))
            e(valu('v_mad_u32_u24', ldB[m], t[12], sT[4], t[13]))
            e(salu('s_mul_i32', sSrc[m], sSrc[m], 1280))
            e(salu('s_lshl_b32', sT[4], sT[3], 7))
            e(salu('s_add_u32', sSrc[m], sSrc[m], sT[4]))
            e(salu('s_cmp_lt_u32', sT[1], 2720))
            e(salu('s_cselect_b32', sSrc[m], sSrc[m], 0x70000000))
            e(salu('s_cmp_lt_u32', sT[1], 2720))
            e(salu('s_cselect_b32', sDst[m], sDst[m], 0x70000000))
            e(salu('s_lshl_b32', sT[3], sT[3], 2))
            e(valu('v_add_u32', t[9], sT[3], vQ))
            x(self.divc(t[10], t[9], 5, 39))
            e(valu('v_mul_u32_u24', t[11], 5, t[10]))
            e(valu('v_sub_u32', t[9], t[9], t[11]))
            e(valu('v_lshlrev_b32', t[9], 10, t[9]))
            e(valu('v_lshl_add_u32', t[9], vU, 4, t[9]))
            e(valu('v_mad_u32_u24', stB[m], t[10], sT[12], t[9]))
        e(salu('s_mul_i32', sT[1], sW, 3072))
        e(salu('s_add_u32', sPB, sT[1], P0B))
        e(valu('v_lshlrev_b32', t[8], 7, vR))
        e(valu('v_lshl_add_u32', t[8], vQ, 5, t[8]))
        e(valu('v_lshl_add_u32', t[8], vCC, 3, t[8]))
        e(valu('v_add_u32', rdB[0], sPB, t[8]))
        e(salu('s_mov_b32', S(75), 0x20000))
        e(salu('s_mul_i32', sW2c, sC, W2C))
        e(salu('s_add_u32', sW2c, sW2c, W2P))
        vHw = t[34]
        e(salu('s_mul_i32', sT[1], sW, 20))
        e(valu('v_add_u32', t[8], sT[1], vL))
        e(valu('v_cmp_gt_u32', 'vcc', 20, vL))
        e(valu('v_lshrrev_b32', t[9], 3, t[8]))
        e(valu('v_and_b32', t[8], 7, t[8]))
        e(valu('v_lshlrev_b32', t[8], 4, t[8]))
        e(valu('v_lshl_add_u32', t[8], t[9], 11, t[8]))
        e(valu('v_add_u32', t[9], DUMMY, vL16))
        e(valu('v_cndmask_b32', vHw, t[9], t[8], 'vcc'))
        fs = self.opt['fstride']
        e(salu('s_lshr_b32', sT[3], 's2', 2))
        e(salu('s_lshl_b32', sT[3], sT[3], fs))
        e(salu('s_and_b32', sT[1], 's2', 3))
        e(salu('s_lshl2_add_u32', sT[3], sT[1], sT[3]))
        e(salu('s_add_u32', sT[3], sT[3], F1))
        e(valu('v_cmp_eq_u32', 'vcc', 0, 'v0'))
        e(valu('v_mov_b32', t[8], sT[3]))
        e(valu('v_cndmask_b32', vFA, vOOB, t[8], 'vcc'))
        x(self.poll_all(F1))
        e(salu('s_mul_i32', sWQb, sJ, WQJ))
        e(salu('s_add_u32', sWQb, sWQb, WQ))
        e(salu('s_lshl1_add_u32', sG, sR, sW))
        e(salu('s_cmp_ge_u32', sG, 20))
        e(salu('s_cselect_b32', sWQ, 20, 0))
        e(salu('s_sub_u32', sG, sG, sWQ))
        e(salu('s_lshl_b32', sWQ, sG, 12))
        e(salu('s_add_u32', sWQ, sWQ, sWQb))
        e(salu('s_lshr_b32', sT[1], 's2', 3))
        e(salu('s_and_b32', sT[2], sT[1], 7))
        e(salu('s_mul_i32', sT[2], sT[2], 3))
        e(salu('s_lshr_b32', sT[2], sT[2], 1))
        e(salu('s_lshr_b32', sT[1], sT[1], 3))
        e(salu('s_mul_i32', sT[1], sT[1], 3))
        e(salu('s_add_u32', sR2, sT[1], sT[2]))
        e(salu('s_cmp_ge_u32', sR2, 12))
        e(salu('s_cselect_b32', sT[1], 12, 0))
        e(salu('s_sub_u32', sR2, sR2, sT[1]))
        if self.opt['rot2'] in (2, 4):
            e(salu('s_lshr_b32', sT[1], 's2', 3))
            e(salu('s_lshr_b32', sT[2], 's2', 6))
            e(salu('s_add_u32', sR2, sT[1], sT[2]))
        e(salu('s_mul_i32', sT[1], sTB, ACTB))
        e(salu('s_add_u32', sT[1], sT[1], ACT))
        e(salu('s_mul_i32', sT[2], sW, 12 * 4096))
        e(salu('s_add_u32', sAh, sT[1], sT[2]))
        e(salu('s_lshl_b32', sT[2], sW, 14))
        e(salu('s_add_u32', sAo, sT[1], sT[2]))
        e(salu('s_add_u32', sAo, sAo, 48 * 4096))
        e(salu('s_lshl_b32', sT[2], sW, 12))
        e(salu('s_add_u32', sAb, sT[1], sT[2]))
        e(salu('s_add_u32', sAb, sAb, 64 * 4096))
        e(salu('s_mul_i32', sT[2], sW, 12 * 5120))
        e(salu('s_add_u32', sWh, sW2c, sT[2]))
        e(salu('s_mul_i32', sT[2], sW, 4 * 5120))
        e(salu('s_add_u32', sWo, sW2c, sT[2]))
        e(salu('s_add_u32', sWo, sWo, 48 * 5120))
        e(salu('s_mul_i32', sT[2], sW, 5120))
        e(salu('s_add_u32', sWb, sW2c, sT[2]))
        e(salu('s_add_u32', sWb, sWb, 64 * 5120))
        e(salu('s_add_u32', sT[1], sJ, 48))
        e(salu('s_lshl_b32', sT[1], sT[1], 12))
        e(salu('s_add_u32', sOA, sT[1], sAP))
        e(salu('s_lshr_b32', sT[1], sJ, 2))
        e(salu('s_add_u32', sT[1], sT[1], 64))
        e(salu('s_lshl_b32', sT[1], sT[1], 12))
        e(salu('s_and_b32', sT[2], sJ, 3))
        e(salu('s_lshl_b32', sT[2], sT[2], 8))
        e(salu('s_add_u32', sT[1], sT[1], sT[2]))
        e(salu('s_add_u32', sOB, sT[1], sAP))
        e(salu('s_mov_b64', sLO16, 0xffff))
        e(salu('s_mov_b32', 's70', 0x00010001))
        e(salu('s_mov_b32', 's71', 0x00010001))
        e(salu('s_mov_b32', sSCL, f2u(20 ** -0.5 * 1.4426950408889634)))
        for i in range(4):
            e(salu('s_add_u32', sT[1], sW, i))
            e(salu('s_and_b32', sT[1], sT[1], 3))
            e(salu('s_lshl_b32', sT[1], sT[1], 10))
            e(salu('s_add_u32', sT[1], sT[1], XR))
            e(valu('v_add_u32', vWr[i], sT[1], vL16))
        e(valu('v_lshlrev_b32', t[8], 2, vQ))
        e(valu('v_sub_u32', t[8], vU, t[8]))
        e(valu('v_mov_b32', t[10], f2u(-1e30)))
        e(salu('s_or_b32', sT[1], sB, sW))
        e(salu('s_cmp_eq_u32', sT[1], 0))
        e(salu('s_cselect_b32', sT[1], 0, 2))
        e(valu('v_cmp_gt_u32', 'vcc', sT[1], vQ))
        e(valu('v_cndmask_b32', t[11], t[10], vZ, 'vcc'))
        for r in range(4):
            e(valu('v_subrev_u32', t[9], r, t[8]))
            e(valu('v_cmp_gt_u32', 'vcc', 8, t[9]))
            e(valu('v_cmp_gt_i32', S(56, 2), 0, t[9]))
            e(valu('v_cndmask_b32', V(MASK + 4 + r), t[10], vZ, 'vcc'))
            e(valu('v_cndmask_b32', V(MASK + r), t[10], t[11], S(56, 2)))
        e(valu('v_mov_b32', t[8], ZERO))
        e(valu('v_mov_b32', t[10], 0))
        e(valu('v_mov_b32', t[11], 0))
        e(ds_write('ds_write_b64', t[8], V(146, 2)))
        loads = (st[1] if npro > 1 else []) + (halo_loads if npro > 2 else []) + [x_ for r_ in st[2:] for x_ in r_]
        self.halo_loads = [] if npro > 2 else halo_loads
        p += self.sprinkle(q, loads, max(1, min(self.opt['pro_every'], (len(q) - 16) // max(len(loads), 1))), start=self.opt['pro_start'])
        self.rawB = []
        for m in range(3):
            self.rawB.append(Group([Group([salu('s_cmp_lt_u32', sDst[m], W2P + 48 * 5120), salu('s_cselect_b64', S(72, 2), S(20, 2), S(12, 2)),
                                           salu('s_cselect_b32', S(74), S(22), S(14))]),
                                    salu('s_add_u32', 'm0', sPB, 1024 * m),
                                    bdma(ldB[m], S(72, 4), sSrc[m], 0, FL[self.opt['flB']])]))
        if self.opt['rawB'] < 0:
            p += flatten(self.rawB)
        p += self.stamp('setup')
        shadow = self.opt['srow'] >= 2
        hs, hq, ht, h3, h4, h5 = (V(n) for n in range(224, 229)) if False else (V(248), V(249), V(250), V(251), V(252), V(253))
        z = [valu('v_readfirstlane_b32', sTAG, vTAG), valu('v_mov_b32', ht, 0x3f803f80),
             salu('s_mul_i32', sTAG, sTAG, 0x19660d), salu('s_add_u32', sTAG, sTAG, 0x3c6ef35f),
             salu('s_cmp_eq_u32', sW, 0), salu('s_cselect_b32', sCMP, sTAG, 0), valu('v_mov_b32', vTAG, sTAG)]
        for i in range(12):
            if not shadow:
                z += [valu('v_dot2_f32_bf16', hs, V(SR + i), ht, hs if i else 0),
                      valu('v_dot2_f32_bf16', hq, V(SR + i), V(SR + i), hq if i else 0)]
                continue
            z += [valu('v_lshlrev_b32', h4, 16, V(SR + i)), valu('v_and_b32', h5, 0xffff0000, V(SR + i))]
            z += [valu('v_add_f32', hs, h4, h5), valu('v_mul_f32', hq, h4, h4)] if i == 0 else \
                [valu('v_add_f32', hs, hs, h4), valu('v_fmac_f32', hq, h4, h4), valu('v_add_f32', hs, hs, h5)]
            z.append(valu('v_fmac_f32', hq, h5, h5))
        z += [valu('v_and_b32', h3, 31, vL), valu('v_cmp_eq_u32', S(98, 2) if not self.opt.get('dbg') else 'vcc', 0, h3),
              valu('v_lshlrev_b32', h3, 3, vSt), valu('v_add_u32', h3, ST, h3)]
        for sh in (8, 4, 2, 1):
            z.append(Skip(1))
            for r in (hs, hq):
                z.append(valu('v_add_f32_dpp', r, r, r, mods=f'row_ror:{sh} row_mask:0xf bank_mask:0xf'))
        z += [valu('v_mov_b32', h4, hs), valu('v_mov_b32', h5, hq),
              valu('v_cndmask_b32', h3, vOOB, h3, S(98, 2) if not self.opt.get('dbg') else 'vcc'), Skip(1),
              valu('v_permlane16_swap_b32', hs, h4), valu('v_permlane16_swap_b32', hq, h5),
              valu('v_add_f32', hs, hs, h4), valu('v_add_f32', hq, hq, h5)]
        z += self.rstats(hs, hq, V(SR), ht) + [valu('v_mov_b32', V(SR + 1), sTAG), bstore(V(SR, 2), h3, SWS, 0, 0, 'sc1')]
        self.srow, self.stats = (srow, z) if shadow else ([], [])
        if not shadow:
            p += z
        p += self.stamp('stats')
        p.append(Group([wait(vm=self.stage_ops[0]), barrier()]))
        p += self.stamp('B0') + [raw("s_nop 0", states=1)] * self.opt['shift']

        def pack(rd, k0, dst):
            o_ = [ds_read('ds_read_b64_tr_b16', V(PK + 4 * (k0 + k) + 2 * h, 2), *rd(k, h)) for k in range(3) for h in range(2)]
            sts = [bstore(V(PK + 4 * (k0 + k), 4), dst[k][0], SWS, dst[k][1], 0, FL[self.opt['flS']]) for k in range(3)]
            return o_, sts
        self.packA = pack(lambda k, h: (rdA[k], 5120 * h), 0, list(zip(stA, soA)))
        if self.opt['padw']:
            self.packA[1].append(bstore(V(PK + 8, 4), stA[2], SWS, S(93), 64, FL[self.opt['flS']]))
        self.packB = pack(lambda k, h: (rdB[0], 1024 * k + 512 * h), 3, list(zip(stB, sDst)))
        self.f2_pub = [valu('v_add_u32', vFA, F2 - F1, vFA)]
        self.ones = [valu('v_mov_b32', V(220 + r), 0x3f803f80) for r in range(4)] + \
            [ds_write('ds_write_b128', vHw, V(220, 4), HALO)]
        return p

    @functools.lru_cache(None)
    def x_reads(self, s):
        i, h = s >> 1, s & 1
        return [ds_read('ds_read_b128', X(s, p), vXr[h], (i & 3) * 4096 + p * 1024) for p in range(2)]

    @functools.lru_cache(None)
    def w1_reads(self, s, n):
        i, h = s >> 1, s & 1
        return [ds_read('ds_read_b64_tr_b16', V(WF + 4 * n + 2 * e_, 2), vW1r[n], (i & 3) * 12288 + (32 * h + 4 * e_) * 192)
                for e_ in range(2)]

    @functools.lru_cache(None)
    def wq_read(self, g, n):
        k, sg = g >> 2, g & 3
        return ds_read('ds_read_b128', V(WF + 4 * n, 4), vWr[n], sg * 16384 + ((10 + k) & 3) * 4096)

    @functools.lru_cache(None)
    def halo_read(self, g):
        s = g % 20
        return ds_read('ds_read_b128', V(WF + 16, 4), vHr[s & 1], HALO + (s >> 1) * 2048)

    def late_addresses(self):
        t = [V(T + n) for n in range(24)]
        vQ, vU, vR, vCC = t[0], t[1], t[2], t[3]
        p = [valu('v_lshrrev_b32', vQ, 4, vL), valu('v_and_b32', vU, 15, vL),
             valu('v_bfe_u32', vR, vL, 2, 2), valu('v_and_b32', vCC, 3, vL),
             salu('s_mul_i32', sT[1], sW, 16 * KVR), salu('s_add_u32', sT[1], sT[1], KV),
             valu('v_mul_u32_u24', t[4], KVR, vU),
             valu('v_add_u32', t[4], sT[1], t[4]),
             valu('v_add_u32', vK4, 72, t[4]),
             valu('v_lshl_add_u32', t[5], vQ, 3, t[4]),
             valu('v_add_u32', vKr, 40, t[5]),
             valu('v_add_u32', vQr, 8 * KVR, t[5]),
             valu('v_add_u32', t[6], 8 * KVR + 32, t[4]),
             valu('v_mov_b32', t[7], ZERO),
             valu('v_cmp_eq_u32', S(92, 2), 0, vQ),
             valu('v_cndmask_b32', vQ4, t[7], t[6], S(92, 2)),
             valu('v_lshl_add_u32', t[6], vQ, 2, vR),
             valu('v_mul_u32_u24', t[6], KVR, t[6]),
             valu('v_add_u32', t[6], sT[1], t[6]),
             valu('v_add_u32', vV4, 112, t[6]),
             valu('v_lshl_add_u32', t[6], vCC, 3, t[6]),
             valu('v_add_u32', vVr, 80, t[6]),
             valu('v_mul_u32_u24', t[6], 40, vQ),
             valu('v_add_u32', t[6], 32, t[6]),
             valu('v_min_u32', t[6], 120, t[6]),
             valu('v_lshlrev_b32', t[7], 3, vQ),
             valu('v_and_b32', t[8], 1, vU),
             valu('v_mul_u32_u24', t[8], KVC, t[8]),
             valu('v_lshrrev_b32', t[9], 1, vU),
             valu('v_mul_u32_u24', t[9], KVR, t[9]),
             valu('v_add_u32', t[8], t[8], t[9]),
             valu('v_add_u32', t[8], KV, t[8])]
        for i in range(4):
            p += [salu('s_add_u32', sT[2], sW, i), salu('s_and_b32', sT[2], sT[2], 3),
                  salu('s_mul_i32', sT[3], sT[2], 40),
                  salu('s_cmp_eq_u32', sT[2], 3), salu('s_cselect_b64', S(92, 2), -1, 0),
                  valu('v_add_u32', t[9], sT[3], t[7]),
                  valu('v_cndmask_b32', t[9], t[9], t[6], S(92, 2))]
            if i == 0:
                p.append(valu('v_add_u32', vHKw, t[8], t[9]))
            p += [valu('v_add_u32', t[9], t[4], t[9]), valu('v_add_u32', vKVw[i], 8 * KVR, t[9])]
        p += [salu('s_lshl_b32', sT[2], sW, 6), salu('s_add_u32', sT[2], sT[2], CSQ),
              valu('v_lshl_add_u32', vCQw, vQ, 4, sT[2]),
              valu('v_lshlrev_b32', vCQr, 4, vQ),
              valu('v_lshlrev_b32', t[4], 4, vU), valu('v_lshl_add_u32', t[4], vQ, 10, t[4]), valu('v_mov_b32', t[5], OOB),
              valu('v_cmp_gt_u32', S(92, 2), 32, vL), Skip(1), valu('v_cndmask_b32', vOB, t[5], t[4], S(92, 2))]
        return p

    def flag_addr(self, base):
        t0, t1 = V(T + 22), V(T + 23)
        return [salu('s_lshl_b32', sT[1], sB, 1), salu('s_lshr_b32', sT[2], sW, 1), salu('s_add_u32', sT[1], sT[1], sT[2]),
                salu('s_lshl_b32', sT[1], sT[1], 7), salu('s_and_b32', sT[2], sW, 1), salu('s_lshl1_add_u32', sT[2], sJ, sT[2]),
                salu('s_lshl2_add_u32', sT[1], sT[2], sT[1]), salu('s_add_u32', sT[1], sT[1], base),
                valu('v_mov_b32', t0, sT[1]), valu('v_mov_b32', t1, OOB),
                valu('v_cmp_eq_u32', S(92, 2), 0, vL), valu('v_cndmask_b32', vFA, t1, t0, S(92, 2))]

    def poll_addr(self, idx, base, shift, t0, mask):
        return [salu('s_lshl_b32', 's96', idx, shift), salu('s_add_u32', 's96', 's96', base),
                salu('s_cmp_eq_u32', sW, 0), salu('s_cselect_b32', 's96', 's96', OOB),
                valu('v_and_b32', t0, mask, vL), valu('v_lshl_add_u32', vPA, t0, 2, 's96')]

    def poll_all(self, base):
        return [salu('s_cmp_eq_u32', sW, 0), salu('s_cselect_b32', 's96', 0, 0x70000000),
                salu('s_add_u32', 's96', 's96', base), valu('v_lshl_add_u32', vPA, vL, self.opt['fstride'], 's96')]

    def lanes0(self, ins):
        return Group([salu('s_mov_b64', 'exec', sROW0), ins, salu('s_mov_b64', 'exec', -1)])

    def ff_pre(self):
        t = [V(T + n) for n in range(24)]
        p = [valu('v_lshrrev_b32', t[0], 4, vL), salu('s_lshl_b32', sT[1], sROT, 7), salu('s_add_u32', sT[1], sT[1], CSF),
             valu('v_lshl_add_u32', t[0], t[0], 4, sT[1]),
             self.lanes0(ds_write('ds_write_b128', t[0], V(CS, 4), 0)),
             self.lanes0(ds_write('ds_write_b128', t[0], V(CS + 4, 4), 64))]
        for src, mean, rstd in ((RS, vMEAN[0], vRSTD[0]), (RS + 2, vMEAN[1], vRSTD[1]), (RS + 4, vMEANH, vRSTDH)):
            p += [valu('v_and_b32', rstd, 0xffff0000, V(src)), valu('v_lshlrev_b32', mean, 16, V(src)),
                  valu('v_rcp_f32', rstd, rstd)]
        return p

    def ff_post(self):
        t = [V(T + n) for n in range(24)]
        p = [valu('v_lshrrev_b32', V(RS), 4, vL), valu('v_lshlrev_b32', V(RS), 4, V(RS))]
        for m in range(3):
            p += [salu('s_add_u32', sT[1], sROT, m), salu('s_cmp_ge_u32', sT[1], 3), salu('s_cselect_b32', sT[2], 3, 0),
                  salu('s_sub_u32', sT[1], sT[1], sT[2]), salu('s_lshl_b32', sT[1], sT[1], 7), salu('s_add_u32', sT[1], sT[1], CSF),
                  valu('v_add_u32', V(RS + 1), sT[1], V(RS)),
                  ds_read('ds_read_b128', V(T + 8 * m, 4), V(RS + 1), 0),
                  ds_read('ds_read_b128', V(T + 8 * m + 4, 4), V(RS + 1), 64)]
        p.append(Skip(2))
        self.h_stores = []
        for m in range(3):
            for q in range(2):
                dst = SS + 4 * ((2 * m + q) & 1)
                for n in (2 * m, 2 * m + 1):
                    a = FACC + 8 * n + 4 * q
                    for r in range(4):
                        p.append(valu('v_fma_f32', V(a + r), '-' + vMEAN[q], V(T + 4 * n + r), V(a + r)))
                    for r in range(4):
                        p.append(valu('v_mul_f32', V(a + r), V(a + r), vRSTD[q]))
                    for hh in range(2):
                        p.append(valu('v_cvt_pk_bf16_f32', V(dst + 2 * (n & 1) + hh), V(a + 2 * hh), V(a + 2 * hh + 1)))
                for r in range(4):
                    p.append(valu('v_pk_max_i16', V(dst + r), V(dst + r), 0))
                s_ = bstore(V(dst, 4), vL16, SWS, sHS[m], q * 1024, FL[self.opt['flS']])
                self.h_stores.append(s_)
                p.append(s_)
        return p

    def qkv_pre(self, hd, packed):
        a = ACC[hd]
        t = [V(T + n) for n in range(24)]
        p = [self.lanes0(ds_write('ds_write_b128', vCQw, V(a + 32, 4), hd * 256))]
        self.qkv_pub = [i for g in p for i in (g if isinstance(g, Group) else [g]) if i.kind == 'dsw']
        q = []
        for cls in range(2):
            q.append(valu('v_mul_f32', t[18 + cls], vMEAN[cls], vRSTD[cls]))
        for n in range(4):
            for cls in range(2):
                b = a + 8 * n + 4 * cls
                if packed:
                    for r in (0, 2):
                        q.append(I(f"v_pk_mul_f32 {V(b + r, 2)}, {V(b + r, 2)}, {V(30, 2)} op_sel:[0,{cls}] op_sel_hi:[1,{cls}]",
                                   'valu', regs(V(b + r, 2)) + regs(V(30, 2)), regs(V(b + r, 2))))
                else:
                    for r in range(4):
                        q.append(valu('v_mul_f32', V(b + r), V(b + r), vRSTD[cls]))
        return p, q

    def qkv_post(self, hd, packed):
        a = ACC[hd]
        t = [V(T + n) for n in range(24)]
        p = []
        for n in range(4):
            p += [salu('s_add_u32', sT[1], sW, n), salu('s_and_b32', sT[1], sT[1], 3), salu('s_lshl_b32', sT[1], sT[1], 6),
                  salu('s_add_u32', sT[1], sT[1], CSQ + 256 * hd), valu('v_add_u32', t[20], sT[1], vCQr),
                  ds_read('ds_read_b128', V(T + 4 * n, 4), t[20], 0)]
        p.append(Skip(2))
        p += [valu('v_fma_f32', V(a + 32 + r), '-' + vMEANH, V(T + r), V(a + 32 + r)) for r in range(4)]
        p += [valu('v_mul_f32', V(a + 32 + r), V(a + 32 + r), vRSTDH) for r in range(4)]
        p += [valu('v_cvt_pk_bf16_f32', t[16], V(a + 32), V(a + 33)), valu('v_cvt_pk_bf16_f32', t[17], V(a + 34), V(a + 35))]
        self.kv_writes = [ds_write('ds_write_b64', vHKw, V(T + 16, 2), hd * KVH)]
        p += self.kv_writes
        for n in range(4):
            for cls in range(2):
                b = a + 8 * n + 4 * cls
                if packed:
                    for r in (0, 2):
                        p.append(I(f"v_pk_fma_f32 {V(b + r, 2)}, {V(T + 4 * n + r, 2)}, {V(T + 18, 2)}, {V(b + r, 2)} "
                                   f"op_sel:[0,{cls},0] op_sel_hi:[1,{cls},1] neg_lo:[1,0,0] neg_hi:[1,0,0]", 'valu',
                                   regs(V(b + r, 2)) + regs(V(T + 4 * n + r, 2)) + regs(V(T + 18, 2)), regs(V(b + r, 2))))
                else:
                    for r in range(4):
                        p.append(valu('v_fma_f32', V(b + r), '-' + t[18 + cls], V(T + 4 * n + r), V(b + r)))
                p += [valu('v_cvt_pk_bf16_f32', V(b), V(b), V(b + 1)), valu('v_cvt_pk_bf16_f32', V(b + 1), V(b + 2), V(b + 3))]
                w_ = ds_write('ds_write_b64', vKVw[n], V(b, 2), hd * KVH + cls * KVC)
                self.kv_writes.append(w_)
                p.append(w_)
        return p

    def attention(self, hd):
        a = ACC[hd]
        streams = []
        for cls in range(2):
            off = hd * KVH + cls * KVC
            b = a + 16 * cls
            u = T + 12 * cls
            Kf = [V(b, 4), V(b + 4, 4)]
            Qf, Sf = V(b + 8, 4), [V(u, 4), V(u + 4, 4)]
            Vf = Kf
            Pf = Qf
            O0, O1, L = V(u, 4), V(u + 4, 4), V(b + 12, 4)
            m, m2 = V(u + 8), V(u + 9)
            p = [ds_read('ds_read_b64', V(b + 8, 2), vQr, off)]
            p.append(I(f"ds_read_b64 {V(b + 10, 2)}, {V(u + 10)}", 'dsr', [V(u + 10)], regs(V(b + 10, 2))))
            p.insert(0, valu('v_cndmask_b32', V(u + 10), vQ4, V(u + 11), sLO16))
            for k in range(2):
                p += [ds_read('ds_read_b64', V(b + 4 * k, 2), vKr, off + k * 8 * KVR),
                      ds_read('ds_read_b64', V(b + 4 * k + 2, 2), vK4, off + k * 8 * KVR)]
            p.append(Skip(2))
            p += [mfma(Sf[k], Kf[k], Qf, V(MASK + 4 * k, 4)) for k in range(2)]
            for k in range(2):
                p += [ds_read('ds_read_b64_tr_b16', V(b + 2 * k, 2), vVr, off + k * 8 * KVR),
                      ds_read('ds_read_b64_tr_b16', V(b + 4 + 2 * k, 2), vV4, off + k * 8 * KVR)]
            p.append(Skip(1))
            p += [valu('v_max3_f32', m, V(u), V(u + 1), V(u + 2)), valu('v_max3_f32', m2, V(u + 3), V(u + 4), V(u + 5)),
                  valu('v_max3_f32', m, m, V(u + 6), V(u + 7)), valu('v_max_f32', m, m, m2)]
            for sw in ('v_permlane16_swap_b32', 'v_permlane32_swap_b32'):
                p += [valu('v_mov_b32', m2, m), valu(sw, m, m2), valu('v_max_f32', m, m, m2)]
            p.append(valu('v_mul_f32', m, sSCL, m))
            p += [valu('v_fma_f32', V(u + r), V(u + r), sSCL, '-' + m) for r in range(8)]
            p += [valu('v_exp_f32', V(u + r), V(u + r)) for r in range(8)]
            p += [valu('v_cvt_pk_bf16_f32', V(b + 8 + r), V(u + 2 * r), V(u + 2 * r + 1)) for r in range(4)]
            p += [mfma(L, aONES, Pf, 0), mfma(O0, Vf[0], Pf, 0), mfma(O1, Vf[1], Pf, 0), Skip(2)]
            p.append(valu('v_rcp_f32', m, V(b + 12)))
            p += [valu('v_mul_f32', V(u + r), V(u + r), m) for r in range(8)]
            for k in range(2):
                for hh in range(2):
                    p.append(valu('v_cvt_pk_bf16_f32', V(self.oreg(cls, k) + 2 * hd + hh), V(u + 4 * k + 2 * hh), V(u + 4 * k + 2 * hh + 1)))
            streams.append(p)
        pre = []
        for cls in range(2):
            pre.append(valu('v_add_u32', V(T + 12 * cls + 11), hd * KVH + cls * KVC, vQ4))
        out = pre
        for i, j in zip(*streams):
            out += [i] if isinstance(i, Skip) else [i, j]
        return out

    def oreg(self, cls, k):
        return 112 + 8 * cls + 4 * k

    def phase1(self):
        o = self.opt
        main, pos = [], {}
        for s in range(20):
            for n in range(6):
                for q in ((1, 0) if o['snake'] and n & 1 else (0, 1)):
                    d = V(FACC + 8 * n + 4 * q, 4)
                    main.append(mfma(d, V(WF + 4 * n, 4), X(s, q), d if s else 0))
                if n < 2:
                    d = V(CS + 4 * n, 4)
                    main.append(mfma(d, V(WF + 4 * n, 4), aONES, d if s else 0))
                pos['a', s, n] = len(main) - 1
        for g in range(40):
            hd, s = divmod(g, 20)
            a = ACC[hd]
            for n in range(4):
                for q in ((1, 0) if o['snake'] and n & 1 else (0, 1)):
                    d = V(a + 8 * n + 4 * q, 4)
                    main.append(mfma(d, V(WF + 4 * n, 4), X(s, q), d if s else 0))
                if n == 0:
                    d = V(a + 32, 4)
                    main.append(mfma(d, V(WF, 4), V(WF + 16, 4), d if s else 0))
                pos['b', g, n] = len(main) - 1
        w = Weave(main)
        first_b = pos['a', 19, 5] + 1
        logical = []
        for s in range(20):
            logical += self.x_reads(s) + [r for n in range(6) for r in self.w1_reads(s, n)] + main[14 * s:14 * s + 14]
        for g in range(40):
            logical += [self.wq_read(g, n) for n in range(4)] + [self.halo_read(g)] + main[first_b + 9 * g:first_b + 9 * g + 9]
        annotate(logical)
        annotate(self.packA[0] + self.packA[1])
        annotate(self.packB[0] + self.packB[1])
        stepb = lambda g: first_b + 9 * g
        bar = {}
        dma = {R: self.stage_dma(R) for R in range(o['npro'], 20)}
        for i in range(10):
            bar[i + 1] = pos['a', 2 * i + 1, 1]
        for k in range(9):
            bar[11 + k] = pos['b', 4 * k + 3, 1]
        rawb = [g_[-1] for g_ in self.rawB]
        extra = {}
        for key, ops in (('packA', self.p0a), ('pub1', self.packA[1]), ('packB', rawb), ('pub2', self.packB[1]),
                         ('halo', self.halo_ops)):
            extra.setdefault(o[key], []).extend(ops)
        checks = {o['chk1']: 'f1', o['chk2']: 'f2', o['chk3']: 'f3'}
        assert len(checks) == 3
        for R, gb in bar.items():
            if R in checks:
                w.at(gb, self.check(checks[R]))
            w.at(gb, self.ring_barrier(R, extra.get(R, ())))
            w.at(gb, *self.stamp(f'B{R}'))
            if R in (o['pub1'], o['pub2']):
                w.at(gb, bstore(vTAG, vFA, SWS, 0, 0, 'sc1'))
            if R in (o['poll1'], o['poll2'], o['poll3']):
                w.at(gb, bload(vPOLL if R == o['poll3'] else V(P4, 4), vPA, SWS, 0, 0, 'sc1'))
        for s in range(20):
            start = bar[(s >> 1) + 1] if s & 1 else 0
            nxt = 14 * (s + 1)
            if s < 19:
                lim = len(main) if s & 1 else bar[(s >> 1) + 1]
                w.stream(self.x_reads(s + 1), max(start, pos['a', s, 0] - 2), nxt - 1)
                for n in range(6):
                    w.stream(self.w1_reads(s + 1, n), max(start, pos['a', s, n]), min(lim, pos['a', s + 1, n] - 4))
            else:
                for n in range(4):
                    w.stream([self.wq_read(0, n)], max(start, pos['a', s, n]), nxt - 1)
                w.stream([self.halo_read(0)], pos['a', s, 4], nxt - 1)
        for g in range(39):
            start = bar[11 + (g >> 2)] if g & 3 == 3 else 0
            lim = bar.get(11 + (g >> 2), len(main)) if g & 3 == 2 else len(main)
            w.stream([self.wq_read(g + 1, 0), self.halo_read(g + 1)], max(start, pos['b', g, 0]), stepb(g + 1) - 1)
            for n in range(1, 4):
                w.stream([self.wq_read(g + 1, n)], max(start, pos['b', g, n]), min(lim, pos['b', g + 1, n] - 3))
        nxt, plan = o['npro'], []
        for R, gb in [(0, 0)] + list(bar.items()):
            lim = min(R + 3, 9 if R < o['chk1'] else 19, nxt + o['catch'] - 1)
            todo = list(range(nxt, lim + 1))
            nxt = max(nxt, lim + 1)
            seq = []
            for r_ in todo:
                pre = self.stage_pre[r_]
                seq += [(x_, pre.get(k, [])) for k, x_ in enumerate(dma[r_])] + [(None, pre[len(dma[r_])])]
            if R == o['haloL']:
                seq += [(Group([x_[-1]]), [Group(x_[:2])] + x_[2:-1]) for x_ in self.halo_loads]
            if R == o['srow'] - 2:
                seq += [(x_, []) for x_ in self.srow]
            if R == o['rawA']:
                seq += [(Group([x_[-1]]), x_[:-1]) for x_ in self.rawA]
            if R == o['rawB']:
                seq += [(Group([x_[-1]]), x_[:-1]) for x_ in self.rawB]
            for name, pk in (('packA', self.packA), ('packB', self.packB)):
                if R == o[name]:
                    w.stream(pk[0], gb + 1, gb + 11)
                    k = min(len(seq), 4 if len(seq) < 10 else 8)
                    seq = seq[:k] + [(x_, []) for x_ in pk[1]] + seq[k:]
            if seq:
                plan.append((seq, gb + (1 if len(seq) > 3 else 13), bar[R + 1]))
        annotate([x for seq, _, _ in plan for g_, pre in seq for x in list(pre) + ([g_] if g_ else [])])
        for seq, a_, b_ in plan:
            self.place_mem(w, seq, a_, b_)
        assert o['rawA'] < o['packA'] and 1 <= o['packA'] < o['pub1'] < o['pub2'] <= 14 and o['rawB'] < o['packB'] < o['pub2'] and o['packB'] <= 9
        assert o['poll1'] < o['chk1'] <= 9 and o['chk1'] < o['poll2'] < o['chk2'] < o['poll3'] < o['chk3'] <= 20
        assert o['haloL'] < o['halo'] <= 8 and o['statL'] <= 8
        if self.stats:
            assert o['srow'] - 2 < o['statC'] < o['pub1']
            w.stream(self.stats, bar[o['statC']] + 1, bar[o['pub1']])
        w.stream(self.f2_pub, bar[o['pub1']] + 1, bar[o['pub1']] + 12)
        w.stream(self.ones, bar[o['halo']] + 1, bar[o['halo'] + 1])
        sl_, sc_, fp_ = self.stat_loads(), self.check_stats(), self.ff_pre()
        annotate(sl_ + sc_ + fp_)
        w.spread(sl_, bar[o['statL']] + 1, bar[o['statL']] + 8)
        w.stream(sc_, bar[10] + 1, first_b)
        tp = V(WF + 20)
        assert o['poll2'] >= 11
        w.stream(fp_ + self.poll_all(F2), first_b + 4, bar[11])
        wl = [x_ for i in range(7) for x_ in self.w_loads(i)]
        w.spread(wl, bar[o['chk2']] + 2, stepb(o['w_end']))
        g = w.stream(self.ff_post(), bar[11] + 1, stepb(o['ff_end']))
        g = w.stream(self.late_addresses() + self.flag_addr(F3), max(g + 1, bar[o['pub2']] + 1), stepb(20) + 3)
        assert stepb(o['f3_step']) > g
        w.at(stepb(o['f3_step']), Group([wait(vm=self.h_stores), bstore(vTAG, vFA, SWS, 0, 0, 'sc1')]))
        w.stream(self.poll_addr(sTB, F3, 7, tp, 31), max(bar[o['chk2']] + 1, g + 1), bar[o['poll3']])
        if o['chk3'] < 20:
            nA = o['nA_p1b']
            for i in range(nA):
                lo = bar[o['chk3']] + 2 + (stepb(40) - bar[o['chk3']] - 2) * i // nA
                assert lo >= stepb(20 + 2 * i + 2)
                w.spread(self.a_loads(i), lo, bar[o['chk3']] + 2 + (stepb(40) - bar[o['chk3']] - 2) * (i + 1) // nA)
        pre, mul = self.qkv_pre(0, False)
        g = w.stream(pre, stepb(20) + 5)
        g = w.stream(mul[:12], g + 1)
        w.at(g + 1, Group([wait(lgkm=self.qkv_pub), barrier()]))
        g = w.stream(mul[12:] + self.qkv_post(0, False), g + 1, stepb(o['kv_end']))
        g = w.stream([Skip(3)] + [Group([wait(lgkm=self.kv_writes), barrier()])], g)
        w.stream(self.attention(0), g, len(main))
        self.ovf = (w.overflow(0, first_b), w.overflow(first_b, stepb(20)), w.overflow(stepb(20)))
        pro = self.x_reads(0) + [r for n in range(6) for r in self.w1_reads(0, n)]
        return pro + w.flat()

    @staticmethod
    def sprinkle(seq, extra, every, start=0):
        out, n, extra = [], -start, list(extra)
        seq = tie(seq)
        annotate(seq)
        annotate(extra)
        for i in seq:
            out.append(i)
            if isinstance(i, Skip):
                continue
            n += 1
            if extra and n >= every:
                out.append(extra.pop(0))
                n = 0
        return out + extra

    def tail1(self):
        o = self.opt
        p = self.stamp('gemm1')
        pre, mul = self.qkv_pre(1, True)
        late = o['chk3'] == 20
        head = pre + mul + ([self.check('f3')] if late else []) + [Group([wait(lgkm=self.qkv_pub), barrier()])]
        seq = self.qkv_post(1, True) + [Group([wait(lgkm=self.kv_writes), barrier()])] + self.attention(1)
        al = [x_ for i in range(0 if late else o['nA_p1b'], o['nA_att']) for x_ in self.a_loads(i)]
        p += head + self.sprinkle(seq, al, o['att_every']) if late else self.sprinkle(head + seq, al, o['att_every'])
        self.o_stores = [bstore(V(self.oreg(c, 0), 4), vL16, SWS, sOA, c * 1024, 'sc1') for c in range(2)]
        p += self.o_stores
        o0, o1 = self.oreg(0, 1), self.oreg(1, 1)
        p += [valu('v_cndmask_b32', V(o0 + r), V(o1 + r), V(o0 + r), sLO16) for r in range(4)]
        ob = bstore(V(o0, 4), vOB, SWS, sOB, 0, 'sc1')
        p.append(ob)
        self.o_stores.append(ob)
        p += self.flag_addr(F4) + self.poll_addr(sTB, F4, 7, V(T + 1), 31)
        return p + self.stamp('attn')

    def phase2(self):
        o = self.opt
        t = [V(136 + n) for n in range(60)]
        main = []
        tile = lambda n, k: V(P2ACC + 16 * n + 4 * k, 4)
        km = o['kmaj']
        for i in range(16 if km else 15):
            for n in range(5):
                for k in ((3, 2, 1, 0) if o['snake'] and n & 1 else (0, 1, 2, 3)):
                    main.append(mfma(tile(n, k), wslot(i, n), aslot(i, k), tile(n, k) if i else 0))
        if km:
            main += [mfma(tile(n, k), wslot(16, n), aslot(16, k), tile(n, k)) for k in range(4) for n in range(5)]
        else:
            for n in range(5):
                for i in (15, 16):
                    for k in range(4):
                        main.append(mfma(tile(n, k), wslot(i, n), aslot(i, k), tile(n, k)))
        w = Weave(main)
        annotate([x_ for i in range(15) for x_ in self.w_loads(i) + self.a_loads(i) + main[20 * i:20 * i + 20]] +
                 [x_ for i in (15, 16) for x_ in self.w_loads(i) + self.a_loads(i)] + main[300:])
        pre = [salu('s_mul_i32', sT[1], sTB, 64 * 1280), salu('s_mul_i32', sT[2], sC, 160), salu('s_add_u32', sT[3], sT[1], sT[2])]
        vO, vRd = t[12:17], t[17:22]
        for r in range(5):
            pre += [valu('v_add_u32', t[6], 256 * r, 'v0')] + self.divc(t[7], t[6], 20, 1279)
            pre += [valu('v_mul_u32_u24', t[8], 20, t[7]), valu('v_sub_u32', t[8], t[6], t[8]),
                    valu('v_mul_u32_u24', vO[r], 1280, t[7]), valu('v_lshl_add_u32', vO[r], t[8], 3, vO[r]),
                    bload(A(aRES + 2 * r, 2), vO[r], SX, sT[3], 0, FL[o['flR']]),
                    valu('v_and_b32', t[6], 1, t[7]), valu('v_lshlrev_b32', t[6], 4, t[6]),
                    valu('v_and_b32', vRd[r], 32, t[7]), valu('v_add_u32', t[6], t[6], vRd[r]),
                    valu('v_bfe_u32', vRd[r], t[7], 1, 4), valu('v_add_u32', t[6], t[6], vRd[r]),
                    valu('v_and_b32', t[7], 0x30, t[6]), valu('v_mul_u32_u24', t[6], REDR, t[6]),
                    valu('v_lshl_add_u32', t[6], t[7], 2, t[6]), valu('v_lshl_add_u32', vRd[r], t[8], 4, t[6])]
        vRw = t[10]
        pre += [valu('v_and_b32', t[6], 15, vL), valu('v_mul_u32_u24', t[6], REDR, t[6]), valu('v_lshrrev_b32', t[7], 4, vL),
                valu('v_lshl_add_u32', t[6], t[7], 4, t[6]), salu('s_mul_i32', sT[1], sW, REDW),
                valu('v_add_u32', vRw, sT[1], t[6])]
        for i in range(15):
            w.at(20 * i, *self.stamp(f'S{i}'))
        w.at(20 * o['f4_step'], Group([wait(vm=self.o_stores), bstore(vTAG, vFA, SWS, 0, 0, 'sc1')]))
        w.at(20 * o['poll4'] + 1, bload(vPOLL, vPA, SWS, 0, 0, 'sc1'))
        chk = 20 * o['chk4'] + 19
        w.at(chk, self.check('f4'), barrier())
        pend = [('W', i) for i in range(7, 17)] + [('A', i) for i in range(o['nA_att'], 17)]
        total = sum(5 if k == 'W' else 4 for k, _ in pend)
        pace, pos_ = (o['ld_end'] - 3) / total, 3.0
        first_use = lambda i: 20 * min(i, 16 if km else 15)
        while pend:
            def earliest(x):
                k, i = x
                if k == 'W':
                    return 20 * (i - 7) + 3
                return max(20 * (i - 9) if i >= 10 else 0, chk + 1 if i >= 12 else 0)
            ok = [x for x in pend if earliest(x) <= pos_ + 2]
            x = min(ok, key=lambda x: (x[1], x[0] == 'A')) if ok else min(pend, key=earliest)
            pend.remove(x)
            pos_ = max(pos_, earliest(x))
            for n, ld in enumerate(self.w_loads(x[1]) if x[0] == 'W' else self.a_loads(x[1])):
                g = int(pos_)
                if x[0] == 'W':
                    g = max(g, 20 * (x[1] - 7) + 4 * n + 3)
                assert g < first_use(x[1]) - 4
                w.at(g, ld)
                left = sum(5 if k == 'W' else 4 for k, _ in pend) + (5 if x[0] == 'W' else 4) - n
                pos_ = max(pos_, g) + max(1.0, min(pace, (o['ld_end'] - g) / left))
        pre += [valu('v_mov_b32', t[6], OOB), valu('v_or_b32', t[7], 's2', 'v0'), valu('v_cmp_ne_u32', S(92, 2), 0, t[7]),
                Skip(1), valu('v_cndmask_b32', t[6], 0, t[6], S(92, 2)), bstore(vTAG, t[6], SWS, 0, 0, 'sc1')]
        w.stream(pre, o['pre2'], 20 * 12)
        X0, p = 160, []
        for r in range(5):
            for k in range(2):
                p.append(valu('v_accvgpr_read_b32', V(X0 + 4 * r + 2 * k + 1), A(aRES + 2 * r + k)))
            for k in range(2):
                p += [valu('v_lshlrev_b32', V(X0 + 4 * r + 2 * k), 16, V(X0 + 4 * r + 2 * k + 1)),
                      valu('v_and_b32', V(X0 + 4 * r + 2 * k + 1), 0xffff0000, V(X0 + 4 * r + 2 * k + 1))]
        w.stream(p, 20 * 12, 20 * 15)
        ws_ = []
        for n in range(5):
            for k in range(4):
                ws_.append(ds_write('ds_write_b128', vRw, V(P2ACC + 16 * n + 4 * k, 4), RED + k * REDT + 64 * n))
        if km:
            ws_ = [ws_[4 * n + k] for k in range(4) for n in range(5)]
            for m in range(15):
                w.at(325 + m, ws_[m])
            ws_ = ws_[15:]
        else:
            for m in range(16):
                w.at(300 + 8 * (m >> 2) + 8 + 2 * (m & 3), ws_[m])
            ws_ = ws_[16:]
        p = w.flat() + self.stamp('gemm2')
        p += ws_ + [Group([wait(all_lgkm=True), barrier()])] + self.stamp('redbar')
        R0 = 40
        for r in range(5):
            for wv in range(4):
                p.append(ds_read('ds_read_b128', V(R0 + 16 * r + 4 * wv, 4), vRd[r], RED + wv * REDW))
        pk = lambda op, d, a_, b_: I(f"{op} {d}, {a_}, {b_}", 'valu', regs(a_) + regs(b_), regs(d))
        for r in range(5):
            b = R0 + 16 * r
            for k in range(2):
                p.append(pk('v_pk_add_f32', V(b + 2 * k, 2), V(b + 2 * k, 2), V(b + 4 + 2 * k, 2)))
            for k in range(2):
                p.append(pk('v_pk_add_f32', V(b + 8 + 2 * k, 2), V(b + 8 + 2 * k, 2), V(b + 12 + 2 * k, 2)))
            for k in range(2):
                p.append(pk('v_pk_add_f32', V(b + 2 * k, 2), V(b + 2 * k, 2), V(X0 + 4 * r + 2 * k, 2)))
            for k in range(2):
                p.append(pk('v_pk_add_f32', V(b + 2 * k, 2), V(b + 2 * k, 2), V(b + 8 + 2 * k, 2)))
            for k in range(2):
                p.append(valu('v_cvt_pk_bf16_f32', V(b + 4 + k), V(b + 2 * k), V(b + 2 * k + 1)))
            p.append(bstore(V(b + 4, 2), vO[r], SOUT, sT[3], 0, ('', 'sc1', 'nt', 'sc0 sc1')[o['outfl']]))
        return p

    def stamp_out(self):
        if not self.stamps:
            return []
        p = self.stamp('end')
        p += [raw("s_memrealtime s[82:83]", wr=['s82', 's83']), raw("s_waitcnt lgkmcnt(0)"),
              raw(f"v_writelane_b32 {vJUNK}, s82, 63", rd=['s82'], wr=[vJUNK], kind='valu'),
              raw(f"v_writelane_b32 {vJUNK}, s84, 62", rd=['s84'], wr=[vJUNK], kind='valu'),
              salu('s_lshl2_add_u32', sT[1], 's2', sW), salu('s_lshl_b32', sT[1], sT[1], 8), salu('s_add_u32', sT[1], sT[1], STAMP),
              valu('v_lshlrev_b32', V(140), 2, vL), bstore(vJUNK, V(140), SWS, sT[1])]
        if self.opt.get('dbg'):
            p += [raw(f"v_readlane_b32 s82, {vJUNK}, 0", rd=[vJUNK], wr=['s82'], kind='rdlane'),
                  raw(f"v_readlane_b32 s83, {vJUNK}, 61", rd=[vJUNK], wr=['s83'], kind='rdlane'),
                  raw(f"v_readlane_b32 s85, {vJUNK}, 63", rd=[vJUNK], wr=['s85'], kind='rdlane'),
                  valu('v_subrev_u32', V(141), 's82', vJUNK),
                  salu('s_sub_u32', 's85', 's85', 's83'),
                  raw("v_writelane_b32 v141, s85, 12", rd=['s85'], wr=['v141'], kind='valu'),
                  raw("v_writelane_b32 v141, s84, 13", rd=['s84'], wr=['v141'], kind='valu'),
                  salu('s_mov_b32', 's4', 's98'), salu('s_mov_b32', 's5', 's99'), salu('s_mov_b32', 's6', 64),
                  salu('s_lshl2_add_u32', sT[1], 's2', sW),
                  salu('s_cmp_eq_u32', sT[1], self.opt['dbg']), salu('s_cselect_b32', sT[1], 0, 256),
                  bstore(V(141), V(140), SX, sT[1])]
        return p

    def build(self):
        self.stage_ops = {}
        self.stage_pre = {}
        prog = self.startup() + self.phase1() + self.tail1() + self.phase2() + self.stamp_out()
        jit = self.opt.get('jitter', 0)
        if jit:
            import random
            rnd = random.Random(jit)
            out, k = [], 0
            for i in flatten(prog):
                out.append(i)
                if (i.kind == 'barrier' or i.kind == 'vst' or i.kind == 'label' and 'L_ok' in i.text) and rnd.random() < 0.5:
                    k += 1
                    out.append(raw(f"s_lshl2_add_u32 s100, s2, s32\n    s_mul_i32 s100, s100, {rnd.randrange(1 << 20) | 1}\n"
                                   f"    s_bitcmp1_b32 s100, {rnd.randrange(3, 12)}\n    s_cbranch_scc0 L_jit{k}\n"
                                   f"    s_bitcmp1_b32 s100, {rnd.randrange(12, 18)}\n    s_cbranch_scc0 L_jit{k}\n"
                                   f"    s_sleep {rnd.choice((2, 8, 30, 90))}\nL_jit{k}:", wr=['s100']))
            prog = out
        abl = self.opt.get('abl', 0)
        if abl:
            prog = flatten(prog)
            nb, keep = 0, []
            for i in prog:
                nb += i.kind == 'barrier'
                flag = i.kind == 'vst' and 'dwordx4' not in i.text
                drop = (abl & 1 and i.kind == 'dma' and nb >= 2) or (abl & 2 and i.kind == 'vst' and not flag) or \
                       (abl & 4 and i.kind == 'vld' and nb >= 2 and 'dwordx4' in i.text) or \
                       (abl & 8 and i.kind == 'mfma') or (abl & 16 and i.kind == 'dsr') or \
                       (abl & 64 and (i.kind == 'mfma' and 'v[56:59], v[' in i.text.split('], ', 2)[-1] + ' ' and 'v[40:43], v[56:59]' in i.text
                                      or i.kind == 'dsr' and i.rd[0] in ('v17', 'v18'))) or \
                       (abl & 128 and i.kind == 'mfma' and 'a[240:243]' in i.text and nb < 12) or \
                       (abl & 256 and i.kind in ('valu', 'trans') and 11 <= nb <= 21 and i.text.split()[0] in (
                           'v_fma_f32', 'v_mul_f32', 'v_cvt_pk_bf16_f32', 'v_pk_max_i16', 'v_exp_f32', 'v_max3_f32')) or \
                       (abl & 512 and i.kind == 'mfma' and nb >= 24) or (abl & 1024 and i.kind == 'mfma' and 11 <= nb <= 21)
                if not drop:
                    i.meta.pop('exp', None)
                    keep.append(i)
            prog = keep
        prog = finalize(prog, not abl, self.opt['age'])
        self.prog = prog
        body = "\n".join(("" if i.kind == 'label' else "    ") + i.text for i in prog)
        return f"""; Fused LayerNorm + sliding-window attention + ReLU FFN + residual, one workgroup per CU.
; @launch grid=(256,1,1) block=(256,1,1) lds={LDS_SIZE}
.amdgcn_target "amdgcn-amd-amdhsa--gfx950"
.text
.globl {NAME}
.p2align 8
.type {NAME},@function
{NAME}:
{body}
L_end:
    s_endpgm
{"".join(self.slow)}L_last:
.section .rodata,"a"
.p2align 6
.amdhsa_kernel {NAME}
  .amdhsa_next_free_vgpr 512
  .amdhsa_next_free_sgpr 102
  .amdhsa_accum_offset 256
  .amdhsa_group_segment_fixed_size 0
  .amdhsa_kernarg_size 72
  .amdhsa_user_sgpr_count 2
  .amdhsa_user_sgpr_kernarg_segment_ptr 1
  .amdhsa_system_sgpr_workgroup_id_x 1
.end_amdhsa_kernel
"""


if __name__ == "__main__":
    out = sys.argv[1]
    opts = dict(kv.split('=') for kv in sys.argv[2:])
    opts = {k: int(v) for k, v in opts.items()}
    g = Gen(stamps=opts.pop('stamps', 0), **opts)
    open(out, "w").write(g.build())
    print(stats(g.prog), g.ovf)
```

```python
import functools
import struct
import sys
from fw import *

NAME = "parallel_sum__sliding_local_dilated__dense_activation_relu__prompt_kernel"

F1, F2, F3, F4 = 0x1000, 0x1400, 0x1800, 0x2800
ST = 0x3800
WQ = 0x10000
WQJ = 163840
W2P = 0x290000
W2C = 348160
ACT = 0x540000
ACTB = 278528
STAMP = 0xE00000
WS_SIZE = 0x1000000
OOB = 0x7ffffff0

HALO = 0
XR = 20480
W1R = 86016
P0A = 135168
P0B = 147456
CSF = 159744
CSQ = CSF + 512
ZERO = CSF + 1024
DUMMY = CSF + 2048
KV = W1R
KVR, KVC, KVH = 136, 9792, 19584
RED, REDR, REDT, REDW = 0, 336, 5440, 21760
LDS_SIZE = 163840

SX, SWQKV, SWO, SW1, SW2, SOUT, SWS = (S(n, 4) for n in (4, 8, 12, 16, 20, 24, 28))
sW, sB, sJ, sTB, sC, sTAG = (S(n) for n in range(32, 38))
sXb, sXl, sW1, sW1l, sWQ, sAP = (S(n) for n in range(38, 44))
sHS = [S(44), S(45), S(46)]
sOA, sOB, sAh, sAo, sAb, sWh, sWo, sWb = (S(n) for n in range(47, 55))
sT = [S(n) for n in range(55, 68)]
sROT, sCNT = S(68), S(69)
sROW0 = S(70, 2)
sU1, sU2, sU3 = S(72, 2), S(74, 2), S(76, 2)
sSCL = S(78)
sCMP = S(81)
sLO16 = S(0, 2)
sLA, sLW = S(79), S(80)
sKP, sXs, sW1b, sG, sWQb, sR, sR2 = (S(n) for n in range(85, 92))
STAMP0 = 82

vL, vL16, vL16b = V(1), V(2), V(3)
vXa = [V(4), V(5), V(28), V(29)]
vXr = [V(6), V(7)]
vW1a = [V(8), V(9), V(10)]
vW1r = [V(n) for n in range(11, 17)]
vHr = [V(17), V(18)]
vWr = [V(n) for n in range(19, 23)]
vPOLL, vPA, vFA, vJUNK, vTAG = V(23), V(24), V(25), V(26), V(27)
vMEAN = [V(28), V(29)]
vRSTD = [V(30), V(31)]
vKVw = [V(n) for n in range(8, 12)]
vHKw, vKr, vK4, vVr, vV4 = V(12), V(13), V(14), V(15), V(16)
vQr, vQ4, vCQr, vCQw = V(4), V(5), V(6), V(7)
MASK = 32
WF = 40
FACC, RS, SS, CS = 64, 112, 120, 128
vMEANH, vRSTDH, vOB = V(61), V(62), V(63)
vSA, vSH = V(126), V(127)
ACC = [136, 64]
OKEEP = 128
T = 172
WSLOT = [A(160 + 20 * i, 1) for i in range(4)]
aONES = A(240, 4)
aRES = 244
P2ACC = 40
P4 = 248


def f2u(x):
    return struct.unpack('<I', struct.pack('<f', x))[0]


def X(s, p):
    return A(8 * s + 4 * p, 4)


def wslot(i, n):
    i %= 7
    return A(160 + 20 * i + 4 * n, 4) if i < 4 else V(196 + 20 * (i - 4) + 4 * n, 4)


def aslot(i, t):
    return A(16 * (i % 10) + 4 * t, 4)


LIGHT = ('start', 'B0', 'B5', 'B10', 'B15', 'gemm1', 'attn', 'S5', 'S11', 'gemm2', 'end')


FL = ('', 'nt', 'sc1', 'sc0 sc1', 'sc0 sc1 nt', 'sc1 nt')


class Gen:
    def __init__(self, stamps=False, **opt):
        self.stamps = stamps
        self.nstamp = 0
        self.stamp_names = []
        self.slow = []
        self.opt = dict(rot=4, rot2=0, npro=2, catch=2, pro_every=99, rawA=-1, haloL=1, packA=1, pub1=3, halo=4, statL=7, srow=1, statC=1, poll1=7, chk1=8,
                        rawB=3, packB=7, pub2=10, poll2=14, chk2=16, w_end=37, ff_end=13, f3_step=21, poll3=18, chk3=19,
                        kv_end=30, pre2=45, snake=1, kmaj=1, touch=1, shift=0, res=-9, flP=2, age=6, tlb=0, touch2=0, fstride=4, padw=1, flR=0, flH=0, fast=4, pro_start=0, flA=1, flB=0, flX=0, flS=2, outfl=0, nA_p1b=2, nA_att=9, att_every=8, ld_end=300, f4_step=3, poll4=7, chk4=9)
        self.opt.update(opt)

    def stamp(self, name):
        if not self.stamps or (self.stamps == 1 and name not in LIGHT):
            return []
        k = self.nstamp
        assert k < 61
        self.nstamp += 1
        self.stamp_names.append(name)
        rt = self.stamps == 1
        return [Group([raw("s_memtime s[82:83]", wr=['s82', 's83'])] +
                      ([raw("s_memrealtime s[100:101]", wr=['s100', 's101'])] if rt else []) +
                      [raw("s_waitcnt lgkmcnt(0)", drains_lgkm=True),
                       raw(f"v_writelane_b32 {vJUNK}, s82, {k}", rd=['s82'], kind='salu')] +
                      ([raw(f"v_writelane_b32 {vJUNK}, s100, {32 + k}", rd=['s100'], kind='salu')] if rt else []))]

    def check(self, name):
        if name in ('f1', 'f2'):
            dst = V(P4, 4)
            test = [valu('v_xor_b32', V(P4 + r), sCMP, V(P4 + r)) for r in range(4)]
            test += [valu('v_or3_b32', V(P4), V(P4), V(P4 + 1), V(P4 + 2)), valu('v_or_b32', V(P4), V(P4), V(P4 + 3)),
                     valu('v_cmp_ne_u32', 'vcc', 0, V(P4))]
        else:
            dst, test = vPOLL, [valu('v_cmp_ne_u32', 'vcc', sCMP, vPOLL)]
        body = "\n".join("    " + i.text for i in test)
        self.slow.append(f"""L_slow_{name}:
{f"    s_add_u32 s84, s84, {1 << (4 * len(self.slow))}{chr(10)}" if self.stamps else ""}    s_mov_b32 {sCNT}, 0x8000
L_spin_{name}:
    {bload(dst, vPA, SWS, 0, 0, FL[self.opt['flP']]).text}
    s_waitcnt vmcnt(0)
{body}
    s_sub_u32 {sCNT}, {sCNT}, 1
    s_cbranch_scc1 L_ok_{name}
    s_cbranch_vccnz L_spin_{name}
    s_branch L_ok_{name}
""")
        return Group(test + [raw(f"s_cbranch_vccnz L_slow_{name}", rd=['vcc'], kind='branch'),
                             raw(f"L_ok_{name}:", kind='label', states=0)])

    def divc(self, dst, src, d, maxv):
        for sh in range(8, 24):
            m = -(-(1 << sh) // d)
            if m * maxv < (1 << 32) and m < (1 << 24) and all((v * m) >> sh == v // d for v in range(maxv + 1)):
                return [valu('v_mul_u32_u24', dst, m, src), valu('v_lshrrev_b32', dst, sh, dst)]
        raise ValueError

    def rstats(self, vs, vq, dst, t):
        inv = f2u(1.0 / 640.0)
        return [valu('v_mul_f32', vs, inv, vs),
                valu('v_mul_f32', t, inv, vq),
                valu('v_fma_f32', t, '-' + vs, vs, t),
                valu('v_max_f32', t, 0, t),
                valu('v_cvt_pk_bf16_f32', t, t, t),
                valu('v_lshlrev_b32', t, 16, t),
                valu('v_add_f32', t, f2u(1e-5), t),
                valu('v_cvt_pk_bf16_f32', t, t, t),
                valu('v_lshlrev_b32', t, 16, t),
                valu('v_sqrt_f32', t, t),
                valu('v_cvt_pk_bf16_f32', dst, vs, t)]

    def stat_loads(self):
        return [bload(V(RS, 4), vSA, SWS, 0, 0, 'sc1'), bload(V(RS + 4, 2), vSH, SWS, 0, 0, 'sc1')]

    def check_stats(self):
        t = V(RS + 6)
        test = [valu('v_xor_b32', t, vTAG, V(RS + 1)), valu('v_xor_b32', V(RS + 7), vTAG, V(RS + 3)),
                valu('v_xor_b32', V(RS + 5), vTAG, V(RS + 5)), valu('v_or3_b32', t, t, V(RS + 7), V(RS + 5)),
                valu('v_cmp_ne_u32', 'vcc', 0, t)]
        body = "\n".join("    " + i.text for i in self.stat_loads()) + "\n    s_waitcnt vmcnt(0)\n" + \
            "\n".join("    " + i.text for i in test)
        self.slow.append(f"""L_slow_st:
{f"    s_add_u32 s84, s84, {1 << (4 * len(self.slow))}{chr(10)}" if self.stamps else ""}    s_mov_b32 {sCNT}, 0x8000
L_spin_st:
{body}
    s_sub_u32 {sCNT}, {sCNT}, 1
    s_cbranch_scc1 L_ok_st
    s_cbranch_vccnz L_spin_st
    s_branch L_ok_st
""")
        return test[:-1] + [Group([test[-1], raw("s_cbranch_vccnz L_slow_st", rd=['vcc'], kind='branch'),
                                   raw("L_ok_st:", kind='label', states=0)])]

    def stage_dma(self, R):
        slot, out = R & 3, []
        if R < 10:
            for k in range(4):
                out.append(Group([bdma(vXa[k], SX, sXs, k * 1024, FL[self.opt['flX']])]))
            for m in range(3):
                out.append(Group([bdma(vW1a[m], SW1, sW1, m * 1024, FL[self.opt['flX']])]))
            self.stage_pre[R] = {0: [salu('s_add_u32', 'm0', sXl, slot * 4096)],
                                 4: [salu('s_add_u32', 'm0', sW1l, slot * 12288)],
                                 7: [salu('s_add_u32', sKP, sKP, 1),
                                     Group([salu('s_cmp_eq_u32', sKP, 10), salu('s_cselect_b32', sKP, 0, sKP)]),
                                     salu('s_lshl_b32', sXs, sKP, 7), salu('s_add_u32', sXs, sXs, sXb),
                                     salu('s_mul_i32', sW1, sKP, 64 * 3072), salu('s_add_u32', sW1, sW1, sW1b)] if R < 9 else []}
        else:
            for m in range(4):
                out.append(Group([bdma(vL16, SWS, sWQ, m * 1024, 'sc1')]))
            self.stage_pre[R] = {0: [salu('s_add_u32', 'm0', sXl, slot * 4096)],
                                 4: [salu('s_add_u32', sG, sG, 4),
                                     Group([salu('s_cmp_ge_u32', sG, 20), salu('s_cselect_b32', sWQ, 20, 0)]),
                                     salu('s_sub_u32', sG, sG, sWQ), salu('s_lshl_b32', sWQ, sG, 12),
                                     salu('s_add_u32', sWQ, sWQ, sWQb)] +
                                    ([salu('s_add_u32', sWQ, sWQ, 81920)] if R >= 14 else []) if R < 19 else []}
        self.stage_ops[R] = [i for g in out for i in g if i.kind == 'dma']
        return out

    def inline_stage(self, R):
        out, pre = self.stage_dma(R), self.stage_pre[R]
        for k, ins in pre.items():
            ins = flatten(ins)
            if k < len(out):
                out[k][:0] = ins
            else:
                out[-1].extend(ins)
        return out

    def place_mem(self, w, seq, start, end):
        n = sum(1 for g, _ in seq if g)
        first = start + len(seq[0][1])
        last = end - (min(len(seq[-1][1]), 3) if seq[-1][0] is None else 0) - 1
        prev, k, carry = start - 1, 0, []
        for g, pre in seq + [(None, None)]:
            if pre is not None:
                carry += pre
            if g is None and pre is not None:
                continue
            if g is not None:
                lo = min(max(prev + 1, first + (last - first) * k // n), end - 1)
                hi = min(max(lo + 1, first + (last - first) * (k + 1) // n - 1), end)
                at = min(range(lo, hi), key=lambda x: (max(gcost(w.v[x] + vcost(g), w.s[x] + scost(g)) - w.cap, 0), x))
                k += 1
            else:
                at = end
            room = at - prev - 1
            if room <= 0:
                if g is not None:
                    w.at(at, Group(flatten(carry) + flatten([g])))
                elif carry:
                    w.at(prev, Group(flatten(carry)))
            else:
                for j, c in enumerate(carry):
                    w.at(prev + 1 + (j if len(carry) <= room else j * room // len(carry)), c)
                if g is not None:
                    w.at(at, g)
            carry, prev = [], at

    def ring_barrier(self, R, extra_vm=()):
        what = f"x / w1 stage {R}" if R < 10 else f"packed wqkv stage {R - 10}"
        return Group([wait(vm=self.stage_ops[R] + list(extra_vm), all_lgkm=True),
                      barrier(f"{what} is in LDS, the slot of the stage before it is free")])

    def p2_steps(self):
        return [(sAh, sWh, i) for i in range(12)] + [(sAo, sWo, i) for i in range(4)] + [(sAb, sWb, 0)]

    def step_base(self, dst, base, k, stride, i):
        m = self.opt['rot2']
        if i == 16 or not m or (m == 12 and i >= 12):
            return [salu('s_add_u32', dst, base, k * stride)]
        if m in (2, 4):
            return [salu('s_add_u32', dst, sR2, k & (m - 1)), salu('s_and_b32', dst, dst, m - 1), salu('s_mul_i32', dst, dst, stride),
                    salu('s_add_u32', dst, dst, base)] + ([salu('s_add_u32', dst, dst, (k & ~(m - 1)) * stride)] if k >= m else [])
        return [salu('s_cmp_ge_u32', sR2, 12 - k), salu('s_cselect_b32', dst, (k - 12) & 0xffffffff, k),
                salu('s_add_u32', dst, dst, sR2), salu('s_mul_i32', dst, dst, stride), salu('s_add_u32', dst, dst, base)]

    @functools.lru_cache(None)
    def w_loads(self, i):
        _, sw, k = self.p2_steps()[i]
        out = []
        for n in range(5):
            g = [bload(wslot(i, n), vL16 if n < 4 else vL16b, SWS, sLW, (n & 3) * 1024, 'sc1')]
            if n == 0:
                g[:0] = self.step_base(sLW, sw, k, 5120, i)
            out.append(Group(g))
        return out

    @functools.lru_cache(None)
    def a_loads(self, i):
        sa, _, k = self.p2_steps()[i]
        out = []
        for t in range(4):
            g = [bload(aslot(i, t), vL16, SWS, sLA, t * 1024, 'sc1')]
            if t == 0:
                g[:0] = self.step_base(sLA, sa, k, 4096, i)
            out.append(Group(g))
        return out

    def startup(self):
        t = [V(n) for n in range(136, 256)]
        vQ, vZ, vOOB, vU, vHu, vR, vCC, vPs = t[5], t[7], t[14], t[15], t[16], t[17], t[18], t[19]
        rdA, soA = [t[20], t[21], t[22]], [sT[8], sT[9], sT[10]]
        rdB, stB, ldB = [t[23], t[24], t[25]], [t[26], t[27], t[28]], [t[29], t[30], t[31]]
        sW2c, sPB = sT[11], sT[12]
        H, PK = 200, 176
        p = []
        e = p.append
        x = p.extend
        e(salu('s_cmp_ge_u32', 's2', 256))
        e(raw("s_cbranch_scc1 L_end", rd=['scc'], kind='branch'))
        e(salu('s_getpc_b64', S(56, 2)))
        e(raw("L_pc:", kind='label', states=0))
        for r, off in ((4, 0), (16, 32), (8, 8), (28, 64), (12, 16), (20, 40), (24, 48)):
            e(raw(f"s_load_dwordx2 {S(r, 2)}, s[0:1], {off}", wr=regs(S(r, 2))))
        if self.opt.get('dbg'):
            e(raw("s_load_dwordx2 s[98:99], s[0:1], 56", wr=['s98', 's99']))
        e(salu('s_lshr_b32', sT[0], 's2', 3))
        e(salu('s_lshl_b32', sT[4], sT[0], 4))
        e(valu('v_lshrrev_b32', t[0], 6, 'v0'))
        e(valu('v_and_b32', t[1], 3, 'v0'))
        e(valu('v_lshl_add_u32', t[1], t[0], 2, t[1]))
        e(valu('v_add_lshl_u32', t[1], sT[4], t[1], 7))
        e(valu('v_min_u32', t[1], 'L_last-L_pc-4', t[1]))
        e(valu('v_mov_b32', t[3], 's57'))
        e(I(f"v_add_co_u32 {t[2]}, vcc, s56, {t[1]}", 'valu', ['s56', t[1]], [t[2], 'vcc']))
        e(valu('v_readfirstlane_b32', sW, t[0]))
        e(valu('v_and_b32', vL, 63, 'v0'))
        e(I(f"v_addc_co_u32 {t[3]}, vcc, 0, {t[3]}, vcc", 'valu', [t[3], 'vcc'], [t[3], 'vcc']))
        e(I(f"global_load_dword v255, {V(138, 2)}, off", 'vld', [t[2], t[3]], ['v255']))
        x(self.stamp('start'))
        if self.stamps:
            e(salu('s_mov_b32', 's84', 0))
            e(raw("s_memrealtime s[82:83]", wr=['s82', 's83']))
            e(raw("s_waitcnt lgkmcnt(0)"))
            e(raw(f"v_writelane_b32 {vJUNK}, s82, 61", rd=['s82'], kind='salu'))
        e(salu('s_and_b32', sT[3], 's2', 7))
        e(salu('s_lshr_b32', sT[4], sT[3], 1))
        e(salu('s_and_b32', sT[3], sT[3], 1))
        e(salu('s_and_b32', sB, sT[0], 3))
        e(salu('s_lshl2_add_u32', sB, sT[4], sB))
        e(valu('v_lshrrev_b32', t[4], 3, vL))
        e(valu('v_lshrrev_b32', vQ, 4, vL))
        e(valu('v_and_b32', t[6], 7, vL))
        e(valu('v_xor_b32', t[6], t[6], vQ))
        e(valu('v_lshlrev_b32', t[6], 4, t[6]))
        e(valu('v_mul_u32_u24', vXa[0], 2560, t[4]))
        e(valu('v_add_u32', vXa[0], vXa[0], t[6]))
        e(valu('v_xor_b32', vXa[2], 64, vXa[0]))
        e(valu('v_add_u32', vXa[1], 1280 - 1024, vXa[0]))
        e(valu('v_add_u32', vXa[3], 20480 + 1280 - 3072, vXa[2]))
        e(valu('v_add_u32', vXa[2], 20480 - 2048, vXa[2]))
        rot = self.opt['rot']
        if rot == 1:
            e(salu('s_and_b32', sR, sT[0], 3))
            e(salu('s_mul_i32', sR, sR, 5))
            e(salu('s_lshr_b32', sR, sR, 1))
            e(salu('s_lshr_b32', sKP, sT[0], 2))
            e(salu('s_add_u32', sR, sR, sKP))
            e(salu('s_cmp_ge_u32', sR, 10))
            e(salu('s_cselect_b32', sKP, 10, 0))
            e(salu('s_sub_u32', sR, sR, sKP))
        elif rot == 2:
            e(salu('s_lshr_b32', sR, sT[0], 2))
            e(salu('s_xor_b32', sR, sR, sT[0]))
            e(salu('s_and_b32', sR, sR, 1))
            e(salu('s_mul_i32', sR, sR, 5))
        elif rot == 4:
            e(salu('s_lshr_b32', sR, sT[0], 2))
            e(salu('s_add_u32', sR, sR, sT[0]))
            e(salu('s_and_b32', sR, sR, 3))
            e(salu('s_mul_i32', sR, sR, 5))
            e(salu('s_lshr_b32', sR, sR, 1))
        elif rot in (3, 7, 8, 9):
            g_, step = {3: (3, 3), 7: (5, 2), 8: (4, 0), 9: (5, 2)}[rot]
            e(salu('s_lshr_b32', sR, sT[0], 2))
            e(salu('s_and_b32', sKP, sT[0], 3))
            e(salu('s_add_u32', sR, sR, sKP))
            if rot in (8, 9):
                e(salu('s_add_u32', sR, sR, sT[4]))
                e(salu('s_lshl1_add_u32', sR, sT[3], sR))
            e(salu('s_mul_i32', sKP, sR, -(-256 // g_)))
            e(salu('s_lshr_b32', sKP, sKP, 8))
            e(salu('s_mul_i32', sKP, sKP, g_))
            e(salu('s_sub_u32', sR, sR, sKP))
            if step:
                e(salu('s_mul_i32', sR, sR, step))
            else:
                e(salu('s_mul_i32', sR, sR, 5))
                e(salu('s_lshr_b32', sR, sR, 1))
        elif rot in (5, 6):
            e(salu('s_and_b32', sR, sT[0], 3))
            e(salu('s_mul_i32', sR, sR, 5))
            e(salu('s_lshr_b32', sR, sR, 1))
            if rot == 5:
                e(salu('s_lshr_b32', sKP, sT[0], 2))
            else:
                e(salu('s_lshr_b32', sKP, sT[0], 2))
                e(salu('s_and_b32', sKP, sKP, 3))
                e(salu('s_mul_i32', sKP, sKP, 5))
                e(salu('s_lshr_b32', sKP, sKP, 1))
            e(salu('s_add_u32', sR, sR, sKP))
            e(salu('s_mul_i32', sKP, sT[3], 5 if rot == 5 else 1))
            e(salu('s_add_u32', sR, sR, sKP))
            e(salu('s_add_u32', sR, sR, sT[4]))
            e(salu('s_mul_i32', sKP, sR, 26))
            e(salu('s_lshr_b32', sKP, sKP, 8))
            e(salu('s_mul_i32', sKP, sKP, 10))
            e(salu('s_sub_u32', sR, sR, sKP))
        else:
            e(salu('s_mov_b32', sR, 0))
        e(salu('s_mov_b32', sKP, sR))
        e(salu('s_lshl2_add_u32', sXb, sB, sW))
        e(salu('s_mul_i32', sXb, sXb, 32 * 1280))
        e(salu('s_lshl_b32', sXs, sKP, 7))
        e(salu('s_add_u32', sXs, sXs, sXb))
        e(salu('s_lshl_b32', sXl, sW, 14))
        e(salu('s_add_u32', sXl, sXl, XR))
        e(salu('s_mov_b32', S(6), 2621440))
        e(salu('s_mov_b32', S(7), 0x20000))
        npro = self.opt['npro']
        st = [self.inline_stage(R) for R in range(npro)]
        fast = self.opt['fast']
        if fast:
            e(raw("s_waitcnt lgkmcnt(0)", drains_lgkm=True))
            x(st[0][:fast])
        for r, size in ((16, 1966080),):
            e(salu('s_mov_b32', S(r + 2), size))
            e(salu('s_mov_b32', S(r + 3), 0x20000))
        e(salu('s_lshr_b32', sJ, sT[0], 2))
        e(salu('s_lshl3_add_u32', sJ, sT[3], sJ))
        e(salu('s_mul_i32', sW1b, sW, 16 * 3072))
        e(salu('s_mul_i32', sT[1], sJ, 192))
        e(salu('s_add_u32', sW1b, sW1b, sT[1]))
        e(salu('s_mul_i32', sW1, sKP, 64 * 3072))
        e(salu('s_add_u32', sW1, sW1, sW1b))
        e(salu('s_mul_i32', sW1l, sW, 3072))
        e(salu('s_add_u32', sW1l, sW1l, W1R))
        e(salu('s_mov_b32', S(30), WS_SIZE))
        e(salu('s_mov_b32', S(31), 0x20000))
        vSr, vSt, SR = V(232), V(233), 236
        e(valu('v_mov_b32', vZ, 0))
        e(valu('v_mov_b32', vOOB, OOB))
        e(salu('s_lshl2_add_u32', sT[1], sJ, sW))
        e(salu('s_lshl_b32', sT[1], sT[1], 1))
        e(salu('s_lshl_b32', sT[2], sB, 7))
        e(salu('s_add_u32', sT[1], sT[1], sT[2]))
        e(valu('v_lshrrev_b32', vSt, 5, vL))
        e(valu('v_add_u32', vSt, sT[1], vSt))
        e(valu('v_and_b32', t[8], 31, vL))
        e(valu('v_cmp_gt_u32', 'vcc', 16, t[8]))
        e(valu('v_mul_u32_u24', vSr, 1280, vSt))
        e(valu('v_lshl_add_u32', vSr, t[8], 4, vSr))
        e(valu('v_cndmask_b32', V(234), vOOB, vSr, 'vcc'))
        if self.opt['touch']:
            e(salu('s_lshl_b32', sT[1], 's2', 7))
            e(salu('s_add_u32', sT[1], sT[1], F1))
            e(valu('v_cmp_eq_u32', 'vcc', 1, 'v0'))
            e(valu('v_mov_b32', V(235), sT[1]))
            e(valu('v_cndmask_b32', V(235), 0, V(235), 'vcc'))
            if self.opt['tlb']:
                e(valu('v_subrev_u32', t[9], 8, 'v0'))
                e(valu('v_cmp_gt_u32', 'vcc', 7, t[9]))
                e(valu('v_lshlrev_b32', t[9], 21, t[9]))
                e(valu('v_cndmask_b32', V(235), V(235), t[9], 'vcc'))
        e(raw("s_waitcnt lgkmcnt(0)", drains_lgkm=True))
        x(self.stamp('karg'))
        srow = [bload(V(SR, 4), vSr, SX), bload(V(SR + 4, 4), vSr, SX, 0, 512), bload(V(SR + 8, 4), V(234), SX, 0, 1024),
                bload(vTAG, V(235) if self.opt['touch'] else vZ, SWS, 0, 0, 'sc1')]
        if self.opt['srow'] == 0:
            x(srow)

        def w1_addr(m):
            return [valu('v_add_u32', t[8], 64 * m, vL)] + self.divc(t[9], t[8], 12, 191) + [
                valu('v_mul_u32_u24', t[10], 12, t[9]), valu('v_sub_u32', t[8], t[8], t[10]),
                valu('v_lshrrev_b32', t[10], 2, t[9]), valu('v_and_b32', t[10], 2, t[10]),
                valu('v_xor_b32', t[8], t[8], t[10]), valu('v_mul_u32_u24', t[9], 3072, t[9]),
                valu('v_lshl_add_u32', vW1a[m], t[8], 4, t[9])] + (
                [valu('v_subrev_u32', vW1a[m], 1024 * m, vW1a[m])] if m else [])
        x(st[0][fast:2])
        x(w1_addr(0))
        x(st[0][max(fast, 2):3])
        x(w1_addr(1))
        x(st[0][max(fast, 3):4])
        x(self.stamp('st0x'))
        x(w1_addr(2))
        e(st[0][4])
        e(salu('s_and_b32', sTB, sT[0], 7))
        e(salu('s_lshl3_add_u32', sTB, sT[4], sTB))
        e(salu('s_lshr_b32', sC, sT[0], 3))
        e(salu('s_lshl2_add_u32', sC, sT[3], sC))
        for r, size in ((8, 2457600), (12, 819200), (20, 1966080), (24, 2621440)):
            e(salu('s_mov_b32', S(r + 2), size))
            e(salu('s_mov_b32', S(r + 3), 0x20000))
        e(st[0][5])
        e(st[0][6])
        x(self.stamp('st0w'))
        if self.opt['srow'] == 1:
            x(srow)
        self.p0a, self.rawA = [], []
        early = self.opt['rawA'] < 0
        ldA, sA = [V(229), V(230), V(231)], S(97)
        later = []
        e_, x_ = (e, x) if early else (later.append, later.extend)
        sUA, sSec = sT[6], sT[7]
        e_(salu('s_mul_i32', sUA, 's2', 171))
        e_(salu('s_lshr_b32', sUA, sUA, 9))
        e_(salu('s_mul_i32', sSec, sUA, 3))
        e_(salu('s_sub_u32', sSec, 's2', sSec))
        e_(salu('s_mul_i32', sA, sUA, 8 * 3840))
        e_(salu('s_mul_i32', sT[2], sSec, 1280))
        e_(salu('s_add_u32', sA, sA, sT[2]))
        e_(salu('s_lshl_b32', sT[2], sW, 6))
        for m in range(3):
            e_(valu('v_add_u32', t[8], sT[2], vL))
            if m:
                e_(valu('v_add_u32', t[8], 256 * m, t[8]))
            x_(self.divc(t[9], t[8], 80, 767))
            if m == 2:
                e_(valu('v_cmp_gt_u32', 'vcc', 640, t[8]))
            e_(valu('v_mul_u32_u24', t[9], 3840 - 1280, t[9]))
            e_(valu('v_lshl_add_u32', ldA[m], t[8], 4, t[9]))
            if m == 2:
                e_(valu('v_cndmask_b32', ldA[m], vOOB, ldA[m], 'vcc'))
            d = bdma(ldA[m], SWQKV, sA, 0, FL[self.opt['flA']])
            g_ = Group([salu('s_lshl_b32', sT[5], sW, 10), salu('s_add_u32', 'm0', sT[5], P0A + 4096 * m), d])
            self.p0a.append(d)
            if early:
                e(g_)
            else:
                self.rawA.append(g_)
        if self.opt['touch2']:
            e(salu('s_lshr_b32', sT[1], sUA, 2))
            e(salu('s_lshl_b32', sT[1], sT[1], 12))
            e(salu('s_and_b32', sT[2], sUA, 3))
            e(salu('s_lshl_b32', sT[2], sT[2], 8))
            e(salu('s_add_u32', sT[1], sT[1], sT[2]))
            e(salu('s_add_u32', sT[1], sT[1], WQ + 3072))
            e(salu('s_lshl2_add_u32', sT[2], sSec, sW))
            e(salu('s_cmp_lt_u32', sT[2], 8))
            e(salu('s_cselect_b32', sT[1], sT[1], 0x70000000))
            e(salu('s_cmp_lt_u32', 's2', 240))
            e(salu('s_cselect_b32', sT[1], sT[1], 0x70000000))
            e(salu('s_mul_i32', sT[2], sT[2], 4 * 81920))
            e(salu('s_add_u32', sT[1], sT[1], sT[2]))
            e(valu('v_and_b32', t[8], 3, vL))
            e(valu('v_mul_u32_u24', t[8], 81920, t[8]))
            e(bload(V(254), t[8], SWS, sT[1]))
        if self.opt['tlb'] > 1:
            e(valu('v_lshlrev_b32', t[8], 20, 'v0'))
            e(valu('v_cmp_gt_u32', 'vcc', 3, 'v0'))
            e(valu('v_cndmask_b32', t[8], vOOB, t[8], 'vcc'))
            e(bload(V(254), t[8], SOUT))
        x(self.stamp('p0a'))

        q = later
        e = q.append
        x = q.extend
        vHa = t[32]
        e(valu('v_and_b32', vU, 15, vL))
        e(valu('v_bfe_u32', vR, vL, 2, 2))
        e(valu('v_and_b32', vCC, 3, vL))
        e(salu('s_and_b32', sT[1], sW, 1))
        e(salu('s_lshl_b32', sT[2], sT[1], 3))
        e(valu('v_lshrrev_b32', vHu, 3, vL))
        e(valu('v_add_u32', vHu, sT[2], vHu))
        e(salu('s_lshl_b32', sT[2], sB, 7))
        e(salu('s_sub_u32', sT[2], sT[2], 16))
        e(valu('v_add_u32', vHa, sT[2], vHu))
        e(valu('v_cmp_le_i32', 'vcc', 0, vHa))
        e(valu('v_lshrrev_b32', t[8], 1, vHu))
        e(valu('v_xor_b32', t[8], t[8], vL))
        e(valu('v_and_b32', t[8], 7, t[8]))
        e(valu('v_mul_u32_u24', vHa, 1280, vHa))
        e(valu('v_lshl_add_u32', vHa, t[8], 4, vHa))
        e(valu('v_cndmask_b32', vHa, vOOB, vHa, 'vcc'))
        e(valu('v_cmp_lt_u32', 'vcc', 1, vHu))
        e(valu('v_cndmask_b32', vHa, vOOB, vHa, 'vcc'))
        sHk, sHl = S(94), S(95)
        e(salu('s_lshr_b32', sT[2], sW, 1))
        e(salu('s_mul_i32', sT[2], sT[2], 5))
        e(salu('s_lshl_b32', sHl, sT[2], 11))
        e(salu('s_lshl_b32', sT[1], sT[1], 10))
        e(salu('s_add_u32', sHl, sHl, sT[1]))
        e(salu('s_add_u32', sHk, sT[2], sR))
        halo_loads = []
        for i5 in range(5):
            halo_loads.append(Group([salu('s_cmp_ge_u32', sHk, 10 - i5), salu('s_cselect_b32', sT[5], (i5 - 10) & 0xffffffff, i5),
                                     salu('s_add_u32', sT[5], sT[5], sHk), salu('s_lshl_b32', sT[5], sT[5], 7),
                                     salu('s_add_u32', 'm0', sHl, HALO + 2048 * i5), bdma(vHa, SX, sT[5], 0, FL[self.opt['flH']])]))
        self.halo_ops = [g_[-1] for g_ in halo_loads]
        e(salu('s_lshl2_add_u32', sT[1], sB, sW))
        e(salu('s_lshl_b32', sT[1], sT[1], 8))
        e(salu('s_add_u32', sT[1], sT[1], ST))
        e(valu('v_lshl_add_u32', vSA, vU, 4, sT[1]))
        e(salu('s_lshl_b32', sT[1], sB, 10))
        e(salu('s_max_u32', sT[1], sT[1], 128))
        e(salu('s_add_u32', sT[1], sT[1], ST - 128))
        e(valu('v_lshl_add_u32', vSH, vU, 3, sT[1]))
        e(valu('v_lshlrev_b32', vL16, 4, vL))
        e(valu('v_add_u32', vL16b, 4096, vL16))
        e(valu('v_lshrrev_b32', t[8], 1, vU))
        e(valu('v_xor_b32', t[8], t[8], vQ))
        e(valu('v_lshlrev_b32', t[8], 4, t[8]))
        e(valu('v_lshl_add_u32', vHr[0], vU, 7, t[8]))
        e(valu('v_xor_b32', vHr[1], 64, vHr[0]))
        e(valu('v_and_b32', t[8], 8, vU))
        e(valu('v_lshlrev_b32', t[8], 7, t[8]))
        e(valu('v_add3_u32', vXr[0], sXl, vHr[0], t[8]))
        e(valu('v_xor_b32', vXr[1], 64, vXr[0]))
        e(valu('v_lshl_add_u32', t[8], vQ, 3, vR))
        e(valu('v_mul_u32_u24', t[8], 192, t[8]))
        e(valu('v_lshl_add_u32', t[8], vCC, 3, t[8]))
        e(valu('v_and_b32', t[9], 1, vQ))
        e(valu('v_lshl_add_u32', t[8], t[9], 5, t[8]))
        e(salu('s_cmp_eq_u32', sW, 3))
        e(salu('s_cselect_b32', sROT, 0, sW))
        e(salu('s_lshl_b32', sT[1], sB, 1))
        e(salu('s_lshr_b32', sT[2], sW, 1))
        e(salu('s_add_u32', sT[12], sT[1], sT[2]))
        e(salu('s_mul_i32', sAP, sT[12], ACTB))
        e(salu('s_and_b32', sT[2], sW, 1))
        e(salu('s_lshl_b32', sT[2], sT[2], 11))
        e(salu('s_add_u32', sAP, sAP, sT[2]))
        e(salu('s_add_u32', sAP, sAP, ACT))
        for m in range(3):
            e(salu('s_add_u32', sT[1], sROT, m))
            e(salu('s_cmp_ge_u32', sT[1], 3))
            e(salu('s_cselect_b32', sT[2], 3, 0))
            e(salu('s_sub_u32', sT[1], sT[1], sT[2]))
            e(salu('s_lshl_b32', sT[2], sT[1], 6))
            e(salu('s_add_u32', sT[2], sT[2], W1R))
            e(valu('v_add_u32', vW1r[2 * m], sT[2], t[8]))
            e(valu('v_xor_b32', vW1r[2 * m + 1], 32, vW1r[2 * m]))
            e(salu('s_mul_i32', sT[2], sJ, 3))
            e(salu('s_add_u32', sT[1], sT[1], sT[2]))
            e(salu('s_lshl_b32', sT[1], sT[1], 12))
            e(salu('s_add_u32', sHS[m], sT[1], sAP))
        e(valu('v_mov_b32', t[8], 0x3f803f80))
        for r in range(4):
            e(valu('v_accvgpr_write_b32', A(240 + r), t[8]))
        stA = [vPs, t[33], t[35]]
        soA[:] = [sT[9], sT[9], sT[10]]
        e(salu('s_lshr_b32', sT[1], sUA, 2))
        e(salu('s_lshl_b32', sT[1], sT[1], 12))
        e(salu('s_and_b32', sT[2], sUA, 3))
        e(salu('s_lshl_b32', sT[2], sT[2], 8))
        e(salu('s_add_u32', sT[1], sT[1], sT[2]))
        e(salu('s_add_u32', sT[1], sT[1], WQ))
        e(salu('s_cmp_lt_u32', 's2', 240))
        e(salu('s_cselect_b32', sT[1], sT[1], 0x70000000))
        e(salu('s_lshl_b32', sT[2], sSec, 10))
        e(salu('s_add_u32', soA[0], sT[1], sT[2]))
        e(salu('s_lshl_b32', sT[2], sSec, 6))
        e(salu('s_add_u32', sT[2], sT[2], 3072))
        e(salu('s_add_u32', soA[2], sT[1], sT[2]))
        e(salu('s_cmp_eq_u32', sSec, 2))
        e(salu('s_cselect_b32', S(93), soA[2], 0x70000000))
        e(salu('s_mov_b32', sT[3], WQJ))
        e(salu('s_mov_b32', sT[4], 81920))
        e(valu('v_mul_u32_u24', t[8], 1280, vR))
        e(valu('v_add_u32', t[8], P0A, t[8]))
        for k in range(3):
            if k < 2:
                e(salu('s_lshl_b32', sT[1], sW, 2))
                e(salu('s_add_u32', sT[1], sT[1], 16 * k))
                e(valu('v_add_u32', t[9], sT[1], vQ))
                e(valu('v_mul_u32_u24', t[10], 40, t[9]))
                e(valu('v_lshl_add_u32', t[10], vCC, 3, t[10]))
                e(valu('v_add_u32', rdA[k], t[8], t[10]))
                e(valu('v_lshlrev_b32', t[11], 4, vU))
            else:
                e(salu('s_and_b32', sT[1], sW, 1))
                e(salu('s_lshl_b32', sT[1], sT[1], 4))
                e(valu('v_lshl_add_u32', t[12], vQ, 2, sT[1]))
                e(valu('v_add_u32', t[9], t[12], vCC))
                e(valu('v_mul_u32_u24', t[10], 40, t[9]))
                e(valu('v_add3_u32', rdA[k], t[8], t[10], 32))
                e(valu('v_add_u32', t[9], t[12], vR))
                e(valu('v_lshlrev_b32', t[11], 4, vCC))
            e(valu('v_lshrrev_b32', t[10], 1, t[9]))
            e(valu('v_mad_u32_u24', t[11], t[10], sT[3], t[11]))
            e(valu('v_and_b32', t[9], 1, t[9]))
            e(valu('v_mad_u32_u24', stA[k], t[9], sT[4], t[11]))
        e(salu('s_cmp_lt_u32', sW, 2))
        e(salu('s_cselect_b64', 'vcc', -1, 0))
        e(valu('v_cndmask_b32', stA[2], vOOB, stA[2], 'vcc'))
        sSrc, sDst = [S(76), S(77), S(3)], [sT[6], sT[7], sT[8]]
        e(valu('v_lshrrev_b32', t[12], 3, vL))
        e(valu('v_and_b32', t[13], 3, t[12]))
        e(valu('v_lshrrev_b32', t[12], 2, t[12]))
        e(valu('v_mul_u32_u24', t[13], 1280, t[13]))
        e(valu('v_and_b32', t[8], 7, vL))
        e(valu('v_lshl_add_u32', t[13], t[8], 4, t[13]))
        e(salu('s_mov_b32', sT[12], W2C))
        for m in range(3):
            e(salu('s_mul_i32', sT[1], sW, 768))
            e(salu('s_add_u32', sT[1], sT[1], 's2'))
            if m:
                e(salu('s_add_u32', sT[1], sT[1], 256 * m))
            e(salu('s_mul_i32', sT[2], sT[1], 6554))
            e(salu('s_lshr_b32', sT[2], sT[2], 16))
            e(salu('s_mul_i32', sT[3], sT[2], 10))
            e(salu('s_sub_u32', sT[3], sT[1], sT[3]))
            e(salu('s_lshr_b32', sT[4], sT[2], 2))
            e(salu('s_mul_i32', sDst[m], sT[4], 5120))
            e(salu('s_and_b32', sT[5], sT[2], 3))
            e(salu('s_lshl_b32', sSrc[m], sT[5], 8))
            e(salu('s_add_u32', sDst[m], sDst[m], sSrc[m]))
            e(salu('s_add_u32', sDst[m], sDst[m], W2P))
            e(salu('s_lshl_b32', sT[5], sT[5], 2))
            e(salu('s_lshl_b32', sSrc[m], sT[4], 5))
            e(salu('s_add_u32', sSrc[m], sSrc[m], sT[5]))
            e(salu('s_sub_u32', sT[4], sT[4], 48))
            e(salu('s_mul_i32', sT[4], sT[4], 40))
            e(salu('s_add_u32', sT[4], sT[4], sT[5]))
            e(salu('s_sub_u32', sT[5], sT[2], 256))
            e(salu('s_mul_i32', sT[5], sT[5], 40))
            e(salu('s_add_u32', sT[5], sT[5], 16))
            e(salu('s_cmp_lt_u32', sT[2], 256))
            e(salu('s_cselect_b32', sT[4], sT[4], sT[5]))
            e(salu('s_cmp_lt_u32', sT[2], 192))
            e(salu('s_cselect_b32', sSrc[m], sSrc[m], sT[4]))
            e(salu('s_cmp_lt_u32', sT[2], 192))
            e(salu('s_cselect_b32', sT[4], 16, 20))
            e(salu('s_mul_i32', sT[4], sT[4], 1280))
            e(valu('v_mad_u32_u24', ldB[m], t[12], sT[4], t[13]))
            e(salu('s_mul_i32', sSrc[m], sSrc[m], 1280))
            e(salu('s_lshl_b32', sT[4], sT[3], 7))
            e(salu('s_add_u32', sSrc[m], sSrc[m], sT[4]))
            e(salu('s_cmp_lt_u32', sT[1], 2720))
            e(salu('s_cselect_b32', sSrc[m], sSrc[m], 0x70000000))
            e(salu('s_cmp_lt_u32', sT[1], 2720))
            e(salu('s_cselect_b32', sDst[m], sDst[m], 0x70000000))
            e(salu('s_lshl_b32', sT[3], sT[3], 2))
            e(valu('v_add_u32', t[9], sT[3], vQ))
            x(self.divc(t[10], t[9], 5, 39))
            e(valu('v_mul_u32_u24', t[11], 5, t[10]))
            e(valu('v_sub_u32', t[9], t[9], t[11]))
            e(valu('v_lshlrev_b32', t[9], 10, t[9]))
            e(valu('v_lshl_add_u32', t[9], vU, 4, t[9]))
            e(valu('v_mad_u32_u24', stB[m], t[10], sT[12], t[9]))
        e(salu('s_mul_i32', sT[1], sW, 3072))
        e(salu('s_add_u32', sPB, sT[1], P0B))
        e(valu('v_lshlrev_b32', t[8], 7, vR))
        e(valu('v_lshl_add_u32', t[8], vQ, 5, t[8]))
        e(valu('v_lshl_add_u32', t[8], vCC, 3, t[8]))
        e(valu('v_add_u32', rdB[0], sPB, t[8]))
        e(salu('s_mov_b32', S(75), 0x20000))
        e(salu('s_mul_i32', sW2c, sC, W2C))
        e(salu('s_add_u32', sW2c, sW2c, W2P))
        vHw = t[34]
        e(salu('s_mul_i32', sT[1], sW, 20))
        e(valu('v_add_u32', t[8], sT[1], vL))
        e(valu('v_cmp_gt_u32', 'vcc', 20, vL))
        e(valu('v_lshrrev_b32', t[9], 3, t[8]))
        e(valu('v_and_b32', t[8], 7, t[8]))
        e(valu('v_lshlrev_b32', t[8], 4, t[8]))
        e(valu('v_lshl_add_u32', t[8], t[9], 11, t[8]))
        e(valu('v_add_u32', t[9], DUMMY, vL16))
        e(valu('v_cndmask_b32', vHw, t[9], t[8], 'vcc'))
        fs = self.opt['fstride']
        e(salu('s_lshr_b32', sT[3], 's2', 2))
        e(salu('s_lshl_b32', sT[3], sT[3], fs))
        e(salu('s_and_b32', sT[1], 's2', 3))
        e(salu('s_lshl2_add_u32', sT[3], sT[1], sT[3]))
        e(salu('s_add_u32', sT[3], sT[3], F1))
        e(valu('v_cmp_eq_u32', 'vcc', 0, 'v0'))
        e(valu('v_mov_b32', t[8], sT[3]))
        e(valu('v_cndmask_b32', vFA, vOOB, t[8], 'vcc'))
        x(self.poll_all(F1))
        e(salu('s_mul_i32', sWQb, sJ, WQJ))
        e(salu('s_add_u32', sWQb, sWQb, WQ))
        e(salu('s_lshl1_add_u32', sG, sR, sW))
        e(salu('s_cmp_ge_u32', sG, 20))
        e(salu('s_cselect_b32', sWQ, 20, 0))
        e(salu('s_sub_u32', sG, sG, sWQ))
        e(salu('s_lshl_b32', sWQ, sG, 12))
        e(salu('s_add_u32', sWQ, sWQ, sWQb))
        e(salu('s_lshr_b32', sT[1], 's2', 3))
        e(salu('s_and_b32', sT[2], sT[1], 7))
        e(salu('s_mul_i32', sT[2], sT[2], 3))
        e(salu('s_lshr_b32', sT[2], sT[2], 1))
        e(salu('s_lshr_b32', sT[1], sT[1], 3))
        e(salu('s_mul_i32', sT[1], sT[1], 3))
        e(salu('s_add_u32', sR2, sT[1], sT[2]))
        e(salu('s_cmp_ge_u32', sR2, 12))
        e(salu('s_cselect_b32', sT[1], 12, 0))
        e(salu('s_sub_u32', sR2, sR2, sT[1]))
        if self.opt['rot2'] in (2, 4):
            e(salu('s_lshr_b32', sT[1], 's2', 3))
            e(salu('s_lshr_b32', sT[2], 's2', 6))
            e(salu('s_add_u32', sR2, sT[1], sT[2]))
        e(salu('s_mul_i32', sT[1], sTB, ACTB))
        e(salu('s_add_u32', sT[1], sT[1], ACT))
        e(salu('s_mul_i32', sT[2], sW, 12 * 4096))
        e(salu('s_add_u32', sAh, sT[1], sT[2]))
        e(salu('s_lshl_b32', sT[2], sW, 14))
        e(salu('s_add_u32', sAo, sT[1], sT[2]))
        e(salu('s_add_u32', sAo, sAo, 48 * 4096))
        e(salu('s_lshl_b32', sT[2], sW, 12))
        e(salu('s_add_u32', sAb, sT[1], sT[2]))
        e(salu('s_add_u32', sAb, sAb, 64 * 4096))
        e(salu('s_mul_i32', sT[2], sW, 12 * 5120))
        e(salu('s_add_u32', sWh, sW2c, sT[2]))
        e(salu('s_mul_i32', sT[2], sW, 4 * 5120))
        e(salu('s_add_u32', sWo, sW2c, sT[2]))
        e(salu('s_add_u32', sWo, sWo, 48 * 5120))
        e(salu('s_mul_i32', sT[2], sW, 5120))
        e(salu('s_add_u32', sWb, sW2c, sT[2]))
        e(salu('s_add_u32', sWb, sWb, 64 * 5120))
        e(salu('s_add_u32', sT[1], sJ, 48))
        e(salu('s_lshl_b32', sT[1], sT[1], 12))
        e(salu('s_add_u32', sOA, sT[1], sAP))
        e(salu('s_lshr_b32', sT[1], sJ, 2))
        e(salu('s_add_u32', sT[1], sT[1], 64))
        e(salu('s_lshl_b32', sT[1], sT[1], 12))
        e(salu('s_and_b32', sT[2], sJ, 3))
        e(salu('s_lshl_b32', sT[2], sT[2], 8))
        e(salu('s_add_u32', sT[1], sT[1], sT[2]))
        e(salu('s_add_u32', sOB, sT[1], sAP))
        e(salu('s_mov_b64', sLO16, 0xffff))
        e(salu('s_mov_b32', 's70', 0x00010001))
        e(salu('s_mov_b32', 's71', 0x00010001))
        e(salu('s_mov_b32', sSCL, f2u(20 ** -0.5 * 1.4426950408889634)))
        for i in range(4):
            e(salu('s_add_u32', sT[1], sW, i))
            e(salu('s_and_b32', sT[1], sT[1], 3))
            e(salu('s_lshl_b32', sT[1], sT[1], 10))
            e(salu('s_add_u32', sT[1], sT[1], XR))
            e(valu('v_add_u32', vWr[i], sT[1], vL16))
        e(valu('v_lshlrev_b32', t[8], 2, vQ))
        e(valu('v_sub_u32', t[8], vU, t[8]))
        e(valu('v_mov_b32', t[10], f2u(-1e30)))
        e(salu('s_or_b32', sT[1], sB, sW))
        e(salu('s_cmp_eq_u32', sT[1], 0))
        e(salu('s_cselect_b32', sT[1], 0, 2))
        e(valu('v_cmp_gt_u32', 'vcc', sT[1], vQ))
        e(valu('v_cndmask_b32', t[11], t[10], vZ, 'vcc'))
        for r in range(4):
            e(valu('v_subrev_u32', t[9], r, t[8]))
            e(valu('v_cmp_gt_u32', 'vcc', 8, t[9]))
            e(valu('v_cmp_gt_i32', S(56, 2), 0, t[9]))
            e(valu('v_cndmask_b32', V(MASK + 4 + r), t[10], vZ, 'vcc'))
            e(valu('v_cndmask_b32', V(MASK + r), t[10], t[11], S(56, 2)))
        e(valu('v_mov_b32', t[8], ZERO))
        e(valu('v_mov_b32', t[10], 0))
        e(valu('v_mov_b32', t[11], 0))
        e(ds_write('ds_write_b64', t[8], V(146, 2)))
        loads = (st[1] if npro > 1 else []) + (halo_loads if npro > 2 else []) + [x_ for r_ in st[2:] for x_ in r_]
        self.halo_loads = [] if npro > 2 else halo_loads
        p += self.sprinkle(q, loads, max(1, min(self.opt['pro_every'], (len(q) - 16) // max(len(loads), 1))), start=self.opt['pro_start'])
        self.rawB = []
        for m in range(3):
            self.rawB.append(Group([Group([salu('s_cmp_lt_u32', sDst[m], W2P + 48 * 5120), salu('s_cselect_b64', S(72, 2), S(20, 2), S(12, 2)),
                                           salu('s_cselect_b32', S(74), S(22), S(14))]),
                                    salu('s_add_u32', 'm0', sPB, 1024 * m),
                                    bdma(ldB[m], S(72, 4), sSrc[m], 0, FL[self.opt['flB']])]))
        if self.opt['rawB'] < 0:
            p += flatten(self.rawB)
        p += self.stamp('setup')
        shadow = self.opt['srow'] >= 2
        hs, hq, ht, h3, h4, h5 = (V(n) for n in range(224, 229)) if False else (V(248), V(249), V(250), V(251), V(252), V(253))
        z = [valu('v_readfirstlane_b32', sTAG, vTAG), valu('v_mov_b32', ht, 0x3f803f80),
             salu('s_mul_i32', sTAG, sTAG, 0x19660d), salu('s_add_u32', sTAG, sTAG, 0x3c6ef35f),
             salu('s_cmp_eq_u32', sW, 0), salu('s_cselect_b32', sCMP, sTAG, 0), valu('v_mov_b32', vTAG, sTAG)]
        for i in range(12):
            if not shadow:
                z += [valu('v_dot2_f32_bf16', hs, V(SR + i), ht, hs if i else 0),
                      valu('v_dot2_f32_bf16', hq, V(SR + i), V(SR + i), hq if i else 0)]
                continue
            z += [valu('v_lshlrev_b32', h4, 16, V(SR + i)), valu('v_and_b32', h5, 0xffff0000, V(SR + i))]
            z += [valu('v_add_f32', hs, h4, h5), valu('v_mul_f32', hq, h4, h4)] if i == 0 else \
                [valu('v_add_f32', hs, hs, h4), valu('v_fmac_f32', hq, h4, h4), valu('v_add_f32', hs, hs, h5)]
            z.append(valu('v_fmac_f32', hq, h5, h5))
        z += [valu('v_and_b32', h3, 31, vL), valu('v_cmp_eq_u32', S(98, 2) if not self.opt.get('dbg') else 'vcc', 0, h3),
              valu('v_lshlrev_b32', h3, 3, vSt), valu('v_add_u32', h3, ST, h3)]
        for sh in (8, 4, 2, 1):
            z.append(Skip(1))
            for r in (hs, hq):
                z.append(valu('v_add_f32_dpp', r, r, r, mods=f'row_ror:{sh} row_mask:0xf bank_mask:0xf'))
        z += [valu('v_mov_b32', h4, hs), valu('v_mov_b32', h5, hq),
              valu('v_cndmask_b32', h3, vOOB, h3, S(98, 2) if not self.opt.get('dbg') else 'vcc'), Skip(1),
              valu('v_permlane16_swap_b32', hs, h4), valu('v_permlane16_swap_b32', hq, h5),
              valu('v_add_f32', hs, hs, h4), valu('v_add_f32', hq, hq, h5)]
        z += self.rstats(hs, hq, V(SR), ht) + [valu('v_mov_b32', V(SR + 1), sTAG), bstore(V(SR, 2), h3, SWS, 0, 0, 'sc1')]
        self.srow, self.stats = (srow, z) if shadow else ([], [])
        if not shadow:
            p += z
        p += self.stamp('stats')
        p.append(Group([wait(vm=self.stage_ops[0]), barrier('x / w1 stage 0 is in LDS; phase 1a (ffn GEMM) starts')]))
        p += self.stamp('B0') + [raw("s_nop 0", states=1)] * self.opt['shift']

        def pack(rd, k0, dst):
            o_ = [ds_read('ds_read_b64_tr_b16', V(PK + 4 * (k0 + k) + 2 * h, 2), *rd(k, h)) for k in range(3) for h in range(2)]
            sts = [bstore(V(PK + 4 * (k0 + k), 4), dst[k][0], SWS, dst[k][1], 0, FL[self.opt['flS']]) for k in range(3)]
            return o_, sts
        self.packA = pack(lambda k, h: (rdA[k], 5120 * h), 0, list(zip(stA, soA)))
        if self.opt['padw']:
            self.packA[1].append(bstore(V(PK + 8, 4), stA[2], SWS, S(93), 64, FL[self.opt['flS']]))
        self.packB = pack(lambda k, h: (rdB[0], 1024 * k + 512 * h), 3, list(zip(stB, sDst)))
        self.f2_pub = [valu('v_add_u32', vFA, F2 - F1, vFA)]
        self.ones = [valu('v_mov_b32', V(220 + r), 0x3f803f80) for r in range(4)] + \
            [ds_write('ds_write_b128', vHw, V(220, 4), HALO)]
        return p

    @functools.lru_cache(None)
    def x_reads(self, s):
        i, h = s >> 1, s & 1
        return [ds_read('ds_read_b128', X(s, p), vXr[h], (i & 3) * 4096 + p * 1024) for p in range(2)]

    @functools.lru_cache(None)
    def w1_reads(self, s, n):
        i, h = s >> 1, s & 1
        return [ds_read('ds_read_b64_tr_b16', V(WF + 4 * n + 2 * e_, 2), vW1r[n], (i & 3) * 12288 + (32 * h + 4 * e_) * 192)
                for e_ in range(2)]

    @functools.lru_cache(None)
    def wq_read(self, g, n):
        k, sg = g >> 2, g & 3
        return ds_read('ds_read_b128', V(WF + 4 * n, 4), vWr[n], sg * 16384 + ((10 + k) & 3) * 4096)

    @functools.lru_cache(None)
    def halo_read(self, g):
        s = g % 20
        return ds_read('ds_read_b128', V(WF + 16, 4), vHr[s & 1], HALO + (s >> 1) * 2048)

    def late_addresses(self):
        t = [V(T + n) for n in range(24)]
        vQ, vU, vR, vCC = t[0], t[1], t[2], t[3]
        p = [valu('v_lshrrev_b32', vQ, 4, vL), valu('v_and_b32', vU, 15, vL),
             valu('v_bfe_u32', vR, vL, 2, 2), valu('v_and_b32', vCC, 3, vL),
             salu('s_mul_i32', sT[1], sW, 16 * KVR), salu('s_add_u32', sT[1], sT[1], KV),
             valu('v_mul_u32_u24', t[4], KVR, vU),
             valu('v_add_u32', t[4], sT[1], t[4]),
             valu('v_add_u32', vK4, 72, t[4]),
             valu('v_lshl_add_u32', t[5], vQ, 3, t[4]),
             valu('v_add_u32', vKr, 40, t[5]),
             valu('v_add_u32', vQr, 8 * KVR, t[5]),
             valu('v_add_u32', t[6], 8 * KVR + 32, t[4]),
             valu('v_mov_b32', t[7], ZERO),
             valu('v_cmp_eq_u32', S(92, 2), 0, vQ),
             valu('v_cndmask_b32', vQ4, t[7], t[6], S(92, 2)),
             valu('v_lshl_add_u32', t[6], vQ, 2, vR),
             valu('v_mul_u32_u24', t[6], KVR, t[6]),
             valu('v_add_u32', t[6], sT[1], t[6]),
             valu('v_add_u32', vV4, 112, t[6]),
             valu('v_lshl_add_u32', t[6], vCC, 3, t[6]),
             valu('v_add_u32', vVr, 80, t[6]),
             valu('v_mul_u32_u24', t[6], 40, vQ),
             valu('v_add_u32', t[6], 32, t[6]),
             valu('v_min_u32', t[6], 120, t[6]),
             valu('v_lshlrev_b32', t[7], 3, vQ),
             valu('v_and_b32', t[8], 1, vU),
             valu('v_mul_u32_u24', t[8], KVC, t[8]),
             valu('v_lshrrev_b32', t[9], 1, vU),
             valu('v_mul_u32_u24', t[9], KVR, t[9]),
             valu('v_add_u32', t[8], t[8], t[9]),
             valu('v_add_u32', t[8], KV, t[8])]
        for i in range(4):
            p += [salu('s_add_u32', sT[2], sW, i), salu('s_and_b32', sT[2], sT[2], 3),
                  salu('s_mul_i32', sT[3], sT[2], 40),
                  salu('s_cmp_eq_u32', sT[2], 3), salu('s_cselect_b64', S(92, 2), -1, 0),
                  valu('v_add_u32', t[9], sT[3], t[7]),
                  valu('v_cndmask_b32', t[9], t[9], t[6], S(92, 2))]
            if i == 0:
                p.append(valu('v_add_u32', vHKw, t[8], t[9]))
            p += [valu('v_add_u32', t[9], t[4], t[9]), valu('v_add_u32', vKVw[i], 8 * KVR, t[9])]
        p += [salu('s_lshl_b32', sT[2], sW, 6), salu('s_add_u32', sT[2], sT[2], CSQ),
              valu('v_lshl_add_u32', vCQw, vQ, 4, sT[2]),
              valu('v_lshlrev_b32', vCQr, 4, vQ),
              valu('v_lshlrev_b32', t[4], 4, vU), valu('v_lshl_add_u32', t[4], vQ, 10, t[4]), valu('v_mov_b32', t[5], OOB),
              valu('v_cmp_gt_u32', S(92, 2), 32, vL), Skip(1), valu('v_cndmask_b32', vOB, t[5], t[4], S(92, 2))]
        return p

    def flag_addr(self, base):
        t0, t1 = V(T + 22), V(T + 23)
        return [salu('s_lshl_b32', sT[1], sB, 1), salu('s_lshr_b32', sT[2], sW, 1), salu('s_add_u32', sT[1], sT[1], sT[2]),
                salu('s_lshl_b32', sT[1], sT[1], 7), salu('s_and_b32', sT[2], sW, 1), salu('s_lshl1_add_u32', sT[2], sJ, sT[2]),
                salu('s_lshl2_add_u32', sT[1], sT[2], sT[1]), salu('s_add_u32', sT[1], sT[1], base),
                valu('v_mov_b32', t0, sT[1]), valu('v_mov_b32', t1, OOB),
                valu('v_cmp_eq_u32', S(92, 2), 0, vL), valu('v_cndmask_b32', vFA, t1, t0, S(92, 2))]

    def poll_addr(self, idx, base, shift, t0, mask):
        return [salu('s_lshl_b32', 's96', idx, shift), salu('s_add_u32', 's96', 's96', base),
                salu('s_cmp_eq_u32', sW, 0), salu('s_cselect_b32', 's96', 's96', OOB),
                valu('v_and_b32', t0, mask, vL), valu('v_lshl_add_u32', vPA, t0, 2, 's96')]

    def poll_all(self, base):
        return [salu('s_cmp_eq_u32', sW, 0), salu('s_cselect_b32', 's96', 0, 0x70000000),
                salu('s_add_u32', 's96', 's96', base), valu('v_lshl_add_u32', vPA, vL, self.opt['fstride'], 's96')]

    def res_addr(self, r, dst, t6, t7, t8):
        return [valu('v_add_u32', t6, 256 * r, 'v0')] + self.divc(t7, t6, 20, 1279) + [
            valu('v_mul_u32_u24', t8, 20, t7), valu('v_sub_u32', t8, t6, t8),
            valu('v_mul_u32_u24', dst, 1280, t7), valu('v_lshl_add_u32', dst, t8, 3, dst)]

    def lanes0(self, ins):
        return Group([salu('s_mov_b64', 'exec', sROW0), ins, salu('s_mov_b64', 'exec', -1)])

    def ff_pre(self):
        t = [V(T + n) for n in range(24)]
        p = [valu('v_lshrrev_b32', t[0], 4, vL), salu('s_lshl_b32', sT[1], sROT, 7), salu('s_add_u32', sT[1], sT[1], CSF),
             valu('v_lshl_add_u32', t[0], t[0], 4, sT[1]),
             self.lanes0(ds_write('ds_write_b128', t[0], V(CS, 4), 0)),
             self.lanes0(ds_write('ds_write_b128', t[0], V(CS + 4, 4), 64))]
        for src, mean, rstd in ((RS, vMEAN[0], vRSTD[0]), (RS + 2, vMEAN[1], vRSTD[1]), (RS + 4, vMEANH, vRSTDH)):
            p += [valu('v_and_b32', rstd, 0xffff0000, V(src)), valu('v_lshlrev_b32', mean, 16, V(src)),
                  valu('v_rcp_f32', rstd, rstd)]
        return p

    def ff_post(self):
        t = [V(T + n) for n in range(24)]
        p = [valu('v_lshrrev_b32', V(RS), 4, vL), valu('v_lshlrev_b32', V(RS), 4, V(RS))]
        for m in range(3):
            p += [salu('s_add_u32', sT[1], sROT, m), salu('s_cmp_ge_u32', sT[1], 3), salu('s_cselect_b32', sT[2], 3, 0),
                  salu('s_sub_u32', sT[1], sT[1], sT[2]), salu('s_lshl_b32', sT[1], sT[1], 7), salu('s_add_u32', sT[1], sT[1], CSF),
                  valu('v_add_u32', V(RS + 1), sT[1], V(RS)),
                  ds_read('ds_read_b128', V(T + 8 * m, 4), V(RS + 1), 0),
                  ds_read('ds_read_b128', V(T + 8 * m + 4, 4), V(RS + 1), 64)]
        p.append(Skip(2))
        self.h_stores = []
        for m in range(3):
            for q in range(2):
                dst = SS + 4 * ((2 * m + q) & 1)
                for n in (2 * m, 2 * m + 1):
                    a = FACC + 8 * n + 4 * q
                    for r in range(4):
                        p.append(valu('v_fma_f32', V(a + r), '-' + vMEAN[q], V(T + 4 * n + r), V(a + r)))
                    for r in range(4):
                        p.append(valu('v_mul_f32', V(a + r), V(a + r), vRSTD[q]))
                    for hh in range(2):
                        p.append(valu('v_cvt_pk_bf16_f32', V(dst + 2 * (n & 1) + hh), V(a + 2 * hh), V(a + 2 * hh + 1)))
                for r in range(4):
                    p.append(valu('v_pk_max_i16', V(dst + r), V(dst + r), 0))
                s_ = bstore(V(dst, 4), vL16, SWS, sHS[m], q * 1024, FL[self.opt['flS']])
                self.h_stores.append(s_)
                p.append(s_)
        return p

    def qkv_pre(self, hd, packed):
        a = ACC[hd]
        t = [V(T + n) for n in range(24)]
        p = [self.lanes0(ds_write('ds_write_b128', vCQw, V(a + 32, 4), hd * 256))]
        self.qkv_pub = [i for g in p for i in (g if isinstance(g, Group) else [g]) if i.kind == 'dsw']
        q = []
        for cls in range(2):
            q.append(valu('v_mul_f32', t[18 + cls], vMEAN[cls], vRSTD[cls]))
        for n in range(4):
            for cls in range(2):
                b = a + 8 * n + 4 * cls
                if packed:
                    for r in (0, 2):
                        q.append(I(f"v_pk_mul_f32 {V(b + r, 2)}, {V(b + r, 2)}, {V(30, 2)} op_sel:[0,{cls}] op_sel_hi:[1,{cls}]",
                                   'valu', regs(V(b + r, 2)) + regs(V(30, 2)), regs(V(b + r, 2))))
                else:
                    for r in range(4):
                        q.append(valu('v_mul_f32', V(b + r), V(b + r), vRSTD[cls]))
        return p, q

    def qkv_post(self, hd, packed):
        a = ACC[hd]
        t = [V(T + n) for n in range(24)]
        p = []
        for n in range(4):
            p += [salu('s_add_u32', sT[1], sW, n), salu('s_and_b32', sT[1], sT[1], 3), salu('s_lshl_b32', sT[1], sT[1], 6),
                  salu('s_add_u32', sT[1], sT[1], CSQ + 256 * hd), valu('v_add_u32', t[20], sT[1], vCQr),
                  ds_read('ds_read_b128', V(T + 4 * n, 4), t[20], 0)]
        p.append(Skip(2))
        p += [valu('v_fma_f32', V(a + 32 + r), '-' + vMEANH, V(T + r), V(a + 32 + r)) for r in range(4)]
        p += [valu('v_mul_f32', V(a + 32 + r), V(a + 32 + r), vRSTDH) for r in range(4)]
        p += [valu('v_cvt_pk_bf16_f32', t[16], V(a + 32), V(a + 33)), valu('v_cvt_pk_bf16_f32', t[17], V(a + 34), V(a + 35))]
        self.kv_writes = [ds_write('ds_write_b64', vHKw, V(T + 16, 2), hd * KVH)]
        p += self.kv_writes
        for n in range(4):
            for cls in range(2):
                b = a + 8 * n + 4 * cls
                if packed:
                    for r in (0, 2):
                        p.append(I(f"v_pk_fma_f32 {V(b + r, 2)}, {V(T + 4 * n + r, 2)}, {V(T + 18, 2)}, {V(b + r, 2)} "
                                   f"op_sel:[0,{cls},0] op_sel_hi:[1,{cls},1] neg_lo:[1,0,0] neg_hi:[1,0,0]", 'valu',
                                   regs(V(b + r, 2)) + regs(V(T + 4 * n + r, 2)) + regs(V(T + 18, 2)), regs(V(b + r, 2))))
                else:
                    for r in range(4):
                        p.append(valu('v_fma_f32', V(b + r), '-' + t[18 + cls], V(T + 4 * n + r), V(b + r)))
                p += [valu('v_cvt_pk_bf16_f32', V(b), V(b), V(b + 1)), valu('v_cvt_pk_bf16_f32', V(b + 1), V(b + 2), V(b + 3))]
                w_ = ds_write('ds_write_b64', vKVw[n], V(b, 2), hd * KVH + cls * KVC)
                self.kv_writes.append(w_)
                p.append(w_)
        return p

    def attention(self, hd):
        a = ACC[hd]
        streams = []
        for cls in range(2):
            off = hd * KVH + cls * KVC
            b = a + 16 * cls
            u = T + 12 * cls
            Kf = [V(b, 4), V(b + 4, 4)]
            Qf, Sf = V(b + 8, 4), [V(u, 4), V(u + 4, 4)]
            Vf = Kf
            Pf = Qf
            O0, O1, L = V(u, 4), V(u + 4, 4), V(b + 12, 4)
            m, m2 = V(u + 8), V(u + 9)
            p = [ds_read('ds_read_b64', V(b + 8, 2), vQr, off)]
            p.append(I(f"ds_read_b64 {V(b + 10, 2)}, {V(u + 10)}", 'dsr', [V(u + 10)], regs(V(b + 10, 2))))
            p.insert(0, valu('v_cndmask_b32', V(u + 10), vQ4, V(u + 11), sLO16))
            for k in range(2):
                p += [ds_read('ds_read_b64', V(b + 4 * k, 2), vKr, off + k * 8 * KVR),
                      ds_read('ds_read_b64', V(b + 4 * k + 2, 2), vK4, off + k * 8 * KVR)]
            p.append(Skip(2))
            p += [mfma(Sf[k], Kf[k], Qf, V(MASK + 4 * k, 4)) for k in range(2)]
            for k in range(2):
                p += [ds_read('ds_read_b64_tr_b16', V(b + 2 * k, 2), vVr, off + k * 8 * KVR),
                      ds_read('ds_read_b64_tr_b16', V(b + 4 + 2 * k, 2), vV4, off + k * 8 * KVR)]
            p.append(Skip(1))
            p += [valu('v_max3_f32', m, V(u), V(u + 1), V(u + 2)), valu('v_max3_f32', m2, V(u + 3), V(u + 4), V(u + 5)),
                  valu('v_max3_f32', m, m, V(u + 6), V(u + 7)), valu('v_max_f32', m, m, m2)]
            for sw in ('v_permlane16_swap_b32', 'v_permlane32_swap_b32'):
                p += [valu('v_mov_b32', m2, m), valu(sw, m, m2), valu('v_max_f32', m, m, m2)]
            p.append(valu('v_mul_f32', m, sSCL, m))
            p += [valu('v_fma_f32', V(u + r), V(u + r), sSCL, '-' + m) for r in range(8)]
            p += [valu('v_exp_f32', V(u + r), V(u + r)) for r in range(8)]
            p += [valu('v_cvt_pk_bf16_f32', V(b + 8 + r), V(u + 2 * r), V(u + 2 * r + 1)) for r in range(4)]
            p += [mfma(L, aONES, Pf, 0), mfma(O0, Vf[0], Pf, 0), mfma(O1, Vf[1], Pf, 0), Skip(2)]
            p.append(valu('v_rcp_f32', m, V(b + 12)))
            p += [valu('v_mul_f32', V(u + r), V(u + r), m) for r in range(8)]
            for k in range(2):
                for hh in range(2):
                    p.append(valu('v_cvt_pk_bf16_f32', V(self.oreg(cls, k) + 2 * hd + hh), V(u + 4 * k + 2 * hh), V(u + 4 * k + 2 * hh + 1)))
            streams.append(p)
        pre = []
        for cls in range(2):
            pre.append(valu('v_add_u32', V(T + 12 * cls + 11), hd * KVH + cls * KVC, vQ4))
        out = pre
        for i, j in zip(*streams):
            out += [i] if isinstance(i, Skip) else [i, j]
        return out

    def oreg(self, cls, k):
        return 112 + 8 * cls + 4 * k

    def phase1(self):
        o = self.opt
        main, pos = [], {}
        for s in range(20):
            for n in range(6):
                for q in ((1, 0) if o['snake'] and n & 1 else (0, 1)):
                    d = V(FACC + 8 * n + 4 * q, 4)
                    main.append(mfma(d, V(WF + 4 * n, 4), X(s, q), d if s else 0))
                if n < 2:
                    d = V(CS + 4 * n, 4)
                    main.append(mfma(d, V(WF + 4 * n, 4), aONES, d if s else 0))
                pos['a', s, n] = len(main) - 1
        for g in range(40):
            hd, s = divmod(g, 20)
            a = ACC[hd]
            for n in range(4):
                for q in ((1, 0) if o['snake'] and n & 1 else (0, 1)):
                    d = V(a + 8 * n + 4 * q, 4)
                    main.append(mfma(d, V(WF + 4 * n, 4), X(s, q), d if s else 0))
                if n == 0:
                    d = V(a + 32, 4)
                    main.append(mfma(d, V(WF, 4), V(WF + 16, 4), d if s else 0))
                pos['b', g, n] = len(main) - 1
        w = Weave(main)
        first_b = pos['a', 19, 5] + 1
        logical = []
        for s in range(20):
            logical += self.x_reads(s) + [r for n in range(6) for r in self.w1_reads(s, n)] + main[14 * s:14 * s + 14]
        for g in range(40):
            logical += [self.wq_read(g, n) for n in range(4)] + [self.halo_read(g)] + main[first_b + 9 * g:first_b + 9 * g + 9]
        annotate(logical)
        annotate(self.packA[0] + self.packA[1])
        annotate(self.packB[0] + self.packB[1])
        stepb = lambda g: first_b + 9 * g
        bar = {}
        dma = {R: self.stage_dma(R) for R in range(o['npro'], 20)}
        for i in range(10):
            bar[i + 1] = pos['a', 2 * i + 1, 1]
        for k in range(9):
            bar[11 + k] = pos['b', 4 * k + 3, 1]
        rawb = [g_[-1] for g_ in self.rawB]
        extra = {}
        for key, ops in (('packA', self.p0a), ('pub1', self.packA[1]), ('packB', rawb), ('pub2', self.packB[1]),
                         ('halo', self.halo_ops)):
            extra.setdefault(o[key], []).extend(ops)
        checks = {o['chk1']: 'f1', o['chk2']: 'f2', o['chk3']: 'f3'}
        assert len(checks) == 3
        for R, gb in bar.items():
            if R in checks:
                w.at(gb, self.check(checks[R]))
            w.at(gb, self.ring_barrier(R, extra.get(R, ())))
            w.at(gb, *self.stamp(f'B{R}'))
            if R in (o['pub1'], o['pub2']):
                w.at(gb, bstore(vTAG, vFA, SWS, 0, 0, 'sc1'))
            if R in (o['poll1'], o['poll2'], o['poll3']):
                w.at(gb, bload(vPOLL if R == o['poll3'] else V(P4, 4), vPA, SWS, 0, 0, FL[o['flP']]))
        for s in range(20):
            start = bar[(s >> 1) + 1] if s & 1 else 0
            nxt = 14 * (s + 1)
            if s < 19:
                lim = len(main) if s & 1 else bar[(s >> 1) + 1]
                w.stream(self.x_reads(s + 1), max(start, pos['a', s, 0] - 2), nxt - 1)
                for n in range(6):
                    w.stream(self.w1_reads(s + 1, n), max(start, pos['a', s, n]), min(lim, pos['a', s + 1, n] - 4))
            else:
                for n in range(4):
                    w.stream([self.wq_read(0, n)], max(start, pos['a', s, n]), nxt - 1)
                w.stream([self.halo_read(0)], pos['a', s, 4], nxt - 1)
        for g in range(39):
            start = bar[11 + (g >> 2)] if g & 3 == 3 else 0
            lim = bar.get(11 + (g >> 2), len(main)) if g & 3 == 2 else len(main)
            w.stream([self.wq_read(g + 1, 0), self.halo_read(g + 1)], max(start, pos['b', g, 0]), stepb(g + 1) - 1)
            for n in range(1, 4):
                w.stream([self.wq_read(g + 1, n)], max(start, pos['b', g, n]), min(lim, pos['b', g + 1, n] - 3))
        nxt, plan = o['npro'], []
        for R, gb in [(0, 0)] + list(bar.items()):
            lim = min(R + 3, 9 if R < o['chk1'] else 19, nxt + o['catch'] - 1)
            todo = list(range(nxt, lim + 1))
            nxt = max(nxt, lim + 1)
            seq = []
            for r_ in todo:
                pre = self.stage_pre[r_]
                seq += [(x_, pre.get(k, [])) for k, x_ in enumerate(dma[r_])] + [(None, pre[len(dma[r_])])]
            if R == o['haloL']:
                seq += [(Group([x_[-1]]), [Group(x_[:2])] + x_[2:-1]) for x_ in self.halo_loads]
            if R == o['srow'] - 2:
                seq += [(x_, []) for x_ in self.srow]
            if R == o['rawA']:
                seq += [(Group([x_[-1]]), x_[:-1]) for x_ in self.rawA]
            if R == o['rawB']:
                seq += [(Group([x_[-1]]), x_[:-1]) for x_ in self.rawB]
            for name, pk in (('packA', self.packA), ('packB', self.packB)):
                if R == o[name]:
                    w.stream(pk[0], gb + 1, gb + 11)
                    k = min(len(seq), 4 if len(seq) < 10 else 8)
                    seq = seq[:k] + [(x_, []) for x_ in pk[1]] + seq[k:]
            if seq:
                plan.append((seq, gb + (1 if len(seq) > 3 else 13), bar[R + 1]))
        annotate([x for seq, _, _ in plan for g_, pre in seq for x in list(pre) + ([g_] if g_ else [])])
        for seq, a_, b_ in plan:
            self.place_mem(w, seq, a_, b_)
        assert o['rawA'] < o['packA'] and 1 <= o['packA'] < o['pub1'] < o['pub2'] <= 14 and o['rawB'] < o['packB'] < o['pub2'] and o['packB'] <= 9
        assert o['poll1'] < o['chk1'] <= 9 and o['chk1'] < o['poll2'] < o['chk2'] < o['poll3'] < o['chk3'] <= 20
        assert o['haloL'] < o['halo'] <= 8 and o['statL'] <= 8
        if self.stats:
            assert o['srow'] - 2 < o['statC'] < o['pub1']
            w.stream(self.stats, bar[o['statC']] + 1, bar[o['pub1']])
        w.stream(self.f2_pub, bar[o['pub1']] + 1, bar[o['pub1']] + 12)
        w.stream(self.ones, bar[o['halo']] + 1, bar[o['halo'] + 1])
        sl_, sc_, fp_ = self.stat_loads(), self.check_stats(), self.ff_pre()
        annotate(sl_ + sc_ + fp_)
        w.spread(sl_, bar[o['statL']] + 1, bar[o['statL']] + 8)
        w.stream(sc_, bar[10] + 1, first_b)
        tp = V(WF + 20)
        assert o['poll2'] >= 11
        w.stream(fp_ + self.poll_all(F2), first_b + 4, bar[11])
        wl = [x_ for i in range(7) for x_ in self.w_loads(i)]
        w.spread(wl, bar[o['chk2']] + 2, stepb(o['w_end']))
        g = w.stream(self.ff_post(), bar[11] + 1, stepb(o['ff_end']))
        g = w.stream(self.late_addresses() + self.flag_addr(F3), max(g + 1, bar[o['pub2']] + 1), stepb(20) + 3)
        assert stepb(o['f3_step']) > g
        if o['res']:
            rs = [salu('s_mul_i32', 's97', sTB, 64 * 1280), salu('s_mul_i32', 's95', sC, 160), salu('s_add_u32', 's97', 's97', 's95')]
            for r in range(5):
                rs += self.res_addr(r, V(216), V(217), V(218), V(219)) + [bload(A(aRES + 2 * r, 2), V(216), SX, 's97')]
            w.stream(rs, stepb(o['res']) if o['res'] > 0 else bar[-o['res']] + 1, bar[o['chk2']] if o['res'] > 0 else bar[min(2 - o['res'], 11)])
        w.at(stepb(o['f3_step']), Group([wait(vm=self.h_stores), bstore(vTAG, vFA, SWS, 0, 0, 'sc1')]))
        w.stream(self.poll_addr(sTB, F3, 7, tp, 31), max(bar[o['chk2']] + 1, g + 1), bar[o['poll3']])
        if o['chk3'] < 20:
            nA = o['nA_p1b']
            for i in range(nA):
                lo = bar[o['chk3']] + 2 + (stepb(40) - bar[o['chk3']] - 2) * i // nA
                assert lo >= stepb(20 + 2 * i + 2)
                w.spread(self.a_loads(i), lo, bar[o['chk3']] + 2 + (stepb(40) - bar[o['chk3']] - 2) * (i + 1) // nA)
        pre, mul = self.qkv_pre(0, False)
        g = w.stream(pre, stepb(20) + 5)
        g = w.stream(mul[:12], g + 1)
        w.at(g + 1, Group([wait(lgkm=self.qkv_pub), barrier('head 0: column sums are in LDS')]))
        g = w.stream(mul[12:] + self.qkv_post(0, False), g + 1, stepb(o['kv_end']))
        g = w.stream([Skip(3)] + [Group([wait(lgkm=self.kv_writes), barrier('head 0: q, k, v rows are in LDS')])], g)
        w.stream(self.attention(0), g, len(main))
        self.ovf = (w.overflow(0, first_b), w.overflow(first_b, stepb(20)), w.overflow(stepb(20)))
        pro = self.x_reads(0) + [r for n in range(6) for r in self.w1_reads(0, n)]
        return pro + w.flat()

    @staticmethod
    def sprinkle(seq, extra, every, start=0):
        out, n, extra = [], -start, list(extra)
        seq = tie(seq)
        annotate(seq)
        annotate(extra)
        for i in seq:
            out.append(i)
            if isinstance(i, Skip):
                continue
            n += 1
            if extra and n >= every:
                out.append(extra.pop(0))
                n = 0
        return out + extra

    def tail1(self):
        o = self.opt
        p = self.stamp('gemm1')
        pre, mul = self.qkv_pre(1, True)
        late = o['chk3'] == 20
        head = pre + mul + ([self.check('f3')] if late else []) + [Group([wait(lgkm=self.qkv_pub), barrier('head 1: column sums are in LDS')])]
        seq = self.qkv_post(1, True) + [Group([wait(lgkm=self.kv_writes), barrier('head 1: q, k, v rows are in LDS')])] + self.attention(1)
        al = [x_ for i in range(0 if late else o['nA_p1b'], o['nA_att']) for x_ in self.a_loads(i)]
        p += head + self.sprinkle(seq, al, o['att_every']) if late else self.sprinkle(head + seq, al, o['att_every'])
        self.o_stores = [bstore(V(self.oreg(c, 0), 4), vL16, SWS, sOA, c * 1024, 'sc1') for c in range(2)]
        p += self.o_stores
        o0, o1 = self.oreg(0, 1), self.oreg(1, 1)
        p += [valu('v_cndmask_b32', V(o0 + r), V(o1 + r), V(o0 + r), sLO16) for r in range(4)]
        ob = bstore(V(o0, 4), vOB, SWS, sOB, 0, 'sc1')
        p.append(ob)
        self.o_stores.append(ob)
        p += self.flag_addr(F4) + self.poll_addr(sTB, F4, 7, V(T + 1), 31)
        return p + self.stamp('attn')

    def phase2(self):
        o = self.opt
        t = [V(136 + n) for n in range(60)]
        main = []
        tile = lambda n, k: V(P2ACC + 16 * n + 4 * k, 4)
        km = o['kmaj']
        for i in range(16 if km else 15):
            for n in range(5):
                for k in ((3, 2, 1, 0) if o['snake'] and n & 1 else (0, 1, 2, 3)):
                    main.append(mfma(tile(n, k), wslot(i, n), aslot(i, k), tile(n, k) if i else 0))
        if km:
            main += [mfma(tile(n, k), wslot(16, n), aslot(16, k), tile(n, k)) for k in range(4) for n in range(5)]
        else:
            for n in range(5):
                for i in (15, 16):
                    for k in range(4):
                        main.append(mfma(tile(n, k), wslot(i, n), aslot(i, k), tile(n, k)))
        w = Weave(main)
        annotate([x_ for i in range(15) for x_ in self.w_loads(i) + self.a_loads(i) + main[20 * i:20 * i + 20]] +
                 [x_ for i in (15, 16) for x_ in self.w_loads(i) + self.a_loads(i)] + main[300:])
        pre = [salu('s_mul_i32', sT[1], sTB, 64 * 1280), salu('s_mul_i32', sT[2], sC, 160), salu('s_add_u32', sT[3], sT[1], sT[2])]
        vO, vRd = t[12:17], t[17:22]
        for r in range(5):
            pre += self.res_addr(r, vO[r], t[6], t[7], t[8])
            if not o['res']:
                pre.append(bload(A(aRES + 2 * r, 2), vO[r], SX, sT[3], 0, FL[o['flR']]))
            pre += [valu('v_and_b32', t[6], 1, t[7]), valu('v_lshlrev_b32', t[6], 4, t[6]),
                    valu('v_and_b32', vRd[r], 32, t[7]), valu('v_add_u32', t[6], t[6], vRd[r]),
                    valu('v_bfe_u32', vRd[r], t[7], 1, 4), valu('v_add_u32', t[6], t[6], vRd[r]),
                    valu('v_and_b32', t[7], 0x30, t[6]), valu('v_mul_u32_u24', t[6], REDR, t[6]),
                    valu('v_lshl_add_u32', t[6], t[7], 2, t[6]), valu('v_lshl_add_u32', vRd[r], t[8], 4, t[6])]
        vRw = t[10]
        pre += [valu('v_and_b32', t[6], 15, vL), valu('v_mul_u32_u24', t[6], REDR, t[6]), valu('v_lshrrev_b32', t[7], 4, vL),
                valu('v_lshl_add_u32', t[6], t[7], 4, t[6]), salu('s_mul_i32', sT[1], sW, REDW),
                valu('v_add_u32', vRw, sT[1], t[6])]
        for i in range(15):
            w.at(20 * i, *self.stamp(f'S{i}'))
        w.at(20 * o['f4_step'], Group([wait(vm=self.o_stores), bstore(vTAG, vFA, SWS, 0, 0, 'sc1')]))
        w.at(20 * o['poll4'] + 1, bload(vPOLL, vPA, SWS, 0, 0, FL[o['flP']]))
        chk = 20 * o['chk4'] + 19
        w.at(chk, self.check('f4'), barrier('the o rows of this tile have been published'))
        pend = [('W', i) for i in range(7, 17)] + [('A', i) for i in range(o['nA_att'], 17)]
        total = sum(5 if k == 'W' else 4 for k, _ in pend)
        pace, pos_ = (o['ld_end'] - 3) / total, 3.0
        first_use = lambda i: 20 * min(i, 16 if km else 15)
        while pend:
            def earliest(x):
                k, i = x
                if k == 'W':
                    return 20 * (i - 7) + 3
                return max(20 * (i - 9) if i >= 10 else 0, chk + 1 if i >= 12 else 0)
            ok = [x for x in pend if earliest(x) <= pos_ + 2]
            x = min(ok, key=lambda x: (x[1], x[0] == 'A')) if ok else min(pend, key=earliest)
            pend.remove(x)
            pos_ = max(pos_, earliest(x))
            for n, ld in enumerate(self.w_loads(x[1]) if x[0] == 'W' else self.a_loads(x[1])):
                g = int(pos_)
                if x[0] == 'W':
                    g = max(g, 20 * (x[1] - 7) + 4 * n + 3)
                assert g < first_use(x[1]) - 4
                w.at(g, ld)
                left = sum(5 if k == 'W' else 4 for k, _ in pend) + (5 if x[0] == 'W' else 4) - n
                pos_ = max(pos_, g) + max(1.0, min(pace, (o['ld_end'] - g) / left))
        pre += [valu('v_mov_b32', t[6], OOB), valu('v_or_b32', t[7], 's2', 'v0'), valu('v_cmp_ne_u32', S(92, 2), 0, t[7]),
                Skip(1), valu('v_cndmask_b32', t[6], 0, t[6], S(92, 2)), bstore(vTAG, t[6], SWS, 0, 0, 'sc1')]
        w.stream(pre, o['pre2'], 20 * 12)
        X0, p = 160, []
        for r in range(5):
            for k in range(2):
                p.append(valu('v_accvgpr_read_b32', V(X0 + 4 * r + 2 * k + 1), A(aRES + 2 * r + k)))
            for k in range(2):
                p += [valu('v_lshlrev_b32', V(X0 + 4 * r + 2 * k), 16, V(X0 + 4 * r + 2 * k + 1)),
                      valu('v_and_b32', V(X0 + 4 * r + 2 * k + 1), 0xffff0000, V(X0 + 4 * r + 2 * k + 1))]
        w.stream(p, 20 * 12, 20 * 15)
        ws_ = []
        for n in range(5):
            for k in range(4):
                ws_.append(ds_write('ds_write_b128', vRw, V(P2ACC + 16 * n + 4 * k, 4), RED + k * REDT + 64 * n))
        if km:
            ws_ = [ws_[4 * n + k] for k in range(4) for n in range(5)]
            for m in range(15):
                w.at(325 + m, ws_[m])
            ws_ = ws_[15:]
        else:
            for m in range(16):
                w.at(300 + 8 * (m >> 2) + 8 + 2 * (m & 3), ws_[m])
            ws_ = ws_[16:]
        p = w.flat() + self.stamp('gemm2')
        p += ws_ + [Group([wait(all_lgkm=True), barrier('the partial sums of all four waves are in LDS')])] + self.stamp('redbar')
        R0 = 40
        for r in range(5):
            for wv in range(4):
                p.append(ds_read('ds_read_b128', V(R0 + 16 * r + 4 * wv, 4), vRd[r], RED + wv * REDW))
        pk = lambda op, d, a_, b_: I(f"{op} {d}, {a_}, {b_}", 'valu', regs(a_) + regs(b_), regs(d))
        for r in range(5):
            b = R0 + 16 * r
            for k in range(2):
                p.append(pk('v_pk_add_f32', V(b + 2 * k, 2), V(b + 2 * k, 2), V(b + 4 + 2 * k, 2)))
            for k in range(2):
                p.append(pk('v_pk_add_f32', V(b + 8 + 2 * k, 2), V(b + 8 + 2 * k, 2), V(b + 12 + 2 * k, 2)))
            for k in range(2):
                p.append(pk('v_pk_add_f32', V(b + 2 * k, 2), V(b + 2 * k, 2), V(X0 + 4 * r + 2 * k, 2)))
            for k in range(2):
                p.append(pk('v_pk_add_f32', V(b + 2 * k, 2), V(b + 2 * k, 2), V(b + 8 + 2 * k, 2)))
            for k in range(2):
                p.append(valu('v_cvt_pk_bf16_f32', V(b + 4 + k), V(b + 2 * k), V(b + 2 * k + 1)))
            p.append(bstore(V(b + 4, 2), vO[r], SOUT, sT[3], 0, ('', 'sc1', 'nt', 'sc0 sc1')[o['outfl']]))
        return p

    def stamp_out(self):
        if not self.stamps:
            return []
        p = self.stamp('end')
        p += [raw("s_memrealtime s[82:83]", wr=['s82', 's83']), raw("s_waitcnt lgkmcnt(0)"),
              raw(f"v_writelane_b32 {vJUNK}, s82, 63", rd=['s82'], wr=[vJUNK], kind='valu'),
              raw(f"v_writelane_b32 {vJUNK}, s84, 62", rd=['s84'], wr=[vJUNK], kind='valu'),
              salu('s_lshl2_add_u32', sT[1], 's2', sW), salu('s_lshl_b32', sT[1], sT[1], 8), salu('s_add_u32', sT[1], sT[1], STAMP),
              valu('v_lshlrev_b32', V(140), 2, vL), bstore(vJUNK, V(140), SWS, sT[1])]
        if self.opt.get('dbg'):
            p += [raw(f"v_readlane_b32 s82, {vJUNK}, 0", rd=[vJUNK], wr=['s82'], kind='rdlane'),
                  raw(f"v_readlane_b32 s83, {vJUNK}, 61", rd=[vJUNK], wr=['s83'], kind='rdlane'),
                  raw(f"v_readlane_b32 s85, {vJUNK}, 63", rd=[vJUNK], wr=['s85'], kind='rdlane'),
                  valu('v_subrev_u32', V(141), 's82', vJUNK),
                  salu('s_sub_u32', 's85', 's85', 's83'),
                  raw("v_writelane_b32 v141, s85, 12", rd=['s85'], wr=['v141'], kind='valu'),
                  raw("v_writelane_b32 v141, s84, 13", rd=['s84'], wr=['v141'], kind='valu'),
                  salu('s_mov_b32', 's4', 's98'), salu('s_mov_b32', 's5', 's99'), salu('s_mov_b32', 's6', 64),
                  salu('s_lshl2_add_u32', sT[1], 's2', sW),
                  salu('s_cmp_eq_u32', sT[1], self.opt['dbg']), salu('s_cselect_b32', sT[1], 0, 256),
                  bstore(V(141), V(140), SX, sT[1])]
        return p

    def build(self):
        self.stage_ops = {}
        self.stage_pre = {}
        prog = self.startup() + self.phase1() + self.tail1() + self.phase2() + self.stamp_out()
        jit = self.opt.get('jitter', 0)
        if jit:
            import random
            rnd = random.Random(jit)
            out, k = [], 0
            for i in flatten(prog):
                out.append(i)
                if (i.kind == 'barrier' or i.kind == 'vst' or i.kind == 'label' and 'L_ok' in i.text) and rnd.random() < 0.5:
                    k += 1
                    out.append(raw(f"s_lshl2_add_u32 s100, s2, s32\n    s_mul_i32 s100, s100, {rnd.randrange(1 << 20) | 1}\n"
                                   f"    s_bitcmp1_b32 s100, {rnd.randrange(3, 12)}\n    s_cbranch_scc0 L_jit{k}\n"
                                   f"    s_bitcmp1_b32 s100, {rnd.randrange(12, 18)}\n    s_cbranch_scc0 L_jit{k}\n"
                                   f"    s_sleep {rnd.choice((2, 8, 30, 90))}\nL_jit{k}:", wr=['s100']))
            prog = out
        abl = self.opt.get('abl', 0)
        if abl:
            prog = flatten(prog)
            nb, keep = 0, []
            for i in prog:
                nb += i.kind == 'barrier'
                flag = i.kind == 'vst' and 'dwordx4' not in i.text
                drop = (abl & 1 and i.kind == 'dma' and nb >= 2) or (abl & 2 and i.kind == 'vst' and not flag) or \
                       (abl & 4 and i.kind == 'vld' and nb >= 2 and 'dwordx4' in i.text) or \
                       (abl & 8 and i.kind == 'mfma') or (abl & 16 and i.kind == 'dsr') or \
                       (abl & 64 and (i.kind == 'mfma' and 'v[56:59], v[' in i.text.split('], ', 2)[-1] + ' ' and 'v[40:43], v[56:59]' in i.text
                                      or i.kind == 'dsr' and i.rd[0] in ('v17', 'v18'))) or \
                       (abl & 128 and i.kind == 'mfma' and 'a[240:243]' in i.text and nb < 12) or \
                       (abl & 256 and i.kind in ('valu', 'trans') and 11 <= nb <= 21 and i.text.split()[0] in (
                           'v_fma_f32', 'v_mul_f32', 'v_cvt_pk_bf16_f32', 'v_pk_max_i16', 'v_exp_f32', 'v_max3_f32')) or \
                       (abl & 512 and i.kind == 'mfma' and nb >= 24) or (abl & 1024 and i.kind == 'mfma' and 11 <= nb <= 21)
                if not drop:
                    i.meta.pop('exp', None)
                    keep.append(i)
            prog = keep
        prog = finalize(prog, not abl, self.opt['age'])
        self.prog = prog
        body = "\n".join(("" if i.kind == 'label' else "    ") + i.text for i in prog)
        return f"""; Fused LayerNorm + sliding-window attention + ReLU FFN + residual; 256 co-resident workgroups, one per CU.
; Phase 1b: q, k, v of two heads for the same tokens plus a 14-row halo, banded attention on the matrix cores.
; Hand-offs between workgroups: write-through (sc1) stores, drained, then a flag word holding this launch's tag;
;   consumers read flags and data with sc1 loads. The tag is derived from ws[0], which the launch then replaces.
; @launch grid=(256,1,1) block=(256,1,1) lds={LDS_SIZE}
.amdgcn_target "amdgcn-amd-amdhsa--gfx950"
.text
.globl {NAME}
.p2align 8
.type {NAME},@function
{NAME}:
{body}
L_end:
    s_endpgm
{"".join(self.slow)}L_last:
.section .rodata,"a"
.p2align 6
.amdhsa_kernel {NAME}
  .amdhsa_next_free_vgpr 512
  .amdhsa_next_free_sgpr 102
  .amdhsa_accum_offset 256
  .amdhsa_group_segment_fixed_size 0
  .amdhsa_kernarg_size 72
  .amdhsa_user_sgpr_count 2
  .amdhsa_user_sgpr_kernarg_segment_ptr 1
  .amdhsa_system_sgpr_workgroup_id_x 1
.end_amdhsa_kernel
"""


if __name__ == "__main__":
    out = sys.argv[1]
    opts = dict(kv.split('=') for kv in sys.argv[2:])
    opts = {k: int(v) for k, v in opts.items()}
    g = Gen(stamps=opts.pop('stamps', 0), **opts)
    open(out, "w").write(g.build())
    print(stats(g.prog), g.ovf)
```

```python
import functools
import struct
import sys
from fw import *

NAME = "parallel_sum__sliding_local_dilated__dense_activation_relu__prompt_kernel"

F1, F2, F3, F4 = 0x1000, 0x1400, 0x1800, 0x2800
ST = 0x3800
WQ = 0x10000
WQJ = 163840
W2P = 0x290000
W2C = 348160
ACT = 0x540000
ACTB = 278528
STAMP = 0xE00000
WS_SIZE = 0x1000000
OOB = 0x7ffffff0

HALO = 0
XR = 20480
W1R = 86016
P0A = 135168
P0B = 147456
CSF = 159744
CSQ = CSF + 512
ZERO = CSF + 1024
DUMMY = CSF + 2048
KV = W1R
KVR, KVC, KVH = 136, 9792, 19584
RED, REDR, REDT, REDW = 0, 336, 5440, 21760
LDS_SIZE = 163840

SX, SWQKV, SWO, SW1, SW2, SOUT, SWS = (S(n, 4) for n in (4, 8, 12, 16, 20, 24, 28))
sW, sB, sJ, sTB, sC, sTAG = (S(n) for n in range(32, 38))
sXb, sXl, sW1, sW1l, sWQ, sAP = (S(n) for n in range(38, 44))
sHS = [S(44), S(45), S(46)]
sOA, sOB, sAh, sAo, sAb, sWh, sWo, sWb = (S(n) for n in range(47, 55))
sT = [S(n) for n in range(55, 68)]
sROT, sCNT = S(68), S(69)
sROW0 = S(70, 2)
sU1, sU2, sU3 = S(72, 2), S(74, 2), S(76, 2)
sSCL = S(78)
sCMP = S(81)
sLO16 = S(0, 2)
sLA, sLW = S(79), S(80)
sKP, sXs, sW1b, sG, sWQb, sR, sR2 = (S(n) for n in range(85, 92))
STAMP0 = 82

vL, vL16, vL16b = V(1), V(2), V(3)
vXa = [V(4), V(5), V(28), V(29)]
vXr = [V(6), V(7)]
vW1a = [V(8), V(9), V(10)]
vW1r = [V(n) for n in range(11, 17)]
vHr = [V(17), V(18)]
vWr = [V(n) for n in range(19, 23)]
vPOLL, vPA, vFA, vJUNK, vTAG = V(23), V(24), V(25), V(26), V(27)
vMEAN = [V(28), V(29)]
vRSTD = [V(30), V(31)]
vKVw = [V(n) for n in range(8, 12)]
vHKw, vKr, vK4, vVr, vV4 = V(12), V(13), V(14), V(15), V(16)
vQr, vQ4, vCQr, vCQw = V(4), V(5), V(6), V(7)
MASK = 32
WF = 40
FACC, RS, SS, CS = 64, 112, 120, 128
vMEANH, vRSTDH, vOB = V(61), V(62), V(63)
vSA, vSH = V(126), V(127)
ACC = [136, 64]
OKEEP = 128
T = 172
WSLOT = [A(160 + 20 * i, 1) for i in range(4)]
aONES = A(240, 4)
aRES = 244
P2ACC = 40
P4 = 248


def f2u(x):
    return struct.unpack('<I', struct.pack('<f', x))[0]


def X(s, p):
    return A(8 * s + 4 * p, 4)


def wslot(i, n):
    i %= 7
    return A(160 + 20 * i + 4 * n, 4) if i < 4 else V(196 + 20 * (i - 4) + 4 * n, 4)


def aslot(i, t):
    return A(16 * (i % 10) + 4 * t, 4)


LIGHT = ('start', 'B0', 'B5', 'B10', 'B15', 'gemm1', 'attn', 'S5', 'S11', 'gemm2', 'end')


FL = ('', 'nt', 'sc1', 'sc0 sc1', 'sc0 sc1 nt', 'sc1 nt')


class Gen:
    def __init__(self, stamps=False, **opt):
        self.stamps = stamps
        self.nstamp = 0
        self.stamp_names = []
        self.slow = []
        self.opt = dict(rot=4, rot2=0, npro=2, catch=2, pro_every=99, rawA=-1, haloL=1, packA=1, pub1=3, halo=4, statL=7, srow=1, statC=1, poll1=7, chk1=8,
                        rawB=3, packB=7, pub2=10, poll2=14, chk2=16, w_end=37, ff_end=13, f3_step=21, poll3=18, chk3=19,
                        kv_end=30, pre2=45, snake=1, kmaj=1, touch=1, shift=0, defer=2, stat_end=0, zin=0, stat_at=0, var2=2, pfh=0, map1=0, map2=0, res=-9, flP=2, age=6, tlb=0, touch2=0, fstride=4, padw=1, flR=0, flH=0, fast=4, pro_start=0, flA=1, flB=0, flX=0, flS=2, outfl=0, nA_p1b=2, nA_att=9, att_every=8, ld_end=300, f4_step=3, poll4=7, chk4=9)
        self.opt.update(opt)

    def stamp(self, name):
        if not self.stamps or (self.stamps == 1 and name not in LIGHT):
            return []
        k = self.nstamp
        assert k < 61
        self.nstamp += 1
        self.stamp_names.append(name)
        rt = self.stamps == 1
        return [Group([raw("s_memtime s[82:83]", wr=['s82', 's83'])] +
                      ([raw("s_memrealtime s[100:101]", wr=['s100', 's101'])] if rt else []) +
                      [raw("s_waitcnt lgkmcnt(0)", drains_lgkm=True),
                       raw(f"v_writelane_b32 {vJUNK}, s82, {k}", rd=['s82'], kind='salu')] +
                      ([raw(f"v_writelane_b32 {vJUNK}, s100, {32 + k}", rd=['s100'], kind='salu')] if rt else []))]

    def check(self, name):
        if name in ('f1', 'f2'):
            dst = V(P4, 4)
            test = [valu('v_xor_b32', V(P4 + r), sCMP, V(P4 + r)) for r in range(4)]
            test += [valu('v_or3_b32', V(P4), V(P4), V(P4 + 1), V(P4 + 2)), valu('v_or_b32', V(P4), V(P4), V(P4 + 3)),
                     valu('v_cmp_ne_u32', 'vcc', 0, V(P4))]
        else:
            dst, test = vPOLL, [valu('v_cmp_ne_u32', 'vcc', sCMP, vPOLL)]
        body = "\n".join("    " + i.text for i in test)
        self.slow.append(f"""L_slow_{name}:
{f"    s_add_u32 s84, s84, {1 << (4 * len(self.slow))}{chr(10)}" if self.stamps else ""}    s_mov_b32 {sCNT}, 0x8000
L_spin_{name}:
    {bload(dst, vPA, SWS, 0, 0, FL[self.opt['flP']]).text}
    s_waitcnt vmcnt(0)
{body}
    s_sub_u32 {sCNT}, {sCNT}, 1
    s_cbranch_scc1 L_ok_{name}
    s_cbranch_vccnz L_spin_{name}
    s_branch L_ok_{name}
""")
        return Group(test + [raw(f"s_cbranch_vccnz L_slow_{name}", rd=['vcc'], kind='branch'),
                             raw(f"L_ok_{name}:", kind='label', states=0)])

    def divc(self, dst, src, d, maxv):
        for sh in range(8, 24):
            m = -(-(1 << sh) // d)
            if m * maxv < (1 << 32) and m < (1 << 24) and all((v * m) >> sh == v // d for v in range(maxv + 1)):
                return [valu('v_mul_u32_u24', dst, m, src), valu('v_lshrrev_b32', dst, sh, dst)]
        raise ValueError

    def rstats(self, vs, vq, dst, t):
        inv = f2u(1.0 / 640.0)
        return [valu('v_mul_f32', vs, inv, vs),
                valu('v_mul_f32', t, inv, vq),
                valu('v_fma_f32', t, '-' + vs, vs, t),
                valu('v_max_f32', t, 0, t),
                valu('v_cvt_pk_bf16_f32', t, t, t),
                valu('v_lshlrev_b32', t, 16, t),
                valu('v_add_f32', t, f2u(1e-5), t),
                valu('v_cvt_pk_bf16_f32', t, t, t),
                valu('v_lshlrev_b32', t, 16, t),
                valu('v_sqrt_f32', t, t),
                valu('v_cvt_pk_bf16_f32', dst, vs, t)]

    def stat_loads(self):
        return [bload(V(RS, 4), vSA, SWS, 0, 0, 'sc1'), bload(V(RS + 4, 2), vSH, SWS, 0, 0, 'sc1')]

    def check_stats(self):
        t = V(RS + 6)
        test = [valu('v_xor_b32', t, vTAG, V(RS + 1)), valu('v_xor_b32', V(RS + 7), vTAG, V(RS + 3)),
                valu('v_xor_b32', V(RS + 5), vTAG, V(RS + 5)), valu('v_or3_b32', t, t, V(RS + 7), V(RS + 5)),
                valu('v_cmp_ne_u32', 'vcc', 0, t)]
        body = "\n".join("    " + i.text for i in self.stat_loads()) + "\n    s_waitcnt vmcnt(0)\n" + \
            "\n".join("    " + i.text for i in test)
        self.slow.append(f"""L_slow_st:
{f"    s_add_u32 s84, s84, {1 << (4 * len(self.slow))}{chr(10)}" if self.stamps else ""}    s_mov_b32 {sCNT}, 0x8000
L_spin_st:
{body}
    s_sub_u32 {sCNT}, {sCNT}, 1
    s_cbranch_scc1 L_ok_st
    s_cbranch_vccnz L_spin_st
    s_branch L_ok_st
""")
        return test[:-1] + [Group([test[-1], raw("s_cbranch_vccnz L_slow_st", rd=['vcc'], kind='branch'),
                                   raw("L_ok_st:", kind='label', states=0)])]

    def stage_dma(self, R):
        slot, out = R & 3, []
        if R < 10:
            for k in range(4):
                out.append(Group([bdma(vXa[k], SX, sXs, k * 1024, FL[self.opt['flX']])]))
            for m in range(3):
                out.append(Group([bdma(vW1a[m], SW1, sW1, m * 1024, FL[self.opt['flX']])]))
            self.stage_pre[R] = {0: [salu('s_add_u32', 'm0', sXl, slot * 4096)],
                                 4: [salu('s_add_u32', 'm0', sW1l, slot * 12288)],
                                 7: [salu('s_add_u32', sKP, sKP, 1),
                                     Group([salu('s_cmp_eq_u32', sKP, 10), salu('s_cselect_b32', sKP, 0, sKP)]),
                                     salu('s_lshl_b32', sXs, sKP, 7), salu('s_add_u32', sXs, sXs, sXb),
                                     salu('s_mul_i32', sW1, sKP, 64 * 3072), salu('s_add_u32', sW1, sW1, sW1b)] if R < 9 else []}
        else:
            for m in range(4):
                out.append(Group([bdma(vL16, SWS, sWQ, m * 1024, 'sc1')]))
            self.stage_pre[R] = {0: [salu('s_add_u32', 'm0', sXl, slot * 4096)],
                                 4: [salu('s_add_u32', sG, sG, 4),
                                     Group([salu('s_cmp_ge_u32', sG, 20), salu('s_cselect_b32', sWQ, 20, 0)]),
                                     salu('s_sub_u32', sG, sG, sWQ), salu('s_lshl_b32', sWQ, sG, 12),
                                     salu('s_add_u32', sWQ, sWQ, sWQb)] +
                                    ([salu('s_add_u32', sWQ, sWQ, 81920)] if R >= 14 else []) if R < 19 else []}
        self.stage_ops[R] = [i for g in out for i in g if i.kind == 'dma']
        return out

    def inline_stage(self, R):
        out, pre = self.stage_dma(R), self.stage_pre[R]
        for k, ins in pre.items():
            ins = flatten(ins)
            if k < len(out):
                out[k][:0] = ins
            else:
                out[-1].extend(ins)
        return out

    def place_mem(self, w, seq, start, end):
        n = sum(1 for g, _ in seq if g)
        first = start + len(seq[0][1])
        last = end - (min(len(seq[-1][1]), 3) if seq[-1][0] is None else 0) - 1
        prev, k, carry = start - 1, 0, []
        for g, pre in seq + [(None, None)]:
            if pre is not None:
                carry += pre
            if g is None and pre is not None:
                continue
            if g is not None:
                lo = min(max(prev + 1, first + (last - first) * k // n), end - 1)
                hi = min(max(lo + 1, first + (last - first) * (k + 1) // n - 1), end)
                at = min(range(lo, hi), key=lambda x: (max(gcost(w.v[x] + vcost(g), w.s[x] + scost(g)) - w.cap, 0), x))
                k += 1
            else:
                at = end
            room = at - prev - 1
            if room <= 0:
                if g is not None:
                    w.at(at, Group(flatten(carry) + flatten([g])))
                elif carry:
                    w.at(prev, Group(flatten(carry)))
            else:
                for j, c in enumerate(carry):
                    w.at(prev + 1 + (j if len(carry) <= room else j * room // len(carry)), c)
                if g is not None:
                    w.at(at, g)
            carry, prev = [], at

    def ring_barrier(self, R, extra_vm=()):
        what = f"x / w1 stage {R}" if R < 10 else f"packed wqkv stage {R - 10}"
        return Group([wait(vm=self.stage_ops[R] + list(extra_vm), all_lgkm=True),
                      barrier(f"{what} is in LDS, the slot of the stage before it is free")])

    def p2_steps(self):
        return [(sAh, sWh, i) for i in range(12)] + [(sAo, sWo, i) for i in range(4)] + [(sAb, sWb, 0)]

    def step_base(self, dst, base, k, stride, i):
        m = self.opt['rot2']
        if i == 16 or not m or (m == 12 and i >= 12):
            return [salu('s_add_u32', dst, base, k * stride)]
        if m in (2, 4):
            return [salu('s_add_u32', dst, sR2, k & (m - 1)), salu('s_and_b32', dst, dst, m - 1), salu('s_mul_i32', dst, dst, stride),
                    salu('s_add_u32', dst, dst, base)] + ([salu('s_add_u32', dst, dst, (k & ~(m - 1)) * stride)] if k >= m else [])
        return [salu('s_cmp_ge_u32', sR2, 12 - k), salu('s_cselect_b32', dst, (k - 12) & 0xffffffff, k),
                salu('s_add_u32', dst, dst, sR2), salu('s_mul_i32', dst, dst, stride), salu('s_add_u32', dst, dst, base)]

    @functools.lru_cache(None)
    def w_loads(self, i):
        _, sw, k = self.p2_steps()[i]
        out = []
        for n in range(5):
            g = [bload(wslot(i, n), vL16 if n < 4 else vL16b, SWS, sLW, (n & 3) * 1024, 'sc1')]
            if n == 0:
                g[:0] = self.step_base(sLW, sw, k, 5120, i)
            out.append(Group(g))
        return out

    @functools.lru_cache(None)
    def a_loads(self, i):
        sa, _, k = self.p2_steps()[i]
        out = []
        for t in range(4):
            g = [bload(aslot(i, t), vL16, SWS, sLA, t * 1024, 'sc1')]
            if t == 0:
                g[:0] = self.step_base(sLA, sa, k, 4096, i)
            out.append(Group(g))
        return out

    def startup(self):
        t = [V(n) for n in range(136, 256)]
        vQ, vZ, vOOB, vU, vHu, vR, vCC, vPs = t[5], t[7], t[14], t[15], t[16], t[17], t[18], t[19]
        rdA, soA = [t[20], t[21], t[22]], [sT[8], sT[9], sT[10]]
        rdB, stB, ldB = [t[23], t[24], t[25]], [t[26], t[27], t[28]], [t[29], t[30], t[31]]
        sW2c, sPB = sT[11], sT[12]
        H, PK = 200, 176
        p = []
        e = p.append
        x = p.extend
        e(salu('s_cmp_ge_u32', 's2', 256))
        e(raw("s_cbranch_scc1 L_end", rd=['scc'], kind='branch'))
        e(salu('s_getpc_b64', S(56, 2)))
        e(raw("L_pc:", kind='label', states=0))
        for r, off in ((4, 0), (16, 32), (8, 8), (28, 64), (12, 16), (20, 40), (24, 48)):
            e(raw(f"s_load_dwordx2 {S(r, 2)}, s[0:1], {off}", wr=regs(S(r, 2))))
        if self.opt.get('dbg'):
            e(raw("s_load_dwordx2 s[98:99], s[0:1], 56", wr=['s98', 's99']))
        e(salu('s_lshr_b32', sT[0], 's2', 3))
        e(salu('s_lshl_b32', sT[4], sT[0], 4))
        e(valu('v_lshrrev_b32', t[0], 6, 'v0'))
        e(valu('v_and_b32', t[1], 3, 'v0'))
        e(valu('v_lshl_add_u32', t[1], t[0], 2, t[1]))
        e(valu('v_add_lshl_u32', t[1], sT[4], t[1], 7))
        if self.opt['pfh']:
            e(valu('v_subrev_u32', t[2], 4, 'v0'))
            e(valu('v_cmp_gt_u32', 'vcc', self.opt['pfh'], t[2]))
            e(valu('v_lshlrev_b32', t[2], 7, V(0)))
            e(valu('v_cndmask_b32', t[1], t[1], t[2], 'vcc'))
        e(valu('v_min_u32', t[1], 'L_last-L_pc-4', t[1]))
        e(valu('v_mov_b32', t[3], 's57'))
        e(I(f"v_add_co_u32 {t[2]}, vcc, s56, {t[1]}", 'valu', ['s56', t[1]], [t[2], 'vcc']))
        e(valu('v_readfirstlane_b32', sW, t[0]))
        e(valu('v_and_b32', vL, 63, 'v0'))
        e(I(f"v_addc_co_u32 {t[3]}, vcc, 0, {t[3]}, vcc", 'valu', [t[3], 'vcc'], [t[3], 'vcc']))
        e(I(f"global_load_dword v255, {V(138, 2)}, off", 'vld', [t[2], t[3]], ['v255']))
        x(self.stamp('start'))
        if self.stamps:
            e(salu('s_mov_b32', 's84', 0))
            e(raw("s_memrealtime s[82:83]", wr=['s82', 's83']))
            e(raw("s_waitcnt lgkmcnt(0)"))
            e(raw(f"v_writelane_b32 {vJUNK}, s82, 61", rd=['s82'], kind='salu'))
        e(salu('s_and_b32', sT[3], 's2', 7))
        e(salu('s_lshr_b32', sT[4], sT[3], 1))
        e(salu('s_and_b32', sT[3], sT[3], 1))
        map1 = self.opt['map1']
        if map1:
            e(salu('s_and_b32', sB, sT[0], 7))
            e(salu('s_lshr_b32', sJ, sT[4], 1))
            e(salu('s_lshl3_add_u32', sB, sJ, sB))
        else:
            e(salu('s_and_b32', sB, sT[0], 3))
            e(salu('s_lshl2_add_u32', sB, sT[4], sB))
        e(valu('v_lshrrev_b32', t[4], 3, vL))
        e(valu('v_lshrrev_b32', vQ, 4, vL))
        e(valu('v_and_b32', t[6], 7, vL))
        e(valu('v_xor_b32', t[6], t[6], vQ))
        e(valu('v_lshlrev_b32', t[6], 4, t[6]))
        e(valu('v_mul_u32_u24', vXa[0], 2560, t[4]))
        e(valu('v_add_u32', vXa[0], vXa[0], t[6]))
        e(valu('v_xor_b32', vXa[2], 64, vXa[0]))
        e(valu('v_add_u32', vXa[1], 1280 - 1024, vXa[0]))
        e(valu('v_add_u32', vXa[3], 20480 + 1280 - 3072, vXa[2]))
        e(valu('v_add_u32', vXa[2], 20480 - 2048, vXa[2]))
        rot = self.opt['rot']
        if rot == 1:
            e(salu('s_and_b32', sR, sT[0], 3))
            e(salu('s_mul_i32', sR, sR, 5))
            e(salu('s_lshr_b32', sR, sR, 1))
            e(salu('s_lshr_b32', sKP, sT[0], 2))
            e(salu('s_add_u32', sR, sR, sKP))
            e(salu('s_cmp_ge_u32', sR, 10))
            e(salu('s_cselect_b32', sKP, 10, 0))
            e(salu('s_sub_u32', sR, sR, sKP))
        elif rot == 2:
            e(salu('s_lshr_b32', sR, sT[0], 2))
            e(salu('s_xor_b32', sR, sR, sT[0]))
            e(salu('s_and_b32', sR, sR, 1))
            e(salu('s_mul_i32', sR, sR, 5))
        elif rot == 4:
            e(salu('s_lshr_b32', sR, sT[0], 3 if map1 else 2))
            e(salu('s_add_u32', sR, sR, sT[0]))
            e(salu('s_and_b32', sR, sR, 3))
            e(salu('s_mul_i32', sR, sR, 5))
            e(salu('s_lshr_b32', sR, sR, 1))
        elif rot in (3, 7, 8, 9):
            g_, step = {3: (3, 3), 7: (5, 2), 8: (4, 0), 9: (5, 2)}[rot]
            e(salu('s_lshr_b32', sR, sT[0], 2))
            e(salu('s_and_b32', sKP, sT[0], 3))
            e(salu('s_add_u32', sR, sR, sKP))
            if rot in (8, 9):
                e(salu('s_add_u32', sR, sR, sT[4]))
                e(salu('s_lshl1_add_u32', sR, sT[3], sR))
            e(salu('s_mul_i32', sKP, sR, -(-256 // g_)))
            e(salu('s_lshr_b32', sKP, sKP, 8))
            e(salu('s_mul_i32', sKP, sKP, g_))
            e(salu('s_sub_u32', sR, sR, sKP))
            if step:
                e(salu('s_mul_i32', sR, sR, step))
            else:
                e(salu('s_mul_i32', sR, sR, 5))
                e(salu('s_lshr_b32', sR, sR, 1))
        elif rot in (5, 6):
            e(salu('s_and_b32', sR, sT[0], 3))
            e(salu('s_mul_i32', sR, sR, 5))
            e(salu('s_lshr_b32', sR, sR, 1))
            if rot == 5:
                e(salu('s_lshr_b32', sKP, sT[0], 2))
            else:
                e(salu('s_lshr_b32', sKP, sT[0], 2))
                e(salu('s_and_b32', sKP, sKP, 3))
                e(salu('s_mul_i32', sKP, sKP, 5))
                e(salu('s_lshr_b32', sKP, sKP, 1))
            e(salu('s_add_u32', sR, sR, sKP))
            e(salu('s_mul_i32', sKP, sT[3], 5 if rot == 5 else 1))
            e(salu('s_add_u32', sR, sR, sKP))
            e(salu('s_add_u32', sR, sR, sT[4]))
            e(salu('s_mul_i32', sKP, sR, 26))
            e(salu('s_lshr_b32', sKP, sKP, 8))
            e(salu('s_mul_i32', sKP, sKP, 10))
            e(salu('s_sub_u32', sR, sR, sKP))
        else:
            e(salu('s_mov_b32', sR, 0))
        e(salu('s_mov_b32', sKP, sR))
        e(salu('s_lshl2_add_u32', sXb, sB, sW))
        e(salu('s_mul_i32', sXb, sXb, 32 * 1280))
        e(salu('s_lshl_b32', sXs, sKP, 7))
        e(salu('s_add_u32', sXs, sXs, sXb))
        e(salu('s_lshl_b32', sXl, sW, 14))
        e(salu('s_add_u32', sXl, sXl, XR))
        e(salu('s_mov_b32', S(6), 2621440))
        e(salu('s_mov_b32', S(7), 0x20000))
        npro = self.opt['npro']
        st = [self.inline_stage(R) for R in range(npro)]
        fast = self.opt['fast']
        if fast:
            e(raw("s_waitcnt lgkmcnt(0)", drains_lgkm=True))
            x(st[0][:fast])
        for r, size in ((16, 1966080),):
            e(salu('s_mov_b32', S(r + 2), size))
            e(salu('s_mov_b32', S(r + 3), 0x20000))
        if map1:
            e(salu('s_and_b32', sJ, 's2', 3))
            e(salu('s_lshr_b32', sT[1], sT[0], 3))
            e(salu('s_lshl2_add_u32', sJ, sJ, sT[1]))
        else:
            e(salu('s_lshr_b32', sJ, sT[0], 2))
            e(salu('s_lshl3_add_u32', sJ, sT[3], sJ))
        e(salu('s_mul_i32', sW1b, sW, 16 * 3072))
        e(salu('s_mul_i32', sT[1], sJ, 192))
        e(salu('s_add_u32', sW1b, sW1b, sT[1]))
        e(salu('s_mul_i32', sW1, sKP, 64 * 3072))
        e(salu('s_add_u32', sW1, sW1, sW1b))
        e(salu('s_mul_i32', sW1l, sW, 3072))
        e(salu('s_add_u32', sW1l, sW1l, W1R))
        e(salu('s_mov_b32', S(30), WS_SIZE))
        e(salu('s_mov_b32', S(31), 0x20000))
        vSr, vSt, SR = V(232), V(233), 236
        e(valu('v_mov_b32', vZ, 0))
        e(valu('v_mov_b32', vOOB, OOB))
        e(salu('s_lshl2_add_u32', sT[1], sJ, sW))
        e(salu('s_lshl_b32', sT[1], sT[1], 1))
        e(salu('s_lshl_b32', sT[2], sB, 7))
        e(salu('s_add_u32', sT[1], sT[1], sT[2]))
        e(valu('v_lshrrev_b32', vSt, 5, vL))
        e(valu('v_add_u32', vSt, sT[1], vSt))
        e(valu('v_and_b32', t[8], 31, vL))
        e(valu('v_cmp_gt_u32', 'vcc', 16, t[8]))
        e(valu('v_mul_u32_u24', vSr, 1280, vSt))
        e(valu('v_lshl_add_u32', vSr, t[8], 4, vSr))
        e(valu('v_cndmask_b32', V(234), vOOB, vSr, 'vcc'))
        if self.opt['touch']:
            e(salu('s_lshl_b32', sT[1], 's2', 7))
            e(salu('s_add_u32', sT[1], sT[1], F1))
            e(valu('v_cmp_eq_u32', 'vcc', 1, 'v0'))
            e(valu('v_mov_b32', V(235), sT[1]))
            e(valu('v_cndmask_b32', V(235), 0, V(235), 'vcc'))
            if self.opt['tlb']:
                e(valu('v_subrev_u32', t[9], 8, 'v0'))
                e(valu('v_cmp_gt_u32', 'vcc', 7, t[9]))
                e(valu('v_lshlrev_b32', t[9], 21, t[9]))
                e(valu('v_cndmask_b32', V(235), V(235), t[9], 'vcc'))
        e(raw("s_waitcnt lgkmcnt(0)", drains_lgkm=True))
        x(self.stamp('karg'))
        srow = [bload(V(SR, 4), vSr, SX), bload(V(SR + 4, 4), vSr, SX, 0, 512), bload(V(SR + 8, 4), V(234), SX, 0, 1024),
                bload(vTAG, V(235) if self.opt['touch'] else vZ, SWS, 0, 0, 'sc1')]
        if self.opt['srow'] == 0:
            x(srow)

        def w1_addr(m):
            return [valu('v_add_u32', t[8], 64 * m, vL)] + self.divc(t[9], t[8], 12, 191) + [
                valu('v_mul_u32_u24', t[10], 12, t[9]), valu('v_sub_u32', t[8], t[8], t[10]),
                valu('v_lshrrev_b32', t[10], 2, t[9]), valu('v_and_b32', t[10], 2, t[10]),
                valu('v_xor_b32', t[8], t[8], t[10]), valu('v_mul_u32_u24', t[9], 3072, t[9]),
                valu('v_lshl_add_u32', vW1a[m], t[8], 4, t[9])] + (
                [valu('v_subrev_u32', vW1a[m], 1024 * m, vW1a[m])] if m else [])
        x(st[0][fast:2])
        x(w1_addr(0))
        x(st[0][max(fast, 2):3])
        x(w1_addr(1))
        x(st[0][max(fast, 3):4])
        x(self.stamp('st0x'))
        x(w1_addr(2))
        e(st[0][4])
        if self.opt['map2']:
            e(salu('s_and_b32', sTB, sT[0], 3))
            e(salu('s_and_b32', sC, 's2', 7))
            e(salu('s_lshl2_add_u32', sTB, sC, sTB))
            e(salu('s_lshr_b32', sC, sT[0], 2))
        else:
            e(salu('s_and_b32', sTB, sT[0], 7))
            e(salu('s_lshl3_add_u32', sTB, sT[4], sTB))
            e(salu('s_lshr_b32', sC, sT[0], 3))
            e(salu('s_lshl2_add_u32', sC, sT[3], sC))
        for r, size in ((8, 2457600), (12, 819200), (20, 1966080), (24, 2621440)):
            e(salu('s_mov_b32', S(r + 2), size))
            e(salu('s_mov_b32', S(r + 3), 0x20000))
        e(st[0][5])
        e(st[0][6])
        x(self.stamp('st0w'))
        if self.opt['srow'] == 1:
            x(srow)
        self.p0a, self.rawA = [], []
        early = self.opt['rawA'] < 0
        ldA, sA = [V(229), V(230), V(231)], S(97)
        later = []
        e_, x_ = (e, x) if early else (later.append, later.extend)
        sUA, sSec = sT[6], sT[7]
        e_(salu('s_mul_i32', sUA, 's2', 171))
        e_(salu('s_lshr_b32', sUA, sUA, 9))
        e_(salu('s_mul_i32', sSec, sUA, 3))
        e_(salu('s_sub_u32', sSec, 's2', sSec))
        e_(salu('s_mul_i32', sA, sUA, 8 * 3840))
        e_(salu('s_mul_i32', sT[2], sSec, 1280))
        e_(salu('s_add_u32', sA, sA, sT[2]))
        e_(salu('s_lshl_b32', sT[2], sW, 6))
        for m in range(3):
            e_(valu('v_add_u32', t[8], sT[2], vL))
            if m:
                e_(valu('v_add_u32', t[8], 256 * m, t[8]))
            x_(self.divc(t[9], t[8], 80, 767))
            if m == 2:
                e_(valu('v_cmp_gt_u32', 'vcc', 640, t[8]))
            e_(valu('v_mul_u32_u24', t[9], 3840 - 1280, t[9]))
            e_(valu('v_lshl_add_u32', ldA[m], t[8], 4, t[9]))
            if m == 2:
                e_(valu('v_cndmask_b32', ldA[m], vOOB, ldA[m], 'vcc'))
            d = bdma(ldA[m], SWQKV, sA, 0, FL[self.opt['flA']])
            g_ = Group([salu('s_lshl_b32', sT[5], sW, 10), salu('s_add_u32', 'm0', sT[5], P0A + 4096 * m), d])
            self.p0a.append(d)
            if early:
                e(g_)
            else:
                self.rawA.append(g_)
        if self.opt['touch2']:
            e(salu('s_lshr_b32', sT[1], sUA, 2))
            e(salu('s_lshl_b32', sT[1], sT[1], 12))
            e(salu('s_and_b32', sT[2], sUA, 3))
            e(salu('s_lshl_b32', sT[2], sT[2], 8))
            e(salu('s_add_u32', sT[1], sT[1], sT[2]))
            e(salu('s_add_u32', sT[1], sT[1], WQ + 3072))
            e(salu('s_lshl2_add_u32', sT[2], sSec, sW))
            e(salu('s_cmp_lt_u32', sT[2], 8))
            e(salu('s_cselect_b32', sT[1], sT[1], 0x70000000))
            e(salu('s_cmp_lt_u32', 's2', 240))
            e(salu('s_cselect_b32', sT[1], sT[1], 0x70000000))
            e(salu('s_mul_i32', sT[2], sT[2], 4 * 81920))
            e(salu('s_add_u32', sT[1], sT[1], sT[2]))
            e(valu('v_and_b32', t[8], 3, vL))
            e(valu('v_mul_u32_u24', t[8], 81920, t[8]))
            e(bload(V(254), t[8], SWS, sT[1]))
        if self.opt['tlb'] > 1:
            e(valu('v_lshlrev_b32', t[8], 20, 'v0'))
            e(valu('v_cmp_gt_u32', 'vcc', 3, 'v0'))
            e(valu('v_cndmask_b32', t[8], vOOB, t[8], 'vcc'))
            e(bload(V(254), t[8], SOUT))
        x(self.stamp('p0a'))

        q = later
        e = q.append
        x = q.extend
        vHa = t[32]
        e(valu('v_and_b32', vU, 15, vL))
        e(valu('v_bfe_u32', vR, vL, 2, 2))
        e(valu('v_and_b32', vCC, 3, vL))
        cut = {'H': len(q)}
        e(salu('s_and_b32', sT[1], sW, 1))
        e(salu('s_lshl_b32', sT[2], sT[1], 3))
        e(valu('v_lshrrev_b32', vHu, 3, vL))
        e(valu('v_add_u32', vHu, sT[2], vHu))
        e(salu('s_lshl_b32', sT[2], sB, 7))
        e(salu('s_sub_u32', sT[2], sT[2], 16))
        e(valu('v_add_u32', vHa, sT[2], vHu))
        e(valu('v_cmp_le_i32', 'vcc', 0, vHa))
        e(valu('v_lshrrev_b32', t[8], 1, vHu))
        e(valu('v_xor_b32', t[8], t[8], vL))
        e(valu('v_and_b32', t[8], 7, t[8]))
        e(valu('v_mul_u32_u24', vHa, 1280, vHa))
        e(valu('v_lshl_add_u32', vHa, t[8], 4, vHa))
        e(valu('v_cndmask_b32', vHa, vOOB, vHa, 'vcc'))
        e(valu('v_cmp_lt_u32', 'vcc', 1, vHu))
        e(valu('v_cndmask_b32', vHa, vOOB, vHa, 'vcc'))
        sHk, sHl, sHo = S(94), S(95), S(92) if self.opt['defer'] else sT[5]
        e(salu('s_lshr_b32', sT[2], sW, 1))
        e(salu('s_mul_i32', sT[2], sT[2], 5))
        e(salu('s_lshl_b32', sHl, sT[2], 11))
        e(salu('s_lshl_b32', sT[1], sT[1], 10))
        e(salu('s_add_u32', sHl, sHl, sT[1]))
        e(salu('s_add_u32', sHk, sT[2], sR))
        halo_loads = []
        for i5 in range(5):
            halo_loads.append(Group([salu('s_cmp_ge_u32', sHk, 10 - i5), salu('s_cselect_b32', sHo, (i5 - 10) & 0xffffffff, i5),
                                     salu('s_add_u32', sHo, sHo, sHk), salu('s_lshl_b32', sHo, sHo, 7),
                                     salu('s_add_u32', 'm0', sHl, HALO + 2048 * i5), bdma(vHa, SX, sHo, 0, FL[self.opt['flH']])]))
        self.halo_ops = [g_[-1] for g_ in halo_loads]
        cut['G'] = len(q)
        e(salu('s_lshl2_add_u32', sT[1], sB, sW))
        e(salu('s_lshl_b32', sT[1], sT[1], 8))
        e(salu('s_add_u32', sT[1], sT[1], ST))
        e(valu('v_lshl_add_u32', vSA, vU, 4, sT[1]))
        e(salu('s_lshl_b32', sT[1], sB, 10))
        e(salu('s_max_u32', sT[1], sT[1], 128))
        e(salu('s_add_u32', sT[1], sT[1], ST - 128))
        e(valu('v_lshl_add_u32', vSH, vU, 3, sT[1]))
        cut['L'] = len(q)
        e(valu('v_lshlrev_b32', vL16, 4, vL))
        e(valu('v_add_u32', vL16b, 4096, vL16))
        e(valu('v_lshrrev_b32', t[8], 1, vU))
        e(valu('v_xor_b32', t[8], t[8], vQ))
        e(valu('v_lshlrev_b32', t[8], 4, t[8]))
        e(valu('v_lshl_add_u32', vHr[0], vU, 7, t[8]))
        e(valu('v_xor_b32', vHr[1], 64, vHr[0]))
        e(valu('v_and_b32', t[8], 8, vU))
        e(valu('v_lshlrev_b32', t[8], 7, t[8]))
        e(valu('v_add3_u32', vXr[0], sXl, vHr[0], t[8]))
        e(valu('v_xor_b32', vXr[1], 64, vXr[0]))
        e(valu('v_lshl_add_u32', t[8], vQ, 3, vR))
        e(valu('v_mul_u32_u24', t[8], 192, t[8]))
        e(valu('v_lshl_add_u32', t[8], vCC, 3, t[8]))
        e(valu('v_and_b32', t[9], 1, vQ))
        e(valu('v_lshl_add_u32', t[8], t[9], 5, t[8]))
        e(salu('s_cmp_eq_u32', sW, 3))
        e(salu('s_cselect_b32', sROT, 0, sW))
        e(salu('s_lshl_b32', sT[1], sB, 1))
        e(salu('s_lshr_b32', sT[2], sW, 1))
        e(salu('s_add_u32', sT[12], sT[1], sT[2]))
        e(salu('s_mul_i32', sAP, sT[12], ACTB))
        e(salu('s_and_b32', sT[2], sW, 1))
        e(salu('s_lshl_b32', sT[2], sT[2], 11))
        e(salu('s_add_u32', sAP, sAP, sT[2]))
        e(salu('s_add_u32', sAP, sAP, ACT))
        for m in range(3):
            e(salu('s_add_u32', sT[1], sROT, m))
            e(salu('s_cmp_ge_u32', sT[1], 3))
            e(salu('s_cselect_b32', sT[2], 3, 0))
            e(salu('s_sub_u32', sT[1], sT[1], sT[2]))
            e(salu('s_lshl_b32', sT[2], sT[1], 6))
            e(salu('s_add_u32', sT[2], sT[2], W1R))
            e(valu('v_add_u32', vW1r[2 * m], sT[2], t[8]))
            e(valu('v_xor_b32', vW1r[2 * m + 1], 32, vW1r[2 * m]))
            e(salu('s_mul_i32', sT[2], sJ, 3))
            e(salu('s_add_u32', sT[1], sT[1], sT[2]))
            e(salu('s_lshl_b32', sT[1], sT[1], 12))
            e(salu('s_add_u32', sHS[m], sT[1], sAP))
        e(valu('v_mov_b32', t[8], 0x3f803f80))
        for r in range(4):
            e(valu('v_accvgpr_write_b32', A(240 + r), t[8]))
        cut['A'] = len(q)
        stA = [vPs, t[33], t[35]]
        soA[:] = [sT[9], sT[9], sT[10]]
        e(salu('s_lshr_b32', sT[1], sUA, 2))
        e(salu('s_lshl_b32', sT[1], sT[1], 12))
        e(salu('s_and_b32', sT[2], sUA, 3))
        e(salu('s_lshl_b32', sT[2], sT[2], 8))
        e(salu('s_add_u32', sT[1], sT[1], sT[2]))
        e(salu('s_add_u32', sT[1], sT[1], WQ))
        e(salu('s_cmp_lt_u32', 's2', 240))
        e(salu('s_cselect_b32', sT[1], sT[1], 0x70000000))
        e(salu('s_lshl_b32', sT[2], sSec, 10))
        e(salu('s_add_u32', soA[0], sT[1], sT[2]))
        e(salu('s_lshl_b32', sT[2], sSec, 6))
        e(salu('s_add_u32', sT[2], sT[2], 3072))
        e(salu('s_add_u32', soA[2], sT[1], sT[2]))
        e(salu('s_cmp_eq_u32', sSec, 2))
        e(salu('s_cselect_b32', S(93), soA[2], 0x70000000))
        e(salu('s_mov_b32', sT[3], WQJ))
        e(salu('s_mov_b32', sT[4], 81920))
        e(valu('v_mul_u32_u24', t[8], 1280, vR))
        e(valu('v_add_u32', t[8], P0A, t[8]))
        for k in range(3):
            if k < 2:
                e(salu('s_lshl_b32', sT[1], sW, 2))
                e(salu('s_add_u32', sT[1], sT[1], 16 * k))
                e(valu('v_add_u32', t[9], sT[1], vQ))
                e(valu('v_mul_u32_u24', t[10], 40, t[9]))
                e(valu('v_lshl_add_u32', t[10], vCC, 3, t[10]))
                e(valu('v_add_u32', rdA[k], t[8], t[10]))
                e(valu('v_lshlrev_b32', t[11], 4, vU))
            else:
                e(salu('s_and_b32', sT[1], sW, 1))
                e(salu('s_lshl_b32', sT[1], sT[1], 4))
                e(valu('v_lshl_add_u32', t[12], vQ, 2, sT[1]))
                e(valu('v_add_u32', t[9], t[12], vCC))
                e(valu('v_mul_u32_u24', t[10], 40, t[9]))
                e(valu('v_add3_u32', rdA[k], t[8], t[10], 32))
                e(valu('v_add_u32', t[9], t[12], vR))
                e(valu('v_lshlrev_b32', t[11], 4, vCC))
            e(valu('v_lshrrev_b32', t[10], 1, t[9]))
            e(valu('v_mad_u32_u24', t[11], t[10], sT[3], t[11]))
            e(valu('v_and_b32', t[9], 1, t[9]))
            e(valu('v_mad_u32_u24', stA[k], t[9], sT[4], t[11]))
        e(salu('s_cmp_lt_u32', sW, 2))
        e(salu('s_cselect_b64', 'vcc', -1, 0))
        e(valu('v_cndmask_b32', stA[2], vOOB, stA[2], 'vcc'))
        cut['B'] = len(q)
        sSrc, sDst = [S(76), S(77), S(3)], [sT[6], sT[7], sT[8]]
        e(valu('v_lshrrev_b32', t[12], 3, vL))
        e(valu('v_and_b32', t[13], 3, t[12]))
        e(valu('v_lshrrev_b32', t[12], 2, t[12]))
        e(valu('v_mul_u32_u24', t[13], 1280, t[13]))
        e(valu('v_and_b32', t[8], 7, vL))
        e(valu('v_lshl_add_u32', t[13], t[8], 4, t[13]))
        e(salu('s_mov_b32', sT[12], W2C))
        for m in range(3):
            e(salu('s_mul_i32', sT[1], sW, 768))
            e(salu('s_add_u32', sT[1], sT[1], 's2'))
            if m:
                e(salu('s_add_u32', sT[1], sT[1], 256 * m))
            e(salu('s_mul_i32', sT[2], sT[1], 6554))
            e(salu('s_lshr_b32', sT[2], sT[2], 16))
            e(salu('s_mul_i32', sT[3], sT[2], 10))
            e(salu('s_sub_u32', sT[3], sT[1], sT[3]))
            e(salu('s_lshr_b32', sT[4], sT[2], 2))
            e(salu('s_mul_i32', sDst[m], sT[4], 5120))
            e(salu('s_and_b32', sT[5], sT[2], 3))
            e(salu('s_lshl_b32', sSrc[m], sT[5], 8))
            e(salu('s_add_u32', sDst[m], sDst[m], sSrc[m]))
            e(salu('s_add_u32', sDst[m], sDst[m], W2P))
            e(salu('s_lshl_b32', sT[5], sT[5], 2))
            e(salu('s_lshl_b32', sSrc[m], sT[4], 5))
            e(salu('s_add_u32', sSrc[m], sSrc[m], sT[5]))
            e(salu('s_sub_u32', sT[4], sT[4], 48))
            e(salu('s_mul_i32', sT[4], sT[4], 40))
            e(salu('s_add_u32', sT[4], sT[4], sT[5]))
            e(salu('s_sub_u32', sT[5], sT[2], 256))
            e(salu('s_mul_i32', sT[5], sT[5], 40))
            e(salu('s_add_u32', sT[5], sT[5], 16))
            e(salu('s_cmp_lt_u32', sT[2], 256))
            e(salu('s_cselect_b32', sT[4], sT[4], sT[5]))
            e(salu('s_cmp_lt_u32', sT[2], 192))
            e(salu('s_cselect_b32', sSrc[m], sSrc[m], sT[4]))
            e(salu('s_cmp_lt_u32', sT[2], 192))
            e(salu('s_cselect_b32', sT[4], 16, 20))
            e(salu('s_mul_i32', sT[4], sT[4], 1280))
            e(valu('v_mad_u32_u24', ldB[m], t[12], sT[4], t[13]))
            e(salu('s_mul_i32', sSrc[m], sSrc[m], 1280))
            e(salu('s_lshl_b32', sT[4], sT[3], 7))
            e(salu('s_add_u32', sSrc[m], sSrc[m], sT[4]))
            e(salu('s_cmp_lt_u32', sT[1], 2720))
            e(salu('s_cselect_b32', sSrc[m], sSrc[m], 0x70000000))
            e(salu('s_cmp_lt_u32', sT[1], 2720))
            e(salu('s_cselect_b32', sDst[m], sDst[m], 0x70000000))
            e(salu('s_lshl_b32', sT[3], sT[3], 2))
            e(valu('v_add_u32', t[9], sT[3], vQ))
            x(self.divc(t[10], t[9], 5, 39))
            e(valu('v_mul_u32_u24', t[11], 5, t[10]))
            e(valu('v_sub_u32', t[9], t[9], t[11]))
            e(valu('v_lshlrev_b32', t[9], 10, t[9]))
            e(valu('v_lshl_add_u32', t[9], vU, 4, t[9]))
            e(valu('v_mad_u32_u24', stB[m], t[10], sT[12], t[9]))
        e(salu('s_mul_i32', sT[1], sW, 3072))
        e(salu('s_add_u32', sPB, sT[1], P0B))
        e(valu('v_lshlrev_b32', t[8], 7, vR))
        e(valu('v_lshl_add_u32', t[8], vQ, 5, t[8]))
        e(valu('v_lshl_add_u32', t[8], vCC, 3, t[8]))
        e(valu('v_add_u32', rdB[0], sPB, t[8]))
        e(salu('s_mov_b32', S(75), 0x20000))
        e(salu('s_mul_i32', sW2c, sC, W2C))
        e(salu('s_add_u32', sW2c, sW2c, W2P))
        cut['O'] = len(q)
        vHw = t[34]
        e(salu('s_mul_i32', sT[1], sW, 20))
        e(valu('v_add_u32', t[8], sT[1], vL))
        e(valu('v_cmp_gt_u32', 'vcc', 20, vL))
        e(valu('v_lshrrev_b32', t[9], 3, t[8]))
        e(valu('v_and_b32', t[8], 7, t[8]))
        e(valu('v_lshlrev_b32', t[8], 4, t[8]))
        e(valu('v_lshl_add_u32', t[8], t[9], 11, t[8]))
        e(valu('v_add_u32', t[9], DUMMY, vL16))
        e(valu('v_cndmask_b32', vHw, t[9], t[8], 'vcc'))
        cut['F'] = len(q)
        fs = self.opt['fstride']
        e(salu('s_lshr_b32', sT[3], 's2', 2))
        e(salu('s_lshl_b32', sT[3], sT[3], fs))
        e(salu('s_and_b32', sT[1], 's2', 3))
        e(salu('s_lshl2_add_u32', sT[3], sT[1], sT[3]))
        e(salu('s_add_u32', sT[3], sT[3], F1))
        e(valu('v_cmp_eq_u32', 'vcc', 0, 'v0'))
        e(valu('v_mov_b32', t[8], sT[3]))
        e(valu('v_cndmask_b32', vFA, vOOB, t[8], 'vcc'))
        x(self.poll_all(F1))
        cut['W'] = len(q)
        e(salu('s_mul_i32', sWQb, sJ, WQJ))
        e(salu('s_add_u32', sWQb, sWQb, WQ))
        e(salu('s_lshl1_add_u32', sG, sR, sW))
        e(salu('s_cmp_ge_u32', sG, 20))
        e(salu('s_cselect_b32', sWQ, 20, 0))
        e(salu('s_sub_u32', sG, sG, sWQ))
        e(salu('s_lshl_b32', sWQ, sG, 12))
        e(salu('s_add_u32', sWQ, sWQ, sWQb))
        cut['P'] = len(q)
        if self.opt['rot2'] == 12 or not self.opt['defer']:
            e(salu('s_lshr_b32', sT[1], 's2', 3))
            e(salu('s_and_b32', sT[2], sT[1], 7))
            e(salu('s_mul_i32', sT[2], sT[2], 3))
            e(salu('s_lshr_b32', sT[2], sT[2], 1))
            e(salu('s_lshr_b32', sT[1], sT[1], 3))
            e(salu('s_mul_i32', sT[1], sT[1], 3))
            e(salu('s_add_u32', sR2, sT[1], sT[2]))
            e(salu('s_cmp_ge_u32', sR2, 12))
            e(salu('s_cselect_b32', sT[1], 12, 0))
            e(salu('s_sub_u32', sR2, sR2, sT[1]))
        if self.opt['rot2'] in (2, 4):
            e(salu('s_lshr_b32', sT[1], 's2', 3))
            e(salu('s_lshr_b32', sT[2], 's2', 6))
            e(salu('s_add_u32', sR2, sT[1], sT[2]))
        e(salu('s_mul_i32', sT[1], sTB, ACTB))
        e(salu('s_add_u32', sT[1], sT[1], ACT))
        e(salu('s_mul_i32', sT[2], sW, 12 * 4096))
        e(salu('s_add_u32', sAh, sT[1], sT[2]))
        e(salu('s_lshl_b32', sT[2], sW, 14))
        e(salu('s_add_u32', sAo, sT[1], sT[2]))
        e(salu('s_add_u32', sAo, sAo, 48 * 4096))
        e(salu('s_lshl_b32', sT[2], sW, 12))
        e(salu('s_add_u32', sAb, sT[1], sT[2]))
        e(salu('s_add_u32', sAb, sAb, 64 * 4096))
        e(salu('s_mul_i32', sT[2], sW, 12 * 5120))
        e(salu('s_add_u32', sWh, sW2c, sT[2]))
        e(salu('s_mul_i32', sT[2], sW, 4 * 5120))
        e(salu('s_add_u32', sWo, sW2c, sT[2]))
        e(salu('s_add_u32', sWo, sWo, 48 * 5120))
        e(salu('s_mul_i32', sT[2], sW, 5120))
        e(salu('s_add_u32', sWb, sW2c, sT[2]))
        e(salu('s_add_u32', sWb, sWb, 64 * 5120))
        e(salu('s_add_u32', sT[1], sJ, 48))
        e(salu('s_lshl_b32', sT[1], sT[1], 12))
        e(salu('s_add_u32', sOA, sT[1], sAP))
        e(salu('s_lshr_b32', sT[1], sJ, 2))
        e(salu('s_add_u32', sT[1], sT[1], 64))
        e(salu('s_lshl_b32', sT[1], sT[1], 12))
        e(salu('s_and_b32', sT[2], sJ, 3))
        e(salu('s_lshl_b32', sT[2], sT[2], 8))
        e(salu('s_add_u32', sT[1], sT[1], sT[2]))
        e(salu('s_add_u32', sOB, sT[1], sAP))
        e(salu('s_mov_b64', sLO16, 0xffff))
        e(salu('s_mov_b32', 's70', 0x00010001))
        e(salu('s_mov_b32', 's71', 0x00010001))
        e(salu('s_mov_b32', sSCL, f2u(20 ** -0.5 * 1.4426950408889634)))
        for i in range(4):
            e(salu('s_add_u32', sT[1], sW, i))
            e(salu('s_and_b32', sT[1], sT[1], 3))
            e(salu('s_lshl_b32', sT[1], sT[1], 10))
            e(salu('s_add_u32', sT[1], sT[1], XR))
            e(valu('v_add_u32', vWr[i], sT[1], vL16))
        e(valu('v_lshlrev_b32', t[8], 2, vQ))
        e(valu('v_sub_u32', t[8], vU, t[8]))
        e(valu('v_mov_b32', t[10], f2u(-1e30)))
        e(salu('s_or_b32', sT[1], sB, sW))
        e(salu('s_cmp_eq_u32', sT[1], 0))
        e(salu('s_cselect_b32', sT[1], 0, 2))
        e(valu('v_cmp_gt_u32', 'vcc', sT[1], vQ))
        e(valu('v_cndmask_b32', t[11], t[10], vZ, 'vcc'))
        for r in range(4):
            e(valu('v_subrev_u32', t[9], r, t[8]))
            e(valu('v_cmp_gt_u32', 'vcc', 8, t[9]))
            e(valu('v_cmp_gt_i32', S(56, 2), 0, t[9]))
            e(valu('v_cndmask_b32', V(MASK + 4 + r), t[10], vZ, 'vcc'))
            e(valu('v_cndmask_b32', V(MASK + r), t[10], t[11], S(56, 2)))
        e(valu('v_mov_b32', t[8], ZERO))
        e(valu('v_mov_b32', t[10], 0))
        e(valu('v_mov_b32', t[11], 0))
        e(ds_write('ds_write_b64', t[8], V(146, 2)))
        names = list(cut)
        part = {k: q[cut[k]:cut[names[n + 1]] if n + 1 < len(names) else len(q)] for n, k in enumerate(names)}
        out_ = ['', 'GOWP', 'FBGOWP', 'HAFBGOWP'][self.opt['defer']]
        self.deferred = {k: part[k] for k in out_}
        q = q[:cut['H']] + [i for k in names if k not in out_ for i in part[k]]
        loads = [x_ for r_ in st[1:] for x_ in r_]
        self.halo_loads = halo_loads
        keep = self.opt['zin']
        late_loads = loads[len(loads) - keep:] if keep else []
        loads = loads[:len(loads) - keep]
        p += self.sprinkle(q, loads, max(1, min(self.opt['pro_every'], (len(q) - 16) // max(len(loads), 1))), start=self.opt['pro_start'])
        self.rawB = []
        for m in range(3):
            self.rawB.append(Group([Group([salu('s_cmp_lt_u32', sDst[m], W2P + 48 * 5120), salu('s_cselect_b64', S(72, 2), S(20, 2), S(12, 2)),
                                           salu('s_cselect_b32', S(74), S(22), S(14))]),
                                    salu('s_add_u32', 'm0', sPB, 1024 * m),
                                    bdma(ldB[m], S(72, 4), sSrc[m], 0, FL[self.opt['flB']])]))
        if self.opt['rawB'] < 0:
            p += flatten(self.rawB)
        p += self.stamp('setup')
        shadow = self.opt['srow'] >= 2 or self.opt['stat_end'] > 0
        hs, hq, ht, h3, h4, h5 = (V(n) for n in range(224, 229)) if False else (V(248), V(249), V(250), V(251), V(252), V(253))
        z = [valu('v_readfirstlane_b32', sTAG, vTAG), valu('v_mov_b32', ht, 0x3f803f80),
             salu('s_mul_i32', sTAG, sTAG, 0x19660d), salu('s_add_u32', sTAG, sTAG, 0x3c6ef35f),
             salu('s_cmp_eq_u32', sW, 0), salu('s_cselect_b32', sCMP, sTAG, 0), valu('v_mov_b32', vTAG, sTAG)]
        if self.opt['var2'] == 2:
            assert not shadow
            msk = S(98, 2) if not self.opt.get('dbg') else 'vcc'
            pr, acc, sm, c0 = V(252, 2), V(254, 2), V(224, 2), V(226)
            z += [valu('v_lshlrev_b32', c0, 16, V(SR)), valu('v_and_b32', h3, 31, vL), valu('v_cmp_gt_u32', 'vcc', 32, vL),
                  I(f"v_readlane_b32 {sT[1]}, {c0}, 0", 'rdlane', [c0], [sT[1]]),
                  I(f"v_readlane_b32 {sT[2]}, {c0}, 32", 'rdlane', [c0], [sT[2]]),
                  valu('v_mov_b32', c0, sT[2]), valu('v_mov_b32', hs, sT[1]), valu('v_cndmask_b32', hs, c0, hs, 'vcc'),
                  valu('v_cmp_gt_u32', 'vcc', 16, h3), valu('v_cmp_eq_u32', msk, 0, h3),
                  valu('v_lshlrev_b32', h3, 3, vSt), valu('v_cndmask_b32', ht, 0, hs, 'vcc'), valu('v_add_u32', h3, ST, h3)]
            for i in range(12):
                m_ = V(248 if i < 8 else 250, 2)
                z += [valu('v_lshlrev_b32', h4, 16, V(SR + i)), valu('v_and_b32', h5, 0xffff0000, V(SR + i)),
                      I(f"v_pk_add_f32 {pr if i else sm}, {pr}, {m_} op_sel_hi:[1,0] neg_lo:[0,1] neg_hi:[0,1]", 'valu',
                        regs(pr) + regs(m_)[:1], regs(pr if i else sm))]
                z += [I(f"v_pk_fma_f32 {acc}, {pr}, {pr}, {acc}", 'valu', regs(pr) + regs(acc), regs(acc)),
                      I(f"v_pk_add_f32 {sm}, {sm}, {pr}", 'valu', regs(sm) + regs(pr), regs(sm))] if i else \
                    [I(f"v_pk_mul_f32 {acc}, {sm}, {sm}", 'valu', regs(sm), regs(acc))]
            z += [valu('v_add_f32', c0, V(224), V(225)), valu('v_add_f32', hq, V(254), V(255)),
                  valu('v_cndmask_b32', h3, vOOB, h3, msk)]
            for sh in (8, 4, 2, 1):
                z += [valu('v_add_f32_dpp', r, r, r, mods=f'row_ror:{sh} row_mask:0xf bank_mask:0xf') for r in (c0, hq)]
            z += [valu('v_mov_b32', h4, c0), valu('v_mov_b32', h5, hq),
                  valu('v_permlane16_swap_b32', c0, h4), valu('v_permlane16_swap_b32', hq, h5),
                  valu('v_add_f32', c0, c0, h4), valu('v_add_f32', hq, hq, h5)]
            rs_ = self.rstats(c0, hq, V(SR), ht)
            z += rs_[:4] + [valu('v_add_f32', c0, c0, hs)] + rs_[4:]
            z += [valu('v_mov_b32', V(SR + 1), sTAG), bstore(V(SR, 2), h3, SWS, 0, 0, 'sc1')]
        elif self.opt['var2']:
            msk = S(98, 2) if not self.opt.get('dbg') else 'vcc'
            lo16 = S(92, 2) if shadow else 'vcc'

            def across(r, tmp):
                o_ = []
                for sh in (8, 4, 2, 1):
                    o_ += [Skip(1), valu('v_add_f32_dpp', r, r, r, mods=f'row_ror:{sh} row_mask:0xf bank_mask:0xf')]
                return o_ + [valu('v_mov_b32', tmp, r), Skip(1), valu('v_permlane16_swap_b32', r, tmp), valu('v_add_f32', r, r, tmp)]
            for i in range(0, 12, 1 if shadow else 2):
                if shadow:
                    z += [valu('v_lshlrev_b32', h4, 16, V(SR + i)), valu('v_and_b32', h5, 0xffff0000, V(SR + i)),
                          valu('v_add_f32', hs, hs, h4) if i else valu('v_mov_b32', hs, h4),
                          valu('v_add_f32', hq, hq, h5) if i else valu('v_mov_b32', hq, h5)]
                else:
                    z += [valu('v_dot2_f32_bf16', hs, V(SR + i), ht, hs if i else 0),
                          valu('v_dot2_f32_bf16', hq, V(SR + i + 1), ht, hq if i else 0)]
            z += [valu('v_and_b32', h3, 31, vL), valu('v_cmp_gt_u32', lo16, 16, h3), valu('v_add_f32', hs, hs, hq)]
            z += across(hs, h4) + [valu('v_mul_f32', hs, f2u(1.0 / 640.0), hs), valu('v_cndmask_b32', ht, 0, hs, lo16),
                                   valu('v_cmp_eq_u32', msk, 0, h3)]
            pr, acc = V(252, 2), V(254, 2)
            for i in range(12):
                m_ = V(248 if i < 8 else 250, 2)
                if shadow:
                    m1 = regs(m_)[0]
                    z += [valu('v_lshlrev_b32', h4, 16, V(SR + i)), valu('v_and_b32', h5, 0xffff0000, V(SR + i)),
                          valu('v_sub_f32', h4, h4, m1), valu('v_sub_f32', h5, h5, m1),
                          valu('v_fmac_f32', V(254), h4, h4) if i else valu('v_mul_f32', V(254), h4, h4),
                          valu('v_fmac_f32', V(255), h5, h5) if i else valu('v_mul_f32', V(255), h5, h5)]
                    continue
                z += [valu('v_lshlrev_b32', h4, 16, V(SR + i)), valu('v_and_b32', h5, 0xffff0000, V(SR + i)),
                      I(f"v_pk_add_f32 {pr}, {pr}, {m_} op_sel_hi:[1,0] neg_lo:[0,1] neg_hi:[0,1]", 'valu',
                        regs(pr) + regs(m_)[:1], regs(pr)),
                      I(f"v_pk_fma_f32 {acc}, {pr}, {pr}, {acc}", 'valu', regs(pr) + regs(acc), regs(acc)) if i else
                      I(f"v_pk_mul_f32 {acc}, {pr}, {pr}", 'valu', regs(pr), regs(acc))]
            z.append(valu('v_add_f32', hq, V(254), V(255)))
            z += [valu('v_lshlrev_b32', h3, 3, vSt), valu('v_add_u32', h3, ST, h3)] + across(hq, h4)
            z += [valu('v_cndmask_b32', h3, vOOB, h3, msk), valu('v_mul_f32', ht, f2u(1.0 / 640.0), hq)]
            z += self.rstats(hs, hq, V(SR), ht)[4:]
            z += [valu('v_mov_b32', V(SR + 1), sTAG), bstore(V(SR, 2), h3, SWS, 0, 0, 'sc1')]
        else:
            for i in range(12):
                if not shadow:
                    z += [valu('v_dot2_f32_bf16', hs, V(SR + i), ht, hs if i else 0),
                          valu('v_dot2_f32_bf16', hq, V(SR + i), V(SR + i), hq if i else 0)]
                    continue
                z += [valu('v_lshlrev_b32', h4, 16, V(SR + i)), valu('v_and_b32', h5, 0xffff0000, V(SR + i))]
                z += [valu('v_add_f32', hs, h4, h5), valu('v_mul_f32', hq, h4, h4)] if i == 0 else \
                    [valu('v_add_f32', hs, hs, h4), valu('v_fmac_f32', hq, h4, h4), valu('v_add_f32', hs, hs, h5)]
                z.append(valu('v_fmac_f32', hq, h5, h5))
            z += [valu('v_and_b32', h3, 31, vL), valu('v_cmp_eq_u32', S(98, 2) if not self.opt.get('dbg') else 'vcc', 0, h3),
                  valu('v_lshlrev_b32', h3, 3, vSt), valu('v_add_u32', h3, ST, h3)]
            for sh in (8, 4, 2, 1):
                z.append(Skip(1))
                for r in (hs, hq):
                    z.append(valu('v_add_f32_dpp', r, r, r, mods=f'row_ror:{sh} row_mask:0xf bank_mask:0xf'))
            z += [valu('v_mov_b32', h4, hs), valu('v_mov_b32', h5, hq),
                  valu('v_cndmask_b32', h3, vOOB, h3, S(98, 2) if not self.opt.get('dbg') else 'vcc'), Skip(1),
                  valu('v_permlane16_swap_b32', hs, h4), valu('v_permlane16_swap_b32', hq, h5),
                  valu('v_add_f32', hs, hs, h4), valu('v_add_f32', hq, hq, h5)]
            z += self.rstats(hs, hq, V(SR), ht) + [valu('v_mov_b32', V(SR + 1), sTAG), bstore(V(SR, 2), h3, SWS, 0, 0, 'sc1')]
        self.srow, self.stats = (srow if self.opt['srow'] >= 2 else [], z) if shadow else ([], [])
        self.stat_block = flatten(z) if self.opt['stat_end'] < 0 else []
        if not shadow and not self.stat_block:
            p += self.sprinkle(z, late_loads, len(flatten(z)) // (keep + 1) + 1) if keep else z
        p += self.stamp('stats')
        p.append(Group([wait(vm=self.stage_ops[0]), barrier('x / w1 stage 0 is in LDS; phase 1a (ffn GEMM) starts')]))
        p += self.stamp('B0') + [raw("s_nop 0", states=1)] * self.opt['shift']

        def pack(rd, k0, dst):
            o_ = [ds_read('ds_read_b64_tr_b16', V(PK + 4 * (k0 + k) + 2 * h, 2), *rd(k, h)) for k in range(3) for h in range(2)]
            sts = [bstore(V(PK + 4 * (k0 + k), 4), dst[k][0], SWS, dst[k][1], 0, FL[self.opt['flS']]) for k in range(3)]
            return o_, sts
        self.packA = pack(lambda k, h: (rdA[k], 5120 * h), 0, list(zip(stA, soA)))
        if self.opt['padw']:
            self.packA[1].append(bstore(V(PK + 8, 4), stA[2], SWS, S(93), 64, FL[self.opt['flS']]))
        self.packB = pack(lambda k, h: (rdB[0], 1024 * k + 512 * h), 3, list(zip(stB, sDst)))
        self.f2_pub = [valu('v_add_u32', vFA, F2 - F1, vFA)]
        self.ones = [valu('v_mov_b32', V(220 + r), 0x3f803f80) for r in range(4)] + \
            [ds_write('ds_write_b128', vHw, V(220, 4), HALO)]
        return p

    @functools.lru_cache(None)
    def x_reads(self, s):
        i, h = s >> 1, s & 1
        return [ds_read('ds_read_b128', X(s, p), vXr[h], (i & 3) * 4096 + p * 1024) for p in range(2)]

    @functools.lru_cache(None)
    def w1_reads(self, s, n):
        i, h = s >> 1, s & 1
        return [ds_read('ds_read_b64_tr_b16', V(WF + 4 * n + 2 * e_, 2), vW1r[n], (i & 3) * 12288 + (32 * h + 4 * e_) * 192)
                for e_ in range(2)]

    @functools.lru_cache(None)
    def wq_read(self, g, n):
        k, sg = g >> 2, g & 3
        return ds_read('ds_read_b128', V(WF + 4 * n, 4), vWr[n], sg * 16384 + ((10 + k) & 3) * 4096)

    @functools.lru_cache(None)
    def halo_read(self, g):
        s = g % 20
        return ds_read('ds_read_b128', V(WF + 16, 4), vHr[s & 1], HALO + (s >> 1) * 2048)

    def late_addresses(self):
        t = [V(T + n) for n in range(24)]
        vQ, vU, vR, vCC = t[0], t[1], t[2], t[3]
        p = [valu('v_lshrrev_b32', vQ, 4, vL), valu('v_and_b32', vU, 15, vL),
             valu('v_bfe_u32', vR, vL, 2, 2), valu('v_and_b32', vCC, 3, vL),
             salu('s_mul_i32', sT[1], sW, 16 * KVR), salu('s_add_u32', sT[1], sT[1], KV),
             valu('v_mul_u32_u24', t[4], KVR, vU),
             valu('v_add_u32', t[4], sT[1], t[4]),
             valu('v_add_u32', vK4, 72, t[4]),
             valu('v_lshl_add_u32', t[5], vQ, 3, t[4]),
             valu('v_add_u32', vKr, 40, t[5]),
             valu('v_add_u32', vQr, 8 * KVR, t[5]),
             valu('v_add_u32', t[6], 8 * KVR + 32, t[4]),
             valu('v_mov_b32', t[7], ZERO),
             valu('v_cmp_eq_u32', S(92, 2), 0, vQ),
             valu('v_cndmask_b32', vQ4, t[7], t[6], S(92, 2)),
             valu('v_lshl_add_u32', t[6], vQ, 2, vR),
             valu('v_mul_u32_u24', t[6], KVR, t[6]),
             valu('v_add_u32', t[6], sT[1], t[6]),
             valu('v_add_u32', vV4, 112, t[6]),
             valu('v_lshl_add_u32', t[6], vCC, 3, t[6]),
             valu('v_add_u32', vVr, 80, t[6]),
             valu('v_mul_u32_u24', t[6], 40, vQ),
             valu('v_add_u32', t[6], 32, t[6]),
             valu('v_min_u32', t[6], 120, t[6]),
             valu('v_lshlrev_b32', t[7], 3, vQ),
             valu('v_and_b32', t[8], 1, vU),
             valu('v_mul_u32_u24', t[8], KVC, t[8]),
             valu('v_lshrrev_b32', t[9], 1, vU),
             valu('v_mul_u32_u24', t[9], KVR, t[9]),
             valu('v_add_u32', t[8], t[8], t[9]),
             valu('v_add_u32', t[8], KV, t[8])]
        for i in range(4):
            p += [salu('s_add_u32', sT[2], sW, i), salu('s_and_b32', sT[2], sT[2], 3),
                  salu('s_mul_i32', sT[3], sT[2], 40),
                  salu('s_cmp_eq_u32', sT[2], 3), salu('s_cselect_b64', S(92, 2), -1, 0),
                  valu('v_add_u32', t[9], sT[3], t[7]),
                  valu('v_cndmask_b32', t[9], t[9], t[6], S(92, 2))]
            if i == 0:
                p.append(valu('v_add_u32', vHKw, t[8], t[9]))
            p += [valu('v_add_u32', t[9], t[4], t[9]), valu('v_add_u32', vKVw[i], 8 * KVR, t[9])]
        p += [salu('s_lshl_b32', sT[2], sW, 6), salu('s_add_u32', sT[2], sT[2], CSQ),
              valu('v_lshl_add_u32', vCQw, vQ, 4, sT[2]),
              valu('v_lshlrev_b32', vCQr, 4, vQ),
              valu('v_lshlrev_b32', t[4], 4, vU), valu('v_lshl_add_u32', t[4], vQ, 10, t[4]), valu('v_mov_b32', t[5], OOB),
              valu('v_cmp_gt_u32', S(92, 2), 32, vL), Skip(1), valu('v_cndmask_b32', vOB, t[5], t[4], S(92, 2))]
        return p

    def flag_addr(self, base):
        t0, t1 = V(T + 22), V(T + 23)
        return [salu('s_lshl_b32', sT[1], sB, 1), salu('s_lshr_b32', sT[2], sW, 1), salu('s_add_u32', sT[1], sT[1], sT[2]),
                salu('s_lshl_b32', sT[1], sT[1], 7), salu('s_and_b32', sT[2], sW, 1), salu('s_lshl1_add_u32', sT[2], sJ, sT[2]),
                salu('s_lshl2_add_u32', sT[1], sT[2], sT[1]), salu('s_add_u32', sT[1], sT[1], base),
                valu('v_mov_b32', t0, sT[1]), valu('v_mov_b32', t1, OOB),
                valu('v_cmp_eq_u32', S(92, 2), 0, vL), valu('v_cndmask_b32', vFA, t1, t0, S(92, 2))]

    def poll_addr(self, idx, base, shift, t0, mask):
        return [salu('s_lshl_b32', 's96', idx, shift), salu('s_add_u32', 's96', 's96', base),
                salu('s_cmp_eq_u32', sW, 0), salu('s_cselect_b32', 's96', 's96', OOB),
                valu('v_and_b32', t0, mask, vL), valu('v_lshl_add_u32', vPA, t0, 2, 's96')]

    def poll_all(self, base):
        return [salu('s_cmp_eq_u32', sW, 0), salu('s_cselect_b32', 's96', 0, 0x70000000),
                salu('s_add_u32', 's96', 's96', base), valu('v_lshl_add_u32', vPA, vL, self.opt['fstride'], 's96')]

    def res_addr(self, r, dst, t6, t7, t8):
        return [valu('v_add_u32', t6, 256 * r, 'v0')] + self.divc(t7, t6, 20, 1279) + [
            valu('v_mul_u32_u24', t8, 20, t7), valu('v_sub_u32', t8, t6, t8),
            valu('v_mul_u32_u24', dst, 1280, t7), valu('v_lshl_add_u32', dst, t8, 3, dst)]

    def lanes0(self, ins):
        return Group([salu('s_mov_b64', 'exec', sROW0), ins, salu('s_mov_b64', 'exec', -1)])

    def ff_pre(self):
        t = [V(T + n) for n in range(24)]
        p = [valu('v_lshrrev_b32', t[0], 4, vL), salu('s_lshl_b32', sT[1], sROT, 7), salu('s_add_u32', sT[1], sT[1], CSF),
             valu('v_lshl_add_u32', t[0], t[0], 4, sT[1]),
             self.lanes0(ds_write('ds_write_b128', t[0], V(CS, 4), 0)),
             self.lanes0(ds_write('ds_write_b128', t[0], V(CS + 4, 4), 64))]
        for src, mean, rstd in ((RS, vMEAN[0], vRSTD[0]), (RS + 2, vMEAN[1], vRSTD[1]), (RS + 4, vMEANH, vRSTDH)):
            p += [valu('v_and_b32', rstd, 0xffff0000, V(src)), valu('v_lshlrev_b32', mean, 16, V(src)),
                  valu('v_rcp_f32', rstd, rstd)]
        return p

    def ff_post(self):
        t = [V(T + n) for n in range(24)]
        p = [valu('v_lshrrev_b32', V(RS), 4, vL), valu('v_lshlrev_b32', V(RS), 4, V(RS))]
        for m in range(3):
            p += [salu('s_add_u32', sT[1], sROT, m), salu('s_cmp_ge_u32', sT[1], 3), salu('s_cselect_b32', sT[2], 3, 0),
                  salu('s_sub_u32', sT[1], sT[1], sT[2]), salu('s_lshl_b32', sT[1], sT[1], 7), salu('s_add_u32', sT[1], sT[1], CSF),
                  valu('v_add_u32', V(RS + 1), sT[1], V(RS)),
                  ds_read('ds_read_b128', V(T + 8 * m, 4), V(RS + 1), 0),
                  ds_read('ds_read_b128', V(T + 8 * m + 4, 4), V(RS + 1), 64)]
        p.append(Skip(2))
        self.h_stores = []
        for m in range(3):
            for q in range(2):
                dst = SS + 4 * ((2 * m + q) & 1)
                for n in (2 * m, 2 * m + 1):
                    a = FACC + 8 * n + 4 * q
                    for r in range(4):
                        p.append(valu('v_fma_f32', V(a + r), '-' + vMEAN[q], V(T + 4 * n + r), V(a + r)))
                    for r in range(4):
                        p.append(valu('v_mul_f32', V(a + r), V(a + r), vRSTD[q]))
                    for hh in range(2):
                        p.append(valu('v_cvt_pk_bf16_f32', V(dst + 2 * (n & 1) + hh), V(a + 2 * hh), V(a + 2 * hh + 1)))
                for r in range(4):
                    p.append(valu('v_pk_max_i16', V(dst + r), V(dst + r), 0))
                s_ = bstore(V(dst, 4), vL16, SWS, sHS[m], q * 1024, FL[self.opt['flS']])
                self.h_stores.append(s_)
                p.append(s_)
        return p

    def qkv_pre(self, hd, packed):
        a = ACC[hd]
        t = [V(T + n) for n in range(24)]
        p = [self.lanes0(ds_write('ds_write_b128', vCQw, V(a + 32, 4), hd * 256))]
        self.qkv_pub = [i for g in p for i in (g if isinstance(g, Group) else [g]) if i.kind == 'dsw']
        q = []
        for cls in range(2):
            q.append(valu('v_mul_f32', t[18 + cls], vMEAN[cls], vRSTD[cls]))
        for n in range(4):
            for cls in range(2):
                b = a + 8 * n + 4 * cls
                if packed:
                    for r in (0, 2):
                        q.append(I(f"v_pk_mul_f32 {V(b + r, 2)}, {V(b + r, 2)}, {V(30, 2)} op_sel:[0,{cls}] op_sel_hi:[1,{cls}]",
                                   'valu', regs(V(b + r, 2)) + regs(V(30, 2)), regs(V(b + r, 2))))
                else:
                    for r in range(4):
                        q.append(valu('v_mul_f32', V(b + r), V(b + r), vRSTD[cls]))
        return p, q

    def qkv_post(self, hd, packed):
        a = ACC[hd]
        t = [V(T + n) for n in range(24)]
        p = []
        for n in range(4):
            p += [salu('s_add_u32', sT[1], sW, n), salu('s_and_b32', sT[1], sT[1], 3), salu('s_lshl_b32', sT[1], sT[1], 6),
                  salu('s_add_u32', sT[1], sT[1], CSQ + 256 * hd), valu('v_add_u32', t[20], sT[1], vCQr),
                  ds_read('ds_read_b128', V(T + 4 * n, 4), t[20], 0)]
        p.append(Skip(2))
        p += [valu('v_fma_f32', V(a + 32 + r), '-' + vMEANH, V(T + r), V(a + 32 + r)) for r in range(4)]
        p += [valu('v_mul_f32', V(a + 32 + r), V(a + 32 + r), vRSTDH) for r in range(4)]
        p += [valu('v_cvt_pk_bf16_f32', t[16], V(a + 32), V(a + 33)), valu('v_cvt_pk_bf16_f32', t[17], V(a + 34), V(a + 35))]
        self.kv_writes = [ds_write('ds_write_b64', vHKw, V(T + 16, 2), hd * KVH)]
        p += self.kv_writes
        for n in range(4):
            for cls in range(2):
                b = a + 8 * n + 4 * cls
                if packed:
                    for r in (0, 2):
                        p.append(I(f"v_pk_fma_f32 {V(b + r, 2)}, {V(T + 4 * n + r, 2)}, {V(T + 18, 2)}, {V(b + r, 2)} "
                                   f"op_sel:[0,{cls},0] op_sel_hi:[1,{cls},1] neg_lo:[1,0,0] neg_hi:[1,0,0]", 'valu',
                                   regs(V(b + r, 2)) + regs(V(T + 4 * n + r, 2)) + regs(V(T + 18, 2)), regs(V(b + r, 2))))
                else:
                    for r in range(4):
                        p.append(valu('v_fma_f32', V(b + r), '-' + t[18 + cls], V(T + 4 * n + r), V(b + r)))
                p += [valu('v_cvt_pk_bf16_f32', V(b), V(b), V(b + 1)), valu('v_cvt_pk_bf16_f32', V(b + 1), V(b + 2), V(b + 3))]
                w_ = ds_write('ds_write_b64', vKVw[n], V(b, 2), hd * KVH + cls * KVC)
                self.kv_writes.append(w_)
                p.append(w_)
        return p

    def attention(self, hd):
        a = ACC[hd]
        streams = []
        for cls in range(2):
            off = hd * KVH + cls * KVC
            b = a + 16 * cls
            u = T + 12 * cls
            Kf = [V(b, 4), V(b + 4, 4)]
            Qf, Sf = V(b + 8, 4), [V(u, 4), V(u + 4, 4)]
            Vf = Kf
            Pf = Qf
            O0, O1, L = V(u, 4), V(u + 4, 4), V(b + 12, 4)
            m, m2 = V(u + 8), V(u + 9)
            p = [ds_read('ds_read_b64', V(b + 8, 2), vQr, off)]
            p.append(I(f"ds_read_b64 {V(b + 10, 2)}, {V(u + 10)}", 'dsr', [V(u + 10)], regs(V(b + 10, 2))))
            p.insert(0, valu('v_cndmask_b32', V(u + 10), vQ4, V(u + 11), sLO16))
            for k in range(2):
                p += [ds_read('ds_read_b64', V(b + 4 * k, 2), vKr, off + k * 8 * KVR),
                      ds_read('ds_read_b64', V(b + 4 * k + 2, 2), vK4, off + k * 8 * KVR)]
            p.append(Skip(2))
            p += [mfma(Sf[k], Kf[k], Qf, V(MASK + 4 * k, 4)) for k in range(2)]
            for k in range(2):
                p += [ds_read('ds_read_b64_tr_b16', V(b + 2 * k, 2), vVr, off + k * 8 * KVR),
                      ds_read('ds_read_b64_tr_b16', V(b + 4 + 2 * k, 2), vV4, off + k * 8 * KVR)]
            p.append(Skip(1))
            p += [valu('v_max3_f32', m, V(u), V(u + 1), V(u + 2)), valu('v_max3_f32', m2, V(u + 3), V(u + 4), V(u + 5)),
                  valu('v_max3_f32', m, m, V(u + 6), V(u + 7)), valu('v_max_f32', m, m, m2)]
            for sw in ('v_permlane16_swap_b32', 'v_permlane32_swap_b32'):
                p += [valu('v_mov_b32', m2, m), valu(sw, m, m2), valu('v_max_f32', m, m, m2)]
            p.append(valu('v_mul_f32', m, sSCL, m))
            p += [valu('v_fma_f32', V(u + r), V(u + r), sSCL, '-' + m) for r in range(8)]
            p += [valu('v_exp_f32', V(u + r), V(u + r)) for r in range(8)]
            p += [valu('v_cvt_pk_bf16_f32', V(b + 8 + r), V(u + 2 * r), V(u + 2 * r + 1)) for r in range(4)]
            p += [mfma(L, aONES, Pf, 0), mfma(O0, Vf[0], Pf, 0), mfma(O1, Vf[1], Pf, 0), Skip(2)]
            p.append(valu('v_rcp_f32', m, V(b + 12)))
            p += [valu('v_mul_f32', V(u + r), V(u + r), m) for r in range(8)]
            for k in range(2):
                for hh in range(2):
                    p.append(valu('v_cvt_pk_bf16_f32', V(self.oreg(cls, k) + 2 * hd + hh), V(u + 4 * k + 2 * hh), V(u + 4 * k + 2 * hh + 1)))
            streams.append(p)
        pre = []
        for cls in range(2):
            pre.append(valu('v_add_u32', V(T + 12 * cls + 11), hd * KVH + cls * KVC, vQ4))
        out = pre
        for i, j in zip(*streams):
            out += [i] if isinstance(i, Skip) else [i, j]
        return out

    def oreg(self, cls, k):
        return 112 + 8 * cls + 4 * k

    def phase1(self):
        o = self.opt
        main, pos = [], {}
        for s in range(20):
            for n in range(6):
                for q in ((1, 0) if o['snake'] and n & 1 else (0, 1)):
                    d = V(FACC + 8 * n + 4 * q, 4)
                    main.append(mfma(d, V(WF + 4 * n, 4), X(s, q), d if s else 0))
                if n < 2:
                    d = V(CS + 4 * n, 4)
                    main.append(mfma(d, V(WF + 4 * n, 4), aONES, d if s else 0))
                pos['a', s, n] = len(main) - 1
        for g in range(40):
            hd, s = divmod(g, 20)
            a = ACC[hd]
            for n in range(4):
                for q in ((1, 0) if o['snake'] and n & 1 else (0, 1)):
                    d = V(a + 8 * n + 4 * q, 4)
                    main.append(mfma(d, V(WF + 4 * n, 4), X(s, q), d if s else 0))
                if n == 0:
                    d = V(a + 32, 4)
                    main.append(mfma(d, V(WF, 4), V(WF + 16, 4), d if s else 0))
                pos['b', g, n] = len(main) - 1
        w = Weave(main)
        first_b = pos['a', 19, 5] + 1
        logical = []
        for s in range(20):
            logical += self.x_reads(s) + [r for n in range(6) for r in self.w1_reads(s, n)] + main[14 * s:14 * s + 14]
        for g in range(40):
            logical += [self.wq_read(g, n) for n in range(4)] + [self.halo_read(g)] + main[first_b + 9 * g:first_b + 9 * g + 9]
        annotate(logical)
        annotate(self.packA[0] + self.packA[1])
        annotate(self.packB[0] + self.packB[1])
        stepb = lambda g: first_b + 9 * g
        bar = {}
        dma = {R: self.stage_dma(R) for R in range(o['npro'], 20)}
        for i in range(10):
            bar[i + 1] = pos['a', 2 * i + 1, 1]
        for k in range(9):
            bar[11 + k] = pos['b', 4 * k + 3, 1]
        rawb = [g_[-1] for g_ in self.rawB]
        extra = {}
        for key, ops in (('packA', self.p0a), ('pub1', self.packA[1]), ('packB', rawb), ('pub2', self.packB[1]),
                         ('halo', self.halo_ops)):
            extra.setdefault(o[key], []).extend(ops)
        checks = {o['chk1']: 'f1', o['chk2']: 'f2', o['chk3']: 'f3'}
        assert len(checks) == 3
        for R, gb in bar.items():
            if R in checks:
                w.at(gb, self.check(checks[R]))
            w.at(gb, self.ring_barrier(R, extra.get(R, ())))
            w.at(gb, *self.stamp(f'B{R}'))
            if R in (o['pub1'], o['pub2']):
                w.at(gb, bstore(vTAG, vFA, SWS, 0, 0, 'sc1'))
            if R in (o['poll1'], o['poll2'], o['poll3']):
                w.at(gb, bload(vPOLL if R == o['poll3'] else V(P4, 4), vPA, SWS, 0, 0, FL[o['flP']]))
        for s in range(20):
            start = bar[(s >> 1) + 1] if s & 1 else 0
            nxt = 14 * (s + 1)
            if s < 19:
                lim = len(main) if s & 1 else bar[(s >> 1) + 1]
                w.stream(self.x_reads(s + 1), max(start, pos['a', s, 0] - 2), nxt - 1)
                for n in range(6):
                    w.stream(self.w1_reads(s + 1, n), max(start, pos['a', s, n]), min(lim, pos['a', s + 1, n] - 4))
            else:
                for n in range(4):
                    w.stream([self.wq_read(0, n)], max(start, pos['a', s, n]), nxt - 1)
                w.stream([self.halo_read(0)], pos['a', s, 4], nxt - 1)
        for g in range(39):
            start = bar[11 + (g >> 2)] if g & 3 == 3 else 0
            lim = bar.get(11 + (g >> 2), len(main)) if g & 3 == 2 else len(main)
            w.stream([self.wq_read(g + 1, 0), self.halo_read(g + 1)], max(start, pos['b', g, 0]), stepb(g + 1) - 1)
            for n in range(1, 4):
                w.stream([self.wq_read(g + 1, n)], max(start, pos['b', g, n]), min(lim, pos['b', g + 1, n] - 3))
        nxt, plan = o['npro'], []
        for R, gb in [(0, 0)] + list(bar.items()):
            lim = min(R + 3, 9 if R < o['chk1'] else 19, nxt + o['catch'] - 1)
            todo = list(range(nxt, lim + 1))
            nxt = max(nxt, lim + 1)
            seq = []
            for r_ in todo:
                pre = self.stage_pre[r_]
                seq += [(x_, pre.get(k, [])) for k, x_ in enumerate(dma[r_])] + [(None, pre[len(dma[r_])])]
            if R == o['haloL']:
                seq += [(Group([x_[-1]]), [Group(x_[:2])] + x_[2:-1]) for x_ in self.halo_loads]
            if R == o['srow'] - 2:
                seq += [(x_, []) for x_ in self.srow]
            if R == o['rawA']:
                seq += [(Group([x_[-1]]), x_[:-1]) for x_ in self.rawA]
            if R == o['rawB']:
                seq += [(Group([x_[-1]]), x_[:-1]) for x_ in self.rawB]
            for name, pk in (('packA', self.packA), ('packB', self.packB)):
                if R == o[name]:
                    w.stream(pk[0], gb + 1, gb + 11)
                    k = min(len(seq), 4 if len(seq) < 10 else 8)
                    seq = seq[:k] + [(x_, []) for x_ in pk[1]] + seq[k:]
            if seq:
                plan.append((seq, gb + (1 if len(seq) > 3 else 13), bar[R + 1]))
        annotate([x for seq, _, _ in plan for g_, pre in seq for x in list(pre) + ([g_] if g_ else [])])
        for seq, a_, b_ in plan:
            self.place_mem(w, seq, a_, b_)
        assert o['rawA'] < o['packA'] and 1 <= o['packA'] < o['pub1'] < o['pub2'] <= 14 and o['rawB'] < o['packB'] < o['pub2'] and o['packB'] <= 9
        assert o['poll1'] < o['chk1'] <= 9 and o['chk1'] < o['poll2'] < o['chk2'] < o['poll3'] < o['chk3'] <= 20
        assert o['haloL'] < o['halo'] <= 8 and o['statL'] <= 8
        d_ = self.deferred
        if d_:
            assert not self.stats
            g = -1
            for keys, end in (('HA', bar[1]), ('FB', bar[min(o['pub1'], o['rawB'])]), ('O', bar[o['halo']]),
                              ('GWP', bar[min(o['statL'], o['poll1'], 7)])):
                seq = [i for k in keys for i in d_.get(k, [])]
                if seq:
                    assert keys != 'HA' or o['haloL'] >= 1
                    g = w.stream(seq, g + 1, end)
        if self.stat_block:
            w.at(bar[-o['stat_end']] - 1, Group(self.stat_block))
        if self.stats:
            if o['stat_end']:
                assert o['stat_end'] + 2 <= o['statL'] and o['stat_end'] <= o['poll1']
                g = w.stream(self.stats[:7], o['stat_at'], bar[o['pub1']])
                w.stream(self.stats[7:], g + 1, bar[o['stat_end']])
            else:
                assert o['srow'] - 2 < o['statC'] < o['pub1']
                w.stream(self.stats, bar[o['statC']] + 1, bar[o['pub1']])
        w.stream(self.f2_pub, bar[o['pub1']] + 1, bar[o['pub1']] + 12)
        w.stream(self.ones, bar[o['halo']] + 1, bar[o['halo'] + 1])
        sl_, sc_, fp_ = self.stat_loads(), self.check_stats(), self.ff_pre()
        annotate(sl_ + sc_ + fp_)
        w.spread(sl_, bar[o['statL']] + 1, bar[o['statL']] + 8)
        w.stream(sc_, bar[10] + 1, first_b)
        tp = V(WF + 20)
        assert o['poll2'] >= 11
        w.stream(fp_ + self.poll_all(F2), first_b + 4, bar[11])
        wl = [x_ for i in range(7) for x_ in self.w_loads(i)]
        w.spread(wl, bar[o['chk2']] + 2, stepb(o['w_end']))
        g = w.stream(self.ff_post(), bar[11] + 1, stepb(o['ff_end']))
        g = w.stream(self.late_addresses() + self.flag_addr(F3), max(g + 1, bar[o['pub2']] + 1), stepb(20) + 3)
        assert stepb(o['f3_step']) > g
        if o['res']:
            rs = [salu('s_mul_i32', 's97', sTB, 64 * 1280), salu('s_mul_i32', 's95', sC, 160), salu('s_add_u32', 's97', 's97', 's95')]
            for r in range(5):
                rs += self.res_addr(r, V(216), V(217), V(218), V(219)) + [bload(A(aRES + 2 * r, 2), V(216), SX, 's97')]
            w.stream(rs, stepb(o['res']) if o['res'] > 0 else bar[-o['res']] + 1, bar[o['chk2']] if o['res'] > 0 else bar[min(2 - o['res'], 11)])
        w.at(stepb(o['f3_step']), Group([wait(vm=self.h_stores), bstore(vTAG, vFA, SWS, 0, 0, 'sc1')]))
        w.stream(self.poll_addr(sTB, F3, 7, tp, 31), max(bar[o['chk2']] + 1, g + 1), bar[o['poll3']])
        if o['chk3'] < 20:
            nA = o['nA_p1b']
            for i in range(nA):
                lo = bar[o['chk3']] + 2 + (stepb(40) - bar[o['chk3']] - 2) * i // nA
                assert lo >= stepb(20 + 2 * i + 2)
                w.spread(self.a_loads(i), lo, bar[o['chk3']] + 2 + (stepb(40) - bar[o['chk3']] - 2) * (i + 1) // nA)
        pre, mul = self.qkv_pre(0, False)
        g = w.stream(pre, stepb(20) + 5)
        g = w.stream(mul[:12], g + 1)
        w.at(g + 1, Group([wait(lgkm=self.qkv_pub), barrier('head 0: column sums are in LDS')]))
        g = w.stream(mul[12:] + self.qkv_post(0, False), g + 1, stepb(o['kv_end']))
        g = w.stream([Skip(3)] + [Group([wait(lgkm=self.kv_writes), barrier('head 0: q, k, v rows are in LDS')])], g)
        w.stream(self.attention(0), g, len(main))
        self.ovf = (w.overflow(0, first_b), w.overflow(first_b, stepb(20)), w.overflow(stepb(20)))
        pro = self.x_reads(0) + [r for n in range(6) for r in self.w1_reads(0, n)]
        return pro + w.flat()

    @staticmethod
    def sprinkle(seq, extra, every, start=0):
        out, n, extra = [], -start, list(extra)
        seq = tie(seq)
        annotate(seq)
        annotate(extra)
        for i in seq:
            out.append(i)
            if isinstance(i, Skip):
                continue
            n += 1
            if extra and n >= every:
                out.append(extra.pop(0))
                n = 0
        return out + extra

    def tail1(self):
        o = self.opt
        p = self.stamp('gemm1')
        pre, mul = self.qkv_pre(1, True)
        late = o['chk3'] == 20
        head = pre + mul + ([self.check('f3')] if late else []) + [Group([wait(lgkm=self.qkv_pub), barrier('head 1: column sums are in LDS')])]
        seq = self.qkv_post(1, True) + [Group([wait(lgkm=self.kv_writes), barrier('head 1: q, k, v rows are in LDS')])] + self.attention(1)
        al = [x_ for i in range(0 if late else o['nA_p1b'], o['nA_att']) for x_ in self.a_loads(i)]
        p += head + self.sprinkle(seq, al, o['att_every']) if late else self.sprinkle(head + seq, al, o['att_every'])
        self.o_stores = [bstore(V(self.oreg(c, 0), 4), vL16, SWS, sOA, c * 1024, 'sc1') for c in range(2)]
        p += self.o_stores
        o0, o1 = self.oreg(0, 1), self.oreg(1, 1)
        p += [valu('v_cndmask_b32', V(o0 + r), V(o1 + r), V(o0 + r), sLO16) for r in range(4)]
        ob = bstore(V(o0, 4), vOB, SWS, sOB, 0, 'sc1')
        p.append(ob)
        self.o_stores.append(ob)
        p += self.flag_addr(F4) + self.poll_addr(sTB, F4, 7, V(T + 1), 31)
        return p + self.stamp('attn')

    def phase2(self):
        o = self.opt
        t = [V(136 + n) for n in range(60)]
        main = []
        tile = lambda n, k: V(P2ACC + 16 * n + 4 * k, 4)
        km = o['kmaj']
        for i in range(16 if km else 15):
            for n in range(5):
                for k in ((3, 2, 1, 0) if o['snake'] and n & 1 else (0, 1, 2, 3)):
                    main.append(mfma(tile(n, k), wslot(i, n), aslot(i, k), tile(n, k) if i else 0))
        if km:
            main += [mfma(tile(n, k), wslot(16, n), aslot(16, k), tile(n, k)) for k in range(4) for n in range(5)]
        else:
            for n in range(5):
                for i in (15, 16):
                    for k in range(4):
                        main.append(mfma(tile(n, k), wslot(i, n), aslot(i, k), tile(n, k)))
        w = Weave(main)
        annotate([x_ for i in range(15) for x_ in self.w_loads(i) + self.a_loads(i) + main[20 * i:20 * i + 20]] +
                 [x_ for i in (15, 16) for x_ in self.w_loads(i) + self.a_loads(i)] + main[300:])
        pre = [salu('s_mul_i32', sT[1], sTB, 64 * 1280), salu('s_mul_i32', sT[2], sC, 160), salu('s_add_u32', sT[3], sT[1], sT[2])]
        vO, vRd = t[12:17], t[17:22]
        for r in range(5):
            pre += self.res_addr(r, vO[r], t[6], t[7], t[8])
            if not o['res']:
                pre.append(bload(A(aRES + 2 * r, 2), vO[r], SX, sT[3], 0, FL[o['flR']]))
            pre += [valu('v_and_b32', t[6], 1, t[7]), valu('v_lshlrev_b32', t[6], 4, t[6]),
                    valu('v_and_b32', vRd[r], 32, t[7]), valu('v_add_u32', t[6], t[6], vRd[r]),
                    valu('v_bfe_u32', vRd[r], t[7], 1, 4), valu('v_add_u32', t[6], t[6], vRd[r]),
                    valu('v_and_b32', t[7], 0x30, t[6]), valu('v_mul_u32_u24', t[6], REDR, t[6]),
                    valu('v_lshl_add_u32', t[6], t[7], 2, t[6]), valu('v_lshl_add_u32', vRd[r], t[8], 4, t[6])]
        vRw = t[10]
        pre += [valu('v_and_b32', t[6], 15, vL), valu('v_mul_u32_u24', t[6], REDR, t[6]), valu('v_lshrrev_b32', t[7], 4, vL),
                valu('v_lshl_add_u32', t[6], t[7], 4, t[6]), salu('s_mul_i32', sT[1], sW, REDW),
                valu('v_add_u32', vRw, sT[1], t[6])]
        for i in range(15):
            w.at(20 * i, *self.stamp(f'S{i}'))
        w.at(20 * o['f4_step'], Group([wait(vm=self.o_stores), bstore(vTAG, vFA, SWS, 0, 0, 'sc1')]))
        w.at(20 * o['poll4'] + 1, bload(vPOLL, vPA, SWS, 0, 0, FL[o['flP']]))
        chk = 20 * o['chk4'] + 19
        w.at(chk, self.check('f4'), barrier('the o rows of this tile have been published'))
        pend = [('W', i) for i in range(7, 17)] + [('A', i) for i in range(o['nA_att'], 17)]
        total = sum(5 if k == 'W' else 4 for k, _ in pend)
        pace, pos_ = (o['ld_end'] - 3) / total, 3.0
        first_use = lambda i: 20 * min(i, 16 if km else 15)
        while pend:
            def earliest(x):
                k, i = x
                if k == 'W':
                    return 20 * (i - 7) + 3
                return max(20 * (i - 9) if i >= 10 else 0, chk + 1 if i >= 12 else 0)
            ok = [x for x in pend if earliest(x) <= pos_ + 2]
            x = min(ok, key=lambda x: (x[1], x[0] == 'A')) if ok else min(pend, key=earliest)
            pend.remove(x)
            pos_ = max(pos_, earliest(x))
            for n, ld in enumerate(self.w_loads(x[1]) if x[0] == 'W' else self.a_loads(x[1])):
                g = int(pos_)
                if x[0] == 'W':
                    g = max(g, 20 * (x[1] - 7) + 4 * n + 3)
                assert g < first_use(x[1]) - 4
                w.at(g, ld)
                left = sum(5 if k == 'W' else 4 for k, _ in pend) + (5 if x[0] == 'W' else 4) - n
                pos_ = max(pos_, g) + max(1.0, min(pace, (o['ld_end'] - g) / left))
        pre += [valu('v_mov_b32', t[6], OOB), valu('v_or_b32', t[7], 's2', 'v0'), valu('v_cmp_ne_u32', S(92, 2), 0, t[7]),
                Skip(1), valu('v_cndmask_b32', t[6], 0, t[6], S(92, 2)), bstore(vTAG, t[6], SWS, 0, 0, 'sc1')]
        w.stream(pre, o['pre2'], 20 * 12)
        X0, p = 160, []
        for r in range(5):
            for k in range(2):
                p.append(valu('v_accvgpr_read_b32', V(X0 + 4 * r + 2 * k + 1), A(aRES + 2 * r + k)))
            for k in range(2):
                p += [valu('v_lshlrev_b32', V(X0 + 4 * r + 2 * k), 16, V(X0 + 4 * r + 2 * k + 1)),
                      valu('v_and_b32', V(X0 + 4 * r + 2 * k + 1), 0xffff0000, V(X0 + 4 * r + 2 * k + 1))]
        w.stream(p, 20 * 12, 20 * 15)
        ws_ = []
        for n in range(5):
            for k in range(4):
                ws_.append(ds_write('ds_write_b128', vRw, V(P2ACC + 16 * n + 4 * k, 4), RED + k * REDT + 64 * n))
        if km:
            ws_ = [ws_[4 * n + k] for k in range(4) for n in range(5)]
            for m in range(15):
                w.at(325 + m, ws_[m])
            ws_ = ws_[15:]
        else:
            for m in range(16):
                w.at(300 + 8 * (m >> 2) + 8 + 2 * (m & 3), ws_[m])
            ws_ = ws_[16:]
        p = w.flat() + self.stamp('gemm2')
        p += ws_ + [Group([wait(all_lgkm=True), barrier('the partial sums of all four waves are in LDS')])] + self.stamp('redbar')
        R0 = 40
        for r in range(5):
            for wv in range(4):
                p.append(ds_read('ds_read_b128', V(R0 + 16 * r + 4 * wv, 4), vRd[r], RED + wv * REDW))
        pk = lambda op, d, a_, b_: I(f"{op} {d}, {a_}, {b_}", 'valu', regs(a_) + regs(b_), regs(d))
        for r in range(5):
            b = R0 + 16 * r
            for k in range(2):
                p.append(pk('v_pk_add_f32', V(b + 2 * k, 2), V(b + 2 * k, 2), V(b + 4 + 2 * k, 2)))
            for k in range(2):
                p.append(pk('v_pk_add_f32', V(b + 8 + 2 * k, 2), V(b + 8 + 2 * k, 2), V(b + 12 + 2 * k, 2)))
            for k in range(2):
                p.append(pk('v_pk_add_f32', V(b + 2 * k, 2), V(b + 2 * k, 2), V(X0 + 4 * r + 2 * k, 2)))
            for k in range(2):
                p.append(pk('v_pk_add_f32', V(b + 2 * k, 2), V(b + 2 * k, 2), V(b + 8 + 2 * k, 2)))
            for k in range(2):
                p.append(valu('v_cvt_pk_bf16_f32', V(b + 4 + k), V(b + 2 * k), V(b + 2 * k + 1)))
            p.append(bstore(V(b + 4, 2), vO[r], SOUT, sT[3], 0, ('', 'sc1', 'nt', 'sc0 sc1')[o['outfl']]))
        return p

    def stamp_out(self):
        if not self.stamps:
            return []
        p = self.stamp('end')
        p += [raw("s_memrealtime s[82:83]", wr=['s82', 's83']), raw("s_waitcnt lgkmcnt(0)"),
              raw(f"v_writelane_b32 {vJUNK}, s82, 63", rd=['s82'], wr=[vJUNK], kind='valu'),
              raw(f"v_writelane_b32 {vJUNK}, s84, 62", rd=['s84'], wr=[vJUNK], kind='valu'),
              salu('s_lshl2_add_u32', sT[1], 's2', sW), salu('s_lshl_b32', sT[1], sT[1], 8), salu('s_add_u32', sT[1], sT[1], STAMP),
              valu('v_lshlrev_b32', V(140), 2, vL), bstore(vJUNK, V(140), SWS, sT[1])]
        if self.opt.get('dbg'):
            p += [raw(f"v_readlane_b32 s82, {vJUNK}, 0", rd=[vJUNK], wr=['s82'], kind='rdlane'),
                  raw(f"v_readlane_b32 s83, {vJUNK}, 61", rd=[vJUNK], wr=['s83'], kind='rdlane'),
                  raw(f"v_readlane_b32 s85, {vJUNK}, 63", rd=[vJUNK], wr=['s85'], kind='rdlane'),
                  valu('v_subrev_u32', V(141), 's82', vJUNK),
                  salu('s_sub_u32', 's85', 's85', 's83'),
                  raw("v_writelane_b32 v141, s85, 12", rd=['s85'], wr=['v141'], kind='valu'),
                  raw("v_writelane_b32 v141, s84, 13", rd=['s84'], wr=['v141'], kind='valu'),
                  salu('s_mov_b32', 's4', 's98'), salu('s_mov_b32', 's5', 's99'), salu('s_mov_b32', 's6', 64),
                  salu('s_lshl2_add_u32', sT[1], 's2', sW),
                  salu('s_cmp_eq_u32', sT[1], self.opt['dbg']), salu('s_cselect_b32', sT[1], 0, 256),
                  bstore(V(141), V(140), SX, sT[1])]
        return p

    def build(self):
        self.stage_ops = {}
        self.stage_pre = {}
        prog = self.startup() + self.phase1() + self.tail1() + self.phase2() + self.stamp_out()
        jit = self.opt.get('jitter', 0)
        if jit:
            import random
            rnd = random.Random(jit)
            out, k = [], 0
            for i in flatten(prog):
                out.append(i)
                if (i.kind == 'barrier' or i.kind == 'vst' or i.kind == 'label' and 'L_ok' in i.text) and rnd.random() < 0.5:
                    k += 1
                    out.append(raw(f"s_lshl2_add_u32 s100, s2, s32\n    s_mul_i32 s100, s100, {rnd.randrange(1 << 20) | 1}\n"
                                   f"    s_bitcmp1_b32 s100, {rnd.randrange(3, 12)}\n    s_cbranch_scc0 L_jit{k}\n"
                                   f"    s_bitcmp1_b32 s100, {rnd.randrange(12, 18)}\n    s_cbranch_scc0 L_jit{k}\n"
                                   f"    s_sleep {rnd.choice((2, 8, 30, 90))}\nL_jit{k}:", wr=['s100']))
            prog = out
        abl = self.opt.get('abl', 0)
        if abl:
            prog = flatten(prog)
            nb, keep = 0, []
            for i in prog:
                nb += i.kind == 'barrier'
                flag = i.kind == 'vst' and 'dwordx4' not in i.text
                drop = (abl & 1 and i.kind == 'dma' and nb >= 2) or (abl & 2 and i.kind == 'vst' and not flag) or \
                       (abl & 4 and i.kind == 'vld' and nb >= 2 and 'dwordx4' in i.text) or \
                       (abl & 8 and i.kind == 'mfma') or (abl & 16 and i.kind == 'dsr') or \
                       (abl & 64 and (i.kind == 'mfma' and 'v[56:59], v[' in i.text.split('], ', 2)[-1] + ' ' and 'v[40:43], v[56:59]' in i.text
                                      or i.kind == 'dsr' and i.rd[0] in ('v17', 'v18'))) or \
                       (abl & 128 and i.kind == 'mfma' and 'a[240:243]' in i.text and nb < 12) or \
                       (abl & 256 and i.kind in ('valu', 'trans') and 11 <= nb <= 21 and i.text.split()[0] in (
                           'v_fma_f32', 'v_mul_f32', 'v_cvt_pk_bf16_f32', 'v_pk_max_i16', 'v_exp_f32', 'v_max3_f32')) or \
                       (abl & 512 and i.kind == 'mfma' and nb >= 24) or (abl & 1024 and i.kind == 'mfma' and 11 <= nb <= 21)
                if not drop:
                    i.meta.pop('exp', None)
                    keep.append(i)
            prog = keep
        prog = finalize(prog, not abl, self.opt['age'])
        self.prog = prog
        body = "\n".join(("" if i.kind == 'label' else "    ") + i.text for i in prog)
        return f"""; Fused LayerNorm + sliding-window attention + ReLU FFN + residual; 256 co-resident workgroups, one per CU.
; Phase 1b: q, k, v of two heads for the same tokens plus a 14-row halo, banded attention on the matrix cores.
; Hand-offs between workgroups: write-through (sc1) stores, drained, then a flag word holding this launch's tag;
;   consumers read flags and data with sc1 loads. The tag is derived from ws[0], which the launch then replaces.
; @launch grid=(256,1,1) block=(256,1,1) lds={LDS_SIZE}
.amdgcn_target "amdgcn-amd-amdhsa--gfx950"
.text
.globl {NAME}
.p2align 8
.type {NAME},@function
{NAME}:
{body}
L_end:
    s_endpgm
{"".join(self.slow)}L_last:
.section .rodata,"a"
.p2align 6
.amdhsa_kernel {NAME}
  .amdhsa_next_free_vgpr 512
  .amdhsa_next_free_sgpr 102
  .amdhsa_accum_offset 256
  .amdhsa_group_segment_fixed_size 0
  .amdhsa_kernarg_size 72
  .amdhsa_user_sgpr_count 2
  .amdhsa_user_sgpr_kernarg_segment_ptr 1
  .amdhsa_system_sgpr_workgroup_id_x 1
.end_amdhsa_kernel
"""


if __name__ == "__main__":
    out = sys.argv[1]
    opts = dict(kv.split('=') for kv in sys.argv[2:])
    opts = {k: int(v) for k, v in opts.items()}
    g = Gen(stamps=opts.pop('stamps', 0), **opts)
    open(out, "w").write(g.build())
    print(stats(g.prog), g.ovf)
```
